```python
import torch

def _softmax(x, axis=-1):
    return torch.softmax(x, dim=axis)
def _gelu(x):
    return torch.nn.functional.gelu(x, approximate="tanh")
def _silu(x):
    return torch.nn.functional.silu(x)
def _sigmoid(x):
    return torch.sigmoid(x)
def _layernorm(x, axis=-1, eps=1e-5):
    m = x.mean(dim=axis, keepdim=True)
    v = x.var(dim=axis, keepdim=True, unbiased=False)
    return (x - m) / torch.sqrt(v + eps)
def _scatter_add(tgt, idx, src, axis=0):
    return tgt.clone().index_add_(axis, idx, src)
def _segment_sum(src, seg, n):
    out = torch.zeros((n,) + src.shape[1:], dtype=src.dtype)
    return out.index_add_(0, seg, src)
def _pad(x, pw):
    flat = tuple(v for pair in reversed(pw) for v in pair)
    return torch.nn.functional.pad(x, flat)

kernel_name = 'standalone__mha_softmax__near_ridge'

def setup_inputs():

    _w = (lambda a: (lambda t: t.to(torch.bfloat16) if t.is_floating_point() else t)(torch.as_tensor(a)))
    B, H, Sq, Sk, D = 8, 32, 432, 2048, 128
    return {
        "q": _w((lambda *s: torch.randn(*s, dtype=torch.bfloat16) * 0.8)(B, H, Sq, D)),
        "k": _w((lambda *s: torch.randn(*s, dtype=torch.bfloat16) * 0.8)(B, H, Sk, D)),
        "v": _w((lambda *s: torch.randn(*s, dtype=torch.bfloat16) * 0.05)(B, H, Sk, D)),
    }

def reference(q, k, v):
    scale = q.shape[-1] ** -0.5
    scores = torch.einsum("bhqd,bhkd->bhqk", q, k) * scale
    p = _softmax(scores, axis=-1)
    return torch.einsum("bhqk,bhkd->bhqd", p, v)
```

```python
import sys, math, struct

KNAME = "standalone__mha_softmax__near_ridge"

class Cfg:
    R = 8
    L = 6
    nt = True
    diag = False
    kname = KNAME + "_kernel"

PIECE = 1056
HALF = 8 * PIECE
SLOT = 2 * HALF
NBLK = 64

def Q(t, ds): return 16 * t + 4 * ds
def CI(t): return 112 + 4 * t
def S(i): return 140 + 4 * (i & 1)
def P(i): return 148 + 4 * (i & 1)
def Lr(t): return 156 + t
vAK, vAV, vDMA, vT0, vT1 = 163, 164, 165, 166, 167
def Kf(par, kg, ds):
    if ds in (0, 3):
        return 168 + 4 * (2 * kg + (ds == 3))
    return 184 + 16 * par + 4 * (2 * kg + (ds - 1))
def Vf(par, db):
    return ('a', 224 + 4 * db) if par == 0 else ('v', 216 + 4 * db)
vX = 248
def O(t, db): return 32 * t + 4 * db

sQ, sK, sV, sO = 12, 16, 20, 24
sW, sCnt, sG0, sG1, sSl, sInc, sRd, sC, sMode, sQo = 28, 29, 30, 31, 32, 33, 34, 35, 36, 37
sT0, sT1 = 38, 39
sWS = 40
sTS = 44

def r4(f, b): return "%s[%d:%d]" % (f, b, b + 3)
def r2(f, b): return "%s[%d:%d]" % (f, b, b + 1)
def mfma(df, d, af, a, bf, b, c):
    cs = "0" if c is None else r4(df, c)
    return "v_mfma_f32_16x16x32_bf16 %s, %s, %s, %s" % (r4(df, d), r4(af, a), r4(bf, b), cs)

def f2u(x): return struct.unpack("<I", struct.pack("<f", x))[0]

class Gen:
    def __init__(self, cfg):
        self.c = cfg
        self.o = []
        self.nts = 0
    def e(self, s):
        for l in s.split("\n"):
            l = l.strip()
            if not l: continue
            if l.endswith(":") or l.startswith("."):
                self.o.append(l)
            else:
                self.o.append("    " + l)
    def ts(self, idx):
        if not self.c.diag: return
        self.e("s_memrealtime s[44:45]\ns_memtime s[46:47]\ns_waitcnt lgkmcnt(0)")
        self.e("s_mov_b32 s%d, s44\ns_mov_b32 s%d, s46" % (48 + 2 * idx, 49 + 2 * idx))

    def dma(self, srd, a, n, ldsoff, sbase=sSl):
        m0 = "s_add_u32 m0, s%d, %d" % (sbase, ldsoff + 4 * PIECE * a + 32 * n)
        ld = "buffer_load_dwordx4 v%d, s[%d:%d], s%d offen offset:%d%s lds" % (
            vDMA, srd, srd + 3, sG1 if a else sG0, 1024 * n, " nt" if self.c.nt else "")
        return m0, ld

    def kread(self, par, kg, ds, off):
        return "ds_read_b128 %s, v%d offset:%d" % (r4('v', Kf(par, kg, ds)), vAK, off + kg * 512 + ds * 64)
    def vread(self, par, db, hb, off):
        f, b = Vf(par, db)
        return "ds_read_b64_tr_b16 %s, v%d offset:%d" % (r2(f, b + 2 * hb), vAV, off + hb * 512 + db * 32)

    def block(self, NT, par, dma):
        c = self.c
        gaps = []
        NH = 2 * NT
        u0 = par * NT
        for h in range(NH):
            t, kg = h // 2, h % 2
            u = u0 + t
            h1 = h + 1
            if h1 < NH: t1, kg1, p1 = h1 // 2, h1 % 2, par
            else: t1, kg1, p1 = 0, 0, par ^ 1
            ms = []
            for ds in range(4):
                ms.append(mfma('v', S(h1), 'v', Kf(p1, kg1, ds), 'v', Q(t1, ds), CI(t1) if ds == 0 else S(h1)))
            if t > 0: tp, pp = t - 1, par
            else: tp, pp = NT - 1, par ^ 1
            for i in range(4):
                db = 4 * kg + i
                f, b = Vf(pp, db)
                ms.append(mfma('a', O(tp, db), f, b, 'v', P(u - 1), O(tp, db)))
            s = S(h)
            vs = [[] for _ in range(8)]
            for i in range(4):
                vs[2 * i].append("v_exp_f32 v%d, v%d" % (s + i, s + i))
                vs[2 * i + 1].append("v_add_f32 v%d, v%d, v%d" % (Lr(t), Lr(t), s + i))
            vs[3].append("v_cvt_pk_bf16_f32 v%d, v%d, v%d" % (P(u) + 2 * kg, s, s + 1))
            vs[7].append("v_cvt_pk_bf16_f32 v%d, v%d, v%d" % (P(u) + 2 * kg + 1, s + 2, s + 3))
            for i in range(8):
                gaps.append(dict(m=ms[i], s=[], d=[], v=vs[i]))
        off = par * SLOT
        np_ = par ^ 1
        G = lambda h, i: gaps[8 * h + i]
        G(0, 1)['d'].append(self.kread(np_, 0, 1, off))
        G(0, 5)['d'].append(self.kread(np_, 0, 2, off))
        G(1, 1)['d'].append(self.kread(np_, 1, 1, off))
        G(1, 5)['d'].append(self.kread(np_, 1, 2, off))
        vr = [(db, hb) for db in range(8) for hb in range(2)]
        if NT == 7:
            pos = [(h, i) for h in range(2, 10) for i in (1, 5)]
        else:
            pos = [(h, i) for h in range(2, 9) for i in (1, 5)] + [(NH - 1, 1), (8, 2)]
            pos.sort()
        for (db, hb), (h, i) in zip(vr, pos):
            G(h, i)['d'].append(self.vread(np_, db, hb, off))
        G(NH - 3, 1)['d'].append(self.kread(np_, 0, 0, off))
        G(NH - 3, 5)['d'].append(self.kread(np_, 0, 3, off))
        G(NH - 2, 1)['d'].append(self.kread(np_, 1, 0, off))
        G(NH - 2, 5)['d'].append(self.kread(np_, 1, 3, off))
        G(NH - 2, 7)['s'].append("s_waitcnt lgkmcnt(2)")
        G(NH - 1, 6)['s'].append("s_waitcnt lgkmcnt(0)")
        if par == 1:
            G(0, 0)['s'].append("s_add_u32 s%d, s%d, %d" % (sRd, sRd, 2 * SLOT))
            G(0, 2)['s'].append("s_cmp_eq_u32 s%d, %d" % (sRd, c.R * SLOT))
            G(0, 4)['s'].append("s_cselect_b32 s%d, %d, %d" % (sInc, 0, 0))
            G(0, 4)['s'][-1] = "s_cselect_b32 s%d, s%d, s%d" % (sInc, sT0, sT1)
            G(0, 6)['s'].append("s_cselect_b32 s%d, 0, s%d" % (sRd, sRd))
            G(NH - 1, 5)['v'].append("v_add_u32 v%d, s%d, v%d" % (vAK, sInc, vAK))
            if NT == 7:
                G(NH - 1, 1)['v'].append("v_add_u32 v%d, s%d, v%d" % (vAV, sInc, vAV))
            else:
                G(NH - 1, 5)['v'].append("v_add_u32 v%d, s%d, v%d" % (vAV, sInc, vAV))
        if dma:
            lst = []
            for srd, lo in ((sK, 0), (sV, HALF)):
                for a in range(2):
                    for n in range(4):
                        lst.append(self.dma(srd, a, n, lo))
            cand = [(h, i) for h in range(1, NH - 1) for i in (0, 2, 4, 6) if not G(h, i)['d']]
            step = len(cand) / 16.0
            for k, (m0, ld) in enumerate(lst):
                h, i = cand[int(k * step)]
                g = 8 * h + i
                gaps[g - 1]['s'].append(m0)
                gaps[g]['d'].append(ld)
            G(NH - 1, 0)['s'].append("s_add_u32 s%d, s%d, 8192" % (sG0, sG0))
            G(NH - 1, 1)['s'].append("s_add_u32 s%d, s%d, 8192" % (sG1, sG1))
            G(NH - 1, 2)['s'].append("s_add_u32 s%d, s%d, %d" % (sSl, sSl, SLOT))
            G(NH - 1, 3)['s'].append("s_cmp_eq_u32 s%d, %d" % (sSl, c.R * SLOT))
            G(NH - 1, 4)['s'].append("s_cselect_b32 s%d, 0, s%d" % (sSl, sSl))
        return gaps

    def emit_gaps(self, gaps):
        for g in gaps:
            self.e(g['m'])
            for x in g['s'] + g['d'] + g['v']:
                self.e(x)

    def mainloop(self, NT, dma, tag):
        c = self.c
        g0 = self.block(NT, 0, dma)
        g1 = self.block(NT, 1, dma)
        gaps = g0 + g1
        last = gaps[-1]
        if dma:
            gaps[-2]['s'][-1] = "s_waitcnt vmcnt(%d) lgkmcnt(0)" % ((c.L - 3) * 16)
        gaps[-3]['s'].append("s_sub_u32 s%d, s%d, 1" % (sCnt, sCnt))
        last['s'].append("s_cmp_lg_u32 s%d, 0" % sCnt)
        self.e(".p2align 6")
        self.e("L_loop_%s:" % tag)
        self.e("s_barrier")
        self.emit_gaps(gaps)
        self.e("s_cbranch_scc1 L_loop_%s" % tag)

    def xlane(self, op, v, tmp):
        for sw in ("v_permlane32_swap_b32", "v_permlane16_swap_b32"):
            self.e("v_mov_b32 v%d, v%d" % (tmp, v))
            self.e("s_nop 1")
            self.e("%s v%d, v%d" % (sw, v, tmp))
            self.e("s_nop 1")
            self.e("%s v%d, v%d, v%d" % (op, v, v, tmp))

    def pro_dma(self, srd, blk, lo):
        slot = (blk + 1) % self.c.R
        for n in range(2):
            self.e("s_add_u32 m0, s%d, %d" % (sT0, slot * SLOT + lo + 32 * n))
            self.e("s_add_u32 s%d, s%d, %d" % (sG1, sG0, blk * 8192))
            self.e("buffer_load_dwordx4 v%d, s[%d:%d], s%d offen offset:%d%s lds" % (
                vDMA, srd, srd + 3, sG1, 1024 * n, " nt" if self.c.nt else ""))

    def wave_code(self, NT, dma, tag):
        c = self.c
        e = self.e
        e("L_wave_%s:" % tag)
        self.pro_dma(sK, 0, 0)
        for t in range(NT):
            e("s_add_u32 s%d, s%d, %d" % (sG1, sQo, t * 4096))
            for ds in range(4):
                e("buffer_load_dwordx4 %s, v%d, s[%d:%d], s%d offen offset:%d" % (r4('v', Q(t, ds)), vT0, sQ, sQ + 3, sG1, ds * 64))
        self.pro_dma(sV, 0, HALF)
        for b in (1, 2):
            self.pro_dma(sK, b, 0)
            self.pro_dma(sV, b, HALF)
        out = 2 + 4 * NT + 10
        for r in range(32 * NT):
            e("v_accvgpr_write_b32 a%d, 0" % r)
        for r in range(32):
            e("v_mov_b32 v%d, 0" % (Vf(1, 0)[1] + r))
        for r in range(4):
            e("v_mov_b32 v%d, 0" % (P(1) + r))
        for t in range(NT):
            e("v_mov_b32 v%d, 0" % Lr(t))
        out -= 2
        e("s_waitcnt vmcnt(%d)" % out)
        e("s_barrier")
        self.ts(1)
        off0 = SLOT
        for kg in range(2):
            for ds in range(4):
                e(self.kread(0, kg, ds, off0))
        for t in range(NT):
            out -= 4
            e("s_waitcnt vmcnt(%d)" % out)
            for r in range(0, 16, 2):
                q = Q(t, 0) + r
                e("v_lshlrev_b32 v%d, 16, v%d" % (vX, q))
                e("v_and_b32 v%d, 0xffff0000, v%d" % (vX + 1, q))
                e("v_lshlrev_b32 v%d, 16, v%d" % (vX + 2, q + 1))
                e("v_and_b32 v%d, 0xffff0000, v%d" % (vX + 3, q + 1))
                for i in range(4):
                    e("v_mul_f32 v%d, s%d, v%d" % (vX + i, sC, vX + i))
                e("v_cvt_pk_bf16_f32 v%d, v%d, v%d" % (q, vX, vX + 1))
                e("v_cvt_pk_bf16_f32 v%d, v%d, v%d" % (q + 1, vX + 2, vX + 3))
            if t == 0:
                e("s_waitcnt lgkmcnt(0)")
            e("s_nop 1")
            for kg in range(2):
                for ds in range(4):
                    e(mfma('v', S(kg), 'v', Kf(0, kg, ds), 'v', Q(t, ds), None if ds == 0 else S(kg)))
            e("s_nop 7")
            s = S(0)
            e("v_max3_f32 v%d, v%d, v%d, v%d" % (vX, s, s + 1, s + 2))
            e("v_max3_f32 v%d, v%d, v%d, v%d" % (vX, vX, s + 3, s + 4))
            e("v_max3_f32 v%d, v%d, v%d, v%d" % (vX, vX, s + 5, s + 6))
            e("v_max_f32 v%d, v%d, v%d" % (vX, vX, s + 7))
            self.xlane("v_max_f32", vX, vX + 1)
            for i in range(4):
                e("v_sub_f32 v%d, 0, v%d" % (CI(t) + i, vX))
        self.ts(2)
        if dma:
            for b in range(3, c.L):
                e("s_mov_b32 s%d, %d" % (sG0, b * 8192))
                e("s_mov_b32 s%d, %d" % (sG1, b * 8192 + 4096))
                e("s_mov_b32 s%d, %d" % (sSl, ((b + 1) % c.R) * SLOT))
                for srd, lo in ((sK, 0), (sV, HALF)):
                    for a in range(2):
                        for n in range(4):
                            m0, ld = self.dma(srd, a, n, lo)
                            e(m0); e("s_nop 0"); e(ld)
                out += 16
            e("s_mov_b32 s%d, %d" % (sG0, c.L * 8192))
            e("s_mov_b32 s%d, %d" % (sG1, c.L * 8192 + 4096))
            e("s_mov_b32 s%d, %d" % (sSl, ((c.L + 1) % c.R) * SLOT))
        out -= 2
        e("s_waitcnt vmcnt(%d)" % out)
        e("s_barrier")
        for db in range(8):
            for hb in range(2):
                e(self.vread(0, db, hb, off0))
        for ds in range(4):
            e(mfma('v', S(0), 'v', Kf(0, 0, ds), 'v', Q(0, ds), CI(0) if ds == 0 else S(0)))
        e("v_add_u32 v%d, %d, v%d" % (vAK, 2 * SLOT, vAK))
        e("v_add_u32 v%d, %d, v%d" % (vAV, 2 * SLOT, vAV))
        e("s_mov_b32 s%d, %d" % (sRd, 2 * SLOT))
        e("s_mov_b32 s%d, %d" % (sT0, (2 * SLOT - c.R * SLOT) & 0xffffffff))
        e("s_mov_b32 s%d, %d" % (sT1, 2 * SLOT))
        e("s_mov_b32 s%d, %d" % (sCnt, NBLK // 2))
        out -= 8
        e("s_waitcnt vmcnt(%d) lgkmcnt(0)" % out)
        e("s_nop 4")
        self.ts(3)
        self.mainloop(NT, dma, tag)
        self.ts(4)
        e("s_nop 1")
        for db in range(8):
            f, b = Vf(1, db)
            e(mfma('a', O(NT - 1, db), f, b, 'v', P(1), O(NT - 1, db)))
        e("v_lshrrev_b32 v%d, 4, v%d" % (vX, vDMA))
        e("v_and_b32 v%d, 15, v%d" % (vX + 1, vX))
        e("v_lshlrev_b32 v%d, 8, v%d" % (vT0, vX + 1))
        e("v_and_b32 v%d, 16, v%d" % (vX + 1, vX))
        e("v_lshl_add_u32 v%d, v%d, 1, v%d" % (vT0, vX + 1, vT0))
        e("v_and_b32 v%d, 32, v%d" % (vX + 1, vX))
        e("v_lshrrev_b32 v%d, 1, v%d" % (vX + 1, vX + 1))
        e("v_add_u32 v%d, v%d, v%d" % (vT0, vX + 1, vT0))
        e("v_mov_b32 v%d, 0" % vT1)
        for t in range(NT):
            self.xlane("v_add_f32", Lr(t), vX)
            e("v_maximum3_f32 v%d, v%d, v%d, v%d" % (vT1, vT1, Lr(t), Lr(t)))
            e("v_rcp_f32 v%d, v%d" % (Lr(t), Lr(t)))
            e("s_add_u32 s%d, s%d, %d" % (sG1, sQo, t * 4096))
            for a in range(4):
                tb = (a % 4) * 16
                for i in range(8):
                    e("v_accvgpr_read_b32 v%d, a%d" % (tb + i, O(t, 2 * a) + i))
                for i in range(8):
                    e("v_mul_f32 v%d, v%d, v%d" % (tb + i, tb + i, Lr(t)))
                pk = 64 + ((4 * t + a) % 8) * 4
                for i in range(4):
                    e("v_cvt_pk_bf16_f32 v%d, v%d, v%d" % (pk + i, tb + 2 * i, tb + 2 * i + 1))
                e("s_nop 1")
                e("v_permlane16_swap_b32 v%d, v%d" % (pk, pk + 2))
                e("v_permlane16_swap_b32 v%d, v%d" % (pk + 1, pk + 3))
                e("buffer_store_dwordx4 %s, v%d, s[%d:%d], s%d offen offset:%d" % (r4('v', pk), vT0, sO, sO + 3, sG1, a * 64))
        self.ts(5)
        e("s_waitcnt vmcnt(0)")
        self.ts(6)
        e("s_branch L_fin")

    def build(self):
        c = self.c
        e = self.e
        lds = c.R * SLOT
        self.o.append("; @launch grid=(256,1,1) block=(256,1,1) lds=%d" % lds)
        e('.amdgcn_target "amdgcn-amd-amdhsa--gfx950"')
        e(".text\n.globl %s\n.p2align 8\n.type %s,@function" % (c.kname, c.kname))
        e("%s:" % c.kname)
        e("s_cmp_ge_u32 s2, 256\ns_cbranch_scc1 L_end")
        e("s_load_dwordx4 s[4:7], s[0:1], 0\ns_load_dwordx4 s[8:11], s[0:1], 16")
        if c.diag:
            e("s_load_dwordx2 s[40:41], s[0:1], 40")
            self.ts(0)
        e("v_lshrrev_b32 v1, 6, v0")
        e("v_and_b32 v0, 63, v0")
        e("v_readfirstlane_b32 s%d, v1" % sW)
        e("v_lshlrev_b32 v%d, 4, v0" % vDMA)
        e("v_and_b32 v1, 7, v0\nv_mul_u32_u24 v%d, %d, v1" % (vAK, PIECE))
        e("v_and_b32 v1, 8, v0\nv_lshl_add_u32 v%d, v1, 5, v%d" % (vAK, vAK))
        e("v_and_b32 v1, 48, v0\nv_add_u32 v%d, v1, v%d" % (vAK, vAK))
        e("v_bfe_u32 v1, v0, 2, 3\nv_mul_u32_u24 v%d, %d, v1" % (vAV, PIECE))
        e("v_and_b32 v1, 32, v0\nv_lshl_add_u32 v%d, v1, 3, v%d" % (vAV, vAV))
        e("v_and_b32 v1, 3, v0\nv_lshl_add_u32 v%d, v1, 3, v%d" % (vAV, vAV))
        e("v_add_u32 v%d, %d, v%d" % (vAV, HALF, vAV))
        e("v_and_b32 v1, 15, v0\nv_lshlrev_b32 v%d, 8, v1" % vT0)
        e("v_and_b32 v1, 48, v0\nv_add_u32 v%d, v1, v%d" % (vT0, vT0))
        e("s_mul_i32 s%d, s2, 110592" % sT0)
        e("s_lshl_b32 s%d, s2, 19" % sT1)
        e("s_mov_b32 s%d, 0x%08x" % (sC, f2u(math.log2(math.e) / math.sqrt(128.0))))
        e("s_waitcnt lgkmcnt(0)")
        for srd, src, offs, size in ((sQ, 4, sT0, 110592), (sK, 6, sT1, 524288), (sV, 8, sT1, 524288), (sO, 10, sT0, 110592)):
            e("s_add_u32 s%d, s%d, s%d" % (srd, src, offs))
            e("s_addc_u32 s%d, s%d, 0" % (srd + 1, src + 1))
            e("s_mov_b32 s%d, %d" % (srd + 2, size))
            e("s_mov_b32 s%d, 0x20000" % (srd + 3))
        e("s_mul_i32 s%d, s%d, %d" % (sQo, sW, 112 * 256))
        e("s_mul_i32 s%d, s%d, %d" % (sT0, sW, 2 * PIECE))
        e("s_lshl_b32 s%d, s%d, 11" % (sG0, sW))
        e("s_cmp_eq_u32 s%d, 3" % sW)
        e("s_cbranch_scc1 L_wave_b")
        self.wave_code(7, False, "a")
        self.wave_code(6, True, "b")
        e("L_fin:")
        if c.diag:
            e("s_mov_b32 s42, 0x1000000\ns_mov_b32 s43, 0x20000")
            e("s_lshl_b32 s%d, s2, 2\ns_add_u32 s%d, s%d, s%d\ns_lshl_b32 s%d, s%d, 6" % (sT0, sT0, sT0, sW, sT0, sT0))
            e("v_mov_b32 v0, 0")
            for i in range(0, 16, 4):
                for k in range(4):
                    e("v_mov_b32 v%d, s%d" % (4 + k, 48 + i + k))
                e("buffer_store_dwordx4 v[4:7], v0, s[40:43], s%d offen offset:%d" % (sT0, i * 4))
                e("s_waitcnt vmcnt(0)")
        e("L_end:")
        e("s_endpgm")
        e('.section .rodata,"a"\n.p2align 6')
        e(".amdhsa_kernel %s" % c.kname)
        self.o.append("""  .amdhsa_next_free_vgpr 512
  .amdhsa_next_free_sgpr 102
  .amdhsa_accum_offset 256
  .amdhsa_group_segment_fixed_size 0
  .amdhsa_kernarg_size 48
  .amdhsa_user_sgpr_count 2
  .amdhsa_user_sgpr_kernarg_segment_ptr 1
  .amdhsa_system_sgpr_workgroup_id_x 1
.end_amdhsa_kernel""")
        return "\n".join(self.o) + "\n"

if __name__ == "__main__":
    cfg = Cfg()
    out = sys.argv[1]
    for a in sys.argv[2:]:
        k, v = a.split("=")
        setattr(cfg, k, eval(v))
    open(out, "w").write(Gen(cfg).build())
```

```python
import sys, math, struct

KNAME = "standalone__mha_softmax__near_ridge"

class Cfg:
    R = 8
    L = 6
    nt = True
    diag = False
    nodma = False
    samekv = False
    tsmode = 0
    qflag = ''
    oflag = ''
    pf = False
    nobar = False
    barpos = 0
    nods = False
    unroll = 1
    kname = KNAME + "_kernel"

PIECE = 1056
HALF = 8 * PIECE
SLOT = 2 * HALF
NBLK = 64

def Q(t, ds): return 16 * t + 4 * ds
def CI(t): return 112 + 4 * t
def S(i): return 140 + 4 * (i & 1)
def P(i): return 148 + 4 * (i & 1)
def Lr(t): return 156 + t
vAK, vAV, vDMA, vT0, vT1 = 163, 164, 165, 166, 167
def Kf(par, kg, ds):
    if ds in (0, 3):
        return 168 + 4 * (2 * kg + (ds == 3))
    return 184 + 16 * par + 4 * (2 * kg + (ds - 1))
def Vf(par, db):
    return ('a', 224 + 4 * db) if par == 0 else ('v', 216 + 4 * db)
vX = 248
def O(t, db): return 32 * t + 4 * db

sQ, sK, sV, sO = 12, 16, 20, 24
sW, sCnt, sG0, sG1, sSl, sInc, sRd, sC, sMode, sQo = 28, 29, 30, 31, 32, 33, 34, 35, 36, 37
sT0, sT1 = 38, 39
sWS = 40
sTS = 44

def r4(f, b): return "%s[%d:%d]" % (f, b, b + 3)
def r2(f, b): return "%s[%d:%d]" % (f, b, b + 1)
def mfma(df, d, af, a, bf, b, c):
    cs = "0" if c is None else r4(df, c)
    return "v_mfma_f32_16x16x32_bf16 %s, %s, %s, %s" % (r4(df, d), r4(af, a), r4(bf, b), cs)

def f2u(x): return struct.unpack("<I", struct.pack("<f", x))[0]

class Gen:
    def __init__(self, cfg):
        self.c = cfg
        self.o = []
        self.nts = 0
    def e(self, s):
        for l in s.split("\n"):
            l = l.strip()
            if not l: continue
            if l.endswith(":") or l.startswith("."):
                self.o.append(l)
            else:
                self.o.append("    " + l)
    def ts(self, idx, mode=0):
        if not self.c.diag: return
        if idx != 0 and mode != self.c.tsmode: return
        self.e("s_memrealtime s[44:45]\ns_memtime s[46:47]\ns_waitcnt lgkmcnt(0)")
        self.e("s_mov_b32 s%d, s44\ns_mov_b32 s%d, s46" % (48 + 2 * idx, 49 + 2 * idx))

    def dma(self, srd, a, n, ldsoff, sbase=sSl):
        m0 = "s_add_u32 m0, s%d, %d" % (sbase, ldsoff + 4 * PIECE * a + 32 * n)
        ld = "buffer_load_dwordx4 v%d, s[%d:%d], s%d offen offset:%d%s lds" % (
            vDMA, srd, srd + 3, sG1 if a else sG0, 1024 * n, " nt" if self.c.nt else "")
        return m0, ld

    def kread(self, par, kg, ds, off):
        return "ds_read_b128 %s, v%d offset:%d" % (r4('v', Kf(par, kg, ds)), vAK, off + kg * 512 + ds * 64)
    def vread(self, par, db, hb, off):
        f, b = Vf(par, db)
        return "ds_read_b64_tr_b16 %s, v%d offset:%d" % (r2(f, b + 2 * hb), vAV, off + hb * 512 + db * 32)

    def block(self, NT, par, dma):
        c = self.c
        gaps = []
        NH = 2 * NT
        u0 = par * NT
        for h in range(NH):
            t, kg = h // 2, h % 2
            u = u0 + t
            h1 = h + 1
            if h1 < NH: t1, kg1, p1 = h1 // 2, h1 % 2, par
            else: t1, kg1, p1 = 0, 0, par ^ 1
            ms = []
            for ds in range(4):
                ms.append(mfma('v', S(h1), 'v', Kf(p1, kg1, ds), 'v', Q(t1, ds), CI(t1) if ds == 0 else S(h1)))
            if t > 0: tp, pp = t - 1, par
            else: tp, pp = NT - 1, par ^ 1
            for i in range(4):
                db = 4 * kg + i
                f, b = Vf(pp, db)
                ms.append(mfma('a', O(tp, db), f, b, 'v', P(u - 1), O(tp, db)))
            s = S(h)
            vs = [[] for _ in range(8)]
            for i in range(4):
                vs[2 * i].append("v_exp_f32 v%d, v%d" % (s + i, s + i))
                vs[2 * i + 1].append("v_add_f32 v%d, v%d, v%d" % (Lr(t), Lr(t), s + i))
            vs[3].append("v_cvt_pk_bf16_f32 v%d, v%d, v%d" % (P(u) + 2 * kg, s, s + 1))
            vs[7].append("v_cvt_pk_bf16_f32 v%d, v%d, v%d" % (P(u) + 2 * kg + 1, s + 2, s + 3))
            for i in range(8):
                gaps.append(dict(m=ms[i], s=[], d=[], v=vs[i]))
        off = par * SLOT
        np_ = par ^ 1
        G = lambda h, i: gaps[8 * h + i]
        G(0, 1)['d'].append(self.kread(np_, 0, 1, off))
        G(0, 5)['d'].append(self.kread(np_, 0, 2, off))
        G(1, 1)['d'].append(self.kread(np_, 1, 1, off))
        G(1, 5)['d'].append(self.kread(np_, 1, 2, off))
        vr = [(db, hb) for db in range(8) for hb in range(2)]
        if NT == 7:
            pos = [(h, i) for h in range(2, 10) for i in (1, 5)]
        else:
            pos = [(h, i) for h in range(2, 9) for i in (1, 5)] + [(NH - 1, 1), (8, 2)]
            pos.sort()
        for (db, hb), (h, i) in zip(vr, pos):
            G(h, i)['d'].append(self.vread(np_, db, hb, off))
        G(NH - 3, 1)['d'].append(self.kread(np_, 0, 0, off))
        G(NH - 3, 5)['d'].append(self.kread(np_, 0, 3, off))
        G(NH - 2, 1)['d'].append(self.kread(np_, 1, 0, off))
        G(NH - 2, 5)['d'].append(self.kread(np_, 1, 3, off))
        G(NH - 2, 7)['s'].append("s_waitcnt lgkmcnt(2)")
        G(NH - 1, 6)['s'].append("s_waitcnt lgkmcnt(0)")
        if par == 1:
            G(0, 0)['s'].append("s_add_u32 s%d, s%d, %d" % (sRd, sRd, 2 * SLOT))
            G(0, 2)['s'].append("s_cmp_eq_u32 s%d, %d" % (sRd, c.R * SLOT))
            G(0, 4)['s'].append("s_cselect_b32 s%d, %d, %d" % (sInc, 0, 0))
            G(0, 4)['s'][-1] = "s_cselect_b32 s%d, s%d, s%d" % (sInc, sT0, sT1)
            G(0, 6)['s'].append("s_cselect_b32 s%d, 0, s%d" % (sRd, sRd))
            G(NH - 1, 5)['v'].append("v_add_u32 v%d, s%d, v%d" % (vAK, sInc, vAK))
            if NT == 7:
                G(NH - 1, 1)['v'].append("v_add_u32 v%d, s%d, v%d" % (vAV, sInc, vAV))
            else:
                G(NH - 1, 5)['v'].append("v_add_u32 v%d, s%d, v%d" % (vAV, sInc, vAV))
        if dma:
            lst = []
            for srd, lo in ((sK, 0), (sV, HALF)):
                for a in range(2):
                    for n in range(4):
                        lst.append(self.dma(srd, a, n, lo))
            cand = [(h, i) for h in range(1, NH - 1) for i in (0, 2, 4, 6) if not G(h, i)['d']]
            step = len(cand) / 16.0
            for k, (m0, ld) in enumerate(lst):
                h, i = cand[int(k * step)]
                g = 8 * h + i
                gaps[g - 1]['s'].append(m0)
                if not c.nodma: gaps[g]['d'].append(ld)
            G(NH - 1, 0)['s'].append("s_add_u32 s%d, s%d, 8192" % (sG0, sG0))
            G(NH - 1, 1)['s'].append("s_add_u32 s%d, s%d, 8192" % (sG1, sG1))
            G(NH - 1, 2)['s'].append("s_add_u32 s%d, s%d, %d" % (sSl, sSl, SLOT))
            G(NH - 1, 3)['s'].append("s_cmp_eq_u32 s%d, %d" % (sSl, c.R * SLOT))
            G(NH - 1, 4)['s'].append("s_cselect_b32 s%d, 0, s%d" % (sSl, sSl))
        return gaps

    def emit_gaps(self, gaps):
        for g in gaps:
            self.e(g['m'])
            for x in g['s'] + g['d'] + g['v']:
                self.e(x)

    def mainloop(self, NT, dma, tag):
        c = self.c
        g0 = self.block(NT, 0, dma)
        g1 = self.block(NT, 1, dma)
        gaps = g0 + g1
        last = gaps[-1]
        if dma:
            gaps[-2]['s'][-1] = "s_waitcnt vmcnt(%d) lgkmcnt(0)" % ((c.L - 3) * 16)
        gaps[-3]['s'].append("s_sub_u32 s%d, s%d, 1" % (sCnt, sCnt))
        last['s'].append("s_cmp_lg_u32 s%d, 0" % sCnt)
        self.e(".p2align 6")
        self.e("L_loop_%s:" % tag)
        if c.nods:
            for g in gaps: g['d'] = [x for x in g['d'] if not x.startswith('ds_')]
        if c.barpos == 1 and not c.nobar:
            gaps[0]['s'].insert(0, "s_barrier")
        for k in range(c.unroll):
            if not c.nobar and c.barpos == 0: self.e("s_barrier")
            self.emit_gaps(gaps)
        self.e("s_cbranch_scc1 L_loop_%s" % tag)

    def xlane(self, op, v, tmp):
        for sw in ("v_permlane32_swap_b32", "v_permlane16_swap_b32"):
            self.e("v_mov_b32 v%d, v%d" % (tmp, v))
            self.e("s_nop 1")
            self.e("%s v%d, v%d" % (sw, v, tmp))
            self.e("s_nop 1")
            self.e("%s v%d, v%d, v%d" % (op, v, v, tmp))

    def pro_dma(self, srd, blk, lo):
        slot = (blk + 1) % self.c.R
        for n in range(2):
            self.e("s_add_u32 m0, s%d, %d" % (sT0, slot * SLOT + lo + 32 * n))
            self.e("s_add_u32 s%d, s%d, %d" % (sG1, sG0, blk * 8192))
            self.e("buffer_load_dwordx4 v%d, s[%d:%d], s%d offen offset:%d%s lds" % (
                vDMA, srd, srd + 3, sG1, 1024 * n, " nt" if self.c.nt else ""))

    def wave_code(self, NT, dma, tag):
        c = self.c
        e = self.e
        e("L_wave_%s:" % tag)
        self.ts(1, 1)
        self.pro_dma(sK, 0, 0)
        for t in range(NT):
            e("s_add_u32 s%d, s%d, %d" % (sG1, sQo, t * 4096))
            for ds in range(4):
                e("buffer_load_dwordx4 %s, v%d, s[%d:%d], s%d offen offset:%d %s" % (r4('v', Q(t, ds)), vT0, sQ, sQ + 3, sG1, ds * 64, c.qflag))
            if t < 6: self.ts(t + 1, 2)
        self.pro_dma(sV, 0, HALF)
        for b in (1, 2):
            self.pro_dma(sK, b, 0)
            self.pro_dma(sV, b, HALF)
        out = 2 + 4 * NT + 10
        self.ts(2, 1)
        for r in range(32 * NT):
            e("v_accvgpr_write_b32 a%d, 0" % r)
        for r in range(32):
            e("v_mov_b32 v%d, 0" % (Vf(1, 0)[1] + r))
        for r in range(4):
            e("v_mov_b32 v%d, 0" % (P(1) + r))
        for t in range(NT):
            e("v_mov_b32 v%d, 0" % Lr(t))
        out -= 2
        self.ts(3, 1)
        e("s_waitcnt vmcnt(%d)" % out)
        self.ts(4, 1)
        e("s_barrier")
        self.ts(5, 1)
        self.ts(1)
        off0 = SLOT
        for kg in range(2):
            for ds in range(4):
                e(self.kread(0, kg, ds, off0))
        for t in range(NT):
            out -= 4
            e("s_waitcnt vmcnt(%d)" % out)
            for r in range(0, 16, 2):
                q = Q(t, 0) + r
                e("v_lshlrev_b32 v%d, 16, v%d" % (vX, q))
                e("v_and_b32 v%d, 0xffff0000, v%d" % (vX + 1, q))
                e("v_lshlrev_b32 v%d, 16, v%d" % (vX + 2, q + 1))
                e("v_and_b32 v%d, 0xffff0000, v%d" % (vX + 3, q + 1))
                for i in range(4):
                    e("v_mul_f32 v%d, s%d, v%d" % (vX + i, sC, vX + i))
                e("v_cvt_pk_bf16_f32 v%d, v%d, v%d" % (q, vX, vX + 1))
                e("v_cvt_pk_bf16_f32 v%d, v%d, v%d" % (q + 1, vX + 2, vX + 3))
            if t == 0:
                e("s_waitcnt lgkmcnt(0)")
            e("s_nop 1")
            for kg in range(2):
                for ds in range(4):
                    e(mfma('v', S(kg), 'v', Kf(0, kg, ds), 'v', Q(t, ds), None if ds == 0 else S(kg)))
            e("s_nop 7")
            s = S(0)
            e("v_max3_f32 v%d, v%d, v%d, v%d" % (vX, s, s + 1, s + 2))
            e("v_max3_f32 v%d, v%d, v%d, v%d" % (vX, vX, s + 3, s + 4))
            e("v_max3_f32 v%d, v%d, v%d, v%d" % (vX, vX, s + 5, s + 6))
            e("v_max_f32 v%d, v%d, v%d" % (vX, vX, s + 7))
            self.xlane("v_max_f32", vX, vX + 1)
            for i in range(4):
                e("v_sub_f32 v%d, 0, v%d" % (CI(t) + i, vX))
        self.ts(2)
        self.ts(6, 1)
        if dma:
            for b in range(3, c.L):
                e("s_mov_b32 s%d, %d" % (sG0, b * 8192))
                e("s_mov_b32 s%d, %d" % (sG1, b * 8192 + 4096))
                e("s_mov_b32 s%d, %d" % (sSl, ((b + 1) % c.R) * SLOT))
                for srd, lo in ((sK, 0), (sV, HALF)):
                    for a in range(2):
                        for n in range(4):
                            m0, ld = self.dma(srd, a, n, lo)
                            e(m0); e("s_nop 0"); e(ld)
                out += 16
            e("s_mov_b32 s%d, %d" % (sG0, c.L * 8192))
            e("s_mov_b32 s%d, %d" % (sG1, c.L * 8192 + 4096))
            e("s_mov_b32 s%d, %d" % (sSl, ((c.L + 1) % c.R) * SLOT))
        out -= 2
        e("s_waitcnt vmcnt(%d)" % out)
        e("s_barrier")
        for db in range(8):
            for hb in range(2):
                e(self.vread(0, db, hb, off0))
        for ds in range(4):
            e(mfma('v', S(0), 'v', Kf(0, 0, ds), 'v', Q(0, ds), CI(0) if ds == 0 else S(0)))
        e("v_add_u32 v%d, %d, v%d" % (vAK, 2 * SLOT, vAK))
        e("v_add_u32 v%d, %d, v%d" % (vAV, 2 * SLOT, vAV))
        e("s_mov_b32 s%d, %d" % (sRd, 2 * SLOT))
        e("s_mov_b32 s%d, %d" % (sT0, (2 * SLOT - c.R * SLOT) & 0xffffffff))
        e("s_mov_b32 s%d, %d" % (sT1, 2 * SLOT))
        e("s_mov_b32 s%d, %d" % (sCnt, NBLK // 2))
        out -= 8
        e("s_waitcnt vmcnt(%d) lgkmcnt(0)" % out)
        e("s_nop 4")
        self.ts(3)
        self.mainloop(NT, dma, tag)
        self.ts(4)
        e("s_nop 1")
        for db in range(8):
            f, b = Vf(1, db)
            e(mfma('a', O(NT - 1, db), f, b, 'v', P(1), O(NT - 1, db)))
        e("v_lshrrev_b32 v%d, 4, v%d" % (vX, vDMA))
        e("v_and_b32 v%d, 15, v%d" % (vX + 1, vX))
        e("v_lshlrev_b32 v%d, 8, v%d" % (vT0, vX + 1))
        e("v_and_b32 v%d, 16, v%d" % (vX + 1, vX))
        e("v_lshl_add_u32 v%d, v%d, 1, v%d" % (vT0, vX + 1, vT0))
        e("v_and_b32 v%d, 32, v%d" % (vX + 1, vX))
        e("v_lshrrev_b32 v%d, 1, v%d" % (vX + 1, vX + 1))
        e("v_add_u32 v%d, v%d, v%d" % (vT0, vX + 1, vT0))
        e("v_mov_b32 v%d, 0" % vT1)
        for t in range(NT):
            self.xlane("v_add_f32", Lr(t), vX)
            e("v_maximum3_f32 v%d, v%d, v%d, v%d" % (vT1, vT1, Lr(t), Lr(t)))
            e("v_rcp_f32 v%d, v%d" % (Lr(t), Lr(t)))
            e("s_add_u32 s%d, s%d, %d" % (sG1, sQo, t * 4096))
            for a in range(4):
                tb = (a % 4) * 16
                for i in range(8):
                    e("v_accvgpr_read_b32 v%d, a%d" % (tb + i, O(t, 2 * a) + i))
                for i in range(8):
                    e("v_mul_f32 v%d, v%d, v%d" % (tb + i, tb + i, Lr(t)))
                pk = 64 + ((4 * t + a) % 8) * 4
                for i in range(4):
                    e("v_cvt_pk_bf16_f32 v%d, v%d, v%d" % (pk + i, tb + 2 * i, tb + 2 * i + 1))
                e("s_nop 1")
                e("v_permlane16_swap_b32 v%d, v%d" % (pk, pk + 2))
                e("v_permlane16_swap_b32 v%d, v%d" % (pk + 1, pk + 3))
                e("buffer_store_dwordx4 %s, v%d, s[%d:%d], s%d offen offset:%d %s" % (r4('v', pk), vT0, sO, sO + 3, sG1, a * 64, c.oflag))
        self.ts(5)
        e("s_waitcnt vmcnt(0)")
        self.ts(6)
        e("s_branch L_fin")

    def build(self):
        c = self.c
        e = self.e
        lds = c.R * SLOT
        self.o.append("; @launch grid=(256,1,1) block=(256,1,1) lds=%d" % lds)
        e('.amdgcn_target "amdgcn-amd-amdhsa--gfx950"')
        e(".text\n.globl %s\n.p2align 8\n.type %s,@function" % (c.kname, c.kname))
        e("%s:" % c.kname)
        e("s_cmp_ge_u32 s2, 256\ns_cbranch_scc1 L_end")
        e("s_load_dwordx4 s[4:7], s[0:1], 0\ns_load_dwordx4 s[8:11], s[0:1], 16")
        if c.diag:
            e("s_load_dwordx2 s[40:41], s[0:1], 40")
            self.ts(0)
        if c.pf:
            e("s_getpc_b64 s[64:65]")
            e("v_lshlrev_b32 v2, 7, v0")
            e("v_min_u32 v2, L_end-L_pc, v2")
            e("L_pc:")
            e("global_load_dword v255, v2, s[64:65]")
        e("v_lshrrev_b32 v1, 6, v0")
        e("v_and_b32 v0, 63, v0")
        e("v_readfirstlane_b32 s%d, v1" % sW)
        e("v_lshlrev_b32 v%d, 4, v0" % vDMA)
        e("v_and_b32 v1, 7, v0\nv_mul_u32_u24 v%d, %d, v1" % (vAK, PIECE))
        e("v_and_b32 v1, 8, v0\nv_lshl_add_u32 v%d, v1, 5, v%d" % (vAK, vAK))
        e("v_and_b32 v1, 48, v0\nv_add_u32 v%d, v1, v%d" % (vAK, vAK))
        e("v_bfe_u32 v1, v0, 2, 3\nv_mul_u32_u24 v%d, %d, v1" % (vAV, PIECE))
        e("v_and_b32 v1, 32, v0\nv_lshl_add_u32 v%d, v1, 3, v%d" % (vAV, vAV))
        e("v_and_b32 v1, 3, v0\nv_lshl_add_u32 v%d, v1, 3, v%d" % (vAV, vAV))
        e("v_add_u32 v%d, %d, v%d" % (vAV, HALF, vAV))
        e("v_and_b32 v1, 15, v0\nv_lshlrev_b32 v%d, 8, v1" % vT0)
        e("v_and_b32 v1, 48, v0\nv_add_u32 v%d, v1, v%d" % (vT0, vT0))
        e("s_mul_i32 s%d, s2, 110592" % sT0)
        e("s_lshl_b32 s%d, s2, 19" % sT1)
        if c.samekv: e("s_and_b32 s%d, s%d, 0x380000" % (sT1, sT1))
        e("s_mov_b32 s%d, 0x%08x" % (sC, f2u(math.log2(math.e) / math.sqrt(128.0))))
        e("s_waitcnt lgkmcnt(0)")
        for srd, src, offs, size in ((sQ, 4, sT0, 110592), (sK, 6, sT1, 524288), (sV, 8, sT1, 524288), (sO, 10, sT0, 110592)):
            e("s_add_u32 s%d, s%d, s%d" % (srd, src, offs))
            e("s_addc_u32 s%d, s%d, 0" % (srd + 1, src + 1))
            e("s_mov_b32 s%d, %d" % (srd + 2, size))
            e("s_mov_b32 s%d, 0x20000" % (srd + 3))
        e("s_mul_i32 s%d, s%d, %d" % (sQo, sW, 112 * 256))
        e("s_mul_i32 s%d, s%d, %d" % (sT0, sW, 2 * PIECE))
        e("s_lshl_b32 s%d, s%d, 11" % (sG0, sW))
        e("s_cmp_eq_u32 s%d, 3" % sW)
        e("s_cbranch_scc1 L_wave_b")
        self.wave_code(7, False, "a")
        self.wave_code(6, True, "b")
        e("L_fin:")
        if c.diag:
            e("s_mov_b32 s42, 0x1000000\ns_mov_b32 s43, 0x20000")
            e("s_lshl_b32 s%d, s2, 2\ns_add_u32 s%d, s%d, s%d\ns_lshl_b32 s%d, s%d, 6" % (sT0, sT0, sT0, sW, sT0, sT0))
            e("v_mov_b32 v0, 0")
            for i in range(0, 16, 4):
                for k in range(4):
                    e("v_mov_b32 v%d, s%d" % (4 + k, 48 + i + k))
                e("buffer_store_dwordx4 v[4:7], v0, s[40:43], s%d offen offset:%d" % (sT0, i * 4))
                e("s_waitcnt vmcnt(0)")
        e("L_end:")
        e("s_endpgm")
        e('.section .rodata,"a"\n.p2align 6')
        e(".amdhsa_kernel %s" % c.kname)
        self.o.append("""  .amdhsa_next_free_vgpr 512
  .amdhsa_next_free_sgpr 102
  .amdhsa_accum_offset 256
  .amdhsa_group_segment_fixed_size 0
  .amdhsa_kernarg_size 48
  .amdhsa_user_sgpr_count 2
  .amdhsa_user_sgpr_kernarg_segment_ptr 1
  .amdhsa_system_sgpr_workgroup_id_x 1
.end_amdhsa_kernel""")
        return "\n".join(self.o) + "\n"

if __name__ == "__main__":
    cfg = Cfg()
    out = sys.argv[1]
    for a in sys.argv[2:]:
        k, v = a.split("=")
        setattr(cfg, k, eval(v))
    open(out, "w").write(Gen(cfg).build())
```

```python
import re

TRANS = ("v_exp_f32", "v_rcp_f32", "v_log_f32", "v_rsq_f32", "v_sqrt_f32")

def regs_of(op):
    op = op.strip()
    op = op.lstrip("-").replace("|", "")
    m = re.fullmatch(r"([vas])\[(\d+):(\d+)\]", op)
    if m: return ["%s%d" % (m.group(1), i) for i in range(int(m.group(2)), int(m.group(3)) + 1)]
    m = re.fullmatch(r"([vas])(\d+)", op)
    if m: return [op]
    if op in ("m0", "vcc", "exec", "scc"): return [op]
    return []

class Ins:
    __slots__ = ("text", "op", "kind", "R", "W", "A", "B", "C", "passes", "idx", "lgkm0", "prio", "dpp")
    def __init__(self, text, xr=(), xw=(), lgkm0=False, prio=0):
        self.text = text.strip()
        self.lgkm0 = lgkm0
        self.prio = prio
        t = self.text
        sp = t.split(None, 1)
        op = sp[0]
        self.op = op
        rest = sp[1] if len(sp) > 1 else ""
        ops = [o.strip() for o in rest.split(",")] if rest else []
        mods = ""
        if ops:
            last = ops[-1].split(None, 1)
            ops[-1] = last[0]
            mods = last[1] if len(last) > 1 else ""
        R, W = set(), set()
        self.A = self.B = self.C = ()
        self.passes = 0
        self.dpp = "row_" in mods or "quad_perm" in mods
        rs = [regs_of(o) for o in ops]
        if t.endswith(":") or op.startswith("."):
            self.kind = "label"
        elif op.startswith("v_mfma"):
            self.kind = "mfma"
            W.update(rs[0]); self.A, self.B, self.C = rs[1], rs[2], rs[3]
            R.update(rs[1] + rs[2] + rs[3])
            self.passes = 8 if op.endswith("16x16x4_f32") else 4
        elif op.startswith("v_"):
            self.kind = "trans" if op.startswith(TRANS) else "valu"
            if op.startswith("v_permlane"):
                W.update(rs[0] + rs[1]); R.update(rs[0] + rs[1])
            elif op.startswith("v_cmp"):
                W.update(rs[0])
                for r in rs[1:]: R.update(r)
            else:
                W.update(rs[0])
                for r in rs[1:]: R.update(r)
                if self.dpp or op.startswith("v_fmac"): R.update(rs[0])
        elif op.startswith("ds_read") or op.startswith("ds_bpermute"):
            self.kind = "dsr"; W.update(rs[0])
            for r in rs[1:]: R.update(r)
        elif op.startswith("ds_write"):
            self.kind = "dsw"
            for r in rs: R.update(r)
        elif op.startswith("buffer_load") or op.startswith("global_load"):
            if re.search(r"\blds\b", mods):
                self.kind = "dma"
                for r in rs: R.update(r)
                R.add("m0")
            else:
                self.kind = "vload"; W.update(rs[0])
                for r in rs[1:]: R.update(r)
            R.add("vmq"); W.add("vmq")
        elif op.startswith("buffer_store") or op.startswith("buffer_atomic"):
            self.kind = "vstore"
            for r in rs: R.update(r)
            R.add("vmq"); W.add("vmq")
        elif op == "s_nop":
            self.kind = "nop"
        elif op == "s_waitcnt":
            self.kind = "wait"
            if "vmcnt" in t: R.add("vmq"); W.add("vmq")
        elif op == "s_barrier":
            self.kind = "barrier"; R.add("vmq"); W.add("vmq")
        elif op.startswith("s_cbranch") or op == "s_branch" or op == "s_endpgm":
            self.kind = "branch"
            if "scc" in op: R.add("scc")
            if "vcc" in op: R.add("vcc")
        elif op.startswith("s_load") or op.startswith("s_mem"):
            self.kind = "smem"; W.update(rs[0])
            for r in rs[1:]: R.update(r)
        elif op.startswith("s_"):
            self.kind = "salu"
            if op.startswith("s_cmp"):
                W.add("scc")
                for r in rs: R.update(r)
            else:
                if rs: W.update(rs[0])
                for r in rs[1:]: R.update(r)
                if op.startswith(("s_add", "s_sub", "s_and", "s_or", "s_xor", "s_lsh", "s_min", "s_max", "s_bfe")): W.add("scc")
                if op.startswith(("s_addc", "s_subb", "s_cselect")): R.add("scc")
        else:
            raise ValueError("unknown instruction: " + t)
        R.update(xr); W.update(xw)
        self.R, self.W = R, W

    def states(self):
        if self.kind == "label": return 0
        if self.kind == "nop": return int(self.text.split()[1]) + 1
        return 1

def I(x, **kw):
    return x if isinstance(x, Ins) else Ins(x, **kw)

isvalu = lambda i: i.kind in ("valu", "trans")
isvec = lambda r: r[0] in "va" and r[1:].isdigit()
issg = lambda r: (r[0] == "s" and r[1:].isdigit()) or r == "vcc"

def need_states(p, c):
    n = 0
    if isvalu(p):
        wv = {r for r in p.W if isvec(r)}
        if c.kind == "mfma" and wv & c.R: n = max(n, 2)
        if isvalu(c) and wv & c.R:
            if p.kind == "trans": n = max(n, 1)
            if c.op.startswith("v_permlane") or c.dpp: n = max(n, 2)
            if c.op.startswith(("v_readfirstlane", "v_readlane")): n = max(n, 1)
        ws = {r for r in p.W if issg(r)}
        if ws & c.R:
            if isvalu(c): n = max(n, 2)
            if c.kind in ("dma", "vload", "vstore"): n = max(n, 5)
            if c.kind in ("salu", "branch"): n = max(n, 4)
    if p.kind == "mfma":
        sg = p.op.endswith("_f32") and not p.op.endswith("bf16")
        big = {4: 8, 8: 12}[p.passes] if not sg else {4: 6, 8: 10}[p.passes]
        if c.kind == "mfma":
            if p.W & (set(c.A) | set(c.B)): n = max(n, big)
            if p.W & set(c.C):
                if not (c.op == p.op and set(c.C) == p.W): n = max(n, {4: 6, 8: 10}[p.passes])
            elif p.W & c.W: n = max(n, {4: 6, 8: 10}[p.passes])
        elif p.W & (c.R | c.W): n = max(n, big)
        if isvalu(c) and set(p.C) & c.W: n = max(n, {4: 3, 8: 7}[p.passes])
    if p.kind == "salu" and "m0" in p.W and c.kind == "dma": n = max(n, 1)
    if p.kind in ("vstore", "dsw") and isvalu(c) and {r for r in p.R if isvec(r)} & c.W: n = max(n, 2)
    return n

def pad_hazards(seq, hist=(), fix=True, name=""):
    out = list(hist)
    nh = len(out)
    for c in seq:
        if c.kind != "label":
            need = 0
            d = 0
            for p in reversed(out):
                if d >= 12: break
                k = need_states(p, c) - d
                if k > need:
                    need = k
                    if not fix: raise RuntimeError("%s hazard: %s -> %s short by %d" % (name, p.text, c.text, k))
                d += p.states()
            if need > 0: out.append(Ins("s_nop %d" % (need - 1)))
        out.append(c)
    return out[nh:]

def insert_lgkm(seq, pend=None, hoist=True):
    out = []
    pend = list(pend or [])
    pend = [(r, -1) for r in pend]
    for c in seq:
        if c.kind == "wait" and "lgkmcnt" in c.text:
            n = int(re.search(r"lgkmcnt\((\d+)\)", c.text).group(1))
            pend = pend[len(pend) - n:] if n < len(pend) and n > 0 else ([] if n == 0 else pend)
        touch = c.R | c.W
        k = -1
        for j, (r, _) in enumerate(pend):
            if r & touch: k = j
        if c.lgkm0 and pend: k = len(pend) - 1
        if c.kind == "smem" and pend: k = len(pend) - 1
        if k >= 0:
            pos = len(out)
            if hoist and c.kind == "mfma":
                q = len(out) - 1
                while q >= 0 and out[q].kind not in ("mfma", "label", "branch", "barrier"): q -= 1
                if q >= 0 and out[q].kind == "mfma" and pend[k][1] < q: pos = q + 1
            n = sum(1 for (r, i) in pend[k + 1:] if i < pos)
            n = min(n, 15)
            out.insert(pos, Ins("s_waitcnt lgkmcnt(%d)" % n))
            pend = [(r, i + 1 if i >= pos else i) for (r, i) in pend[k + 1:]]
        if c.kind in ("dsr", "dsw"):
            pend.append(({r for r in c.W if isvec(r)}, len(out)))
        out.append(c)
    return out, [r for r, _ in pend]

def latency(p, c, raw):
    if not raw:
        if p.kind == "mfma" and isvalu(c): return 16 if not (p.W & c.W) else 44
        return 4
    if p.kind == "mfma":
        if c.kind == "mfma" and c.op == p.op and set(c.C) == p.W and not (p.W & (set(c.A) | set(c.B))): return 4 * p.passes
        return 4 * p.passes + 28
    if p.kind == "trans": return 16
    if p.kind == "valu":
        if c.kind == "mfma" or c.dpp or c.op.startswith("v_permlane"): return 12
        return 8
    if p.kind == "dsr": return 140
    if p.kind == "dsw": return 16
    return 4

MEMK = ("dsr", "dsw", "dma", "vload", "vstore")
def schedule(prog, verbose=False, AGE=48, order=False, dswcost=4):
    n = len(prog)
    preds = [[] for _ in range(n)]
    succs = [[] for _ in range(n)]
    lastw, readers = {}, {}
    for i, c in enumerate(prog):
        d = {}
        for r in c.R:
            if r in lastw: d[lastw[r]] = max(d.get(lastw[r], 0), latency(prog[lastw[r]], c, True) if r != "vmq" else 4)
        for r in c.W:
            if r in lastw: d[lastw[r]] = max(d.get(lastw[r], 0), latency(prog[lastw[r]], c, False))
            for j in readers.get(r, ()):
                if j != i: d[j] = max(d.get(j, 0), latency(prog[j], c, False))
        for j, l in d.items():
            preds[i].append((j, l)); succs[j].append((i, l))
        for r in c.R: readers.setdefault(r, []).append(i)
        for r in c.W:
            lastw[r] = i; readers[r] = []
    cp = [0] * n
    for i in range(n - 1, -1, -1):
        cp[i] = max([cp[j] + l for j, l in succs[i]] + [0])
    if order: cp = [-i for i in range(n)]
    npred = [len(p) for p in preds]
    ready_t = [0] * n
    avail = [i for i in range(n) if npred[i] == 0]
    t = 0; vec_free = 0; mf_free = 0; last_valu = -100
    out = []
    ispk = lambda c: c.op.startswith("v_pk_")
    while avail:
        best = None
        rpk = [i for i in avail if ispk(prog[i]) and ready_t[i] <= max(t, vec_free, mf_free)]
        inburst = bool(out) and ispk(out[-1]) and rpk
        for i in (rpk if inburst else avail):
            c = prog[i]
            e = max(t, ready_t[i])
            if ispk(c) and not inburst and len(rpk) < 8: e += 64
            if c.kind == "mfma": e = max(e, vec_free, mf_free)
            elif isvalu(c): e = max(e, vec_free)
            elif c.kind in MEMK:
                e = max(e, vec_free)
                if ready_t[i] + AGE > t: e = max(e, last_valu + 12)
            cls = 0 if c.kind == "mfma" else 1 if c.kind in MEMK else 2
            key = (e, cls, -(cp[i] + c.prio), i)
            if best is None or key < best[0]: best = (key, i)
        (e, cls, _, _), i = best
        c = prog[i]
        if c.kind in MEMK: e = max(e, last_valu + 12)
        if ispk(c): e = max(t, ready_t[i], vec_free, mf_free)
        if c.kind == "trans":
            for j in avail:
                if prog[j].kind == "mfma" and max(t, ready_t[j], vec_free, mf_free) == e + 4:
                    alt = [k for k in avail if prog[k].kind == "valu" and not ispk(prog[k]) and max(t, ready_t[k], vec_free) <= e]
                    if alt:
                        i = max(alt, key=lambda k: (cp[k] + prog[k].prio, -k)); c = prog[i]
                    break
        avail.remove(i)
        out.append(c)
        if c.kind == "mfma":
            vec_free = e + 8; mf_free = e + 4 * c.passes; t = e + 4
        elif c.kind == "trans":
            vec_free = e + 8; t = e + 8; last_valu = e + 4
        elif c.kind == "valu":
            vec_free = e + 4; t = e + 4; last_valu = e
        elif c.kind == "dsw":
            t = e + dswcost; vec_free = t
        else:
            t = e + 4
        for j, l in succs[i]:
            ready_t[j] = max(ready_t[j], e + l)
            npred[j] -= 1
            if npred[j] == 0: avail.append(j)
    assert len(out) == n
    if verbose: print("scheduled %d instrs, est %d cycles" % (n, t))
    return out
```

```python
import itertools
def windows(NT, tau, LAT):
    W = []
    for g in range(4):
        ks, kg = g >> 1, g & 1
        t = tau[g]
        n = 2 * (t - 1) + ks - 1
        for ds in range(4):
            pos = ds if kg == 0 else 4 + (3 - ds)
            G = 16 * n + pos
            W.append((('K', g, ds), G, G + 32 - LAT))
        for db in range(8):
            n2 = 2 * (t - 1) + 2 + (db >> 2)
            i = db & 3
            order = (0, 1) if i % 2 == 0 else (1, 0)
            G = 16 * n2 + 8 + 2 * i + order.index(ks)
            W.append((('V', g, db), G, G + 32 - LAT))
    return W
def edf(W, positions):
    W = sorted(W, key=lambda w: w[1])
    res = {}
    pend = []
    i = 0
    for p in positions:
        while i < len(W) and W[i][1] <= p:
            pend.append(W[i]); i += 1
        pend.sort(key=lambda w: w[2])
        if pend:
            w = pend.pop(0)
            if w[2] < p: return None
            res[w[0]] = p
    if pend or i < len(W): return None
    return res
if __name__ == "__main__":
    for NT in (7, 6):
        for LAT in (12, 10, 8):
            sols = []
            for tau in itertools.product(range(0, NT + 1), repeat=4):
                W = windows(NT, tau, LAT)
                for start in range(-32, 32, 4):
                    if NT == 7: pos = [start + 4 * p + 1 for p in range(8 * NT - 2)]
                    else: pos = sorted([start + 4 * p + 1 for p in range(8 * NT - 1)] + [start + 16 * p + 2 for p in range(2 * NT)])
                    r = edf(W, pos)
                    if r:
                        sols.append((abs(tau[0] - tau[1]) + abs(tau[2] - tau[3]), tau, start, min(r.values()), max(r.values())))
            sols.sort()
            print(NT, LAT, len(sols))
            for s in sols[:40]: print("   ", s)
```

```python
import sys, math, struct
from asmlib import *
import solve

KNAME = "standalone__mha_softmax__near_ridge"

class Cfg:
    diag = False
    kname = KNAME + "_kernel"
    dflag = "nt"
    qflag = "nt"
    oflag = "sc1"
    bias = 2.0
    force_slow = False
    pkmul = 0
    verbose = False
    lo_exp = -30
    hi_exp = 30
    tsmode = 0
    nostore = False
    lead = 10
    p1bar = dict(V2=41, K3=69, V3=112)
    pfsplit = True
    dswcost = 16
    first = 14
    sh_hi = 0.35
    s3_lo = 0.5

PK, PV_ = 1056, 1040
HK = 8 * PK
SLOT = HK + 8 * PV_
SS = 2 * SLOT
RING = 3 * SS
STG = RING
QT = 4 * PV_
PRIV = 3 * QT
LDS = STG + 4 * PRIV

def O(t, db):
    if t == 6 and db >= 4: return ('a', 240 + 4 * (db - 4))
    return ('v', 32 * t + 4 * db)
def S(i): return 208 + 4 * (i & 3)
def P(U, ks): return 224 + 8 * (U & 1) + 4 * ks
CI = 240
def Lr(t): return 244 + t
vAK, vAV, vDMA, vEW, vER = 251, 252, 253, 254, 255
vQA, vQB = 30, 31
def Q(t, ds): return 16 * t + 4 * ds
def Kf(g, ds): return 112 + 16 * g + 4 * ds
def Vf(db, ks): return 176 + 8 * db + 4 * ks

sQ, sK, sV, sO = 12, 16, 20, 24
sW, sCnt, sInc, sRd, sC, sQo, sSl = 28, 29, 30, 31, 32, 33, 34
sT0, sT1, sT2 = 35, 36, 37
sG = 64
sWK, sWV, sWG = 68, 69, 70
sIncW, sIncN = 71, 72
sNT, sTile, sBlk, sStg, sQS = 73, 74, 75, 76, 77
sSt = 80

def rn(f, b, n): return "%s[%d:%d]" % (f, b, b + n - 1)
def mfma(D, A, B, C, half=False):
    n = 2 if half else 4
    cs = "0" if C is None else rn(C[0], C[1], 4)
    op = "v_mfma_f32_16x16x16_bf16" if half else "v_mfma_f32_16x16x32_bf16"
    return "%s %s, %s, %s, %s" % (op, rn(D[0], D[1], 4), rn(A[0], A[1], n), rn(B[0], B[1], n), cs)
def f2u(x): return struct.unpack("<I", struct.pack("<f", x))[0]

class Wave:
    def __init__(self, gen, NT, dma, tag):
        self.g, self.c, self.NT, self.dma, self.tag = gen, gen.c, NT, dma, tag
        self.tau = (2, 1, 5, 4) if NT == 7 else (2, 1, 4, 3)
        W = solve.windows(NT, self.tau, 10 if NT == 7 else 12)
        if NT == 7: pos = [4 * p + 1 for p in range(8 * NT - 2)]
        else: pos = sorted([4 * p + 1 for p in range(8 * NT - 1)] + [16 * p + 2 for p in range(2 * NT)])
        self.rd = solve.edf(W, pos)
        assert self.rd
        self.oinit = set()
        self.group = {}
        self.code = []

    def kread(self, g, ds, off=0):
        return "ds_read_b128 %s, v%d offset:%d" % (rn('a', Kf(g, ds), 4), vAK, off + (g >> 1) * SLOT + (g & 1) * 512 + ds * 64)
    def vread(self, g, db, off=0):
        return "ds_read_b64_tr_b16 %s, v%d offset:%d" % (rn('a', Vf(db, g >> 1) + 2 * (g & 1), 2), vAV, off + (g >> 1) * SLOT + (g & 1) * 512 + db * 16)
    def qk(self, t, g, sb, raw=False):
        order = range(4) if g & 1 == 0 else range(3, -1, -1)
        o = []
        for i, ds in enumerate(order):
            o.append(mfma(('v', sb), ('a', Kf(g, ds)), ('a', Q(t, ds)), (None if raw else ('v', CI)) if i == 0 else ('v', sb)))
        return o
    def pv1(self, t, db, pb, ks, gs):
        D = O(t, db)
        C = D if (t, db) in self.oinit else None
        self.oinit.add((t, db))
        if len(gs) == 2: return mfma(D, ('v', pb), ('a', Vf(db, ks)), C)
        h = gs[0] & 1
        return mfma(D, ('v', pb + 2 * h), ('a', Vf(db, ks) + 2 * h), C, half=True)
    def pv(self, t, groups, pbase, dbs=range(8)):
        o = []
        for db in dbs:
            for ks in ((0, 1) if db % 2 == 0 else (1, 0)):
                gs = [g for g in groups if g >> 1 == ks]
                if gs: o.append(self.pv1(t, db, pbase(ks), ks, gs))
        return o
    def softmax(self, t, sb, pdst):
        o = []
        for i in range(4):
            o.append("v_exp_f32 v%d, v%d" % (sb + i, sb + i))
            o.append("v_add_f32 v%d, v%d, v%d" % (Lr(t), Lr(t), sb + i))
            if i & 1: o.append("v_cvt_pk_bf16_f32 v%d, v%d, v%d" % (pdst + i // 2, sb + i - 1, sb + i))
        return o
    def tagged(self, text, grp, **kw):
        i = Ins(text, **kw); self.group[id(i)] = grp; return i
    def share(self, kv, blk):
        srd, lo, base, pad = (sK, 0, sWK, PK - 1024) if kv == 'K' else (sV, HK, sWV, PV_ - 1024)
        lds = ((blk >> 1) % 3) * SS + (blk & 1) * SLOT + lo
        o = []
        for n in range(2):
            b = [Ins("s_add_u32 m0, s%d, %d" % (base, lds + pad * n))]
            b.append(Ins("s_add_u32 s%d, s%d, %d" % (sT2, sWG, blk * 8192)))
            b.append(self.tagged("buffer_load_dwordx4 v%d, s[%d:%d], s%d offen offset:%d %s lds" % (vDMA, srd, srd + 3, sT2, 1024 * n, self.c.dflag), "%s%d" % (kv, blk)))
            o.append(b)
        return o
    def qbuf(self, t):
        k = self.NT - 1 - t
        if k < 4: return sQS, vQA, (k >> 1) * SS + (k & 1) * QT
        return sStg, vQB, (k - 4) * QT
    def qload(self, t):
        sb, _, off = self.qbuf(t)
        o = []
        for n in range(4):
            b = [Ins("s_add_u32 m0, s%d, %d" % (sb, off + (PV_ - 1024) * n))]
            b.append(Ins("s_add_u32 s%d, s%d, %d" % (sT1, sQo, t * 4096)))
            b.append(self.tagged("buffer_load_dwordx4 v%d, s[%d:%d], s%d offen offset:%d %s lds" % (vDMA, sQ, sQ + 3, sT1, n * 1024, self.c.qflag), "Q%d" % t))
            o.append(b)
        return o
    def waitv(self, grp):
        i = Ins("s_waitcnt vmcnt(0)"); self.group[id(i)] = "W:" + grp; return i
    def scale(self, t):
        o = []
        tb = 32 * t + 16 if t < 6 else 16
        _, va, off = self.qbuf(t)
        for ds in range(4):
            o.append("ds_read_b128 %s, v%d offset:%d" % (rn('v', 32 * t + 4 * ds, 4), va, off + ds * 64))
        for r in range(16):
            q = 32 * t + r
            a, b = tb + 2 * (r % 6), tb + 2 * (r % 6) + 1
            o.append("v_lshlrev_b32 v%d, 16, v%d" % (a, q))
            o.append("v_and_b32 v%d, 0xffff0000, v%d" % (b, q))
            o.append("v_mul_f32 v%d, s%d, v%d" % (a, sC, a))
            o.append("v_mul_f32 v%d, s%d, v%d" % (b, sC, b))
            o.append("v_cvt_pk_bf16_f32 v%d, v%d, v%d" % (a, a, b))
            o.append("v_accvgpr_write_b32 a%d, v%d" % (Q(t, 0) + r, a))
        return o
    def seg(self, head, body, bundles=(), span=(0.0, 0.8)):
        self.code += self.ts2() + [I(x) for x in head] + self.ts2()
        b = schedule([I(x) for x in body], self.c.verbose) if body else []
        n = len(b)
        k = len(bundles)
        pos = [int(n * (span[0] + (span[1] - span[0]) * j / max(k, 1))) for j in range(k)]
        j = 0
        for i in range(n + 1):
            while j < k and pos[j] <= i:
                self.code += bundles[j]; j += 1
            if i < n: self.code.append(b[i])
    def ts2(self):
        if not (self.c.diag and self.c.tsmode == 2): return []
        self.nts = getattr(self, 'nts', 1) + 1
        k = self.nts - 1
        reg = 48 + k if k < 16 else 88 + k - 16
        assert k < 30
        return [Ins("s_memtime s[46:47]"), Ins("s_waitcnt lgkmcnt(0)"), Ins("s_mov_b32 s%d, s46" % reg)]
    def ts(self, idx):
        if not self.c.diag or self.c.tsmode == 2: return []
        return [Ins("s_memrealtime s[44:45]"), Ins("s_memtime s[46:47]"), Ins("s_waitcnt lgkmcnt(0)"),
                Ins("s_mov_b32 s%d, s44" % (48 + 2 * idx)), Ins("s_mov_b32 s%d, s46" % (49 + 2 * idx))]

    def prologue(self):
        c, NT, tau = self.c, self.NT, self.tau
        T = NT - 1
        G0 = lambda t: [g for g in range(4) if tau[g] <= t]
        seq = self.share('K', 0) + self.qload(T) + self.share('K', 1) + self.qload(T - 1) + self.share('V', 0) + self.share('V', 1)
        for t in range(T - 2, 0, -1): seq += self.qload(t)
        nq = len(seq)
        seq += self.share('K', 2) + self.qload(0)
        seq += self.share('V', 2) + self.share('K', 3) + self.share('V', 3)
        grp = [self.group[id(b[-1])] for b in seq]
        state = [0]
        def nxt(g, cap=None):
            want = c.first if g is None else max(j for j, x in enumerate(grp) if x == g) + 1 + c.lead
            want = min(want, len(seq) if cap is None else cap)
            r = seq[state[0]:want]
            state[0] = max(state[0], want)
            return r
        for b in nxt(None): self.code += b
        self.code += [Ins("v_mov_b32 v%d, 0" % Lr(t)) for t in range(NT)]
        self.seg([self.waitv("Q%d" % T)], self.scale(T), nxt("K1", nq))
        body = [self.kread(g, ds) for g in range(4) for ds in range(4)]
        for g in range(4): body += self.qk(T, g, S(g), raw=True)
        x, y = 28, 29
        body.append("v_max3_f32 v%d, v%d, v%d, v%d" % (x, S(0), S(0) + 1, S(0) + 2))
        body.append("v_max3_f32 v%d, v%d, v%d, v%d" % (x, x, S(0) + 3, S(0) + 4))
        body.append("v_max3_f32 v%d, v%d, v%d, v%d" % (x, x, S(0) + 5, S(0) + 6))
        body.append("v_max_f32 v%d, v%d, v%d" % (x, x, S(0) + 7))
        for sw in ("v_permlane32_swap_b32", "v_permlane16_swap_b32"):
            body.append("v_mov_b32 v%d, v%d" % (y, x))
            body.append("%s v%d, v%d" % (sw, x, y))
            body.append("v_max_f32 v%d, v%d, v%d" % (x, x, y))
        for k in (8, 4, 2, 1):
            body.append("v_max_f32_dpp v%d, v%d, v%d row_ror:%d row_mask:0xf bank_mask:0xf" % (x, x, x, k))
        for i in range(4):
            body.append("v_sub_f32 v%d, 0x%08x, v%d" % (CI + i, f2u(-c.bias), x))
        for g in range(4):
            for i in range(4):
                body.append("v_add_f32 v%d, v%d, v%d" % (S(g) + i, S(g) + i, CI))
            body += self.softmax(T, S(g), P(T, g >> 1) + 2 * (g & 1))
        self.seg([self.waitv("K1"), Ins("s_barrier")] + self.ts(1), body, nxt("Q%d" % (T - 1), nq))
        PB = lambda ks: P(T + 1, ks)
        def unit(t):
            o = []
            for g in G0(t):
                o += self.qk(t, g, S(g))
                o += self.softmax(t, S(g), PB(g >> 1) + 2 * (g & 1))
            return o
        self.seg([self.waitv("Q%d" % (T - 1))], self.scale(T - 1) + unit(T - 1), nxt("V1", nq))
        body = [self.vread(g, db) for db in range(8) for g in range(4)] + self.pv(T - 1, G0(T - 1), PB)
        self.seg([self.waitv("V1"), Ins("s_barrier", lgkm0=True)], body, nxt("Q%d" % (T - 2)))
        for t in range(T - 2, 0, -1):
            self.seg([self.waitv("Q%d" % t)], self.scale(t) + unit(t) + self.pv(t, G0(t), PB), nxt("Q%d" % (t - 1)))
        body = self.scale(0) + self.qk(0, 0, S(0)) + self.qk(0, 1, S(1))
        body += ["v_add_u32 v%d, %d, v%d" % (vAK, SS, vAK), "v_add_u32 v%d, %d, v%d" % (vAV, SS, vAV)]
        body += ["s_mov_b32 s%d, %d" % (sRd, SS), "s_mov_b32 s%d, %d" % (sIncW, (-2 * SS) & 0xffffffff), "s_mov_b32 s%d, %d" % (sIncN, SS)]
        body += ["s_mov_b32 s%d, %d" % (sCnt, 15 if NT == 7 else 29)]
        if self.dma:
            body += ["s_mov_b32 s%d, %d" % (sG + i, 3 * 16384 + 4096 * i) for i in range(4)]
            body += ["s_mov_b32 s%d, 0" % sSl]
        self.seg([self.waitv("Q0")] + self.ts(2 if c.tsmode == 0 else 1), body, nxt("V3"))

    def period(self, p):
        c, NT = self.c, self.NT
        first = p == 1
        gaps = []
        NS = 2 * NT
        for n in range(NS):
            t, hh = n >> 1, n & 1
            U = NT * p + t
            n1 = (n + 1) % NS
            t1, ks1 = n1 >> 1, n1 & 1
            ms = self.qk(t1, 2 * ks1, S(2 * ks1)) + self.qk(t1, 2 * ks1 + 1, S(2 * ks1 + 1))
            ms += self.pv((t - 1) % NT, range(4), lambda ks: P(U - 1, ks), range(4 * hh, 4 * hh + 4))
            for i in range(16):
                s_ = S(2 * hh) + i // 2
                if i % 2 == 0: v = ["v_exp_f32 v%d, v%d" % (s_, s_)]
                else:
                    v = ["v_add_f32 v%d, v%d, v%d" % (Lr(t), Lr(t), s_)]
                    if i % 4 == 3: v.append("v_cvt_pk_bf16_f32 v%d, v%d, v%d" % (P(U, hh) + i // 4, s_ - 1, s_))
                gaps.append(dict(m=ms[i], s=[], d=[], v=v))
        NG = len(gaps)
        for (kind, g, x), pos in self.rd.items():
            gaps[pos]['d'].append(self.kread(g, x) if kind == 'K' else self.vread(g, x))
        gaps[0]['s'].append(Ins("s_barrier", lgkm0=True))
        gaps[2]['s'].append("s_add_u32 s%d, s%d, %d" % (sRd, sRd, SS))
        gaps[3]['s'].append("s_cmp_eq_u32 s%d, %d" % (sRd, RING))
        gaps[4]['s'].append("s_cselect_b32 s%d, s%d, s%d" % (sInc, sIncW, sIncN))
        gaps[5]['s'].append("s_cselect_b32 s%d, 0, s%d" % (sRd, sRd))
        last = max(self.rd.values())
        assert last < NG - 7
        gaps[NG - 7]['v'].append("v_add_u32 v%d, s%d, v%d" % (vAK, sInc, vAK))
        gaps[NG - 3]['v'].append("v_add_u32 v%d, s%d, v%d" % (vAV, sInc, vAV))
        lo = 8
        if first:
            for kind, ks, grp in (('V', 0, "V2"), ('K', 1, "K3"), ('V', 1, "V3")):
                f = min(pos for (k, g, x), pos in self.rd.items() if k == kind and g >> 1 == ks)
                f = min(f, c.p1bar[grp])
                gaps[f - 1]['s'].append(self.waitv(grp))
                gaps[f]['s'].append(Ins("s_barrier"))
            bl = []
            for blk in (4, 5): bl += self.share('K', blk) + self.share('V', blk)
            hi = int(NG * c.sh_hi)
            self.place(gaps, bl, lo, hi)
            lo = int(NG * c.s3_lo)
        if self.dma:
            bl = []
            for blk in range(2):
                for srd, l0, st in ((sK, 0, PK), (sV, HK, PV_)):
                    for a in range(2):
                        for n in range(4):
                            bl.append([Ins("s_add_u32 m0, s%d, %d" % (sSl, blk * SLOT + l0 + 4 * st * a + (st - 1024) * n)),
                                       self.tagged("buffer_load_dwordx4 v%d, s[%d:%d], s%d offen offset:%d %s lds" % (vDMA, srd, srd + 3, sG + 2 * blk + a, 1024 * n, c.dflag), "S")])
            self.place(gaps, bl, lo, NG - 12)
            for i in range(4):
                gaps[NG - 11 + i]['s'].append("s_add_u32 s%d, s%d, 16384" % (sG + i, sG + i))
            gaps[NG - 7]['s'].append("s_add_u32 s%d, s%d, %d" % (sSl, sSl, SS))
            gaps[NG - 6]['s'].append("s_cmp_eq_u32 s%d, %d" % (sSl, RING))
            gaps[NG - 5]['s'].append("s_cselect_b32 s%d, 0, s%d" % (sSl, sSl))
        if first: gaps[NG - 1]['s'].append(self.waitv("V5"))
        elif self.dma: gaps[NG - 1]['s'].append("s_waitcnt vmcnt(32)")
        return gaps
    def place(self, gaps, bundles, lo, hi):
        cand = [i for i in range(lo + 2, hi) if not gaps[i]['d'] and len(gaps[i]['v']) == 1]
        k = len(bundles)
        prev = lo - 1
        for j, b in enumerate(bundles):
            tgt = lo + 2 + (hi - lo - 2) * j / k
            ns = len(b) - 1
            cc = [i for i in cand if i - ns >= prev]
            i = min(cc, key=lambda i: abs(i - tgt) - (2.5 if i % 2 else 0))
            for q, ins in enumerate(b[:-1]):
                gi = i - ns + q
                if gi == prev: gaps[gi]['d'].append(ins)
                else: gaps[gi]['s'].append(ins)
            gaps[i]['d'].append(b[-1])
            prev = i
    def flat(self, gaps):
        o = []
        for g in gaps:
            o.append(I(g['m']))
            o += [I(x) for x in g['s'] + g['d'] + g['v']]
        return o

    def finalize(self, t, k, Lm, packs, acct, first, Ofn=O, Lreg=None, land=None, soff=None, pk=False, one=None):
        c = self.c
        buf = k & 1
        st = "L:st%d" % buf
        Lreg = Lr(t) if Lreg is None else Lreg
        land = Q(t, 0) if land is None else land
        o = ["v_mfma_f32_16x16x4_f32 %s, v%d, a%d, 0" % (rn('v', Lm, 4), Lreg, one)]
        if first is not None:
            for op, r in (("v_max3_u32", vAK), ("v_min3_u32", vAV)):
                if first:
                    o.append("%s v%d, v%d, v%d, v%d" % (op, r, Lm, Lm + 1, Lm + 2))
                    o.append("%s v%d, v%d, v%d, v%d" % (op, r, r, Lm + 3, Lm + 3))
                else:
                    o.append("%s v%d, v%d, v%d, v%d" % (op, r, r, Lm, Lm + 1))
                    o.append("%s v%d, v%d, v%d, v%d" % (op, r, r, Lm + 2, Lm + 3))
        for r in range(4): o.append("v_rcp_f32 v%d, v%d" % (Lm + r, Lm + r))
        loc = {}
        for db in range(8):
            f, b = Ofn(t, db)
            if f == 'a':
                for r in range(4):
                    o.append("v_accvgpr_read_b32 v%d, a%d" % (acct + 4 * (db - 4) + r, b + r))
                b = acct + 4 * (db - 4)
            loc[db] = b
        if pk:
            for db in range(8):
                for r in (0, 2):
                    o.append("v_pk_mul_f32 %s, %s, %s" % (rn('v', loc[db] + r, 2), rn('v', loc[db] + r, 2), rn('v', Lm + r, 2)))
        for r in range(4):
            for db in range(8):
                if not pk: o.append("v_mul_f32 v%d, v%d, v%d" % (loc[db] + r, loc[db] + r, Lm + r))
            pb = packs[r % len(packs)]
            for j in range(4):
                o.append("v_cvt_pk_bf16_f32 v%d, v%d, v%d" % (pb + j, loc[2 * j] + r, loc[2 * j + 1] + r))
            o.append(Ins("ds_write_b128 v%d, %s offset:%d" % (vEW, rn('v', pb, 4), r * 320 + buf * 5120), xw=[st + "r%d" % r]))
        if soff is None:
            soff = sSt + t
            o.append("s_add_u32 s%d, s%d, %d" % (soff, sQo, t * 4096))
        for a in range(4):
            for sel in range(2):
                o.append(Ins("ds_read_b64_tr_b16 %s, v%d offset:%d" % (rn('a', land + 4 * a + 2 * sel, 2), vER, a * 1280 + 64 * sel + buf * 5120), xr=[st + "r%d" % r for r in range(4)]))
        for a in range(4 if not c.nostore else 0):
            o.append("buffer_store_dwordx4 %s, v%d, s[%d:%d], s%d offen offset:%d %s" % (rn('a', land + 4 * a, 4), vDMA, sO, sO + 3, soff, a * 1024, c.oflag))
        return o

    def tail(self):
        c, NT, tau = self.c, self.NT, self.tau
        T = NT - 1
        U = NT * 31
        G1 = lambda t: [g for g in range(4) if tau[g] > t]
        ring = dict(xr=["L:ring"])
        prog = [Ins("s_barrier", lgkm0=True, xw=["L:ring"])]
        prog += self.pv(T, range(4), lambda ks: P(U - 1, ks))
        sidx = 0
        for t in range(NT):
            gs = G1(t)
            if not gs: continue
            pb = (lambda u: (lambda ks: P(u, ks)))(U); U += 1
            for g in gs:
                sb = S(sidx); sidx += 1
                if not (t == 0 and g < 2): prog += self.qk(t, g, sb)
                if tau[g] == t + 1: prog += [Ins(self.kread(g, ds), **ring) for ds in range(4)]
                prog += self.softmax(t, sb, pb(g >> 1) + 2 * (g & 1))
            prog += self.pv(t, gs, pb)
            for db in range(8):
                prog += [Ins(self.vread(g, db), **ring) for g in gs if tau[g] == t + 1]
        order = [t for t in range(NT) if not G1(t)] + [t for t in range(NT) if G1(t)]
        gorder = sorted(range(4), key=lambda g: tau[g])
        pool = 32 * order[0]
        for k, t in enumerate(order):
            pb = (lambda u: (lambda ks: P(u, ks)))(U); U += 1
            for g in (gorder if k == 0 else range(4)):
                sb = S(sidx); sidx += 1
                prog += self.qk(t, g, sb)
                prog += self.softmax(t, sb, pb(g >> 1) + 2 * (g & 1))
            prog += self.pv(t, range(4), pb)
            pk = k >= len(order) - c.pkmul
            one = Q(t, 0)
            prog.append("v_accvgpr_write_b32 a%d, 1.0" % one)
            if k == 0: prog += self.finalize(t, k, pb(0), [pb(1)], None, None, pk=pk, one=one)
            elif t == 6: prog += self.finalize(t, k, pool + 4 * (k & 1), [pool + 8, pool + 12], pool + 16, None, pk=pk, one=one)
            else: prog += self.finalize(t, k, pool + 4 * (k & 1), [pool + 16, pool + 20, pool + 24, pool + 28], None, None, pk=pk, one=one)
        ls = [Lr(t) for t in range(NT)] + [Lr(0)]
        for op, r in (("v_max3_u32", vAK), ("v_min3_u32", vAV)):
            prog.append("%s v%d, v%d, v%d, v%d" % (op, r, ls[0], ls[1], ls[2]))
            prog.append("%s v%d, v%d, v%d, v%d" % (op, r, r, ls[3], ls[4]))
            prog.append("%s v%d, v%d, v%d, v%d" % (op, r, r, ls[5], ls[6]))
        return schedule([I(x) for x in prog], c.verbose, order=True, dswcost=c.dswcost)

    def resolve_waits(self, seq):
        issued = []
        for i in seq:
            g = self.group.get(id(i))
            if i.kind in ("dma", "vload", "vstore"): issued.append(g)
            elif g and g.startswith("W:"):
                last = max(j for j, x in enumerate(issued) if x == g[2:])
                i.text = "s_waitcnt vmcnt(%d)" % min(63, len(issued) - 1 - last)

    def build(self):
        c, NT, tag = self.c, self.NT, self.tag
        self.code = [Ins("L_wave_%s:" % tag)]
        self.prologue()
        self.code += self.ts(3 if c.tsmode == 0 else 2)
        self.code += self.ts2()
        self.code.append(self.waitv("K2"))
        self.code += self.flat(self.period(1)) + self.ts2()
        if c.tsmode == 1: self.code += self.ts(3)
        self.resolve_waits(self.code)
        head, pend = insert_lgkm(self.code)
        assert not pend
        head = pad_hazards(head)
        gaps = self.period(2)
        gaps[-4]['s'].append("s_sub_u32 s%d, s%d, 1" % (sCnt, sCnt))
        gaps[-2]['s'].append("s_cmp_lg_u32 s%d, 0" % sCnt)
        bodyA, pend = insert_lgkm(self.flat(gaps))
        assert not pend
        bodyA.append(Ins("s_cbranch_scc1 L_loop_%s" % tag))
        pad_hazards(bodyA, hist=head[-16:], fix=False, name="loop entry")
        if NT == 7:
            bodyB, pend = insert_lgkm(self.flat(self.period(3)))
            assert not pend
            pad_hazards(bodyB, hist=bodyA[-16:], fix=False, name="loop back")
            pad_hazards(bodyA, hist=bodyB[-16:], fix=False, name="loop mid")
            head.append(Ins("s_branch L_mid_%s" % tag))
            body = bodyB + [Ins("L_mid_%s:" % tag)] + bodyA
        else:
            pad_hazards(bodyA, hist=bodyA[-16:], fix=False, name="loop back")
            body = bodyA
        tail = self.ts(4) + self.tail()
        tail += [Ins("v_cmp_le_u32 vcc, 0x%08x, v%d" % (f2u(2.0 ** c.hi_exp), vAK)),
                 Ins("s_mov_b64 s[%d:%d], vcc" % (sT1, sT1 + 1)),
                 Ins("v_cmp_ge_u32 vcc, 0x%08x, v%d" % (f2u(2.0 ** c.lo_exp), vAV)),
                 Ins("s_or_b64 s[%d:%d], s[%d:%d], vcc" % (sT1, sT1 + 1, sT1, sT1 + 1)),
                 Ins("s_mov_b32 s%d, %d" % (sNT, NT)),
                 Ins("s_cbranch_scc1 L_slow" if not c.force_slow else "s_branch L_slow")]
        tail += self.ts(5)
        if c.diag: tail += [Ins("s_waitcnt vmcnt(0)")] + self.ts(6)
        tail.append(Ins("s_branch L_fin" if c.diag else "s_endpgm"))
        tail, pend = insert_lgkm(tail)
        tail = pad_hazards(tail, hist=body[-16:])
        return head + [Ins(".p2align 6"), Ins("L_loop_%s:" % tag)] + body + tail

class Gen:
    def __init__(self, cfg):
        self.c = cfg
    def slow(self):
        c = self.c
        w = Wave(self, 7, False, "s")
        o = []
        e = lambda s: o.extend(Ins(l) for l in s.strip().split("\n"))
        vL, vKA, vVA, vQA, vM, vX = 64, 65, 66, 67, 68, 69
        KF = lambda kg, ds: 72 + 16 * kg + 4 * ds
        VF = lambda db: 104 + 4 * db
        QF = lambda ds: 136 + 4 * ds
        SB, PB, LM, PKB = 152, 160, 164, 168
        e("L_slow:")
        e("s_waitcnt vmcnt(0) lgkmcnt(0)")
        e("v_lshrrev_b32 v%d, 4, v%d" % (vX, vDMA))
        e("v_and_b32 v%d, 7, v%d\nv_lshlrev_b32 v%d, 10, v%d" % (vM, vX, vKA, vM))
        e("v_and_b32 v%d, 8, v%d\nv_lshl_add_u32 v%d, v%d, 5, v%d" % (vM, vX, vKA, vM, vKA))
        e("v_and_b32 v%d, 48, v%d\nv_add_u32 v%d, v%d, v%d" % (vM, vX, vKA, vM, vKA))
        e("v_and_b32 v%d, 15, v%d\nv_lshlrev_b32 v%d, 8, v%d" % (vM, vX, vQA, vM))
        e("v_and_b32 v%d, 48, v%d\nv_add_u32 v%d, v%d, v%d" % (vM, vX, vQA, vM, vQA))
        e("v_bfe_u32 v%d, v%d, 2, 3\nv_mul_u32_u24 v%d, %d, v%d" % (vM, vX, vVA, PV_, vM))
        e("v_and_b32 v%d, 32, v%d\nv_lshl_add_u32 v%d, v%d, 3, v%d" % (vM, vX, vVA, vM, vVA))
        e("v_and_b32 v%d, 1, v%d\nv_lshl_add_u32 v%d, v%d, 3, v%d" % (vM, vX, vVA, vM, vVA))
        e("v_and_b32 v%d, 2, v%d\nv_lshl_add_u32 v%d, v%d, 6, v%d" % (vM, vX, vVA, vM, vVA))
        e("v_add_u32 v%d, s%d, v%d" % (vVA, sStg, vVA))
        e("s_mov_b32 s%d, 0" % sTile)
        e("L_slow_tile:")
        e("s_lshl_b32 s%d, s%d, 12\ns_add_u32 s%d, s%d, s%d" % (sSt, sTile, sSt, sSt, sQo))
        for ds in range(4):
            e("buffer_load_dwordx4 %s, v%d, s[%d:%d], s%d offen offset:%d" % (rn('v', QF(ds), 4), vQA, sQ, sQ + 3, sSt, ds * 64))
        e("s_waitcnt vmcnt(0)")
        for r in range(16):
            q = QF(0) + r
            e("v_lshlrev_b32 v%d, 16, v%d\nv_and_b32 v%d, 0xffff0000, v%d" % (vM, q, vX, q))
            e("v_mul_f32 v%d, s%d, v%d\nv_mul_f32 v%d, s%d, v%d" % (vM, sC, vM, vX, sC, vX))
            e("v_cvt_pk_bf16_f32 v%d, v%d, v%d" % (q, vM, vX))
        def kload():
            for kg in range(2):
                for ds in range(4):
                    e("buffer_load_dwordx4 %s, v%d, s[%d:%d], s%d offen offset:%d" % (rn('v', KF(kg, ds), 4), vKA, sK, sK + 3, sBlk, kg * 512 + ds * 64))
        def qk(raw):
            for kg in range(2):
                for ds in range(4):
                    e(mfma(('v', SB + 4 * kg), ('v', KF(kg, ds)), ('v', QF(ds)), (None if raw else ('v', CI)) if ds == 0 else ('v', SB + 4 * kg)))
        e("v_mov_b32 v%d, 0xff800000\ns_mov_b32 s%d, 0" % (vM, sBlk))
        e("L_slow_max:")
        kload()
        e("s_waitcnt vmcnt(0)")
        qk(True)
        e("s_nop 7")
        for i in range(0, 8, 2):
            e("v_max3_f32 v%d, v%d, v%d, v%d" % (vM, vM, SB + i, SB + i + 1))
        e("s_add_u32 s%d, s%d, 8192\ns_cmp_lt_u32 s%d, 524288\ns_cbranch_scc1 L_slow_max" % (sBlk, sBlk, sBlk))
        for sw in ("v_permlane32_swap_b32", "v_permlane16_swap_b32"):
            e("v_mov_b32 v%d, v%d\n%s v%d, v%d\nv_max_f32 v%d, v%d, v%d" % (vX, vM, sw, vM, vX, vM, vM, vX))
        for i in range(4): e("v_sub_f32 v%d, 0, v%d" % (CI + i, vM))
        for r in range(32): e("v_mov_b32 v%d, 0" % r)
        e("v_mov_b32 v%d, 0\ns_mov_b32 s%d, 0" % (vL, sBlk))
        e("L_slow_pv:")
        kload()
        e("s_add_u32 s%d, s%d, 4096" % (sT0, sBlk))
        for a in range(2):
            for n in range(4):
                e("s_add_u32 m0, s%d, %d" % (sStg, 4 * PV_ * a + (PV_ - 1024) * n))
                e("buffer_load_dwordx4 v%d, s[%d:%d], s%d offen offset:%d lds" % (vDMA, sV, sV + 3, sT0 if a else sBlk, 1024 * n))
        e("s_waitcnt vmcnt(0)")
        for db in range(8):
            for hb in range(2):
                e("ds_read_b64_tr_b16 %s, v%d offset:%d" % (rn('v', VF(db) + 2 * hb, 2), vVA, hb * 512 + db * 16))
        qk(False)
        e("s_nop 7")
        for i in range(8):
            e("v_exp_f32 v%d, v%d" % (SB + i, SB + i))
        for i in range(8):
            e("v_add_f32 v%d, v%d, v%d" % (vL, vL, SB + i))
        for i in range(4):
            e("v_cvt_pk_bf16_f32 v%d, v%d, v%d" % (PB + i, SB + 2 * i, SB + 2 * i + 1))
        e("s_waitcnt lgkmcnt(0)")
        for db in range(8):
            e(mfma(('v', 4 * db), ('v', PB), ('v', VF(db)), ('v', 4 * db)))
        e("s_nop 7")
        e("s_add_u32 s%d, s%d, 8192\ns_cmp_lt_u32 s%d, 524288\ns_cbranch_scc1 L_slow_pv" % (sBlk, sBlk, sBlk))
        e("v_accvgpr_write_b32 a16, 1.0")
        o.extend(I(x) for x in w.finalize(0, 0, LM, [PKB], None, None, Lreg=vL, soff=sSt, one=16))
        e("s_waitcnt vmcnt(0) lgkmcnt(0)")
        e("s_add_u32 s%d, s%d, 1\ns_cmp_lt_u32 s%d, s%d\ns_cbranch_scc1 L_slow_tile" % (sTile, sTile, sTile, sNT))
        o, _ = insert_lgkm(o, hoist=False)
        return pad_hazards(o)

    def build(self):
        c = self.c
        o = []
        e = lambda s: o.extend(Ins(l) for l in s.strip().split("\n"))
        e("s_cmp_ge_u32 s2, 256\ns_cbranch_scc1 L_end")
        e("s_load_dwordx4 s[4:7], s[0:1], 0\ns_load_dwordx4 s[8:11], s[0:1], 16")
        if c.diag:
            e("s_load_dwordx2 s[40:41], s[0:1], 40")
            e("s_memrealtime s[44:45]\ns_memtime s[46:47]\ns_waitcnt lgkmcnt(0)\ns_mov_b32 s48, s44\ns_mov_b32 s49, s46")
            if c.tsmode == 2: e("s_mov_b32 s48, s46")
        e("s_getpc_b64 s[38:39]")
        e("L_pc:")
        if c.pfsplit:
            e("s_lshr_b32 s36, s2, 3\ns_and_b32 s36, s36, 7\ns_lshl_b32 s36, s36, 13")
            e("v_lshlrev_b32 v2, 5, v0\nv_add_u32 v2, s36, v2\nv_min_u32 v2, L_slow-L_pc, v2")
            e("global_load_dword v28, v2, s[38:39]")
        else:
            e("v_lshlrev_b32 v2, 7, v0")
            e("v_add_u32 v3, 0x8000, v2")
            e("v_min_u32 v3, L_slow-L_pc, v3")
            e("global_load_dword v28, v2, s[38:39]")
            e("global_load_dword v29, v3, s[38:39]")
        e("v_lshrrev_b32 v1, 6, v0")
        e("v_and_b32 v0, 63, v0")
        e("v_readfirstlane_b32 s%d, v1" % sW)
        e("v_lshlrev_b32 v%d, 4, v0" % vDMA)
        e("v_and_b32 v1, 15, v0\nv_and_b32 v2, 48, v0")
        e("s_mul_i32 s%d, s2, 110592" % sT0)
        e("s_lshl_b32 s%d, s2, 19" % sT1)
        e("s_mov_b32 s%d, 0x%08x" % (sC, f2u(math.log2(math.e) / math.sqrt(128.0))))
        e("s_mul_i32 s%d, s%d, %d" % (sQo, sW, 112 * 256))
        e("s_mul_i32 s%d, s%d, %d" % (sWK, sW, 2 * PK))
        e("s_mul_i32 s%d, s%d, %d" % (sWV, sW, 2 * PV_))
        e("s_lshl_b32 s%d, s%d, 11" % (sWG, sW))
        e("s_mul_i32 s%d, s%d, %d\ns_add_u32 s%d, s%d, %d" % (sStg, sW, PRIV, sStg, sStg, STG))
        e("s_mul_i32 s%d, s%d, %d\ns_add_u32 s%d, s%d, %d" % (sQS, sW, 2 * QT, sQS, sQS, SS))
        e("v_bfe_u32 v3, v0, 2, 2\nv_mul_u32_u24 v%d, %d, v3" % (vQA, PV_))
        e("v_and_b32 v3, 3, v0\nv_lshl_add_u32 v%d, v3, 8, v%d" % (vQA, vQA))
        e("v_add3_u32 v%d, v%d, v2, s%d\nv_add3_u32 v%d, v%d, v2, s%d" % (vQB, vQA, sStg, vQA, vQA, sQS))
        e("v_and_b32 v3, 7, v0\nv_mul_u32_u24 v%d, %d, v3" % (vAK, PK))
        e("v_and_b32 v3, 8, v0\nv_lshl_add_u32 v%d, v3, 5, v%d" % (vAK, vAK))
        e("v_add_u32 v%d, v2, v%d" % (vAK, vAK))
        e("v_and_b32 v3, 1, v0\nv_lshlrev_b32 v4, 3, v3\nv_and_b32 v3, 2, v0\nv_lshl_add_u32 v4, v3, 6, v4")
        e("v_bfe_u32 v3, v0, 2, 3\nv_mul_u32_u24 v%d, %d, v3" % (vAV, PV_))
        e("v_and_b32 v3, 32, v0\nv_lshl_add_u32 v%d, v3, 3, v%d" % (vAV, vAV))
        e("v_add_u32 v%d, v4, v%d\nv_add_u32 v%d, %d, v%d" % (vAV, vAV, vAV, HK, vAV))
        e("v_mul_u32_u24 v%d, 80, v2\nv_lshl_add_u32 v%d, v1, 4, v%d\nv_add_u32 v%d, s%d, v%d" % (vEW, vEW, vEW, vEW, sStg, vEW))
        e("v_mul_u32_u24 v%d, 20, v2\nv_and_b32 v3, 12, v0\nv_lshl_add_u32 v%d, v3, 2, v%d" % (vER, vER, vER))
        e("v_add3_u32 v%d, v%d, v4, s%d" % (vER, vER, sStg))
        e("s_waitcnt lgkmcnt(0)")
        for srd, src, offs, size in ((sK, 6, sT1, 524288), (sQ, 4, sT0, 110592), (sV, 8, sT1, 524288), (sO, 10, sT0, 110592)):
            e("s_add_u32 s%d, s%d, s%d" % (srd, src, offs))
            e("s_addc_u32 s%d, s%d, 0" % (srd + 1, src + 1))
            e("s_mov_b32 s%d, %d" % (srd + 2, size))
            e("s_mov_b32 s%d, 0x20000" % (srd + 3))
        e("s_cmp_eq_u32 s%d, 3" % sW)
        e("s_cbranch_scc1 L_wave_b")
        o = pad_hazards(o)
        o += Wave(self, 7, False, "a").build()
        o += Wave(self, 6, True, "b").build()
        o += self.slow()
        e("L_fin:")
        if c.diag:
            e("s_mov_b32 s42, 0x1000000\ns_mov_b32 s43, 0x20000")
            e("s_lshl_b32 s%d, s2, 2\ns_add_u32 s%d, s%d, s%d\ns_lshl_b32 s%d, s%d, %d" % (sT0, sT0, sT0, sW, sT0, sT0, 7 if c.tsmode == 2 else 6))
            e("v_mov_b32 v0, 0")
            for i in range(0, 28 if c.tsmode == 2 else 16, 4):
                for k in range(4):
                    e("v_mov_b32 v%d, s%d" % (4 + k, 48 + i + k if i < 16 else 72 + i + k))
                e("buffer_store_dwordx4 v[4:7], v0, s[40:43], s%d offen offset:%d" % (sT0, i * 4))
                e("s_waitcnt vmcnt(0)")
        e("L_end:")
        e("s_endpgm")
        txt = ["; MHA forward, B=8 H=32 Sq=432 Sk=2048 D=128, bf16.  One workgroup per head, 4 waves (one per SIMD).",
               "; @launch grid=(256,1,1) block=(256,1,1) lds=%d" % LDS,
               '.amdgcn_target "amdgcn-amd-amdhsa--gfx950"', ".text", ".globl %s" % c.kname, ".p2align 8",
               ".type %s,@function" % c.kname, "%s:" % c.kname]
        for i in o:
            txt.append(i.text if i.kind == "label" else "    " + i.text)
        txt.append('.section .rodata,"a"\n.p2align 6\n.amdhsa_kernel %s' % c.kname)
        txt.append("""  .amdhsa_next_free_vgpr 512
  .amdhsa_next_free_sgpr 102
  .amdhsa_accum_offset 256
  .amdhsa_group_segment_fixed_size 0
  .amdhsa_kernarg_size 48
  .amdhsa_user_sgpr_count 2
  .amdhsa_user_sgpr_kernarg_segment_ptr 1
  .amdhsa_system_sgpr_workgroup_id_x 1
.end_amdhsa_kernel""")
        return "\n".join(txt) + "\n"

if __name__ == "__main__":
    cfg = Cfg()
    out = sys.argv[1]
    for a in sys.argv[2:]:
        k, v = a.split("=")
        assert hasattr(cfg, k), k
        setattr(cfg, k, eval(v))
    open(out, "w").write(Gen(cfg).build())
```

```python
import sys, math, struct
from asmlib import *
import solve

KNAME = "standalone__mha_softmax__near_ridge"

class Cfg:
    diag = False
    kname = KNAME + "_kernel"
    dflag = "nt"
    qflag = "nt"
    oflag = "sc1"
    bias = 2.0
    force_slow = False
    pkmul = 7
    verbose = False
    lo_exp = -30
    hi_exp = 30
    tsmode = 0
    nostore = False
    lead = 10
    p1bar = dict(V2=41, K3=69, V3=112)
    pfsplit = True
    twice = 0
    stall = 0
    idle = 0
    dswcost = 16
    first = 14
    sh_hi = 0.35
    s3_lo = 0.5

PK, PV_ = 1056, 1040
HK = 8 * PK
SLOT = HK + 8 * PV_
SS = 2 * SLOT
RING = 3 * SS
STG = RING
QT = 4 * PV_
PRIV = 3 * QT
LDS = STG + 4 * PRIV

def O(t, db):
    if t == 6 and db >= 4: return ('a', 240 + 4 * (db - 4))
    return ('v', 32 * t + 4 * db)
def S(i): return 208 + 4 * (i & 3)
def P(U, ks): return 224 + 8 * (U & 1) + 4 * ks
CI = 240
def Lr(t): return 244 + t
vAK, vAV, vDMA, vEW, vER = 251, 252, 253, 254, 255
vQA, vQB = 30, 31
def Q(t, ds): return 16 * t + 4 * ds
def Kf(g, ds): return 112 + 16 * g + 4 * ds
def Vf(db, ks): return 176 + 8 * db + 4 * ks

sQ, sK, sV, sO = 12, 16, 20, 24
sW, sCnt, sInc, sRd, sC, sQo, sSl = 28, 29, 30, 31, 32, 33, 34
sT0, sT1, sT2 = 35, 36, 37
sG = 64
sWK, sWV, sWG = 68, 69, 70
sIncW, sIncN = 71, 72
sNT, sTile, sBlk, sStg, sQS = 73, 74, 75, 76, 77
sSt = 80

def rn(f, b, n): return "%s[%d:%d]" % (f, b, b + n - 1)
def mfma(D, A, B, C, half=False):
    n = 2 if half else 4
    cs = "0" if C is None else rn(C[0], C[1], 4)
    op = "v_mfma_f32_16x16x16_bf16" if half else "v_mfma_f32_16x16x32_bf16"
    return "%s %s, %s, %s, %s" % (op, rn(D[0], D[1], 4), rn(A[0], A[1], n), rn(B[0], B[1], n), cs)
def f2u(x): return struct.unpack("<I", struct.pack("<f", x))[0]

class Wave:
    def __init__(self, gen, NT, dma, tag):
        self.g, self.c, self.NT, self.dma, self.tag = gen, gen.c, NT, dma, tag
        self.tau = (2, 1, 5, 4) if NT == 7 else (2, 1, 4, 3)
        W = solve.windows(NT, self.tau, 10 if NT == 7 else 12)
        if NT == 7: pos = [4 * p + 1 for p in range(8 * NT - 2)]
        else: pos = sorted([4 * p + 1 for p in range(8 * NT - 1)] + [16 * p + 2 for p in range(2 * NT)])
        self.rd = solve.edf(W, pos)
        assert self.rd
        self.oinit = set()
        self.group = {}
        self.code = []

    def kread(self, g, ds, off=0):
        return "ds_read_b128 %s, v%d offset:%d" % (rn('a', Kf(g, ds), 4), vAK, off + (g >> 1) * SLOT + (g & 1) * 512 + ds * 64)
    def vread(self, g, db, off=0):
        return "ds_read_b64_tr_b16 %s, v%d offset:%d" % (rn('a', Vf(db, g >> 1) + 2 * (g & 1), 2), vAV, off + (g >> 1) * SLOT + (g & 1) * 512 + db * 16)
    def qk(self, t, g, sb, raw=False):
        order = range(4) if g & 1 == 0 else range(3, -1, -1)
        o = []
        for i, ds in enumerate(order):
            o.append(mfma(('v', sb), ('a', Kf(g, ds)), ('a', Q(t, ds)), (None if raw else ('v', CI)) if i == 0 else ('v', sb)))
        return o
    def pv1(self, t, db, pb, ks, gs):
        D = O(t, db)
        C = D if (t, db) in self.oinit else None
        self.oinit.add((t, db))
        if len(gs) == 2: return mfma(D, ('v', pb), ('a', Vf(db, ks)), C)
        h = gs[0] & 1
        return mfma(D, ('v', pb + 2 * h), ('a', Vf(db, ks) + 2 * h), C, half=True)
    def pv(self, t, groups, pbase, dbs=range(8)):
        o = []
        for db in dbs:
            for ks in ((0, 1) if db % 2 == 0 else (1, 0)):
                gs = [g for g in groups if g >> 1 == ks]
                if gs: o.append(self.pv1(t, db, pbase(ks), ks, gs))
        return o
    def softmax(self, t, sb, pdst):
        o = []
        for i in range(4):
            o.append("v_exp_f32 v%d, v%d" % (sb + i, sb + i))
            o.append("v_add_f32 v%d, v%d, v%d" % (Lr(t), Lr(t), sb + i))
            if i & 1: o.append("v_cvt_pk_bf16_f32 v%d, v%d, v%d" % (pdst + i // 2, sb + i - 1, sb + i))
        return o
    def tagged(self, text, grp, **kw):
        i = Ins(text, **kw); self.group[id(i)] = grp; return i
    def share(self, kv, blk):
        srd, lo, base, pad = (sK, 0, sWK, PK - 1024) if kv == 'K' else (sV, HK, sWV, PV_ - 1024)
        lds = ((blk >> 1) % 3) * SS + (blk & 1) * SLOT + lo
        o = []
        for n in range(2):
            b = [Ins("s_add_u32 m0, s%d, %d" % (base, lds + pad * n))]
            b.append(Ins("s_add_u32 s%d, s%d, %d" % (sT2, sWG, blk * 8192)))
            b.append(self.tagged("buffer_load_dwordx4 v%d, s[%d:%d], s%d offen offset:%d %s lds" % (vDMA, srd, srd + 3, sT2, 1024 * n, self.c.dflag), "%s%d" % (kv, blk)))
            o.append(b)
        return o
    def qbuf(self, t):
        k = self.NT - 1 - t
        if k < 4: return sQS, vQA, (k >> 1) * SS + (k & 1) * QT
        return sStg, vQB, (k - 4) * QT
    def qload(self, t):
        sb, _, off = self.qbuf(t)
        o = []
        for n in range(4):
            b = [Ins("s_add_u32 m0, s%d, %d" % (sb, off + (PV_ - 1024) * n))]
            b.append(Ins("s_add_u32 s%d, s%d, %d" % (sT1, sQo, t * 4096)))
            b.append(self.tagged("buffer_load_dwordx4 v%d, s[%d:%d], s%d offen offset:%d %s lds" % (vDMA, sQ, sQ + 3, sT1, n * 1024, self.c.qflag), "Q%d" % t))
            o.append(b)
        return o
    def waitv(self, grp):
        i = Ins("s_waitcnt vmcnt(0)"); self.group[id(i)] = "W:" + grp; return i
    def scale(self, t):
        o = []
        tb = 32 * t + 16 if t < 6 else 16
        _, va, off = self.qbuf(t)
        for ds in range(4):
            o.append("ds_read_b128 %s, v%d offset:%d" % (rn('v', 32 * t + 4 * ds, 4), va, off + ds * 64))
        for r in range(16):
            q = 32 * t + r
            a, b = tb + 2 * (r % 6), tb + 2 * (r % 6) + 1
            o.append("v_lshlrev_b32 v%d, 16, v%d" % (a, q))
            o.append("v_and_b32 v%d, 0xffff0000, v%d" % (b, q))
            o.append("v_mul_f32 v%d, s%d, v%d" % (a, sC, a))
            o.append("v_mul_f32 v%d, s%d, v%d" % (b, sC, b))
            o.append("v_cvt_pk_bf16_f32 v%d, v%d, v%d" % (a, a, b))
            o.append("v_accvgpr_write_b32 a%d, v%d" % (Q(t, 0) + r, a))
        return o
    def seg(self, head, body, bundles=(), span=(0.0, 0.8)):
        self.code += self.ts2() + [I(x) for x in head] + self.ts2()
        b = schedule([I(x) for x in body], self.c.verbose) if body else []
        n = len(b)
        k = len(bundles)
        pos = [int(n * (span[0] + (span[1] - span[0]) * j / max(k, 1))) for j in range(k)]
        j = 0
        for i in range(n + 1):
            while j < k and pos[j] <= i:
                self.code += bundles[j]; j += 1
            if i < n: self.code.append(b[i])
    def ts2(self):
        if not (self.c.diag and self.c.tsmode == 2): return []
        self.nts = getattr(self, 'nts', 1) + 1
        k = self.nts - 1
        reg = 48 + k if k < 16 else 88 + k - 16
        assert k < 30
        return [Ins("s_memtime s[46:47]"), Ins("s_waitcnt lgkmcnt(0)"), Ins("s_mov_b32 s%d, s46" % reg)]
    def ts(self, idx):
        if not self.c.diag or self.c.tsmode == 2: return []
        return [Ins("s_memrealtime s[44:45]"), Ins("s_memtime s[46:47]"), Ins("s_waitcnt lgkmcnt(0)"),
                Ins("s_mov_b32 s%d, s44" % (48 + 2 * idx)), Ins("s_mov_b32 s%d, s46" % (49 + 2 * idx))]

    def prologue(self):
        c, NT, tau = self.c, self.NT, self.tau
        T = NT - 1
        G0 = lambda t: [g for g in range(4) if tau[g] <= t]
        seq = self.share('K', 0) + self.qload(T) + self.share('K', 1) + self.qload(T - 1) + self.share('V', 0) + self.share('V', 1)
        for t in range(T - 2, 0, -1): seq += self.qload(t)
        nq = len(seq)
        seq += self.share('K', 2) + self.qload(0)
        seq += self.share('V', 2) + self.share('K', 3) + self.share('V', 3)
        grp = [self.group[id(b[-1])] for b in seq]
        state = [0]
        def nxt(g, cap=None):
            want = c.first if g is None else max(j for j, x in enumerate(grp) if x == g) + 1 + c.lead
            want = min(want, len(seq) if cap is None else cap)
            r = seq[state[0]:want]
            state[0] = max(state[0], want)
            return r
        for b in nxt(None): self.code += b
        self.code += [Ins("v_mov_b32 v%d, 0" % Lr(t)) for t in range(NT)]
        self.seg([self.waitv("Q%d" % T)], self.scale(T), nxt("K1", nq))
        body = [self.kread(g, ds) for g in range(4) for ds in range(4)]
        for g in range(4): body += self.qk(T, g, S(g), raw=True)
        x, y = 28, 29
        body.append("v_max3_f32 v%d, v%d, v%d, v%d" % (x, S(0), S(0) + 1, S(0) + 2))
        body.append("v_max3_f32 v%d, v%d, v%d, v%d" % (x, x, S(0) + 3, S(0) + 4))
        body.append("v_max3_f32 v%d, v%d, v%d, v%d" % (x, x, S(0) + 5, S(0) + 6))
        body.append("v_max_f32 v%d, v%d, v%d" % (x, x, S(0) + 7))
        for sw in ("v_permlane32_swap_b32", "v_permlane16_swap_b32"):
            body.append("v_mov_b32 v%d, v%d" % (y, x))
            body.append("%s v%d, v%d" % (sw, x, y))
            body.append("v_max_f32 v%d, v%d, v%d" % (x, x, y))
        for k in (8, 4, 2, 1):
            body.append("v_max_f32_dpp v%d, v%d, v%d row_ror:%d row_mask:0xf bank_mask:0xf" % (x, x, x, k))
        for i in range(4):
            body.append("v_sub_f32 v%d, 0x%08x, v%d" % (CI + i, f2u(-c.bias), x))
        for g in range(4):
            for i in range(4):
                body.append("v_add_f32 v%d, v%d, v%d" % (S(g) + i, S(g) + i, CI))
            body += self.softmax(T, S(g), P(T, g >> 1) + 2 * (g & 1))
        self.seg([self.waitv("K1"), Ins("s_barrier")] + self.ts(1), body, nxt("Q%d" % (T - 1), nq))
        PB = lambda ks: P(T + 1, ks)
        def unit(t):
            o = []
            for g in G0(t):
                o += self.qk(t, g, S(g))
                o += self.softmax(t, S(g), PB(g >> 1) + 2 * (g & 1))
            return o
        self.seg([self.waitv("Q%d" % (T - 1))], self.scale(T - 1) + unit(T - 1), nxt("V1", nq))
        body = [self.vread(g, db) for db in range(8) for g in range(4)] + self.pv(T - 1, G0(T - 1), PB)
        self.seg([self.waitv("V1"), Ins("s_barrier", lgkm0=True)], body, nxt("Q%d" % (T - 2)))
        for t in range(T - 2, 0, -1):
            self.seg([self.waitv("Q%d" % t)], self.scale(t) + unit(t) + self.pv(t, G0(t), PB), nxt("Q%d" % (t - 1)))
        body = self.scale(0) + self.qk(0, 0, S(0)) + self.qk(0, 1, S(1))
        body += ["v_add_u32 v%d, %d, v%d" % (vAK, SS, vAK), "v_add_u32 v%d, %d, v%d" % (vAV, SS, vAV)]
        body += ["s_mov_b32 s%d, %d" % (sRd, SS), "s_mov_b32 s%d, %d" % (sIncW, (-2 * SS) & 0xffffffff), "s_mov_b32 s%d, %d" % (sIncN, SS)]
        body += ["s_mov_b32 s%d, %d" % (sCnt, 15 if NT == 7 else 29)]
        if self.dma:
            body += ["s_mov_b32 s%d, %d" % (sG + i, 3 * 16384 + 4096 * i) for i in range(4)]
            body += ["s_mov_b32 s%d, 0" % sSl]
        self.seg([self.waitv("Q0")] + self.ts(2 if c.tsmode == 0 else 1), body, nxt("V3"))

    def period(self, p):
        c, NT = self.c, self.NT
        first = p == 1
        gaps = []
        NS = 2 * NT
        for n in range(NS):
            t, hh = n >> 1, n & 1
            U = NT * p + t
            n1 = (n + 1) % NS
            t1, ks1 = n1 >> 1, n1 & 1
            ms = self.qk(t1, 2 * ks1, S(2 * ks1)) + self.qk(t1, 2 * ks1 + 1, S(2 * ks1 + 1))
            ms += self.pv((t - 1) % NT, range(4), lambda ks: P(U - 1, ks), range(4 * hh, 4 * hh + 4))
            for i in range(16):
                s_ = S(2 * hh) + i // 2
                if i % 2 == 0: v = ["v_exp_f32 v%d, v%d" % (s_, s_)]
                else:
                    v = ["v_add_f32 v%d, v%d, v%d" % (Lr(t), Lr(t), s_)]
                    if i % 4 == 3: v.append("v_cvt_pk_bf16_f32 v%d, v%d, v%d" % (P(U, hh) + i // 4, s_ - 1, s_))
                gaps.append(dict(m=ms[i], s=[], d=[], v=v))
        NG = len(gaps)
        if c.stall:
            for i in range(15, NG, 16): gaps[i]['v'].append("s_nop %d" % (c.stall - 1))
        for (kind, g, x), pos in self.rd.items():
            gaps[pos]['d'].append(self.kread(g, x) if kind == 'K' else self.vread(g, x))
        gaps[0]['s'].append(Ins("s_barrier", lgkm0=True))
        gaps[2]['s'].append("s_add_u32 s%d, s%d, %d" % (sRd, sRd, SS))
        gaps[3]['s'].append("s_cmp_eq_u32 s%d, %d" % (sRd, RING))
        gaps[4]['s'].append("s_cselect_b32 s%d, s%d, s%d" % (sInc, sIncW, sIncN))
        gaps[5]['s'].append("s_cselect_b32 s%d, 0, s%d" % (sRd, sRd))
        last = max(self.rd.values())
        assert last < NG - 7
        gaps[NG - 7]['v'].append("v_add_u32 v%d, s%d, v%d" % (vAK, sInc, vAK))
        gaps[NG - 3]['v'].append("v_add_u32 v%d, s%d, v%d" % (vAV, sInc, vAV))
        lo = 8
        if first:
            for kind, ks, grp in (('V', 0, "V2"), ('K', 1, "K3"), ('V', 1, "V3")):
                f = min(pos for (k, g, x), pos in self.rd.items() if k == kind and g >> 1 == ks)
                f = min(f, c.p1bar[grp])
                gaps[f - 1]['s'].append(self.waitv(grp))
                gaps[f]['s'].append(Ins("s_barrier"))
            bl = []
            for blk in (4, 5): bl += self.share('K', blk) + self.share('V', blk)
            hi = int(NG * c.sh_hi)
            self.place(gaps, bl, lo, hi)
            lo = int(NG * c.s3_lo)
        if self.dma:
            bl = []
            for blk in range(2):
                for srd, l0, st in ((sK, 0, PK), (sV, HK, PV_)):
                    for a in range(2):
                        for n in range(4):
                            bl.append([Ins("s_add_u32 m0, s%d, %d" % (sSl, blk * SLOT + l0 + 4 * st * a + (st - 1024) * n)),
                                       self.tagged("buffer_load_dwordx4 v%d, s[%d:%d], s%d offen offset:%d %s lds" % (vDMA, srd, srd + 3, sG + 2 * blk + a, 1024 * n, c.dflag), "S")])
            self.place(gaps, bl, lo, NG - 12)
            for i in range(4):
                gaps[NG - 11 + i]['s'].append("s_add_u32 s%d, s%d, 16384" % (sG + i, sG + i))
            gaps[NG - 7]['s'].append("s_add_u32 s%d, s%d, %d" % (sSl, sSl, SS))
            gaps[NG - 6]['s'].append("s_cmp_eq_u32 s%d, %d" % (sSl, RING))
            gaps[NG - 5]['s'].append("s_cselect_b32 s%d, 0, s%d" % (sSl, sSl))
        if first: gaps[NG - 1]['s'].append(self.waitv("V5"))
        elif self.dma: gaps[NG - 1]['s'].append("s_waitcnt vmcnt(32)")
        return gaps
    def place(self, gaps, bundles, lo, hi):
        cand = [i for i in range(lo + 2, hi) if not gaps[i]['d'] and len(gaps[i]['v']) == 1]
        k = len(bundles)
        prev = lo - 1
        for j, b in enumerate(bundles):
            tgt = lo + 2 + (hi - lo - 2) * j / k
            ns = len(b) - 1
            cc = [i for i in cand if i - ns >= prev]
            i = min(cc, key=lambda i: abs(i - tgt) - (2.5 if i % 2 else 0))
            for q, ins in enumerate(b[:-1]):
                gi = i - ns + q
                if gi == prev: gaps[gi]['d'].append(ins)
                else: gaps[gi]['s'].append(ins)
            gaps[i]['d'].append(b[-1])
            prev = i
    def flat(self, gaps):
        o = []
        for g in gaps:
            o.append(I(g['m']))
            o += [I(x) for x in g['s'] + g['d'] + g['v']]
        return o

    def finalize(self, t, k, Lm, packs, acct, first, Ofn=O, Lreg=None, land=None, soff=None, pk=False, one=None):
        c = self.c
        buf = k & 1
        st = "L:st%d" % buf
        Lreg = Lr(t) if Lreg is None else Lreg
        land = Q(t, 0) if land is None else land
        o = ["v_mfma_f32_16x16x4_f32 %s, v%d, a%d, 0" % (rn('v', Lm, 4), Lreg, one)]
        if first is not None:
            for op, r in (("v_max3_u32", vAK), ("v_min3_u32", vAV)):
                if first:
                    o.append("%s v%d, v%d, v%d, v%d" % (op, r, Lm, Lm + 1, Lm + 2))
                    o.append("%s v%d, v%d, v%d, v%d" % (op, r, r, Lm + 3, Lm + 3))
                else:
                    o.append("%s v%d, v%d, v%d, v%d" % (op, r, r, Lm, Lm + 1))
                    o.append("%s v%d, v%d, v%d, v%d" % (op, r, r, Lm + 2, Lm + 3))
        for r in range(4): o.append("v_rcp_f32 v%d, v%d" % (Lm + r, Lm + r))
        loc = {}
        for db in range(8):
            f, b = Ofn(t, db)
            if f == 'a':
                for r in range(4):
                    o.append("v_accvgpr_read_b32 v%d, a%d" % (acct + 4 * (db - 4) + r, b + r))
                b = acct + 4 * (db - 4)
            loc[db] = b
        if pk:
            for db in range(8):
                for r in (0, 2):
                    o.append("v_pk_mul_f32 %s, %s, %s" % (rn('v', loc[db] + r, 2), rn('v', loc[db] + r, 2), rn('v', Lm + r, 2)))
        for r in range(4):
            for db in range(8):
                if not pk: o.append("v_mul_f32 v%d, v%d, v%d" % (loc[db] + r, loc[db] + r, Lm + r))
            pb = packs[r % len(packs)]
            for j in range(4):
                o.append("v_cvt_pk_bf16_f32 v%d, v%d, v%d" % (pb + j, loc[2 * j] + r, loc[2 * j + 1] + r))
            o.append(Ins("ds_write_b128 v%d, %s offset:%d" % (vEW, rn('v', pb, 4), r * 320 + buf * 5120), xw=[st + "r%d" % r]))
        if soff is None:
            soff = sSt + t
            o.append("s_add_u32 s%d, s%d, %d" % (soff, sQo, t * 4096))
        for a in range(4):
            for sel in range(2):
                o.append(Ins("ds_read_b64_tr_b16 %s, v%d offset:%d" % (rn('a', land + 4 * a + 2 * sel, 2), vER, a * 1280 + 64 * sel + buf * 5120), xr=[st + "r%d" % r for r in range(4)]))
        for a in range(4 if not c.nostore else 0):
            o.append("buffer_store_dwordx4 %s, v%d, s[%d:%d], s%d offen offset:%d %s" % (rn('a', land + 4 * a, 4), vDMA, sO, sO + 3, soff, a * 1024, c.oflag))
        return o

    def tail(self):
        c, NT, tau = self.c, self.NT, self.tau
        T = NT - 1
        U = NT * 31
        G1 = lambda t: [g for g in range(4) if tau[g] > t]
        ring = dict(xr=["L:ring"])
        prog = [Ins("s_barrier", lgkm0=True, xw=["L:ring"])]
        prog += self.pv(T, range(4), lambda ks: P(U - 1, ks))
        sidx = 0
        for t in range(NT):
            gs = G1(t)
            if not gs: continue
            pb = (lambda u: (lambda ks: P(u, ks)))(U); U += 1
            for g in gs:
                sb = S(sidx); sidx += 1
                if not (t == 0 and g < 2): prog += self.qk(t, g, sb)
                if tau[g] == t + 1: prog += [Ins(self.kread(g, ds), **ring) for ds in range(4)]
                prog += self.softmax(t, sb, pb(g >> 1) + 2 * (g & 1))
            prog += self.pv(t, gs, pb)
            for db in range(8):
                prog += [Ins(self.vread(g, db), **ring) for g in gs if tau[g] == t + 1]
        order = [t for t in range(NT) if not G1(t)] + [t for t in range(NT) if G1(t)]
        gorder = sorted(range(4), key=lambda g: tau[g])
        pool = 32 * order[0]
        for k, t in enumerate(order):
            pb = (lambda u: (lambda ks: P(u, ks)))(U); U += 1
            for g in (gorder if k == 0 else range(4)):
                sb = S(sidx); sidx += 1
                prog += self.qk(t, g, sb)
                prog += self.softmax(t, sb, pb(g >> 1) + 2 * (g & 1))
            prog += self.pv(t, range(4), pb)
            pk = k >= len(order) - c.pkmul
            one = Q(t, 0)
            prog.append("v_accvgpr_write_b32 a%d, 1.0" % one)
            if k == 0: prog += self.finalize(t, k, pb(0), [pb(1)], None, None, pk=pk, one=one)
            elif t == 6: prog += self.finalize(t, k, pool + 4 * (k & 1), [pool + 8, pool + 12], pool + 16, None, pk=pk, one=one)
            else: prog += self.finalize(t, k, pool + 4 * (k & 1), [pool + 16, pool + 20, pool + 24, pool + 28], None, None, pk=pk, one=one)
        ls = [Lr(t) for t in range(NT)] + [Lr(0)]
        for op, r in (("v_max3_u32", vAK), ("v_min3_u32", vAV)):
            prog.append("%s v%d, v%d, v%d, v%d" % (op, r, ls[0], ls[1], ls[2]))
            prog.append("%s v%d, v%d, v%d, v%d" % (op, r, r, ls[3], ls[4]))
            prog.append("%s v%d, v%d, v%d, v%d" % (op, r, r, ls[5], ls[6]))
        return schedule([I(x) for x in prog], c.verbose, order=True, dswcost=c.dswcost)

    def resolve_waits(self, seq):
        issued = []
        for i in seq:
            g = self.group.get(id(i))
            if i.kind in ("dma", "vload", "vstore"): issued.append(g)
            elif g and g.startswith("W:"):
                last = max(j for j, x in enumerate(issued) if x == g[2:])
                i.text = "s_waitcnt vmcnt(%d)" % min(63, len(issued) - 1 - last)

    def build(self):
        c, NT, tag = self.c, self.NT, self.tag
        self.code = [Ins("L_wave_%s:" % tag)]
        self.prologue()
        self.code += self.ts(3 if c.tsmode == 0 else 2)
        self.code += self.ts2()
        self.code.append(self.waitv("K2"))
        self.code += self.flat(self.period(1)) + self.ts2()
        if c.tsmode == 1: self.code += self.ts(3)
        self.resolve_waits(self.code)
        head, pend = insert_lgkm(self.code)
        assert not pend
        head = pad_hazards(head)
        gaps = self.period(2)
        gaps[-4]['s'].append("s_sub_u32 s%d, s%d, 1" % (sCnt, sCnt))
        gaps[-2]['s'].append("s_cmp_lg_u32 s%d, 0" % sCnt)
        bodyA, pend = insert_lgkm(self.flat(gaps))
        assert not pend
        bodyA.append(Ins("s_cbranch_scc1 L_loop_%s" % tag))
        pad_hazards(bodyA, hist=head[-16:], fix=False, name="loop entry")
        if NT == 7:
            bodyB, pend = insert_lgkm(self.flat(self.period(3)))
            assert not pend
            pad_hazards(bodyB, hist=bodyA[-16:], fix=False, name="loop back")
            pad_hazards(bodyA, hist=bodyB[-16:], fix=False, name="loop mid")
            head.append(Ins("s_branch L_mid_%s" % tag))
            body = bodyB + [Ins("L_mid_%s:" % tag)] + bodyA
        else:
            pad_hazards(bodyA, hist=bodyA[-16:], fix=False, name="loop back")
            body = bodyA
        tail = self.ts(4) + self.tail()
        tail += [Ins("v_cmp_le_u32 vcc, 0x%08x, v%d" % (f2u(2.0 ** c.hi_exp), vAK)),
                 Ins("s_mov_b64 s[%d:%d], vcc" % (sT1, sT1 + 1)),
                 Ins("v_cmp_ge_u32 vcc, 0x%08x, v%d" % (f2u(2.0 ** c.lo_exp), vAV)),
                 Ins("s_or_b64 s[%d:%d], s[%d:%d], vcc" % (sT1, sT1 + 1, sT1, sT1 + 1)),
                 Ins("s_mov_b32 s%d, %d" % (sNT, NT)),
                 Ins("s_cbranch_scc1 L_slow" if not c.force_slow else "s_branch L_slow")]
        tail += self.ts(5)
        if c.diag: tail += [Ins("s_waitcnt vmcnt(0)")] + self.ts(6)
        tail.append(Ins("s_branch L_fin" if (c.diag or c.twice or c.idle) else "s_endpgm"))
        tail, pend = insert_lgkm(tail)
        tail = pad_hazards(tail, hist=body[-16:])
        return head + [Ins(".p2align 6"), Ins("L_loop_%s:" % tag)] + body + tail

class Gen:
    def __init__(self, cfg):
        self.c = cfg
    def slow(self):
        c = self.c
        w = Wave(self, 7, False, "s")
        o = []
        e = lambda s: o.extend(Ins(l) for l in s.strip().split("\n"))
        vL, vKA, vVA, vQA, vM, vX = 64, 65, 66, 67, 68, 69
        KF = lambda kg, ds: 72 + 16 * kg + 4 * ds
        VF = lambda db: 104 + 4 * db
        QF = lambda ds: 136 + 4 * ds
        SB, PB, LM, PKB = 152, 160, 164, 168
        e("L_slow:")
        e("s_waitcnt vmcnt(0) lgkmcnt(0)")
        e("v_lshrrev_b32 v%d, 4, v%d" % (vX, vDMA))
        e("v_and_b32 v%d, 7, v%d\nv_lshlrev_b32 v%d, 10, v%d" % (vM, vX, vKA, vM))
        e("v_and_b32 v%d, 8, v%d\nv_lshl_add_u32 v%d, v%d, 5, v%d" % (vM, vX, vKA, vM, vKA))
        e("v_and_b32 v%d, 48, v%d\nv_add_u32 v%d, v%d, v%d" % (vM, vX, vKA, vM, vKA))
        e("v_and_b32 v%d, 15, v%d\nv_lshlrev_b32 v%d, 8, v%d" % (vM, vX, vQA, vM))
        e("v_and_b32 v%d, 48, v%d\nv_add_u32 v%d, v%d, v%d" % (vM, vX, vQA, vM, vQA))
        e("v_bfe_u32 v%d, v%d, 2, 3\nv_mul_u32_u24 v%d, %d, v%d" % (vM, vX, vVA, PV_, vM))
        e("v_and_b32 v%d, 32, v%d\nv_lshl_add_u32 v%d, v%d, 3, v%d" % (vM, vX, vVA, vM, vVA))
        e("v_and_b32 v%d, 1, v%d\nv_lshl_add_u32 v%d, v%d, 3, v%d" % (vM, vX, vVA, vM, vVA))
        e("v_and_b32 v%d, 2, v%d\nv_lshl_add_u32 v%d, v%d, 6, v%d" % (vM, vX, vVA, vM, vVA))
        e("v_add_u32 v%d, s%d, v%d" % (vVA, sStg, vVA))
        e("s_mov_b32 s%d, 0" % sTile)
        e("L_slow_tile:")
        e("s_lshl_b32 s%d, s%d, 12\ns_add_u32 s%d, s%d, s%d" % (sSt, sTile, sSt, sSt, sQo))
        for ds in range(4):
            e("buffer_load_dwordx4 %s, v%d, s[%d:%d], s%d offen offset:%d" % (rn('v', QF(ds), 4), vQA, sQ, sQ + 3, sSt, ds * 64))
        e("s_waitcnt vmcnt(0)")
        for r in range(16):
            q = QF(0) + r
            e("v_lshlrev_b32 v%d, 16, v%d\nv_and_b32 v%d, 0xffff0000, v%d" % (vM, q, vX, q))
            e("v_mul_f32 v%d, s%d, v%d\nv_mul_f32 v%d, s%d, v%d" % (vM, sC, vM, vX, sC, vX))
            e("v_cvt_pk_bf16_f32 v%d, v%d, v%d" % (q, vM, vX))
        def kload():
            for kg in range(2):
                for ds in range(4):
                    e("buffer_load_dwordx4 %s, v%d, s[%d:%d], s%d offen offset:%d" % (rn('v', KF(kg, ds), 4), vKA, sK, sK + 3, sBlk, kg * 512 + ds * 64))
        def qk(raw):
            for kg in range(2):
                for ds in range(4):
                    e(mfma(('v', SB + 4 * kg), ('v', KF(kg, ds)), ('v', QF(ds)), (None if raw else ('v', CI)) if ds == 0 else ('v', SB + 4 * kg)))
        e("v_mov_b32 v%d, 0xff800000\ns_mov_b32 s%d, 0" % (vM, sBlk))
        e("L_slow_max:")
        kload()
        e("s_waitcnt vmcnt(0)")
        qk(True)
        e("s_nop 7")
        for i in range(0, 8, 2):
            e("v_max3_f32 v%d, v%d, v%d, v%d" % (vM, vM, SB + i, SB + i + 1))
        e("s_add_u32 s%d, s%d, 8192\ns_cmp_lt_u32 s%d, 524288\ns_cbranch_scc1 L_slow_max" % (sBlk, sBlk, sBlk))
        for sw in ("v_permlane32_swap_b32", "v_permlane16_swap_b32"):
            e("v_mov_b32 v%d, v%d\n%s v%d, v%d\nv_max_f32 v%d, v%d, v%d" % (vX, vM, sw, vM, vX, vM, vM, vX))
        for i in range(4): e("v_sub_f32 v%d, 0, v%d" % (CI + i, vM))
        for r in range(32): e("v_mov_b32 v%d, 0" % r)
        e("v_mov_b32 v%d, 0\ns_mov_b32 s%d, 0" % (vL, sBlk))
        e("L_slow_pv:")
        kload()
        e("s_add_u32 s%d, s%d, 4096" % (sT0, sBlk))
        for a in range(2):
            for n in range(4):
                e("s_add_u32 m0, s%d, %d" % (sStg, 4 * PV_ * a + (PV_ - 1024) * n))
                e("buffer_load_dwordx4 v%d, s[%d:%d], s%d offen offset:%d lds" % (vDMA, sV, sV + 3, sT0 if a else sBlk, 1024 * n))
        e("s_waitcnt vmcnt(0)")
        for db in range(8):
            for hb in range(2):
                e("ds_read_b64_tr_b16 %s, v%d offset:%d" % (rn('v', VF(db) + 2 * hb, 2), vVA, hb * 512 + db * 16))
        qk(False)
        e("s_nop 7")
        for i in range(8):
            e("v_exp_f32 v%d, v%d" % (SB + i, SB + i))
        for i in range(8):
            e("v_add_f32 v%d, v%d, v%d" % (vL, vL, SB + i))
        for i in range(4):
            e("v_cvt_pk_bf16_f32 v%d, v%d, v%d" % (PB + i, SB + 2 * i, SB + 2 * i + 1))
        e("s_waitcnt lgkmcnt(0)")
        for db in range(8):
            e(mfma(('v', 4 * db), ('v', PB), ('v', VF(db)), ('v', 4 * db)))
        e("s_nop 7")
        e("s_add_u32 s%d, s%d, 8192\ns_cmp_lt_u32 s%d, 524288\ns_cbranch_scc1 L_slow_pv" % (sBlk, sBlk, sBlk))
        e("v_accvgpr_write_b32 a16, 1.0")
        o.extend(I(x) for x in w.finalize(0, 0, LM, [PKB], None, None, Lreg=vL, soff=sSt, one=16))
        e("s_waitcnt vmcnt(0) lgkmcnt(0)")
        e("s_add_u32 s%d, s%d, 1\ns_cmp_lt_u32 s%d, s%d\ns_cbranch_scc1 L_slow_tile" % (sTile, sTile, sTile, sNT))
        o, _ = insert_lgkm(o, hoist=False)
        return pad_hazards(o)

    def build(self):
        c = self.c
        o = []
        e = lambda s: o.extend(Ins(l) for l in s.strip().split("\n"))
        e("s_cmp_ge_u32 s2, 256\ns_cbranch_scc1 L_end")
        if c.twice: e("s_mov_b32 s90, 0\nL_again:")
        e("s_load_dwordx4 s[4:7], s[0:1], 0\ns_load_dwordx4 s[8:11], s[0:1], 16")
        if c.diag:
            e("s_load_dwordx2 s[40:41], s[0:1], 40")
            e("s_memrealtime s[44:45]\ns_memtime s[46:47]\ns_waitcnt lgkmcnt(0)\ns_mov_b32 s48, s44\ns_mov_b32 s49, s46")
            if c.tsmode == 2: e("s_mov_b32 s48, s46")
        e("s_getpc_b64 s[38:39]")
        e("L_pc:")
        if c.pfsplit:
            e("s_lshr_b32 s36, s2, 3\ns_and_b32 s36, s36, 7\ns_lshl_b32 s36, s36, 13")
            e("v_lshlrev_b32 v2, 5, v0\nv_add_u32 v2, s36, v2\nv_min_u32 v2, L_slow-L_pc, v2")
            e("global_load_dword v28, v2, s[38:39]")
        else:
            e("v_lshlrev_b32 v2, 7, v0")
            e("v_add_u32 v3, 0x8000, v2")
            e("v_min_u32 v3, L_slow-L_pc, v3")
            e("global_load_dword v28, v2, s[38:39]")
            e("global_load_dword v29, v3, s[38:39]")
        e("v_lshrrev_b32 v1, 6, v0")
        e("v_and_b32 v0, 63, v0")
        e("v_readfirstlane_b32 s%d, v1" % sW)
        e("v_lshlrev_b32 v%d, 4, v0" % vDMA)
        e("v_and_b32 v1, 15, v0\nv_and_b32 v2, 48, v0")
        e("s_mul_i32 s%d, s2, 110592" % sT0)
        e("s_lshl_b32 s%d, s2, 19" % sT1)
        e("s_mov_b32 s%d, 0x%08x" % (sC, f2u(math.log2(math.e) / math.sqrt(128.0))))
        e("s_mul_i32 s%d, s%d, %d" % (sQo, sW, 112 * 256))
        e("s_mul_i32 s%d, s%d, %d" % (sWK, sW, 2 * PK))
        e("s_mul_i32 s%d, s%d, %d" % (sWV, sW, 2 * PV_))
        e("s_lshl_b32 s%d, s%d, 11" % (sWG, sW))
        e("s_mul_i32 s%d, s%d, %d\ns_add_u32 s%d, s%d, %d" % (sStg, sW, PRIV, sStg, sStg, STG))
        e("s_mul_i32 s%d, s%d, %d\ns_add_u32 s%d, s%d, %d" % (sQS, sW, 2 * QT, sQS, sQS, SS))
        e("v_bfe_u32 v3, v0, 2, 2\nv_mul_u32_u24 v%d, %d, v3" % (vQA, PV_))
        e("v_and_b32 v3, 3, v0\nv_lshl_add_u32 v%d, v3, 8, v%d" % (vQA, vQA))
        e("v_add3_u32 v%d, v%d, v2, s%d\nv_add3_u32 v%d, v%d, v2, s%d" % (vQB, vQA, sStg, vQA, vQA, sQS))
        e("v_and_b32 v3, 7, v0\nv_mul_u32_u24 v%d, %d, v3" % (vAK, PK))
        e("v_and_b32 v3, 8, v0\nv_lshl_add_u32 v%d, v3, 5, v%d" % (vAK, vAK))
        e("v_add_u32 v%d, v2, v%d" % (vAK, vAK))
        e("v_and_b32 v3, 1, v0\nv_lshlrev_b32 v4, 3, v3\nv_and_b32 v3, 2, v0\nv_lshl_add_u32 v4, v3, 6, v4")
        e("v_bfe_u32 v3, v0, 2, 3\nv_mul_u32_u24 v%d, %d, v3" % (vAV, PV_))
        e("v_and_b32 v3, 32, v0\nv_lshl_add_u32 v%d, v3, 3, v%d" % (vAV, vAV))
        e("v_add_u32 v%d, v4, v%d\nv_add_u32 v%d, %d, v%d" % (vAV, vAV, vAV, HK, vAV))
        e("v_mul_u32_u24 v%d, 80, v2\nv_lshl_add_u32 v%d, v1, 4, v%d\nv_add_u32 v%d, s%d, v%d" % (vEW, vEW, vEW, vEW, sStg, vEW))
        e("v_mul_u32_u24 v%d, 20, v2\nv_and_b32 v3, 12, v0\nv_lshl_add_u32 v%d, v3, 2, v%d" % (vER, vER, vER))
        e("v_add3_u32 v%d, v%d, v4, s%d" % (vER, vER, sStg))
        e("s_waitcnt lgkmcnt(0)")
        for srd, src, offs, size in ((sK, 6, sT1, 524288), (sQ, 4, sT0, 110592), (sV, 8, sT1, 524288), (sO, 10, sT0, 110592)):
            e("s_add_u32 s%d, s%d, s%d" % (srd, src, offs))
            e("s_addc_u32 s%d, s%d, 0" % (srd + 1, src + 1))
            e("s_mov_b32 s%d, %d" % (srd + 2, size))
            e("s_mov_b32 s%d, 0x20000" % (srd + 3))
        e("s_cmp_eq_u32 s%d, 3" % sW)
        e("s_cbranch_scc1 L_wave_b")
        o = pad_hazards(o)
        o += Wave(self, 7, False, "a").build()
        o += Wave(self, 6, True, "b").build()
        o += self.slow()
        e("L_fin:")
        if c.twice:
            e("s_waitcnt vmcnt(0) lgkmcnt(0)\ns_barrier\nv_lshrrev_b32 v0, 4, v%d\ns_lshl_b32 s91, s%d, 6\nv_add_u32 v0, s91, v0" % (vDMA, sW))
            e("s_add_u32 s90, s90, 1\ns_cmp_le_u32 s90, %d\ns_cbranch_scc1 L_again" % c.twice)
        if c.idle:
            e("s_waitcnt vmcnt(0) lgkmcnt(0)\ns_memtime s[92:93]\ns_waitcnt lgkmcnt(0)\nL_idle:\ns_memtime s[94:95]\ns_waitcnt lgkmcnt(0)\ns_sub_u32 s94, s94, s92\ns_cmp_lt_u32 s94, %d\ns_cbranch_scc1 L_idle" % c.idle)
        if c.diag:
            e("s_mov_b32 s42, 0x1000000\ns_mov_b32 s43, 0x20000")
            e("s_lshl_b32 s%d, s2, 2\ns_add_u32 s%d, s%d, s%d\ns_lshl_b32 s%d, s%d, %d" % (sT0, sT0, sT0, sW, sT0, sT0, 7 if c.tsmode == 2 else 6))
            e("v_mov_b32 v0, 0")
            for i in range(0, 28 if c.tsmode == 2 else 16, 4):
                for k in range(4):
                    e("v_mov_b32 v%d, s%d" % (4 + k, 48 + i + k if i < 16 else 72 + i + k))
                e("buffer_store_dwordx4 v[4:7], v0, s[40:43], s%d offen offset:%d" % (sT0, i * 4))
                e("s_waitcnt vmcnt(0)")
        e("L_end:")
        e("s_endpgm")
        txt = ["; MHA forward, B=8 H=32 Sq=432 Sk=2048 D=128, bf16.  One workgroup per head, 4 waves (one per SIMD).",
               "; @launch grid=(256,1,1) block=(256,1,1) lds=%d" % LDS,
               '.amdgcn_target "amdgcn-amd-amdhsa--gfx950"', ".text", ".globl %s" % c.kname, ".p2align 8",
               ".type %s,@function" % c.kname, "%s:" % c.kname]
        for i in o:
            txt.append(i.text if i.kind == "label" else "    " + i.text)
        txt.append('.section .rodata,"a"\n.p2align 6\n.amdhsa_kernel %s' % c.kname)
        txt.append("""  .amdhsa_next_free_vgpr 512
  .amdhsa_next_free_sgpr 102
  .amdhsa_accum_offset 256
  .amdhsa_group_segment_fixed_size 0
  .amdhsa_kernarg_size 48
  .amdhsa_user_sgpr_count 2
  .amdhsa_user_sgpr_kernarg_segment_ptr 1
  .amdhsa_system_sgpr_workgroup_id_x 1
.end_amdhsa_kernel""")
        return "\n".join(txt) + "\n"

if __name__ == "__main__":
    cfg = Cfg()
    out = sys.argv[1]
    for a in sys.argv[2:]:
        k, v = a.split("=")
        assert hasattr(cfg, k), k
        setattr(cfg, k, eval(v))
    open(out, "w").write(Gen(cfg).build())
```

```python
import sys, math, struct
from asmlib import *
import solve

KNAME = "standalone__mha_softmax__near_ridge"

class Cfg:
    diag = False
    kname = KNAME + "_kernel"
    dflag = "nt"
    qflag = "nt"
    oflag = "sc1"
    bias = 2.0
    force_slow = False
    pkmul = 7
    verbose = False
    lo_exp = -30
    hi_exp = 30
    tsmode = 0
    nostore = False
    lead = 10
    p1bar = dict(V4=41, K5=69, V5=121)
    pb_hi = 0.3
    obias = 1
    gamma = 3.0
    oconst = 1.5
    pfpos = 8
    pfsplit = True
    twice = 0
    stall = 0
    idle = 0
    dswcost = 16
    first = 14
    sh_hi = 0.35
    s3_lo = 0.5

PK, PV_ = 1056, 1040
HK = 8 * PK
SLOT = HK + 8 * PV_
SS = 2 * SLOT
RING = 3 * SS
STG = RING
QT = 4 * PV_
PARK = 3 * QT
PRIV = 3 * QT + 512
LDS = STG + 4 * PRIV

def O(t, db):
    if t == 6 and db >= 4: return ('a', 240 + 4 * (db - 4))
    return ('v', 32 * t + 4 * db)
def S(i): return 208 + 4 * (i & 3)
def P(U, ks): return 224 + 8 * (U & 1) + 4 * ks
CI = 240
def Lr(t): return 244 + t
vAK, vAV, vDMA, vEW, vER = 251, 252, 253, 254, 255
vVM, vHalf, vPK = 29, 28, 27
sMask = 79
vQA, vQB = 30, 31
def Q(t, ds): return 16 * t + 4 * ds
def Kf(g, ds): return 112 + 16 * g + 4 * ds
def Vf(db, ks): return 176 + 8 * db + 4 * ks

sQ, sK, sV, sO = 12, 16, 20, 24
sW, sCnt, sInc, sRd, sC, sQo, sSl = 28, 29, 30, 31, 32, 33, 34
sT0, sT1, sT2 = 35, 36, 37
sG = 64
sWK, sWV, sWG = 68, 69, 70
sIncW, sIncN = 71, 72
sNT, sTile, sBlk, sStg, sQS, sQT = 73, 74, 75, 76, 77, 78
sSt = 80

def rn(f, b, n): return "%s[%d:%d]" % (f, b, b + n - 1)
def mfma(D, A, B, C, half=False):
    n = 2 if half else 4
    cs = "0" if C is None else rn(C[0], C[1], 4)
    op = "v_mfma_f32_16x16x16_bf16" if half else "v_mfma_f32_16x16x32_bf16"
    return "%s %s, %s, %s, %s" % (op, rn(D[0], D[1], 4), rn(A[0], A[1], n), rn(B[0], B[1], n), cs)
def f2u(x): return struct.unpack("<I", struct.pack("<f", x))[0]

class Wave:
    def __init__(self, gen, NT, dma, tag):
        self.g, self.c, self.NT, self.dma, self.tag = gen, gen.c, NT, dma, tag
        self.tau = (2, 1, 5, 4) if NT == 7 else (2, 1, 4, 3)
        W = solve.windows(NT, self.tau, 10 if NT == 7 else 12)
        if NT == 7: pos = [4 * p + 1 for p in range(8 * NT - 2)]
        else: pos = sorted([4 * p + 1 for p in range(8 * NT - 1)] + [16 * p + 2 for p in range(2 * NT)])
        self.rd = solve.edf(W, pos)
        assert self.rd
        self.oinit = set()
        self.group = {}
        self.code = []

    def kread(self, g, ds, off=0):
        return "ds_read_b128 %s, v%d offset:%d" % (rn('a', Kf(g, ds), 4), vAK, off + (g >> 1) * SLOT + (g & 1) * 512 + ds * 64)
    def vread(self, g, db, off=0):
        return "ds_read_b64_tr_b16 %s, v%d offset:%d" % (rn('a', Vf(db, g >> 1) + 2 * (g & 1), 2), vAV, off + (g >> 1) * SLOT + (g & 1) * 512 + db * 16)
    def qk(self, t, g, sb, raw=False):
        order = range(4) if g & 1 == 0 else range(3, -1, -1)
        o = []
        for i, ds in enumerate(order):
            o.append(mfma(('v', sb), ('a', Kf(g, ds)), ('a', Q(t, ds)), (None if raw else ('v', CI)) if i == 0 else ('v', sb)))
        return o
    def pv1(self, t, db, pb, ks, gs):
        D = O(t, db)
        C = D if (t, db) in self.oinit else None
        self.oinit.add((t, db))
        if len(gs) == 2: return mfma(D, ('v', pb), ('a', Vf(db, ks)), C)
        h = gs[0] & 1
        return mfma(D, ('v', pb + 2 * h), ('a', Vf(db, ks) + 2 * h), C, half=True)
    def pv(self, t, groups, pbase, dbs=range(8)):
        o = []
        for db in dbs:
            for ks in ((0, 1) if db % 2 == 0 else (1, 0)):
                gs = [g for g in groups if g >> 1 == ks]
                if gs: o.append(self.pv1(t, db, pbase(ks), ks, gs))
        return o
    def pv_first(self, t, pbase):
        c = self.c
        if not c.obias: return [I(x) for x in self.pv(t, range(4), pbase)]
        Bt = O(t, 3)
        o = []
        if c.obias == 1:
            o.append("v_mfma_f32_16x16x4_f32 %s, v%d, v%d, 0" % (rn('v', Bt[1], 4), Lr(t), vVM))
            for r in range(4): o.append("v_and_or_b32 v%d, v%d, s%d, v%d" % (Bt[1] + r, Bt[1] + r, sMask, vHalf))
        else:
            for r in range(4): o.append("v_mov_b32 v%d, 0x%08x" % (Bt[1] + r, f2u(c.oconst)))
        o.append(Ins("ds_write_b128 v%d, %s offset:%d" % (vPK, rn('v', Bt[1], 4), 64 * t)))
        if t == 6:
            for r in range(4): o.append("v_accvgpr_write_b32 a%d, v%d" % (O(6, 7)[1] + r, Bt[1] + r))
        for j, db in enumerate((0, 1, 2, 4, 5, 6, 7, 3)):
            D = O(t, db)
            for k, ks in enumerate((0, 1) if j % 2 == 0 else (1, 0)):
                C = D if k else (Bt if D[0] == 'v' else O(6, 7))
                o.append(mfma(D, ('v', pbase(ks)), ('a', Vf(db, ks)), C))
            self.oinit.add((t, db))
        return [I(x) for x in o]
    def vmax(self):
        c = self.c
        if c.obias != 1: return []
        x, y, z = vVM, 16, 17
        o = ["v_accvgpr_read_b32 v%d, a%d" % (x, Vf(0, 0)), "v_accvgpr_read_b32 v%d, a%d" % (y, Vf(0, 0) + 2), "v_accvgpr_read_b32 v%d, a%d" % (z, Vf(0, 1) + 1),
             "v_max3_f32 v%d, |v%d|, |v%d|, |v%d|" % (x, x, y, z)]
        for sw in ("v_permlane32_swap_b32", "v_permlane16_swap_b32"):
            o += ["v_mov_b32 v%d, v%d" % (y, x), "%s v%d, v%d" % (sw, x, y), "v_max_f32 v%d, v%d, v%d" % (x, x, y)]
        for k in (8, 4, 2, 1):
            o.append("v_max_f32_dpp v%d, v%d, v%d row_ror:%d row_mask:0xf bank_mask:0xf" % (x, x, x, k))
        o.append("v_min_f32 v%d, 0x%08x, v%d" % (x, f2u(2.0 ** 60), x))
        o.append("v_mul_f32 v%d, 0x%08x, v%d" % (x, f2u(c.gamma), x))
        return o
    def softmax(self, t, sb, pdst):
        o = []
        for i in range(4):
            o.append("v_exp_f32 v%d, v%d" % (sb + i, sb + i))
            o.append("v_add_f32 v%d, v%d, v%d" % (Lr(t), Lr(t), sb + i))
            if i & 1: o.append("v_cvt_pk_bf16_f32 v%d, v%d, v%d" % (pdst + i // 2, sb + i - 1, sb + i))
        return o
    def tagged(self, text, grp, **kw):
        i = Ins(text, **kw); self.group[id(i)] = grp; return i
    def share(self, kv, blk):
        srd, lo, base, pad = (sK, 0, sWK, PK - 1024) if kv == 'K' else (sV, HK, sWV, PV_ - 1024)
        lds = ((blk >> 1) % 3) * SS + (blk & 1) * SLOT + lo
        o = []
        for n in range(2):
            if n == 0: b = [Ins("s_add_u32 m0, s%d, %d" % (base, lds)), Ins("s_add_u32 s%d, s%d, %d" % (sT2, sWG, blk * 8192))]
            else: b = [Ins("s_add_u32 m0, m0, %d" % pad)]
            b.append(self.tagged("buffer_load_dwordx4 v%d, s[%d:%d], s%d offen offset:%d %s lds" % (vDMA, srd, srd + 3, sT2, 1024 * n, self.c.dflag), "%s%d" % (kv, blk)))
            o.append(b)
        return o
    def qbuf(self, t):
        k = self.NT - 1 - t
        if k < 4: return sQS, vQA, (k >> 1) * SS + (k & 1) * QT
        return sStg, vQB, (k - 4) * QT
    def qload(self, t):
        sb, _, off = self.qbuf(t)
        o = []
        for n in range(4):
            if n == 0: b = [Ins("s_add_u32 m0, s%d, %d" % (sb, off)), Ins("s_sub_u32 s%d, s%d, %d" % (sT1, sQT, (self.NT - 1 - t) * 4096))]
            else: b = [Ins("s_add_u32 m0, m0, %d" % (PV_ - 1024))]
            b.append(self.tagged("buffer_load_dwordx4 v%d, s[%d:%d], s%d offen offset:%d %s lds" % (vDMA, sQ, sQ + 3, sT1, n * 1024, self.c.qflag), "Q%d" % t))
            o.append(b)
        return o
    def waitv(self, grp):
        i = Ins("s_waitcnt vmcnt(0)"); self.group[id(i)] = "W:" + grp; return i
    def scale(self, t):
        o = []
        tb = 32 * t + 16 if t < 6 else 16
        _, va, off = self.qbuf(t)
        for ds in range(4):
            o.append("ds_read_b128 %s, v%d offset:%d" % (rn('v', 32 * t + 4 * ds, 4), va, off + ds * 64))
        for r in range(16):
            q = 32 * t + r
            a, b = tb + 2 * (r % 5), tb + 2 * (r % 5) + 1
            o.append("v_lshlrev_b32 v%d, 16, v%d" % (a, q))
            o.append("v_and_b32 v%d, 0xffff0000, v%d" % (b, q))
            o.append("v_mul_f32 v%d, s%d, v%d" % (a, sC, a))
            o.append("v_mul_f32 v%d, s%d, v%d" % (b, sC, b))
            o.append("v_cvt_pk_bf16_f32 v%d, v%d, v%d" % (a, a, b))
            o.append("v_accvgpr_write_b32 a%d, v%d" % (Q(t, 0) + r, a))
        return o
    def seg(self, head, body, bundles=(), span=(0.0, 0.8)):
        self.code += self.ts2() + [I(x) for x in head] + self.ts2()
        b = schedule([I(x) for x in body], self.c.verbose) if body else []
        n = len(b)
        k = len(bundles)
        pos = [int(n * (span[0] + (span[1] - span[0]) * j / max(k, 1))) for j in range(k)]
        j = 0
        for i in range(n + 1):
            while j < k and pos[j] <= i:
                self.code += bundles[j]; j += 1
            if i < n: self.code.append(b[i])
    def ts2(self):
        if not (self.c.diag and self.c.tsmode == 2): return []
        self.nts = getattr(self, 'nts', 1) + 1
        k = self.nts - 1
        reg = 48 + k if k < 16 else 88 + k - 16
        assert k < 30, k
        return [Ins("s_memtime s[46:47]"), Ins("s_waitcnt lgkmcnt(0)"), Ins("s_mov_b32 s%d, s46" % reg)]
    def ts(self, idx):
        if not self.c.diag or self.c.tsmode == 2: return []
        return [Ins("s_memrealtime s[44:45]"), Ins("s_memtime s[46:47]"), Ins("s_waitcnt lgkmcnt(0)"),
                Ins("s_mov_b32 s%d, s44" % (48 + 2 * idx)), Ins("s_mov_b32 s%d, s46" % (49 + 2 * idx))]

    def pin(self, ins, after):
        self.npin = getattr(self, 'npin', 0) + 1
        after.W.add("pin%d" % self.npin); ins.R.add("pin%d" % self.npin)
        return ins
    def fence(self, grp, after, bar=False, lgkm0=False, frees=()):
        w = self.waitv(grp)
        if after is not None: self.pin(w, after)
        o = self.ts2c() + [w]
        if bar: o.append(Ins("s_barrier", lgkm0=lgkm0))
        o[-1].W.add("L:" + grp)
        for f in frees: o[-1].W.add("L:" + f)
        if after is not None and len(o) > 1 and self.c.tsmode == 2 and self.c.diag: self.pin(o[0], after)
        return o + self.ts2c()
    def ts2c(self):
        o = self.ts2()
        for x in o: x.R.add("vmq"); x.W.add("vmq")
        return o
    def weave(self, body, bundles, span=(0.0, 0.9)):
        n, k = len(body), len(bundles)
        pos = [int(n * (span[0] + (span[1] - span[0]) * j / max(k, 1))) for j in range(k)]
        o = []; j = 0
        for i in range(n):
            o.append(body[i])
            while j < k and pos[j] <= i:
                self.pin(bundles[j][-1], body[i]); o += bundles[j]; j += 1
        return o
    def prologue(self):
        c, NT, tau = self.c, self.NT, self.tau
        T = NT - 1
        II = lambda l, **kw: [I(x, **kw) for x in l]
        G0 = lambda t: [g for g in range(4) if tau[g] <= t]
        seq = self.share('K', 0) + self.qload(T) + self.share('K', 1) + self.qload(T - 1) + self.share('V', 0) + self.share('V', 1)
        for t in range(T - 2, -1, -1): seq += self.qload(t)
        nq = len(seq)
        for b in (2, 3): seq += self.share('K', b) + self.share('V', b)
        n1 = len(seq)
        for b in (4, 5): seq += self.share('K', b) + self.share('V', b)
        grp = [self.group[id(b[-1])] for b in seq]
        state = [0]
        def nxt(g, cap=None):
            want = c.first if g is None else max(j for j, x in enumerate(grp) if x == g) + 1 + c.lead
            want = min(want, len(seq) if cap is None else cap)
            r = seq[state[0]:want]
            state[0] = max(state[0], want)
            return r
        self.first = nxt(None, nq)
        self.code += [Ins("v_mov_b32 v%d, 0" % Lr(t)) for t in range(NT)]
        misc = ["s_mov_b32 s%d, %d" % (sRd, 2 * SS), "s_mov_b32 s%d, %d" % (sIncW, (-2 * SS) & 0xffffffff), "s_mov_b32 s%d, %d" % (sIncN, SS)]
        misc += ["s_mov_b32 s%d, %d" % (sCnt, 14 if NT == 7 else 28)]
        if self.dma:
            misc += ["s_mov_b32 s%d, %d" % (sG + i, 4 * 16384 + 4096 * i) for i in range(4)]
            misc += ["s_mov_b32 s%d, %d" % (sSl, SS)]
        if c.obias:
            misc += ["s_mov_b32 s%d, 0xff800000" % sMask, "v_mov_b32 v%d, 0x00400000" % vHalf, "s_add_u32 s%d, s%d, %d" % (sT0, sStg, PARK),
                     "v_bfe_u32 v%d, v%d, 8, 2" % (vPK, vDMA), "v_lshl_add_u32 v%d, v%d, 4, s%d" % (vPK, vPK, sT0)]
        self.code += II(misc)
        def scale(t):
            o = II(self.scale(t))
            for x in o[:4]: x.R.add("L:Q%d" % t)
            return o
        UA = lambda t: (NT + 1) - 1 - t
        UB = lambda t: NT + t
        prog = self.fence("Q%d" % T, None)
        a = scale(T)
        prog += self.weave(a, nxt("K1", nq))
        prog += self.fence("K1", a[len(a) // 2], bar=True)
        body = II([self.kread(g, ds) for g in range(4) for ds in range(4)], xr=["L:K1"])
        for g in range(4): body += II(self.qk(T, g, S(g), raw=True))
        x, y = 26, 29
        b2 = ["v_max3_f32 v%d, v%d, v%d, v%d" % (x, S(0), S(0) + 1, S(0) + 2),
              "v_max3_f32 v%d, v%d, v%d, v%d" % (x, x, S(0) + 3, S(0) + 4),
              "v_max3_f32 v%d, v%d, v%d, v%d" % (x, x, S(0) + 5, S(0) + 6),
              "v_max_f32 v%d, v%d, v%d" % (x, x, S(0) + 7)]
        for sw in ("v_permlane32_swap_b32", "v_permlane16_swap_b32"):
            b2 += ["v_mov_b32 v%d, v%d" % (y, x), "%s v%d, v%d" % (sw, x, y), "v_max_f32 v%d, v%d, v%d" % (x, x, y)]
        for k in (8, 4, 2, 1):
            b2.append("v_max_f32_dpp v%d, v%d, v%d row_ror:%d row_mask:0xf bank_mask:0xf" % (x, x, x, k))
        for i in range(4):
            b2.append("v_sub_f32 v%d, 0x%08x, v%d" % (CI + i, f2u(-c.bias), x))
        for g in range(4):
            for i in range(4):
                b2.append("v_add_f32 v%d, v%d, v%d" % (S(g) + i, S(g) + i, CI))
            b2 += self.softmax(T, S(g), P(UA(T), g >> 1) + 2 * (g & 1))
        body += II(b2)
        prog += self.weave(body, nxt("Q%d" % (T - 1), nq), (0.0, 0.25))
        last = body[31]
        sidx = [0]
        def unit(t, gs, U, post=None):
            o = []
            for g in gs:
                sb = S(sidx[0]); sidx[0] += 1
                o += II(self.qk(t, g, sb))
                if post: o += post(g, o[-1])
                o += II(self.softmax(t, sb, P(U, g >> 1) + 2 * (g & 1)))
            return o
        gorder = sorted(range(4), key=lambda g: tau[g])
        kfence = {}
        def kreload(g, after):
            o = []
            name = "K%d" % (2 + (g >> 1))
            if name not in kfence:
                kfence[name] = 1
                o += self.fence(name, after, bar=True, lgkm0=(name == "K2"), frees=["Q%d" % (T - 2), "Q%d" % (T - 3)])
            return o + II([self.kread(g, ds, SS) for ds in range(4)], xr=["L:" + name])
        for t in range(T - 1, -1, -1):
            prog += self.fence("Q%d" % t, last)
            a = scale(t)
            if t == T - 1:
                prog += self.weave(a, nxt("V1", nq), (0.0, 0.5))
                prog += self.fence("V1", a[int(len(a) * 0.6)], bar=True, lgkm0=True, frees=["Q%d" % T, "Q%d" % (T - 1)])
                a = II([self.vread(g, db) for db in range(8) for g in range(4)], xr=["L:V1"])
                a += II(self.vmax())
            a += self.pv_first(t + 1, lambda ks: P(UA(t + 1), ks))
            if t > 0:
                u = unit(t, range(4), UA(t))
                vs = [i for i in a + u if isvalu(i)]
                bl = nxt("Q%d" % (t - 1), n1)
                body = a + u
                cut = body.index(u[-10])
                prog += self.weave(body[:cut], bl) + body[cut:]
                last = u[-10]
            else:
                prog += self.weave(a, nxt("V3", n1))
        u = unit(0, gorder, UA(0), post=lambda g, m: kreload(g, m) if g < 2 else [])
        prog += u
        pv0 = self.pv_first(0, lambda ks: P(UA(0), ks))
        prog += pv0[:-14] + self.fence("V2", pv0[-15], bar=True) + pv0[-14:]
        for g in gorder[:2]:
            prog += II([self.vread(g, db, SS) for db in range(8)], xr=["L:V2"])
        body = []
        for t in range(1, NT):
            u = unit(t, [g for g in gorder if g in G0(t)], UB(t))
            body += u
            if t == 1:
                for g in gorder[2:]: body += kreload(g, u[-1])
            if t == 2:
                body += self.fence("V3", u[-1], bar=True)
                for g in gorder[2:]:
                    body += II([self.vread(g, db, SS) for db in range(8)], xr=["L:V3"])
                body += II(["v_add_u32 v%d, %d, v%d" % (vAK, 2 * SS, vAK), "v_add_u32 v%d, %d, v%d" % (vAV, 2 * SS, vAV)])
            if t < T: body += II(self.pv(t, G0(t), lambda ks: P(UB(t), ks)))
        body += II(self.qk(0, 0, S(0)) + self.qk(0, 1, S(1)))
        prog += self.weave(body, nxt("V5"), (0.0, c.pb_hi))
        self.code += schedule(prog, c.verbose, order=True)

    def period(self, p):
        c, NT = self.c, self.NT
        first = p == 2
        gaps = []
        NS = 2 * NT
        for n in range(NS):
            t, hh = n >> 1, n & 1
            U = NT * p + t
            n1 = (n + 1) % NS
            t1, ks1 = n1 >> 1, n1 & 1
            ms = self.qk(t1, 2 * ks1, S(2 * ks1)) + self.qk(t1, 2 * ks1 + 1, S(2 * ks1 + 1))
            ms += self.pv((t - 1) % NT, range(4), lambda ks: P(U - 1, ks), range(4 * hh, 4 * hh + 4))
            for i in range(16):
                s_ = S(2 * hh) + i // 2
                if i % 2 == 0: v = ["v_exp_f32 v%d, v%d" % (s_, s_)]
                else:
                    v = ["v_add_f32 v%d, v%d, v%d" % (Lr(t), Lr(t), s_)]
                    if i % 4 == 3: v.append("v_cvt_pk_bf16_f32 v%d, v%d, v%d" % (P(U, hh) + i // 4, s_ - 1, s_))
                gaps.append(dict(m=ms[i], s=[], d=[], v=v))
        NG = len(gaps)
        if c.stall:
            for i in range(15, NG, 16): gaps[i]['v'].append("s_nop %d" % (c.stall - 1))
        for (kind, g, x), pos in self.rd.items():
            gaps[pos]['d'].append(self.kread(g, x) if kind == 'K' else self.vread(g, x))
        gaps[0]['s'].append(Ins("s_barrier", lgkm0=True))
        gaps[2]['s'].append("s_add_u32 s%d, s%d, %d" % (sRd, sRd, SS))
        gaps[3]['s'].append("s_cmp_eq_u32 s%d, %d" % (sRd, RING))
        gaps[4]['s'].append("s_cselect_b32 s%d, s%d, s%d" % (sInc, sIncW, sIncN))
        gaps[5]['s'].append("s_cselect_b32 s%d, 0, s%d" % (sRd, sRd))
        last = max(self.rd.values())
        assert last < NG - 7
        gaps[NG - 7]['v'].append("v_add_u32 v%d, s%d, v%d" % (vAK, sInc, vAK))
        gaps[NG - 3]['v'].append("v_add_u32 v%d, s%d, v%d" % (vAV, sInc, vAV))
        lo = 8
        if first:
            for kind, ks, grp in (('V', 0, "V4"), ('K', 1, "K5"), ('V', 1, "V5")):
                f = min(pos for (k, g, x), pos in self.rd.items() if k == kind and g >> 1 == ks)
                f = min(f, c.p1bar[grp])
                gaps[f - 1]['s'].append(self.waitv(grp))
                gaps[f]['s'].append(Ins("s_barrier"))
            bl = []
            for blk in (6, 7): bl += self.share('K', blk) + self.share('V', blk)
            hi = int(NG * c.sh_hi)
            self.place(gaps, bl, lo, hi)
            lo = int(NG * c.s3_lo)
        if self.dma:
            bl = []
            for blk in range(2):
                for srd, l0, st in ((sK, 0, PK), (sV, HK, PV_)):
                    for a in range(2):
                        for n in range(4):
                            bl.append([Ins("s_add_u32 m0, s%d, %d" % (sSl, blk * SLOT + l0 + 4 * st * a + (st - 1024) * n)),
                                       self.tagged("buffer_load_dwordx4 v%d, s[%d:%d], s%d offen offset:%d %s lds" % (vDMA, srd, srd + 3, sG + 2 * blk + a, 1024 * n, c.dflag), "S")])
            self.place(gaps, bl, lo, NG - 12)
            for i in range(4):
                gaps[NG - 11 + i]['s'].append("s_add_u32 s%d, s%d, 16384" % (sG + i, sG + i))
            gaps[NG - 7]['s'].append("s_add_u32 s%d, s%d, %d" % (sSl, sSl, SS))
            gaps[NG - 6]['s'].append("s_cmp_eq_u32 s%d, %d" % (sSl, RING))
            gaps[NG - 5]['s'].append("s_cselect_b32 s%d, 0, s%d" % (sSl, sSl))
        if first: gaps[NG - 1]['s'].append(self.waitv("V7"))
        elif self.dma: gaps[NG - 1]['s'].append("s_waitcnt vmcnt(32)")
        return gaps
    def place(self, gaps, bundles, lo, hi):
        cand = [i for i in range(lo + 2, hi) if not gaps[i]['d'] and len(gaps[i]['v']) == 1]
        k = len(bundles)
        prev = lo - 1
        for j, b in enumerate(bundles):
            tgt = lo + 2 + (hi - lo - 2) * j / k
            ns = len(b) - 1
            cc = [i for i in cand if i - ns >= prev]
            i = min(cc, key=lambda i: abs(i - tgt) - (2.5 if i % 2 else 0))
            for q, ins in enumerate(b[:-1]):
                gi = i - ns + q
                if gi == prev: gaps[gi]['d'].append(ins)
                else: gaps[gi]['s'].append(ins)
            gaps[i]['d'].append(b[-1])
            prev = i
    def flat(self, gaps):
        o = []
        for g in gaps:
            o.append(I(g['m']))
            o += [I(x) for x in g['s'] + g['d'] + g['v']]
        return o

    def finalize(self, t, k, Lm, packs, acct, first, Ofn=O, Lreg=None, land=None, soff=None, pk=False, one=None, nb=None):
        c = self.c
        buf = k & 1
        st = "L:st%d" % buf
        Lreg = Lr(t) if Lreg is None else Lreg
        land = Q(t, 0) if land is None else land
        o = ["v_mfma_f32_16x16x4_f32 %s, v%d, a%d, 0" % (rn('v', Lm, 4), Lreg, one)]
        if first is not None:
            for op, r in (("v_max3_u32", vAK), ("v_min3_u32", vAV)):
                if first:
                    o.append("%s v%d, v%d, v%d, v%d" % (op, r, Lm, Lm + 1, Lm + 2))
                    o.append("%s v%d, v%d, v%d, v%d" % (op, r, r, Lm + 3, Lm + 3))
                else:
                    o.append("%s v%d, v%d, v%d, v%d" % (op, r, r, Lm, Lm + 1))
                    o.append("%s v%d, v%d, v%d, v%d" % (op, r, r, Lm + 2, Lm + 3))
        for r in range(4): o.append("v_rcp_f32 v%d, v%d" % (Lm + r, Lm + r))
        if nb is not None:
            o.append("ds_read_b128 %s, v%d offset:%d" % (rn('v', nb, 4), vAK, 64 * t))
            for r in range(4): o.append("v_mul_f32 v%d, v%d, v%d" % (nb + r, nb + r, Lm + r))
        loc = {}
        for db in range(8):
            f, b = Ofn(t, db)
            if f == 'a':
                for r in range(4):
                    o.append("v_accvgpr_read_b32 v%d, a%d" % (acct + 4 * (db - 4) + r, b + r))
                b = acct + 4 * (db - 4)
            loc[db] = b
        if pk:
            for db in range(8):
                for r in (0, 2):
                    if nb is None: o.append("v_pk_mul_f32 %s, %s, %s" % (rn('v', loc[db] + r, 2), rn('v', loc[db] + r, 2), rn('v', Lm + r, 2)))
                    else: o.append("v_pk_fma_f32 %s, %s, %s, %s neg_lo:[0:0:1] neg_hi:[0:0:1]" % (rn('v', loc[db] + r, 2), rn('v', loc[db] + r, 2), rn('v', Lm + r, 2), rn('v', nb + r, 2)))
        for r in range(4):
            for db in range(8):
                if not pk: o.append("v_mul_f32 v%d, v%d, v%d" % (loc[db] + r, loc[db] + r, Lm + r))
            pb = packs[r % len(packs)]
            for j in range(4):
                o.append("v_cvt_pk_bf16_f32 v%d, v%d, v%d" % (pb + j, loc[2 * j] + r, loc[2 * j + 1] + r))
            o.append(Ins("ds_write_b128 v%d, %s offset:%d" % (vEW, rn('v', pb, 4), r * 320 + buf * 5120), xw=[st + "r%d" % r]))
        if soff is None:
            soff = sSt + t
            o.append("s_add_u32 s%d, s%d, %d" % (soff, sQo, t * 4096))
        for a in range(4):
            for sel in range(2):
                o.append(Ins("ds_read_b64_tr_b16 %s, v%d offset:%d" % (rn('a', land + 4 * a + 2 * sel, 2), vER, a * 1280 + 64 * sel + buf * 5120), xr=[st + "r%d" % r for r in range(4)]))
        for a in range(4 if not c.nostore else 0):
            o.append("buffer_store_dwordx4 %s, v%d, s[%d:%d], s%d offen offset:%d %s" % (rn('a', land + 4 * a, 4), vDMA, sO, sO + 3, soff, a * 1024, c.oflag))
        return o

    def tail(self):
        c, NT, tau = self.c, self.NT, self.tau
        T = NT - 1
        U = NT * 31
        G1 = lambda t: [g for g in range(4) if tau[g] > t]
        ring = dict(xr=["L:ring"])
        prog = [Ins("s_barrier", lgkm0=True, xw=["L:ring"])]
        prog += self.pv(T, range(4), lambda ks: P(U - 1, ks))
        sidx = 0
        for t in range(NT):
            gs = G1(t)
            if not gs: continue
            pb = (lambda u: (lambda ks: P(u, ks)))(U); U += 1
            for g in gs:
                sb = S(sidx); sidx += 1
                if not (t == 0 and g < 2): prog += self.qk(t, g, sb)
                if tau[g] == t + 1: prog += [Ins(self.kread(g, ds), **ring) for ds in range(4)]
                prog += self.softmax(t, sb, pb(g >> 1) + 2 * (g & 1))
            prog += self.pv(t, gs, pb)
            for db in range(8):
                prog += [Ins(self.vread(g, db), **ring) for g in gs if tau[g] == t + 1]
        order = [t for t in range(NT) if not G1(t)] + [t for t in range(NT) if G1(t)]
        gorder = sorted(range(4), key=lambda g: tau[g])
        pool = 32 * order[0]
        for k, t in enumerate(order):
            pb = (lambda u: (lambda ks: P(u, ks)))(U); U += 1
            for g in (gorder if k == 0 else range(4)):
                sb = S(sidx); sidx += 1
                prog += self.qk(t, g, sb)
                prog += self.softmax(t, sb, pb(g >> 1) + 2 * (g & 1))
            prog += self.pv(t, range(4), pb)
            pk = k >= len(order) - c.pkmul
            one = Q(t, 0)
            prog.append("v_accvgpr_write_b32 a%d, 1.0" % one)
            N = lambda x: x if c.obias else None
            assert pk or not c.obias
            if k == 0:
                if c.obias: prog += ["v_bfe_u32 v%d, v%d, 8, 2" % (vAK, vDMA), "v_lshl_add_u32 v%d, v%d, 4, s%d" % (vAK, vAK, sT0)]
                prog += self.finalize(t, k, pb(0), [pb(0), pb(1)], None, None, pk=pk, one=one, nb=N(pb(1)))
            elif t == 6: prog += self.finalize(t, k, pool + 8 * (k & 1), [pool, pool + 4, pool + 8, pool + 12], pool + 16, None, pk=pk, one=one, nb=N(pool + 8 * (k & 1) + 4))
            else: prog += self.finalize(t, k, pool + 8 * (k & 1), [pool + 16, pool + 20, pool + 24, pool + 28], None, None, pk=pk, one=one, nb=N(pool + 8 * (k & 1) + 4))
        ls = [Lr(t) for t in range(NT)] + [Lr(0)]
        for op, r in (("v_max3_u32", vAK), ("v_min3_u32", vAV)):
            prog.append("%s v%d, v%d, v%d, v%d" % (op, r, ls[0], ls[1], ls[2]))
            prog.append("%s v%d, v%d, v%d, v%d" % (op, r, r, ls[3], ls[4]))
            prog.append("%s v%d, v%d, v%d, v%d" % (op, r, r, ls[5], ls[6]))
        return schedule([I(x) for x in prog], c.verbose, order=True, dswcost=c.dswcost)

    def resolve_waits(self, seq):
        issued = [self.group[id(b[-1])] for b in self.first]
        issued.insert(self.c.pfpos, None)
        for i in seq:
            g = self.group.get(id(i))
            if i.kind in ("dma", "vload", "vstore"): issued.append(g)
            elif g and g.startswith("W:"):
                last = max(j for j, x in enumerate(issued) if x == g[2:])
                i.text = "s_waitcnt vmcnt(%d)" % min(63, len(issued) - 1 - last)

    def build(self):
        c, NT, tag = self.c, self.NT, self.tag
        self.code = [Ins("L_wave_%s:" % tag)]
        self.prologue()
        self.code += self.ts(1) + self.ts(2)
        self.code += self.ts2()
        self.code.append(self.waitv("K4"))
        self.code += self.flat(self.period(2)) + self.ts2()
        self.code += self.ts(3)
        self.resolve_waits(self.code)
        head, pend = insert_lgkm(self.code)
        assert not pend
        head = pad_hazards(head)
        gaps = self.period(3)
        if NT == 7: gaps += self.period(4)
        gaps[-4]['s'].append("s_sub_u32 s%d, s%d, 1" % (sCnt, sCnt))
        gaps[-2]['s'].append("s_cmp_lg_u32 s%d, 0" % sCnt)
        body, pend = insert_lgkm(self.flat(gaps))
        assert not pend
        body.append(Ins("s_cbranch_scc1 L_loop_%s" % tag))
        pad_hazards(body, hist=head[-16:], fix=False, name="loop entry")
        pad_hazards(body, hist=body[-16:], fix=False, name="loop back")
        tail = self.ts(4) + self.tail()
        tail += [Ins("v_cmp_le_u32 vcc, 0x%08x, v%d" % (f2u(2.0 ** c.hi_exp), vAK)),
                 Ins("s_mov_b64 s[%d:%d], vcc" % (sT1, sT1 + 1)),
                 Ins("v_cmp_ge_u32 vcc, 0x%08x, v%d" % (f2u(2.0 ** c.lo_exp), vAV)),
                 Ins("s_or_b64 s[%d:%d], s[%d:%d], vcc" % (sT1, sT1 + 1, sT1, sT1 + 1)),
                 Ins("s_mov_b32 s%d, %d" % (sNT, NT)),
                 Ins("s_cbranch_scc1 L_slow" if not c.force_slow else "s_branch L_slow")]
        tail += self.ts(5)
        if c.diag: tail += [Ins("s_waitcnt vmcnt(0)")] + self.ts(6)
        tail.append(Ins("s_branch L_fin" if (c.diag or c.twice or c.idle) else "s_endpgm"))
        tail, pend = insert_lgkm(tail)
        tail = pad_hazards(tail, hist=body[-16:])
        return head + [Ins(".p2align 6"), Ins("L_loop_%s:" % tag)] + body + tail

class Gen:
    def __init__(self, cfg):
        self.c = cfg
    def slow(self):
        c = self.c
        w = Wave(self, 7, False, "s")
        o = []
        e = lambda s: o.extend(Ins(l) for l in s.strip().split("\n"))
        vL, vKA, vVA, vQA, vM, vX = 64, 65, 66, 67, 68, 69
        KF = lambda kg, ds: 72 + 16 * kg + 4 * ds
        VF = lambda db: 104 + 4 * db
        QF = lambda ds: 136 + 4 * ds
        SB, PB, LM, PKB = 152, 160, 164, 168
        e("L_slow:")
        e("s_waitcnt vmcnt(0) lgkmcnt(0)")
        e("v_lshrrev_b32 v%d, 4, v%d" % (vX, vDMA))
        e("v_and_b32 v%d, 7, v%d\nv_lshlrev_b32 v%d, 10, v%d" % (vM, vX, vKA, vM))
        e("v_and_b32 v%d, 8, v%d\nv_lshl_add_u32 v%d, v%d, 5, v%d" % (vM, vX, vKA, vM, vKA))
        e("v_and_b32 v%d, 48, v%d\nv_add_u32 v%d, v%d, v%d" % (vM, vX, vKA, vM, vKA))
        e("v_and_b32 v%d, 15, v%d\nv_lshlrev_b32 v%d, 8, v%d" % (vM, vX, vQA, vM))
        e("v_and_b32 v%d, 48, v%d\nv_add_u32 v%d, v%d, v%d" % (vM, vX, vQA, vM, vQA))
        e("v_bfe_u32 v%d, v%d, 2, 3\nv_mul_u32_u24 v%d, %d, v%d" % (vM, vX, vVA, PV_, vM))
        e("v_and_b32 v%d, 32, v%d\nv_lshl_add_u32 v%d, v%d, 3, v%d" % (vM, vX, vVA, vM, vVA))
        e("v_and_b32 v%d, 1, v%d\nv_lshl_add_u32 v%d, v%d, 3, v%d" % (vM, vX, vVA, vM, vVA))
        e("v_and_b32 v%d, 2, v%d\nv_lshl_add_u32 v%d, v%d, 6, v%d" % (vM, vX, vVA, vM, vVA))
        e("v_add_u32 v%d, s%d, v%d" % (vVA, sStg, vVA))
        e("s_mov_b32 s%d, 0" % sTile)
        e("L_slow_tile:")
        e("s_lshl_b32 s%d, s%d, 12\ns_add_u32 s%d, s%d, s%d" % (sSt, sTile, sSt, sSt, sQo))
        for ds in range(4):
            e("buffer_load_dwordx4 %s, v%d, s[%d:%d], s%d offen offset:%d" % (rn('v', QF(ds), 4), vQA, sQ, sQ + 3, sSt, ds * 64))
        e("s_waitcnt vmcnt(0)")
        for r in range(16):
            q = QF(0) + r
            e("v_lshlrev_b32 v%d, 16, v%d\nv_and_b32 v%d, 0xffff0000, v%d" % (vM, q, vX, q))
            e("v_mul_f32 v%d, s%d, v%d\nv_mul_f32 v%d, s%d, v%d" % (vM, sC, vM, vX, sC, vX))
            e("v_cvt_pk_bf16_f32 v%d, v%d, v%d" % (q, vM, vX))
        def kload():
            for kg in range(2):
                for ds in range(4):
                    e("buffer_load_dwordx4 %s, v%d, s[%d:%d], s%d offen offset:%d" % (rn('v', KF(kg, ds), 4), vKA, sK, sK + 3, sBlk, kg * 512 + ds * 64))
        def qk(raw):
            for kg in range(2):
                for ds in range(4):
                    e(mfma(('v', SB + 4 * kg), ('v', KF(kg, ds)), ('v', QF(ds)), (None if raw else ('v', CI)) if ds == 0 else ('v', SB + 4 * kg)))
        e("v_mov_b32 v%d, 0xff800000\ns_mov_b32 s%d, 0" % (vM, sBlk))
        e("L_slow_max:")
        kload()
        e("s_waitcnt vmcnt(0)")
        qk(True)
        e("s_nop 7")
        for i in range(0, 8, 2):
            e("v_max3_f32 v%d, v%d, v%d, v%d" % (vM, vM, SB + i, SB + i + 1))
        e("s_add_u32 s%d, s%d, 8192\ns_cmp_lt_u32 s%d, 524288\ns_cbranch_scc1 L_slow_max" % (sBlk, sBlk, sBlk))
        for sw in ("v_permlane32_swap_b32", "v_permlane16_swap_b32"):
            e("v_mov_b32 v%d, v%d\n%s v%d, v%d\nv_max_f32 v%d, v%d, v%d" % (vX, vM, sw, vM, vX, vM, vM, vX))
        for i in range(4): e("v_sub_f32 v%d, 0, v%d" % (CI + i, vM))
        for r in range(32): e("v_mov_b32 v%d, 0" % r)
        e("v_mov_b32 v%d, 0\ns_mov_b32 s%d, 0" % (vL, sBlk))
        e("L_slow_pv:")
        kload()
        e("s_add_u32 s%d, s%d, 4096" % (sT0, sBlk))
        for a in range(2):
            for n in range(4):
                e("s_add_u32 m0, s%d, %d" % (sStg, 4 * PV_ * a + (PV_ - 1024) * n))
                e("buffer_load_dwordx4 v%d, s[%d:%d], s%d offen offset:%d lds" % (vDMA, sV, sV + 3, sT0 if a else sBlk, 1024 * n))
        e("s_waitcnt vmcnt(0)")
        for db in range(8):
            for hb in range(2):
                e("ds_read_b64_tr_b16 %s, v%d offset:%d" % (rn('v', VF(db) + 2 * hb, 2), vVA, hb * 512 + db * 16))
        qk(False)
        e("s_nop 7")
        for i in range(8):
            e("v_exp_f32 v%d, v%d" % (SB + i, SB + i))
        for i in range(8):
            e("v_add_f32 v%d, v%d, v%d" % (vL, vL, SB + i))
        for i in range(4):
            e("v_cvt_pk_bf16_f32 v%d, v%d, v%d" % (PB + i, SB + 2 * i, SB + 2 * i + 1))
        e("s_waitcnt lgkmcnt(0)")
        for db in range(8):
            e(mfma(('v', 4 * db), ('v', PB), ('v', VF(db)), ('v', 4 * db)))
        e("s_nop 7")
        e("s_add_u32 s%d, s%d, 8192\ns_cmp_lt_u32 s%d, 524288\ns_cbranch_scc1 L_slow_pv" % (sBlk, sBlk, sBlk))
        e("v_accvgpr_write_b32 a16, 1.0")
        o.extend(I(x) for x in w.finalize(0, 0, LM, [PKB], None, None, Lreg=vL, soff=sSt, one=16))
        e("s_waitcnt vmcnt(0) lgkmcnt(0)")
        e("s_add_u32 s%d, s%d, 1\ns_cmp_lt_u32 s%d, s%d\ns_cbranch_scc1 L_slow_tile" % (sTile, sTile, sTile, sNT))
        o, _ = insert_lgkm(o, hoist=False)
        return pad_hazards(o)

    def build(self):
        c = self.c
        o = []
        e = lambda s: o.extend(Ins(l) for l in s.strip().split("\n"))
        e("s_cmp_ge_u32 s2, 256\ns_cbranch_scc1 L_end")
        if c.twice: e("s_mov_b32 s90, 0\nL_again:")
        e("s_load_dwordx4 s[4:7], s[0:1], 0\ns_load_dwordx4 s[8:11], s[0:1], 16")
        if c.diag:
            e("s_load_dwordx2 s[40:41], s[0:1], 40")
            e("s_memrealtime s[44:45]\ns_memtime s[46:47]\ns_waitcnt lgkmcnt(0)\ns_mov_b32 s48, s44\ns_mov_b32 s49, s46")
            if c.tsmode == 2: e("s_mov_b32 s48, s46")
        wa, wb = Wave(self, 7, False, "a"), Wave(self, 6, True, "b")
        ca, cb = wa.build(), wb.build()
        assert [[x.text for x in b] for b in wa.first] == [[x.text for x in b] for b in wb.first]
        e("v_lshrrev_b32 v1, 6, v0")
        e("v_and_b32 v5, 63, v0")
        e("v_readfirstlane_b32 s%d, v1" % sW)
        e("v_lshlrev_b32 v%d, 4, v5" % vDMA)
        e("s_mul_i32 s%d, s2, 110592" % sT0)
        e("s_lshl_b32 s3, s2, 19")
        e("s_mov_b32 s%d, 524288\ns_mov_b32 s%d, 0x20000\ns_mov_b32 s%d, 110592\ns_mov_b32 s%d, 0x20000" % (sK + 2, sK + 3, sQ + 2, sQ + 3))
        e("s_mul_i32 s%d, s%d, %d" % (sQo, sW, 112 * 256))
        e("s_add_u32 s%d, s%d, %d\ns_min_u32 s%d, s%d, %d" % (sQT, sQo, 6 * 4096, sQT, sQT, 26 * 4096))
        e("s_mul_i32 s%d, s%d, %d" % (sWK, sW, 2 * PK))
        e("s_lshl_b32 s%d, s%d, 11" % (sWG, sW))
        e("s_mul_i32 s%d, s%d, %d\ns_add_u32 s%d, s%d, %d" % (sQS, sW, 2 * QT, sQS, sQS, SS))
        e("s_waitcnt lgkmcnt(0)")
        def srd(r, src, offs):
            e("s_add_u32 s%d, s%d, s%d\ns_addc_u32 s%d, s%d, 0" % (r, src, offs, r + 1, src + 1))
        srd(sK, 6, 3); srd(sQ, 4, sT0)
        for b in wa.first[:c.pfpos]: o.extend(b)
        e("s_getpc_b64 s[38:39]")
        e("L_pc:")
        e("s_lshr_b32 s%d, s2, 3\ns_and_b32 s%d, s%d, 7\ns_lshl_b32 s%d, s%d, 13" % (sC, sC, sC, sC, sC))
        e("v_lshlrev_b32 v2, 5, v0\nv_add_u32 v2, s%d, v2\nv_min_u32 v2, L_slow-L_pc, v2" % sC)
        e("global_load_dword v63, v2, s[38:39]")
        srd(sV, 8, 3); srd(sO, 10, sT0)
        e("s_mov_b32 s%d, 524288\ns_mov_b32 s%d, 0x20000\ns_mov_b32 s%d, 110592\ns_mov_b32 s%d, 0x20000" % (sV + 2, sV + 3, sO + 2, sO + 3))
        e("s_mul_i32 s%d, s%d, %d" % (sWV, sW, 2 * PV_))
        for b in wa.first[c.pfpos:]: o.extend(b)
        e("v_mov_b32 v0, v5")
        e("v_and_b32 v1, 15, v0\nv_and_b32 v2, 48, v0")
        e("s_mov_b32 s%d, 0x%08x" % (sC, f2u(math.log2(math.e) / math.sqrt(128.0))))
        e("s_mul_i32 s%d, s%d, %d\ns_add_u32 s%d, s%d, %d" % (sStg, sW, PRIV, sStg, sStg, STG))
        e("v_bfe_u32 v3, v0, 2, 2\nv_mul_u32_u24 v%d, %d, v3" % (vQA, PV_))
        e("v_and_b32 v3, 3, v0\nv_lshl_add_u32 v%d, v3, 8, v%d" % (vQA, vQA))
        e("v_add3_u32 v%d, v%d, v2, s%d\nv_add3_u32 v%d, v%d, v2, s%d" % (vQB, vQA, sStg, vQA, vQA, sQS))
        e("v_and_b32 v3, 7, v0\nv_mul_u32_u24 v%d, %d, v3" % (vAK, PK))
        e("v_and_b32 v3, 8, v0\nv_lshl_add_u32 v%d, v3, 5, v%d" % (vAK, vAK))
        e("v_add_u32 v%d, v2, v%d" % (vAK, vAK))
        e("v_and_b32 v3, 1, v0\nv_lshlrev_b32 v4, 3, v3\nv_and_b32 v3, 2, v0\nv_lshl_add_u32 v4, v3, 6, v4")
        e("v_bfe_u32 v3, v0, 2, 3\nv_mul_u32_u24 v%d, %d, v3" % (vAV, PV_))
        e("v_and_b32 v3, 32, v0\nv_lshl_add_u32 v%d, v3, 3, v%d" % (vAV, vAV))
        e("v_add_u32 v%d, v4, v%d\nv_add_u32 v%d, %d, v%d" % (vAV, vAV, vAV, HK, vAV))
        e("v_mul_u32_u24 v%d, 80, v2\nv_lshl_add_u32 v%d, v1, 4, v%d\nv_add_u32 v%d, s%d, v%d" % (vEW, vEW, vEW, vEW, sStg, vEW))
        e("v_mul_u32_u24 v%d, 20, v2\nv_and_b32 v3, 12, v0\nv_lshl_add_u32 v%d, v3, 2, v%d" % (vER, vER, vER))
        e("v_add3_u32 v%d, v%d, v4, s%d" % (vER, vER, sStg))
        e("s_cmp_eq_u32 s%d, 3" % sW)
        e("s_cbranch_scc1 L_wave_b")
        o[:] = pad_hazards(o)
        o += ca
        o += cb
        o += self.slow()
        e("L_fin:")
        if c.twice:
            e("s_waitcnt vmcnt(0) lgkmcnt(0)\ns_barrier\nv_lshrrev_b32 v0, 4, v%d\ns_lshl_b32 s91, s%d, 6\nv_add_u32 v0, s91, v0" % (vDMA, sW))
            e("s_add_u32 s90, s90, 1\ns_cmp_le_u32 s90, %d\ns_cbranch_scc1 L_again" % c.twice)
        if c.idle:
            e("s_waitcnt vmcnt(0) lgkmcnt(0)\ns_memtime s[92:93]\ns_waitcnt lgkmcnt(0)\nL_idle:\ns_memtime s[94:95]\ns_waitcnt lgkmcnt(0)\ns_sub_u32 s94, s94, s92\ns_cmp_lt_u32 s94, %d\ns_cbranch_scc1 L_idle" % c.idle)
        if c.diag:
            e("s_mov_b32 s42, 0x1000000\ns_mov_b32 s43, 0x20000")
            e("s_lshl_b32 s%d, s2, 2\ns_add_u32 s%d, s%d, s%d\ns_lshl_b32 s%d, s%d, %d" % (sT0, sT0, sT0, sW, sT0, sT0, 7 if c.tsmode == 2 else 6))
            e("v_mov_b32 v0, 0")
            for i in range(0, 28 if c.tsmode == 2 else 16, 4):
                for k in range(4):
                    e("v_mov_b32 v%d, s%d" % (4 + k, 48 + i + k if i < 16 else 72 + i + k))
                e("buffer_store_dwordx4 v[4:7], v0, s[40:43], s%d offen offset:%d" % (sT0, i * 4))
                e("s_waitcnt vmcnt(0)")
        e("L_end:")
        e("s_endpgm")
        txt = ["; MHA forward, B=8 H=32 Sq=432 Sk=2048 D=128, bf16.  One workgroup per head, 4 waves (one per SIMD).",
               "; @launch grid=(256,1,1) block=(256,1,1) lds=%d" % LDS,
               '.amdgcn_target "amdgcn-amd-amdhsa--gfx950"', ".text", ".globl %s" % c.kname, ".p2align 8",
               ".type %s,@function" % c.kname, "%s:" % c.kname]
        for i in o:
            txt.append(i.text if i.kind == "label" else "    " + i.text.replace("[0:0:1]", "[0,0,1]"))
        txt.append('.section .rodata,"a"\n.p2align 6\n.amdhsa_kernel %s' % c.kname)
        txt.append("""  .amdhsa_next_free_vgpr 512
  .amdhsa_next_free_sgpr 102
  .amdhsa_accum_offset 256
  .amdhsa_group_segment_fixed_size 0
  .amdhsa_kernarg_size 48
  .amdhsa_user_sgpr_count 2
  .amdhsa_user_sgpr_kernarg_segment_ptr 1
  .amdhsa_system_sgpr_workgroup_id_x 1
.end_amdhsa_kernel""")
        return "\n".join(txt) + "\n"

if __name__ == "__main__":
    cfg = Cfg()
    out = sys.argv[1]
    for a in sys.argv[2:]:
        k, v = a.split("=")
        assert hasattr(cfg, k), k
        setattr(cfg, k, eval(v))
    open(out, "w").write(Gen(cfg).build())
```

```python
import sys, math, struct
from asmlib import *
import solve

KNAME = "standalone__mha_softmax__near_ridge"

class Cfg:
    diag = False
    kname = KNAME + "_kernel"
    dflag = "nt"
    qflag = "nt"
    oflag = "sc1"
    bias = 2.0
    force_slow = False
    pkmul = 7
    verbose = False
    lo_exp = -30
    hi_exp = 30
    tsmode = 0
    nostore = False
    lead = 10
    p1bar = dict(V4=41, K5=69, V5=121)
    pb_hi = 0.3
    obias = 1
    gamma = 3.0
    oconst = 1.5
    pfpos = 8
    pfsplit = True
    twice = 0
    dbgout = False
    stall = 0
    idle = 0
    dswcost = 16
    first = 14
    sh_hi = 0.35
    s3_lo = 0.5

PK, PV_ = 1056, 1040
HK = 8 * PK
SLOT = HK + 8 * PV_
SS = 2 * SLOT
RING = 3 * SS
STG = RING
QT = 4 * PV_
PARK = 3 * QT
PRIV = 3 * QT + 512
LDS = STG + 4 * PRIV

def O(t, db):
    if t == 6 and db >= 4: return ('a', 240 + 4 * (db - 4))
    return ('v', 32 * t + 4 * db)
def S(i): return 208 + 4 * (i & 3)
def P(U, ks): return 224 + 8 * (U & 1) + 4 * ks
CI = 240
def Lr(t): return 244 + t
vAK, vAV, vDMA, vEW, vER = 251, 252, 253, 254, 255
vVM, vHalf, vPK = 29, 28, 27
sMask = 79
vQA, vQB = 30, 31
def Q(t, ds): return 16 * t + 4 * ds
def Kf(g, ds): return 112 + 16 * g + 4 * ds
def Vf(db, ks): return 176 + 8 * db + 4 * ks

sQ, sK, sV, sO = 12, 16, 20, 24
sW, sCnt, sInc, sRd, sC, sQo, sSl = 28, 29, 30, 31, 32, 33, 34
sT0, sT1, sT2 = 35, 36, 37
sG = 64
sWK, sWV, sWG = 68, 69, 70
sIncW, sIncN = 71, 72
sNT, sTile, sBlk, sStg, sQS, sQT = 73, 74, 75, 76, 77, 78
sSt = 80

def rn(f, b, n): return "%s[%d:%d]" % (f, b, b + n - 1)
def mfma(D, A, B, C, half=False):
    n = 2 if half else 4
    cs = "0" if C is None else rn(C[0], C[1], 4)
    op = "v_mfma_f32_16x16x16_bf16" if half else "v_mfma_f32_16x16x32_bf16"
    return "%s %s, %s, %s, %s" % (op, rn(D[0], D[1], 4), rn(A[0], A[1], n), rn(B[0], B[1], n), cs)
def f2u(x): return struct.unpack("<I", struct.pack("<f", x))[0]

class Wave:
    def __init__(self, gen, NT, dma, tag):
        self.g, self.c, self.NT, self.dma, self.tag = gen, gen.c, NT, dma, tag
        self.tau = (2, 1, 5, 4) if NT == 7 else (2, 1, 4, 3)
        W = solve.windows(NT, self.tau, 10 if NT == 7 else 12)
        if NT == 7: pos = [4 * p + 1 for p in range(8 * NT - 2)]
        else: pos = sorted([4 * p + 1 for p in range(8 * NT - 1)] + [16 * p + 2 for p in range(2 * NT)])
        self.rd = solve.edf(W, pos)
        assert self.rd
        self.oinit = set()
        self.group = {}
        self.code = []

    def kread(self, g, ds, off=0):
        return "ds_read_b128 %s, v%d offset:%d" % (rn('a', Kf(g, ds), 4), vAK, off + (g >> 1) * SLOT + (g & 1) * 512 + ds * 64)
    def vread(self, g, db, off=0):
        return "ds_read_b64_tr_b16 %s, v%d offset:%d" % (rn('a', Vf(db, g >> 1) + 2 * (g & 1), 2), vAV, off + (g >> 1) * SLOT + (g & 1) * 512 + db * 16)
    def qk(self, t, g, sb, raw=False):
        order = range(4) if g & 1 == 0 else range(3, -1, -1)
        o = []
        for i, ds in enumerate(order):
            o.append(mfma(('v', sb), ('a', Kf(g, ds)), ('a', Q(t, ds)), (None if raw else ('v', CI)) if i == 0 else ('v', sb)))
        return o
    def pv1(self, t, db, pb, ks, gs):
        D = O(t, db)
        C = D if (t, db) in self.oinit else None
        self.oinit.add((t, db))
        if len(gs) == 2: return mfma(D, ('v', pb), ('a', Vf(db, ks)), C)
        h = gs[0] & 1
        return mfma(D, ('v', pb + 2 * h), ('a', Vf(db, ks) + 2 * h), C, half=True)
    def pv(self, t, groups, pbase, dbs=range(8)):
        o = []
        for db in dbs:
            for ks in ((0, 1) if db % 2 == 0 else (1, 0)):
                gs = [g for g in groups if g >> 1 == ks]
                if gs: o.append(self.pv1(t, db, pbase(ks), ks, gs))
        return o
    def pv_first(self, t, pbase):
        c = self.c
        if not c.obias: return [I(x) for x in self.pv(t, range(4), pbase)]
        Bt = O(t, 3)
        o = []
        if c.obias == 1:
            o.append("v_mfma_f32_16x16x4_f32 %s, v%d, v%d, 0" % (rn('v', Bt[1], 4), Lr(t), vVM))
            for r in range(4): o.append("v_and_or_b32 v%d, v%d, s%d, v%d" % (Bt[1] + r, Bt[1] + r, sMask, vHalf))
        else:
            for r in range(4): o.append("v_mov_b32 v%d, 0x%08x" % (Bt[1] + r, f2u(c.oconst)))
        o.append(Ins("ds_write_b128 v%d, %s offset:%d" % (vPK, rn('v', Bt[1], 4), 64 * t)))
        if t == 6:
            for r in range(4): o.append("v_accvgpr_write_b32 a%d, v%d" % (O(6, 7)[1] + r, Bt[1] + r))
        for j, db in enumerate((0, 1, 2, 4, 5, 6, 7, 3)):
            D = O(t, db)
            for k, ks in enumerate((0, 1) if j % 2 == 0 else (1, 0)):
                C = D if k else (Bt if D[0] == 'v' else O(6, 7))
                o.append(mfma(D, ('v', pbase(ks)), ('a', Vf(db, ks)), C))
            self.oinit.add((t, db))
        return [I(x) for x in o]
    def vmax(self):
        c = self.c
        if c.obias != 1: return []
        x, y, z = vVM, 16, 17
        o = ["v_accvgpr_read_b32 v%d, a%d" % (x, Vf(0, 0)), "v_accvgpr_read_b32 v%d, a%d" % (y, Vf(0, 0) + 2), "v_accvgpr_read_b32 v%d, a%d" % (z, Vf(0, 1) + 1),
             "v_max3_f32 v%d, |v%d|, |v%d|, |v%d|" % (x, x, y, z)]
        for sw in ("v_permlane32_swap_b32", "v_permlane16_swap_b32"):
            o += ["v_mov_b32 v%d, v%d" % (y, x), "%s v%d, v%d" % (sw, x, y), "v_max_f32 v%d, v%d, v%d" % (x, x, y)]
        for k in (8, 4, 2, 1):
            o.append("v_max_f32_dpp v%d, v%d, v%d row_ror:%d row_mask:0xf bank_mask:0xf" % (x, x, x, k))
        o.append("v_min_f32 v%d, 0x%08x, v%d" % (x, f2u(2.0 ** 60), x))
        o.append("v_mul_f32 v%d, 0x%08x, v%d" % (x, f2u(c.gamma), x))
        return o
    def softmax(self, t, sb, pdst):
        o = []
        for i in range(4):
            o.append("v_exp_f32 v%d, v%d" % (sb + i, sb + i))
            o.append("v_add_f32 v%d, v%d, v%d" % (Lr(t), Lr(t), sb + i))
            if i & 1: o.append("v_cvt_pk_bf16_f32 v%d, v%d, v%d" % (pdst + i // 2, sb + i - 1, sb + i))
        return o
    def tagged(self, text, grp, **kw):
        i = Ins(text, **kw); self.group[id(i)] = grp; return i
    def share(self, kv, blk):
        srd, lo, base, pad = (sK, 0, sWK, PK - 1024) if kv == 'K' else (sV, HK, sWV, PV_ - 1024)
        lds = ((blk >> 1) % 3) * SS + (blk & 1) * SLOT + lo
        o = []
        for n in range(2):
            if n == 0: b = [Ins("s_add_u32 m0, s%d, %d" % (base, lds)), Ins("s_add_u32 s%d, s%d, %d" % (sT2, sWG, blk * 8192))]
            else: b = [Ins("s_add_u32 m0, m0, %d" % pad)]
            b.append(self.tagged("buffer_load_dwordx4 v%d, s[%d:%d], s%d offen offset:%d %s lds" % (vDMA, srd, srd + 3, sT2, 1024 * n, self.c.dflag), "%s%d" % (kv, blk)))
            o.append(b)
        return o
    def qbuf(self, t):
        k = self.NT - 1 - t
        if k < 4: return sQS, vQA, (k >> 1) * SS + (k & 1) * QT
        return sStg, vQB, (k - 4) * QT
    def qload(self, t):
        sb, _, off = self.qbuf(t)
        o = []
        for n in range(4):
            if n == 0: b = [Ins("s_add_u32 m0, s%d, %d" % (sb, off)), Ins("s_sub_u32 s%d, s%d, %d" % (sT1, sQT, (self.NT - 1 - t) * 4096))]
            else: b = [Ins("s_add_u32 m0, m0, %d" % (PV_ - 1024))]
            b.append(self.tagged("buffer_load_dwordx4 v%d, s[%d:%d], s%d offen offset:%d %s lds" % (vDMA, sQ, sQ + 3, sT1, n * 1024, self.c.qflag), "Q%d" % t))
            o.append(b)
        return o
    def waitv(self, grp):
        i = Ins("s_waitcnt vmcnt(0)"); self.group[id(i)] = "W:" + grp; return i
    def scale(self, t):
        o = []
        tb = 32 * t + 16 if t < 6 else 16
        _, va, off = self.qbuf(t)
        for ds in range(4):
            o.append("ds_read_b128 %s, v%d offset:%d" % (rn('v', 32 * t + 4 * ds, 4), va, off + ds * 64))
        for r in range(16):
            q = 32 * t + r
            a, b = tb + 2 * (r % 5), tb + 2 * (r % 5) + 1
            o.append("v_lshlrev_b32 v%d, 16, v%d" % (a, q))
            o.append("v_and_b32 v%d, 0xffff0000, v%d" % (b, q))
            o.append("v_mul_f32 v%d, s%d, v%d" % (a, sC, a))
            o.append("v_mul_f32 v%d, s%d, v%d" % (b, sC, b))
            o.append("v_cvt_pk_bf16_f32 v%d, v%d, v%d" % (a, a, b))
            o.append("v_accvgpr_write_b32 a%d, v%d" % (Q(t, 0) + r, a))
        return o
    def seg(self, head, body, bundles=(), span=(0.0, 0.8)):
        self.code += self.ts2() + [I(x) for x in head] + self.ts2()
        b = schedule([I(x) for x in body], self.c.verbose) if body else []
        n = len(b)
        k = len(bundles)
        pos = [int(n * (span[0] + (span[1] - span[0]) * j / max(k, 1))) for j in range(k)]
        j = 0
        for i in range(n + 1):
            while j < k and pos[j] <= i:
                self.code += bundles[j]; j += 1
            if i < n: self.code.append(b[i])
    def ts2(self):
        if not (self.c.diag and self.c.tsmode == 2): return []
        self.nts = getattr(self, 'nts', 1) + 1
        k = self.nts - 1
        reg = 48 + k if k < 16 else 88 + k - 16
        assert k < 30, k
        return [Ins("s_memtime s[46:47]"), Ins("s_waitcnt lgkmcnt(0)"), Ins("s_mov_b32 s%d, s46" % reg)]
    def ts(self, idx):
        if not self.c.diag or self.c.tsmode == 2: return []
        return [Ins("s_memrealtime s[44:45]"), Ins("s_memtime s[46:47]"), Ins("s_waitcnt lgkmcnt(0)"),
                Ins("s_mov_b32 s%d, s44" % (48 + 2 * idx)), Ins("s_mov_b32 s%d, s46" % (49 + 2 * idx))]

    def pin(self, ins, after):
        self.npin = getattr(self, 'npin', 0) + 1
        after.W.add("pin%d" % self.npin); ins.R.add("pin%d" % self.npin)
        return ins
    def fence(self, grp, after, bar=False, lgkm0=False, frees=()):
        w = self.waitv(grp)
        if after is not None: self.pin(w, after)
        o = self.ts2c() + [w]
        if bar: o.append(Ins("s_barrier", lgkm0=lgkm0))
        o[-1].W.add("L:" + grp)
        for f in frees: o[-1].W.add("L:" + f)
        if after is not None and len(o) > 1 and self.c.tsmode == 2 and self.c.diag: self.pin(o[0], after)
        return o + self.ts2c()
    def ts2c(self):
        o = self.ts2()
        for x in o: x.R.add("vmq"); x.W.add("vmq")
        return o
    def weave(self, body, bundles, span=(0.0, 0.9)):
        n, k = len(body), len(bundles)
        pos = [int(n * (span[0] + (span[1] - span[0]) * j / max(k, 1))) for j in range(k)]
        o = []; j = 0
        for i in range(n):
            o.append(body[i])
            while j < k and pos[j] <= i:
                self.pin(bundles[j][-1], body[i]); o += bundles[j]; j += 1
        return o
    def prologue(self):
        c, NT, tau = self.c, self.NT, self.tau
        T = NT - 1
        II = lambda l, **kw: [I(x, **kw) for x in l]
        G0 = lambda t: [g for g in range(4) if tau[g] <= t]
        seq = self.share('K', 0) + self.qload(T) + self.share('K', 1) + self.qload(T - 1) + self.share('V', 0) + self.share('V', 1)
        for t in range(T - 2, -1, -1): seq += self.qload(t)
        nq = len(seq)
        for b in (2, 3): seq += self.share('K', b) + self.share('V', b)
        n1 = len(seq)
        for b in (4, 5): seq += self.share('K', b) + self.share('V', b)
        grp = [self.group[id(b[-1])] for b in seq]
        state = [0]
        def nxt(g, cap=None):
            want = c.first if g is None else max(j for j, x in enumerate(grp) if x == g) + 1 + c.lead
            want = min(want, len(seq) if cap is None else cap)
            r = seq[state[0]:want]
            state[0] = max(state[0], want)
            return r
        self.first = nxt(None, nq)
        self.code += [Ins("v_mov_b32 v%d, 0" % Lr(t)) for t in range(NT)]
        misc = ["s_mov_b32 s%d, %d" % (sRd, 2 * SS), "s_mov_b32 s%d, %d" % (sIncW, (-2 * SS) & 0xffffffff), "s_mov_b32 s%d, %d" % (sIncN, SS)]
        misc += ["s_mov_b32 s%d, %d" % (sCnt, 14 if NT == 7 else 28)]
        if self.dma:
            misc += ["s_mov_b32 s%d, %d" % (sG + i, 4 * 16384 + 4096 * i) for i in range(4)]
            misc += ["s_mov_b32 s%d, %d" % (sSl, SS)]
        if c.obias:
            misc += ["s_mov_b32 s%d, 0xff800000" % sMask, "v_mov_b32 v%d, 0x00400000" % vHalf, "s_add_u32 s%d, s%d, %d" % (sT0, sStg, PARK),
                     "v_bfe_u32 v%d, v%d, 8, 2" % (vPK, vDMA), "v_lshl_add_u32 v%d, v%d, 4, s%d" % (vPK, vPK, sT0)]
        self.code += II(misc)
        def scale(t):
            o = II(self.scale(t))
            for x in o[:4]: x.R.add("L:Q%d" % t)
            return o
        UA = lambda t: (NT + 1) - 1 - t
        UB = lambda t: NT + t
        prog = self.fence("Q%d" % T, None)
        a = scale(T)
        prog += self.weave(a, nxt("K1", nq))
        prog += self.fence("K1", a[len(a) // 2], bar=True)
        body = II([self.kread(g, ds) for g in range(4) for ds in range(4)], xr=["L:K1"])
        for g in range(4): body += II(self.qk(T, g, S(g), raw=True))
        x, y = 26, 29
        b2 = ["v_max3_f32 v%d, v%d, v%d, v%d" % (x, S(0), S(0) + 1, S(0) + 2),
              "v_max3_f32 v%d, v%d, v%d, v%d" % (x, x, S(0) + 3, S(0) + 4),
              "v_max3_f32 v%d, v%d, v%d, v%d" % (x, x, S(0) + 5, S(0) + 6),
              "v_max_f32 v%d, v%d, v%d" % (x, x, S(0) + 7)]
        for sw in ("v_permlane32_swap_b32", "v_permlane16_swap_b32"):
            b2 += ["v_mov_b32 v%d, v%d" % (y, x), "%s v%d, v%d" % (sw, x, y), "v_max_f32 v%d, v%d, v%d" % (x, x, y)]
        for k in (8, 4, 2, 1):
            b2.append("v_max_f32_dpp v%d, v%d, v%d row_ror:%d row_mask:0xf bank_mask:0xf" % (x, x, x, k))
        for i in range(4):
            b2.append("v_sub_f32 v%d, 0x%08x, v%d" % (CI + i, f2u(-c.bias), x))
        for g in range(4):
            for i in range(4):
                b2.append("v_add_f32 v%d, v%d, v%d" % (S(g) + i, S(g) + i, CI))
            b2 += self.softmax(T, S(g), P(UA(T), g >> 1) + 2 * (g & 1))
        body += II(b2)
        prog += self.weave(body, nxt("Q%d" % (T - 1), nq), (0.0, 0.25))
        last = body[31]
        sidx = [0]
        def unit(t, gs, U, post=None):
            o = []
            for g in gs:
                sb = S(sidx[0]); sidx[0] += 1
                o += II(self.qk(t, g, sb))
                if post: o += post(g, o[-1])
                o += II(self.softmax(t, sb, P(U, g >> 1) + 2 * (g & 1)))
            return o
        gorder = sorted(range(4), key=lambda g: tau[g])
        kfence = {}
        def kreload(g, after):
            o = []
            name = "K%d" % (2 + (g >> 1))
            if name not in kfence:
                kfence[name] = 1
                o += self.fence(name, after, bar=True, lgkm0=(name == "K2"), frees=["Q%d" % (T - 2), "Q%d" % (T - 3)])
            return o + II([self.kread(g, ds, SS) for ds in range(4)], xr=["L:" + name])
        for t in range(T - 1, -1, -1):
            prog += self.fence("Q%d" % t, last)
            a = scale(t)
            if t == T - 1:
                prog += self.weave(a, nxt("V1", nq), (0.0, 0.5))
                prog += self.fence("V1", a[int(len(a) * 0.6)], bar=True, lgkm0=True, frees=["Q%d" % T, "Q%d" % (T - 1)])
                a = II([self.vread(g, db) for db in range(8) for g in range(4)], xr=["L:V1"])
                a += II(self.vmax())
            a += self.pv_first(t + 1, lambda ks: P(UA(t + 1), ks))
            if t > 0:
                u = unit(t, range(4), UA(t))
                vs = [i for i in a + u if isvalu(i)]
                bl = nxt("Q%d" % (t - 1), n1)
                body = a + u
                cut = body.index(u[-10])
                prog += self.weave(body[:cut], bl) + body[cut:]
                last = u[-10]
            else:
                prog += self.weave(a, nxt("V3", n1))
        u = unit(0, gorder, UA(0), post=lambda g, m: kreload(g, m) if g < 2 else [])
        prog += u
        pv0 = self.pv_first(0, lambda ks: P(UA(0), ks))
        prog += pv0[:-14] + self.fence("V2", pv0[-15], bar=True) + pv0[-14:]
        for g in gorder[:2]:
            prog += II([self.vread(g, db, SS) for db in range(8)], xr=["L:V2"])
        body = []
        for t in range(1, NT):
            u = unit(t, [g for g in gorder if g in G0(t)], UB(t))
            body += u
            if t == 1:
                for g in gorder[2:]: body += kreload(g, u[-1])
            if t == 2:
                body += self.fence("V3", u[-1], bar=True)
                for g in gorder[2:]:
                    body += II([self.vread(g, db, SS) for db in range(8)], xr=["L:V3"])
                body += II(["v_add_u32 v%d, %d, v%d" % (vAK, 2 * SS, vAK), "v_add_u32 v%d, %d, v%d" % (vAV, 2 * SS, vAV)])
            if t < T: body += II(self.pv(t, G0(t), lambda ks: P(UB(t), ks)))
        body += II(self.qk(0, 0, S(0)) + self.qk(0, 1, S(1)))
        prog += self.weave(body, nxt("V5"), (0.0, c.pb_hi))
        self.code += schedule(prog, c.verbose, order=True)

    def period(self, p):
        c, NT = self.c, self.NT
        first = p == 2
        gaps = []
        NS = 2 * NT
        for n in range(NS):
            t, hh = n >> 1, n & 1
            U = NT * p + t
            n1 = (n + 1) % NS
            t1, ks1 = n1 >> 1, n1 & 1
            ms = self.qk(t1, 2 * ks1, S(2 * ks1)) + self.qk(t1, 2 * ks1 + 1, S(2 * ks1 + 1))
            ms += self.pv((t - 1) % NT, range(4), lambda ks: P(U - 1, ks), range(4 * hh, 4 * hh + 4))
            for i in range(16):
                s_ = S(2 * hh) + i // 2
                if i % 2 == 0: v = ["v_exp_f32 v%d, v%d" % (s_, s_)]
                else:
                    v = ["v_add_f32 v%d, v%d, v%d" % (Lr(t), Lr(t), s_)]
                    if i % 4 == 3: v.append("v_cvt_pk_bf16_f32 v%d, v%d, v%d" % (P(U, hh) + i // 4, s_ - 1, s_))
                gaps.append(dict(m=ms[i], s=[], d=[], v=v))
        NG = len(gaps)
        if c.stall:
            for i in range(15, NG, 16): gaps[i]['v'].append("s_nop %d" % (c.stall - 1))
        for (kind, g, x), pos in self.rd.items():
            gaps[pos]['d'].append(self.kread(g, x) if kind == 'K' else self.vread(g, x))
        gaps[0]['s'].append(Ins("s_barrier", lgkm0=True))
        gaps[2]['s'].append("s_add_u32 s%d, s%d, %d" % (sRd, sRd, SS))
        gaps[3]['s'].append("s_cmp_eq_u32 s%d, %d" % (sRd, RING))
        gaps[4]['s'].append("s_cselect_b32 s%d, s%d, s%d" % (sInc, sIncW, sIncN))
        gaps[5]['s'].append("s_cselect_b32 s%d, 0, s%d" % (sRd, sRd))
        last = max(self.rd.values())
        assert last < NG - 7
        gaps[NG - 7]['v'].append("v_add_u32 v%d, s%d, v%d" % (vAK, sInc, vAK))
        gaps[NG - 3]['v'].append("v_add_u32 v%d, s%d, v%d" % (vAV, sInc, vAV))
        lo = 8
        if first:
            for kind, ks, grp in (('V', 0, "V4"), ('K', 1, "K5"), ('V', 1, "V5")):
                f = min(pos for (k, g, x), pos in self.rd.items() if k == kind and g >> 1 == ks)
                f = min(f, c.p1bar[grp])
                gaps[f - 1]['s'].append(self.waitv(grp))
                gaps[f]['s'].append(Ins("s_barrier"))
            bl = []
            for blk in (6, 7): bl += self.share('K', blk) + self.share('V', blk)
            hi = int(NG * c.sh_hi)
            self.place(gaps, bl, lo, hi)
            lo = int(NG * c.s3_lo)
        if self.dma:
            bl = []
            for blk in range(2):
                for srd, l0, st in ((sK, 0, PK), (sV, HK, PV_)):
                    for a in range(2):
                        for n in range(4):
                            bl.append([Ins("s_add_u32 m0, s%d, %d" % (sSl, blk * SLOT + l0 + 4 * st * a + (st - 1024) * n)),
                                       self.tagged("buffer_load_dwordx4 v%d, s[%d:%d], s%d offen offset:%d %s lds" % (vDMA, srd, srd + 3, sG + 2 * blk + a, 1024 * n, c.dflag), "S")])
            self.place(gaps, bl, lo, NG - 12)
            for i in range(4):
                gaps[NG - 11 + i]['s'].append("s_add_u32 s%d, s%d, 16384" % (sG + i, sG + i))
            gaps[NG - 7]['s'].append("s_add_u32 s%d, s%d, %d" % (sSl, sSl, SS))
            gaps[NG - 6]['s'].append("s_cmp_eq_u32 s%d, %d" % (sSl, RING))
            gaps[NG - 5]['s'].append("s_cselect_b32 s%d, 0, s%d" % (sSl, sSl))
        if first: gaps[NG - 1]['s'].append(self.waitv("V7"))
        elif self.dma: gaps[NG - 1]['s'].append("s_waitcnt vmcnt(32)")
        return gaps
    def place(self, gaps, bundles, lo, hi):
        cand = [i for i in range(lo + 2, hi) if not gaps[i]['d'] and len(gaps[i]['v']) == 1]
        k = len(bundles)
        prev = lo - 1
        for j, b in enumerate(bundles):
            tgt = lo + 2 + (hi - lo - 2) * j / k
            ns = len(b) - 1
            cc = [i for i in cand if i - ns >= prev]
            i = min(cc, key=lambda i: abs(i - tgt) - (2.5 if i % 2 else 0))
            for q, ins in enumerate(b[:-1]):
                gi = i - ns + q
                if gi == prev: gaps[gi]['d'].append(ins)
                else: gaps[gi]['s'].append(ins)
            gaps[i]['d'].append(b[-1])
            prev = i
    def flat(self, gaps):
        o = []
        for g in gaps:
            o.append(I(g['m']))
            o += [I(x) for x in g['s'] + g['d'] + g['v']]
        return o

    def finalize(self, t, k, Lm, packs, acct, first, Ofn=O, Lreg=None, land=None, soff=None, pk=False, one=None, nb=None):
        c = self.c
        buf = k & 1
        st = "L:st%d" % buf
        Lreg = Lr(t) if Lreg is None else Lreg
        land = Q(t, 0) if land is None else land
        o = ["v_mfma_f32_16x16x4_f32 %s, v%d, a%d, 0" % (rn('v', Lm, 4), Lreg, one)]
        if first is not None:
            for op, r in (("v_max3_u32", vAK), ("v_min3_u32", vAV)):
                if first:
                    o.append("%s v%d, v%d, v%d, v%d" % (op, r, Lm, Lm + 1, Lm + 2))
                    o.append("%s v%d, v%d, v%d, v%d" % (op, r, r, Lm + 3, Lm + 3))
                else:
                    o.append("%s v%d, v%d, v%d, v%d" % (op, r, r, Lm, Lm + 1))
                    o.append("%s v%d, v%d, v%d, v%d" % (op, r, r, Lm + 2, Lm + 3))
        for r in range(4): o.append("v_rcp_f32 v%d, v%d" % (Lm + r, Lm + r))
        if nb is not None:
            o.append("ds_read_b128 %s, v%d offset:%d" % (rn('v', nb, 4), vAK, 64 * t))
            for r in range(4): o.append("v_mul_f32 v%d, v%d, v%d" % (nb + r, nb + r, Lm + r))
        loc = {}
        for db in range(8):
            f, b = Ofn(t, db)
            if f == 'a':
                for r in range(4):
                    o.append("v_accvgpr_read_b32 v%d, a%d" % (acct + 4 * (db - 4) + r, b + r))
                b = acct + 4 * (db - 4)
            loc[db] = b
        if pk:
            for db in range(8):
                for r in (0, 2):
                    if nb is None: o.append("v_pk_mul_f32 %s, %s, %s" % (rn('v', loc[db] + r, 2), rn('v', loc[db] + r, 2), rn('v', Lm + r, 2)))
                    else: o.append("v_pk_fma_f32 %s, %s, %s, %s neg_lo:[0:0:1] neg_hi:[0:0:1]" % (rn('v', loc[db] + r, 2), rn('v', loc[db] + r, 2), rn('v', Lm + r, 2), rn('v', nb + r, 2)))
        for r in range(4):
            for db in range(8):
                if not pk: o.append("v_mul_f32 v%d, v%d, v%d" % (loc[db] + r, loc[db] + r, Lm + r))
            pb = packs[r % len(packs)]
            for j in range(4):
                o.append("v_cvt_pk_bf16_f32 v%d, v%d, v%d" % (pb + j, loc[2 * j] + r, loc[2 * j + 1] + r))
            o.append(Ins("ds_write_b128 v%d, %s offset:%d" % (vEW, rn('v', pb, 4), r * 320 + buf * 5120), xw=[st + "r%d" % r]))
        if soff is None:
            soff = sSt + t
            o.append("s_add_u32 s%d, s%d, %d" % (soff, sQo, t * 4096))
        for a in range(4):
            for sel in range(2):
                o.append(Ins("ds_read_b64_tr_b16 %s, v%d offset:%d" % (rn('a', land + 4 * a + 2 * sel, 2), vER, a * 1280 + 64 * sel + buf * 5120), xr=[st + "r%d" % r for r in range(4)]))
        for a in range(4 if not c.nostore else 0):
            o.append("buffer_store_dwordx4 %s, v%d, s[%d:%d], s%d offen offset:%d %s" % (rn('a', land + 4 * a, 4), vDMA, sO, sO + 3, soff, a * 1024, c.oflag))
        return o

    def tail(self):
        c, NT, tau = self.c, self.NT, self.tau
        T = NT - 1
        U = NT * 31
        G1 = lambda t: [g for g in range(4) if tau[g] > t]
        ring = dict(xr=["L:ring"])
        prog = [Ins("s_barrier", lgkm0=True, xw=["L:ring"])]
        prog += self.pv(T, range(4), lambda ks: P(U - 1, ks))
        sidx = 0
        for t in range(NT):
            gs = G1(t)
            if not gs: continue
            pb = (lambda u: (lambda ks: P(u, ks)))(U); U += 1
            for g in gs:
                sb = S(sidx); sidx += 1
                if not (t == 0 and g < 2): prog += self.qk(t, g, sb)
                if tau[g] == t + 1: prog += [Ins(self.kread(g, ds), **ring) for ds in range(4)]
                prog += self.softmax(t, sb, pb(g >> 1) + 2 * (g & 1))
            prog += self.pv(t, gs, pb)
            for db in range(8):
                prog += [Ins(self.vread(g, db), **ring) for g in gs if tau[g] == t + 1]
        order = [t for t in range(NT) if not G1(t)] + [t for t in range(NT) if G1(t)]
        gorder = sorted(range(4), key=lambda g: tau[g])
        pool = 32 * order[0]
        for k, t in enumerate(order):
            pb = (lambda u: (lambda ks: P(u, ks)))(U); U += 1
            for g in (gorder if k == 0 else range(4)):
                sb = S(sidx); sidx += 1
                prog += self.qk(t, g, sb)
                prog += self.softmax(t, sb, pb(g >> 1) + 2 * (g & 1))
            prog += self.pv(t, range(4), pb)
            pk = k >= len(order) - c.pkmul
            one = Q(t, 0)
            prog.append("v_accvgpr_write_b32 a%d, 1.0" % one)
            N = lambda x: x if c.obias else None
            assert pk or not c.obias
            if k == 0:
                if c.obias: prog += ["v_bfe_u32 v%d, v%d, 8, 2" % (vAK, vDMA), "v_lshl_add_u32 v%d, v%d, 4, s%d" % (vAK, vAK, sT0)]
                prog += self.finalize(t, k, pb(0), [pb(0), pb(1)], None, None, pk=pk, one=one, nb=N(pb(1)))
            elif t == 6: prog += self.finalize(t, k, pool + 8 * (k & 1), [pool, pool + 4, pool + 8, pool + 12], pool + 16, None, pk=pk, one=one, nb=N(pool + 8 * (k & 1) + 4))
            else: prog += self.finalize(t, k, pool + 8 * (k & 1), [pool + 16, pool + 20, pool + 24, pool + 28], None, None, pk=pk, one=one, nb=N(pool + 8 * (k & 1) + 4))
        ls = [Lr(t) for t in range(NT)] + [Lr(0)]
        for op, r in (("v_max3_u32", vAK), ("v_min3_u32", vAV)):
            prog.append("%s v%d, v%d, v%d, v%d" % (op, r, ls[0], ls[1], ls[2]))
            prog.append("%s v%d, v%d, v%d, v%d" % (op, r, r, ls[3], ls[4]))
            prog.append("%s v%d, v%d, v%d, v%d" % (op, r, r, ls[5], ls[6]))
        return schedule([I(x) for x in prog], c.verbose, order=True, dswcost=c.dswcost)

    def resolve_waits(self, seq):
        issued = [self.group[id(b[-1])] for b in self.first]
        issued.insert(self.c.pfpos, None)
        for i in seq:
            g = self.group.get(id(i))
            if i.kind in ("dma", "vload", "vstore"): issued.append(g)
            elif g and g.startswith("W:"):
                last = max(j for j, x in enumerate(issued) if x == g[2:])
                i.text = "s_waitcnt vmcnt(%d)" % min(63, len(issued) - 1 - last)

    def build(self):
        c, NT, tag = self.c, self.NT, self.tag
        self.code = [Ins("L_wave_%s:" % tag)]
        self.prologue()
        self.code += self.ts(1) + self.ts(2)
        self.code += self.ts2()
        self.code.append(self.waitv("K4"))
        self.code += self.flat(self.period(2)) + self.ts2()
        self.code += self.ts(3)
        self.resolve_waits(self.code)
        head, pend = insert_lgkm(self.code)
        assert not pend
        head = pad_hazards(head)
        gaps = self.period(3)
        if NT == 7: gaps += self.period(4)
        gaps[-4]['s'].append("s_sub_u32 s%d, s%d, 1" % (sCnt, sCnt))
        gaps[-2]['s'].append("s_cmp_lg_u32 s%d, 0" % sCnt)
        body, pend = insert_lgkm(self.flat(gaps))
        assert not pend
        body.append(Ins("s_cbranch_scc1 L_loop_%s" % tag))
        pad_hazards(body, hist=head[-16:], fix=False, name="loop entry")
        pad_hazards(body, hist=body[-16:], fix=False, name="loop back")
        tail = self.ts(4) + self.tail()
        tail += [Ins("v_cmp_le_u32 vcc, 0x%08x, v%d" % (f2u(2.0 ** c.hi_exp), vAK)),
                 Ins("s_mov_b64 s[%d:%d], vcc" % (sT1, sT1 + 1)),
                 Ins("v_cmp_ge_u32 vcc, 0x%08x, v%d" % (f2u(2.0 ** c.lo_exp), vAV)),
                 Ins("s_or_b64 s[%d:%d], s[%d:%d], vcc" % (sT1, sT1 + 1, sT1, sT1 + 1)),
                 Ins("s_mov_b32 s%d, %d" % (sNT, NT)),
                 Ins("s_cbranch_scc1 L_slow" if not c.force_slow else "s_branch L_slow")]
        tail += self.ts(5)
        if c.diag: tail += [Ins("s_waitcnt vmcnt(0)")] + self.ts(6)
        tail.append(Ins("s_branch L_fin" if (c.diag or c.twice or c.idle) else "s_endpgm"))
        tail, pend = insert_lgkm(tail)
        tail = pad_hazards(tail, hist=body[-16:])
        return head + [Ins(".p2align 6"), Ins("L_loop_%s:" % tag)] + body + tail

class Gen:
    def __init__(self, cfg):
        self.c = cfg
    def slow(self):
        c = self.c
        w = Wave(self, 7, False, "s")
        o = []
        e = lambda s: o.extend(Ins(l) for l in s.strip().split("\n"))
        vL, vKA, vVA, vQA, vM, vX = 64, 65, 66, 67, 68, 69
        KF = lambda kg, ds: 72 + 16 * kg + 4 * ds
        VF = lambda db: 104 + 4 * db
        QF = lambda ds: 136 + 4 * ds
        SB, PB, LM, PKB = 152, 160, 164, 168
        e("L_slow:")
        e("s_waitcnt vmcnt(0) lgkmcnt(0)")
        e("v_lshrrev_b32 v%d, 4, v%d" % (vX, vDMA))
        e("v_and_b32 v%d, 7, v%d\nv_lshlrev_b32 v%d, 10, v%d" % (vM, vX, vKA, vM))
        e("v_and_b32 v%d, 8, v%d\nv_lshl_add_u32 v%d, v%d, 5, v%d" % (vM, vX, vKA, vM, vKA))
        e("v_and_b32 v%d, 48, v%d\nv_add_u32 v%d, v%d, v%d" % (vM, vX, vKA, vM, vKA))
        e("v_and_b32 v%d, 15, v%d\nv_lshlrev_b32 v%d, 8, v%d" % (vM, vX, vQA, vM))
        e("v_and_b32 v%d, 48, v%d\nv_add_u32 v%d, v%d, v%d" % (vM, vX, vQA, vM, vQA))
        e("v_bfe_u32 v%d, v%d, 2, 3\nv_mul_u32_u24 v%d, %d, v%d" % (vM, vX, vVA, PV_, vM))
        e("v_and_b32 v%d, 32, v%d\nv_lshl_add_u32 v%d, v%d, 3, v%d" % (vM, vX, vVA, vM, vVA))
        e("v_and_b32 v%d, 1, v%d\nv_lshl_add_u32 v%d, v%d, 3, v%d" % (vM, vX, vVA, vM, vVA))
        e("v_and_b32 v%d, 2, v%d\nv_lshl_add_u32 v%d, v%d, 6, v%d" % (vM, vX, vVA, vM, vVA))
        e("v_add_u32 v%d, s%d, v%d" % (vVA, sStg, vVA))
        e("s_mov_b32 s%d, 0" % sTile)
        e("L_slow_tile:")
        e("s_lshl_b32 s%d, s%d, 12\ns_add_u32 s%d, s%d, s%d" % (sSt, sTile, sSt, sSt, sQo))
        for ds in range(4):
            e("buffer_load_dwordx4 %s, v%d, s[%d:%d], s%d offen offset:%d" % (rn('v', QF(ds), 4), vQA, sQ, sQ + 3, sSt, ds * 64))
        e("s_waitcnt vmcnt(0)")
        for r in range(16):
            q = QF(0) + r
            e("v_lshlrev_b32 v%d, 16, v%d\nv_and_b32 v%d, 0xffff0000, v%d" % (vM, q, vX, q))
            e("v_mul_f32 v%d, s%d, v%d\nv_mul_f32 v%d, s%d, v%d" % (vM, sC, vM, vX, sC, vX))
            e("v_cvt_pk_bf16_f32 v%d, v%d, v%d" % (q, vM, vX))
        def kload():
            for kg in range(2):
                for ds in range(4):
                    e("buffer_load_dwordx4 %s, v%d, s[%d:%d], s%d offen offset:%d" % (rn('v', KF(kg, ds), 4), vKA, sK, sK + 3, sBlk, kg * 512 + ds * 64))
        def qk(raw):
            for kg in range(2):
                for ds in range(4):
                    e(mfma(('v', SB + 4 * kg), ('v', KF(kg, ds)), ('v', QF(ds)), (None if raw else ('v', CI)) if ds == 0 else ('v', SB + 4 * kg)))
        e("v_mov_b32 v%d, 0xff800000\ns_mov_b32 s%d, 0" % (vM, sBlk))
        e("L_slow_max:")
        kload()
        e("s_waitcnt vmcnt(0)")
        qk(True)
        e("s_nop 7")
        for i in range(0, 8, 2):
            e("v_max3_f32 v%d, v%d, v%d, v%d" % (vM, vM, SB + i, SB + i + 1))
        e("s_add_u32 s%d, s%d, 8192\ns_cmp_lt_u32 s%d, 524288\ns_cbranch_scc1 L_slow_max" % (sBlk, sBlk, sBlk))
        for sw in ("v_permlane32_swap_b32", "v_permlane16_swap_b32"):
            e("v_mov_b32 v%d, v%d\n%s v%d, v%d\nv_max_f32 v%d, v%d, v%d" % (vX, vM, sw, vM, vX, vM, vM, vX))
        for i in range(4): e("v_sub_f32 v%d, 0, v%d" % (CI + i, vM))
        for r in range(32): e("v_mov_b32 v%d, 0" % r)
        e("v_mov_b32 v%d, 0\ns_mov_b32 s%d, 0" % (vL, sBlk))
        e("L_slow_pv:")
        kload()
        e("s_add_u32 s%d, s%d, 4096" % (sT0, sBlk))
        for a in range(2):
            for n in range(4):
                e("s_add_u32 m0, s%d, %d" % (sStg, 4 * PV_ * a + (PV_ - 1024) * n))
                e("buffer_load_dwordx4 v%d, s[%d:%d], s%d offen offset:%d lds" % (vDMA, sV, sV + 3, sT0 if a else sBlk, 1024 * n))
        e("s_waitcnt vmcnt(0)")
        for db in range(8):
            for hb in range(2):
                e("ds_read_b64_tr_b16 %s, v%d offset:%d" % (rn('v', VF(db) + 2 * hb, 2), vVA, hb * 512 + db * 16))
        qk(False)
        e("s_nop 7")
        for i in range(8):
            e("v_exp_f32 v%d, v%d" % (SB + i, SB + i))
        for i in range(8):
            e("v_add_f32 v%d, v%d, v%d" % (vL, vL, SB + i))
        for i in range(4):
            e("v_cvt_pk_bf16_f32 v%d, v%d, v%d" % (PB + i, SB + 2 * i, SB + 2 * i + 1))
        e("s_waitcnt lgkmcnt(0)")
        for db in range(8):
            e(mfma(('v', 4 * db), ('v', PB), ('v', VF(db)), ('v', 4 * db)))
        e("s_nop 7")
        e("s_add_u32 s%d, s%d, 8192\ns_cmp_lt_u32 s%d, 524288\ns_cbranch_scc1 L_slow_pv" % (sBlk, sBlk, sBlk))
        e("v_accvgpr_write_b32 a16, 1.0")
        o.extend(I(x) for x in w.finalize(0, 0, LM, [PKB], None, None, Lreg=vL, soff=sSt, one=16))
        e("s_waitcnt vmcnt(0) lgkmcnt(0)")
        e("s_add_u32 s%d, s%d, 1\ns_cmp_lt_u32 s%d, s%d\ns_cbranch_scc1 L_slow_tile" % (sTile, sTile, sTile, sNT))
        o, _ = insert_lgkm(o, hoist=False)
        return pad_hazards(o)

    def build(self):
        c = self.c
        o = []
        e = lambda s: o.extend(Ins(l) for l in s.strip().split("\n"))
        e("s_cmp_ge_u32 s2, 256\ns_cbranch_scc1 L_end")
        if c.twice: e("s_mov_b32 s90, 0\nL_again:")
        e("s_load_dwordx4 s[4:7], s[0:1], 0\ns_load_dwordx4 s[8:11], s[0:1], 16")
        if c.diag:
            e("s_load_dwordx2 s[40:41], s[0:1], %d" % (32 if c.dbgout else 40))
            e("s_memrealtime s[44:45]\ns_memtime s[46:47]\ns_waitcnt lgkmcnt(0)\ns_mov_b32 s48, s44\ns_mov_b32 s49, s46")
            if c.tsmode == 2: e("s_mov_b32 s48, s46")
        wa, wb = Wave(self, 7, False, "a"), Wave(self, 6, True, "b")
        ca, cb = wa.build(), wb.build()
        assert [[x.text for x in b] for b in wa.first] == [[x.text for x in b] for b in wb.first]
        e("v_lshrrev_b32 v1, 6, v0")
        e("v_and_b32 v5, 63, v0")
        e("v_readfirstlane_b32 s%d, v1" % sW)
        e("v_lshlrev_b32 v%d, 4, v5" % vDMA)
        e("s_mul_i32 s%d, s2, 110592" % sT0)
        e("s_lshl_b32 s3, s2, 19")
        e("s_mov_b32 s%d, 524288\ns_mov_b32 s%d, 0x20000\ns_mov_b32 s%d, 110592\ns_mov_b32 s%d, 0x20000" % (sK + 2, sK + 3, sQ + 2, sQ + 3))
        e("s_mul_i32 s%d, s%d, %d" % (sQo, sW, 112 * 256))
        e("s_add_u32 s%d, s%d, %d\ns_min_u32 s%d, s%d, %d" % (sQT, sQo, 6 * 4096, sQT, sQT, 26 * 4096))
        e("s_mul_i32 s%d, s%d, %d" % (sWK, sW, 2 * PK))
        e("s_lshl_b32 s%d, s%d, 11" % (sWG, sW))
        e("s_mul_i32 s%d, s%d, %d\ns_add_u32 s%d, s%d, %d" % (sQS, sW, 2 * QT, sQS, sQS, SS))
        e("s_waitcnt lgkmcnt(0)")
        def srd(r, src, offs):
            e("s_add_u32 s%d, s%d, s%d\ns_addc_u32 s%d, s%d, 0" % (r, src, offs, r + 1, src + 1))
        srd(sK, 6, 3); srd(sQ, 4, sT0)
        for b in wa.first[:c.pfpos]: o.extend(b)
        e("s_getpc_b64 s[38:39]")
        e("L_pc:")
        e("s_lshr_b32 s%d, s2, 3\ns_and_b32 s%d, s%d, 7\ns_lshl_b32 s%d, s%d, 13" % (sC, sC, sC, sC, sC))
        e("v_lshlrev_b32 v2, 5, v0\nv_add_u32 v2, s%d, v2\nv_min_u32 v2, L_slow-L_pc, v2" % sC)
        e("global_load_dword v63, v2, s[38:39]")
        srd(sV, 8, 3); srd(sO, 10, sT0)
        e("s_mov_b32 s%d, 524288\ns_mov_b32 s%d, 0x20000\ns_mov_b32 s%d, 110592\ns_mov_b32 s%d, 0x20000" % (sV + 2, sV + 3, sO + 2, sO + 3))
        e("s_mul_i32 s%d, s%d, %d" % (sWV, sW, 2 * PV_))
        for b in wa.first[c.pfpos:]: o.extend(b)
        e("v_mov_b32 v0, v5")
        e("v_and_b32 v1, 15, v0\nv_and_b32 v2, 48, v0")
        e("s_mov_b32 s%d, 0x%08x" % (sC, f2u(math.log2(math.e) / math.sqrt(128.0))))
        e("s_mul_i32 s%d, s%d, %d\ns_add_u32 s%d, s%d, %d" % (sStg, sW, PRIV, sStg, sStg, STG))
        e("v_bfe_u32 v3, v0, 2, 2\nv_mul_u32_u24 v%d, %d, v3" % (vQA, PV_))
        e("v_and_b32 v3, 3, v0\nv_lshl_add_u32 v%d, v3, 8, v%d" % (vQA, vQA))
        e("v_add3_u32 v%d, v%d, v2, s%d\nv_add3_u32 v%d, v%d, v2, s%d" % (vQB, vQA, sStg, vQA, vQA, sQS))
        e("v_and_b32 v3, 7, v0\nv_mul_u32_u24 v%d, %d, v3" % (vAK, PK))
        e("v_and_b32 v3, 8, v0\nv_lshl_add_u32 v%d, v3, 5, v%d" % (vAK, vAK))
        e("v_add_u32 v%d, v2, v%d" % (vAK, vAK))
        e("v_and_b32 v3, 1, v0\nv_lshlrev_b32 v4, 3, v3\nv_and_b32 v3, 2, v0\nv_lshl_add_u32 v4, v3, 6, v4")
        e("v_bfe_u32 v3, v0, 2, 3\nv_mul_u32_u24 v%d, %d, v3" % (vAV, PV_))
        e("v_and_b32 v3, 32, v0\nv_lshl_add_u32 v%d, v3, 3, v%d" % (vAV, vAV))
        e("v_add_u32 v%d, v4, v%d\nv_add_u32 v%d, %d, v%d" % (vAV, vAV, vAV, HK, vAV))
        e("v_mul_u32_u24 v%d, 80, v2\nv_lshl_add_u32 v%d, v1, 4, v%d\nv_add_u32 v%d, s%d, v%d" % (vEW, vEW, vEW, vEW, sStg, vEW))
        e("v_mul_u32_u24 v%d, 20, v2\nv_and_b32 v3, 12, v0\nv_lshl_add_u32 v%d, v3, 2, v%d" % (vER, vER, vER))
        e("v_add3_u32 v%d, v%d, v4, s%d" % (vER, vER, sStg))
        e("s_cmp_eq_u32 s%d, 3" % sW)
        e("s_cbranch_scc1 L_wave_b")
        o[:] = pad_hazards(o)
        o += ca
        o += cb
        o += self.slow()
        e("L_fin:")
        if c.twice:
            e("s_waitcnt vmcnt(0) lgkmcnt(0)\ns_barrier\nv_lshrrev_b32 v0, 4, v%d\ns_lshl_b32 s91, s%d, 6\nv_add_u32 v0, s91, v0" % (vDMA, sW))
            e("s_add_u32 s90, s90, 1\ns_cmp_le_u32 s90, %d\ns_cbranch_scc1 L_again" % c.twice)
        if c.idle:
            e("s_waitcnt vmcnt(0) lgkmcnt(0)\ns_memtime s[92:93]\ns_waitcnt lgkmcnt(0)\nL_idle:\ns_memtime s[94:95]\ns_waitcnt lgkmcnt(0)\ns_sub_u32 s94, s94, s92\ns_cmp_lt_u32 s94, %d\ns_cbranch_scc1 L_idle" % c.idle)
        if c.diag and c.dbgout:
            e("s_cmp_lg_u32 s%d, 0\ns_cbranch_scc1 L_end" % sW)
            e("s_mov_b32 s42, 256\ns_mov_b32 s43, 0x20000\nv_mov_b32 v0, 0\ns_mov_b64 exec, 1")
            for i in range(1, 7):
                for k in range(2):
                    e("s_sub_u32 s%d, s%d, s%d" % (sT0, 48 + 2 * i + k, 48 + k))
                    e("v_mov_b32 v4, s%d" % sT0)
                    e("buffer_atomic_add v4, v0, s[40:43], 0 offen offset:%d" % (4 * (i - 1) + 24 * k))
                    e("s_waitcnt vmcnt(0)")
            e("v_mov_b32 v4, s60\nbuffer_atomic_umax v4, v0, s[40:43], 0 offen offset:48\ns_waitcnt vmcnt(0)")
            e("s_sub_u32 s%d, 0, s48\nv_mov_b32 v4, s%d\nbuffer_atomic_umax v4, v0, s[40:43], 0 offen offset:52\ns_waitcnt vmcnt(0)" % (sT0, sT0))
            e("v_mov_b32 v4, s48\nbuffer_atomic_umax v4, v0, s[40:43], 0 offen offset:56\ns_waitcnt vmcnt(0)")
        elif c.diag:
            e("s_mov_b32 s42, 0x1000000\ns_mov_b32 s43, 0x20000")
            e("s_lshl_b32 s%d, s2, 2\ns_add_u32 s%d, s%d, s%d\ns_lshl_b32 s%d, s%d, %d" % (sT0, sT0, sT0, sW, sT0, sT0, 7 if c.tsmode == 2 else 6))
            e("v_mov_b32 v0, 0")
            for i in range(0, 28 if c.tsmode == 2 else 16, 4):
                for k in range(4):
                    e("v_mov_b32 v%d, s%d" % (4 + k, 48 + i + k if i < 16 else 72 + i + k))
                e("buffer_store_dwordx4 v[4:7], v0, s[40:43], s%d offen offset:%d" % (sT0, i * 4))
                e("s_waitcnt vmcnt(0)")
        e("L_end:")
        e("s_endpgm")
        txt = ["; MHA forward, B=8 H=32 Sq=432 Sk=2048 D=128, bf16.  One workgroup per head, 4 waves (one per SIMD).",
               "; @launch grid=(256,1,1) block=(256,1,1) lds=%d" % LDS,
               '.amdgcn_target "amdgcn-amd-amdhsa--gfx950"', ".text", ".globl %s" % c.kname, ".p2align 8",
               ".type %s,@function" % c.kname, "%s:" % c.kname]
        for i in o:
            txt.append(i.text if i.kind == "label" else "    " + i.text.replace("[0:0:1]", "[0,0,1]"))
        txt.append('.section .rodata,"a"\n.p2align 6\n.amdhsa_kernel %s' % c.kname)
        txt.append("""  .amdhsa_next_free_vgpr 512
  .amdhsa_next_free_sgpr 102
  .amdhsa_accum_offset 256
  .amdhsa_group_segment_fixed_size 0
  .amdhsa_kernarg_size 48
  .amdhsa_user_sgpr_count 2
  .amdhsa_user_sgpr_kernarg_segment_ptr 1
  .amdhsa_system_sgpr_workgroup_id_x 1
.end_amdhsa_kernel""")
        return "\n".join(txt) + "\n"

if __name__ == "__main__":
    cfg = Cfg()
    out = sys.argv[1]
    for a in sys.argv[2:]:
        k, v = a.split("=")
        assert hasattr(cfg, k), k
        setattr(cfg, k, eval(v))
    open(out, "w").write(Gen(cfg).build())
```

```python
import sys, math, struct
from asmlib import *
import solve

KNAME = "standalone__mha_softmax__near_ridge"

class Cfg:
    diag = False
    kname = KNAME + "_kernel"
    dflag = "nt"
    qflag = "nt"
    oflag = "sc1"
    bias = 2.0
    force_slow = False
    pkmul = 7
    verbose = False
    lo_exp = -30
    hi_exp = 30
    tsmode = 0
    nostore = False
    lead = 10
    p1bar = dict(V4=41, K5=69, V5=121)
    pb_hi = 0.3
    obias = 1
    gamma = 3.0
    oconst = 1.5
    pfpos = 8
    pfsplit = True
    twice = 0
    echo = None
    dbgout = False
    stall = 0
    idle = 0
    dswcost = 16
    first = 14
    sh_hi = 0.35
    s3_lo = 0.5

PK, PV_ = 1056, 1040
HK = 8 * PK
SLOT = HK + 8 * PV_
SS = 2 * SLOT
RING = 3 * SS
STG = RING
QT = 4 * PV_
PARK = 3 * QT
PRIV = 3 * QT + 512
LDS = STG + 4 * PRIV

def O(t, db):
    if t == 6 and db >= 4: return ('a', 240 + 4 * (db - 4))
    return ('v', 32 * t + 4 * db)
def S(i): return 208 + 4 * (i & 3)
def P(U, ks): return 224 + 8 * (U & 1) + 4 * ks
CI = 240
def Lr(t): return 244 + t
vAK, vAV, vDMA, vEW, vER = 251, 252, 253, 254, 255
vVM, vHalf, vPK = 29, 28, 27
sMask = 79
vQA, vQB = 30, 31
def Q(t, ds): return 16 * t + 4 * ds
def Kf(g, ds): return 112 + 16 * g + 4 * ds
def Vf(db, ks): return 176 + 8 * db + 4 * ks

sQ, sK, sV, sO = 12, 16, 20, 24
sW, sCnt, sInc, sRd, sC, sQo, sSl = 28, 29, 30, 31, 32, 33, 34
sT0, sT1, sT2 = 35, 36, 37
sG = 64
sWK, sWV, sWG = 68, 69, 70
sIncW, sIncN = 71, 72
sNT, sTile, sBlk, sStg, sQS, sQT = 73, 74, 75, 76, 77, 78
sSt = 80

def rn(f, b, n): return "%s[%d:%d]" % (f, b, b + n - 1)
def mfma(D, A, B, C, half=False):
    n = 2 if half else 4
    cs = "0" if C is None else rn(C[0], C[1], 4)
    op = "v_mfma_f32_16x16x16_bf16" if half else "v_mfma_f32_16x16x32_bf16"
    return "%s %s, %s, %s, %s" % (op, rn(D[0], D[1], 4), rn(A[0], A[1], n), rn(B[0], B[1], n), cs)
def f2u(x): return struct.unpack("<I", struct.pack("<f", x))[0]

class Wave:
    def __init__(self, gen, NT, dma, tag):
        self.g, self.c, self.NT, self.dma, self.tag = gen, gen.c, NT, dma, tag
        self.tau = (2, 1, 5, 4) if NT == 7 else (2, 1, 4, 3)
        W = solve.windows(NT, self.tau, 10 if NT == 7 else 12)
        if NT == 7: pos = [4 * p + 1 for p in range(8 * NT - 2)]
        else: pos = sorted([4 * p + 1 for p in range(8 * NT - 1)] + [16 * p + 2 for p in range(2 * NT)])
        self.rd = solve.edf(W, pos)
        assert self.rd
        self.oinit = set()
        self.group = {}
        self.code = []

    def kread(self, g, ds, off=0):
        return "ds_read_b128 %s, v%d offset:%d" % (rn('a', Kf(g, ds), 4), vAK, off + (g >> 1) * SLOT + (g & 1) * 512 + ds * 64)
    def vread(self, g, db, off=0):
        return "ds_read_b64_tr_b16 %s, v%d offset:%d" % (rn('a', Vf(db, g >> 1) + 2 * (g & 1), 2), vAV, off + (g >> 1) * SLOT + (g & 1) * 512 + db * 16)
    def qk(self, t, g, sb, raw=False):
        order = range(4) if g & 1 == 0 else range(3, -1, -1)
        o = []
        for i, ds in enumerate(order):
            o.append(mfma(('v', sb), ('a', Kf(g, ds)), ('a', Q(t, ds)), (None if raw else ('v', CI)) if i == 0 else ('v', sb)))
        return o
    def pv1(self, t, db, pb, ks, gs):
        D = O(t, db)
        C = D if (t, db) in self.oinit else None
        self.oinit.add((t, db))
        if len(gs) == 2: return mfma(D, ('v', pb), ('a', Vf(db, ks)), C)
        h = gs[0] & 1
        return mfma(D, ('v', pb + 2 * h), ('a', Vf(db, ks) + 2 * h), C, half=True)
    def pv(self, t, groups, pbase, dbs=range(8)):
        o = []
        for db in dbs:
            for ks in ((0, 1) if db % 2 == 0 else (1, 0)):
                gs = [g for g in groups if g >> 1 == ks]
                if gs: o.append(self.pv1(t, db, pbase(ks), ks, gs))
        return o
    def pv_first(self, t, pbase):
        c = self.c
        if not c.obias: return [I(x) for x in self.pv(t, range(4), pbase)]
        Bt = O(t, 3)
        o = []
        if c.obias == 1:
            o.append("v_mfma_f32_16x16x4_f32 %s, v%d, v%d, 0" % (rn('v', Bt[1], 4), Lr(t), vVM))
            for r in range(4): o.append("v_and_or_b32 v%d, v%d, s%d, v%d" % (Bt[1] + r, Bt[1] + r, sMask, vHalf))
        else:
            for r in range(4): o.append("v_mov_b32 v%d, 0x%08x" % (Bt[1] + r, f2u(c.oconst)))
        o.append(Ins("ds_write_b128 v%d, %s offset:%d" % (vPK, rn('v', Bt[1], 4), 64 * t)))
        if t == 6:
            for r in range(4): o.append("v_accvgpr_write_b32 a%d, v%d" % (O(6, 7)[1] + r, Bt[1] + r))
        for j, db in enumerate((0, 1, 2, 4, 5, 6, 7, 3)):
            D = O(t, db)
            for k, ks in enumerate((0, 1) if j % 2 == 0 else (1, 0)):
                C = D if k else (Bt if D[0] == 'v' else O(6, 7))
                o.append(mfma(D, ('v', pbase(ks)), ('a', Vf(db, ks)), C))
            self.oinit.add((t, db))
        return [I(x) for x in o]
    def vmax(self):
        c = self.c
        if c.obias != 1: return []
        x, y, z = vVM, 16, 17
        o = ["v_accvgpr_read_b32 v%d, a%d" % (x, Vf(0, 0)), "v_accvgpr_read_b32 v%d, a%d" % (y, Vf(0, 0) + 2), "v_accvgpr_read_b32 v%d, a%d" % (z, Vf(0, 1) + 1),
             "v_max3_f32 v%d, |v%d|, |v%d|, |v%d|" % (x, x, y, z)]
        for sw in ("v_permlane32_swap_b32", "v_permlane16_swap_b32"):
            o += ["v_mov_b32 v%d, v%d" % (y, x), "%s v%d, v%d" % (sw, x, y), "v_max_f32 v%d, v%d, v%d" % (x, x, y)]
        for k in (8, 4, 2, 1):
            o.append("v_max_f32_dpp v%d, v%d, v%d row_ror:%d row_mask:0xf bank_mask:0xf" % (x, x, x, k))
        o.append("v_min_f32 v%d, 0x%08x, v%d" % (x, f2u(2.0 ** 60), x))
        o.append("v_mul_f32 v%d, 0x%08x, v%d" % (x, f2u(c.gamma), x))
        return o
    def softmax(self, t, sb, pdst):
        o = []
        for i in range(4):
            o.append("v_exp_f32 v%d, v%d" % (sb + i, sb + i))
            o.append("v_add_f32 v%d, v%d, v%d" % (Lr(t), Lr(t), sb + i))
            if i & 1: o.append("v_cvt_pk_bf16_f32 v%d, v%d, v%d" % (pdst + i // 2, sb + i - 1, sb + i))
        return o
    def tagged(self, text, grp, **kw):
        i = Ins(text, **kw); self.group[id(i)] = grp; return i
    def share(self, kv, blk):
        srd, lo, base, pad = (sK, 0, sWK, PK - 1024) if kv == 'K' else (sV, HK, sWV, PV_ - 1024)
        lds = ((blk >> 1) % 3) * SS + (blk & 1) * SLOT + lo
        o = []
        for n in range(2):
            if n == 0: b = [Ins("s_add_u32 m0, s%d, %d" % (base, lds)), Ins("s_add_u32 s%d, s%d, %d" % (sT2, sWG, blk * 8192))]
            else: b = [Ins("s_add_u32 m0, m0, %d" % pad)]
            b.append(self.tagged("buffer_load_dwordx4 v%d, s[%d:%d], s%d offen offset:%d %s lds" % (vDMA, srd, srd + 3, sT2, 1024 * n, self.c.dflag), "%s%d" % (kv, blk)))
            o.append(b)
        return o
    def qbuf(self, t):
        k = self.NT - 1 - t
        if k < 4: return sQS, vQA, (k >> 1) * SS + (k & 1) * QT
        return sStg, vQB, (k - 4) * QT
    def qload(self, t):
        sb, _, off = self.qbuf(t)
        o = []
        for n in range(4):
            if n == 0: b = [Ins("s_add_u32 m0, s%d, %d" % (sb, off)), Ins("s_sub_u32 s%d, s%d, %d" % (sT1, sQT, (self.NT - 1 - t) * 4096))]
            else: b = [Ins("s_add_u32 m0, m0, %d" % (PV_ - 1024))]
            b.append(self.tagged("buffer_load_dwordx4 v%d, s[%d:%d], s%d offen offset:%d %s lds" % (vDMA, sQ, sQ + 3, sT1, n * 1024, self.c.qflag), "Q%d" % t))
            o.append(b)
        return o
    def waitv(self, grp):
        i = Ins("s_waitcnt vmcnt(0)"); self.group[id(i)] = "W:" + grp; return i
    def scale(self, t):
        o = []
        tb = 32 * t + 16 if t < 6 else 16
        _, va, off = self.qbuf(t)
        for ds in range(4):
            o.append("ds_read_b128 %s, v%d offset:%d" % (rn('v', 32 * t + 4 * ds, 4), va, off + ds * 64))
        for r in range(16):
            q = 32 * t + r
            a, b = tb + 2 * (r % 5), tb + 2 * (r % 5) + 1
            o.append("v_lshlrev_b32 v%d, 16, v%d" % (a, q))
            o.append("v_and_b32 v%d, 0xffff0000, v%d" % (b, q))
            o.append("v_mul_f32 v%d, s%d, v%d" % (a, sC, a))
            o.append("v_mul_f32 v%d, s%d, v%d" % (b, sC, b))
            o.append("v_cvt_pk_bf16_f32 v%d, v%d, v%d" % (a, a, b))
            o.append("v_accvgpr_write_b32 a%d, v%d" % (Q(t, 0) + r, a))
        return o
    def seg(self, head, body, bundles=(), span=(0.0, 0.8)):
        self.code += self.ts2() + [I(x) for x in head] + self.ts2()
        b = schedule([I(x) for x in body], self.c.verbose) if body else []
        n = len(b)
        k = len(bundles)
        pos = [int(n * (span[0] + (span[1] - span[0]) * j / max(k, 1))) for j in range(k)]
        j = 0
        for i in range(n + 1):
            while j < k and pos[j] <= i:
                self.code += bundles[j]; j += 1
            if i < n: self.code.append(b[i])
    def ts2(self):
        if not (self.c.diag and self.c.tsmode == 2): return []
        self.nts = getattr(self, 'nts', 1) + 1
        k = self.nts - 1
        reg = 48 + k if k < 16 else 88 + k - 16
        assert k < 30, k
        return [Ins("s_memtime s[46:47]"), Ins("s_waitcnt lgkmcnt(0)"), Ins("s_mov_b32 s%d, s46" % reg)]
    def ts(self, idx):
        if not self.c.diag or self.c.tsmode == 2: return []
        return [Ins("s_memrealtime s[44:45]"), Ins("s_memtime s[46:47]"), Ins("s_waitcnt lgkmcnt(0)"),
                Ins("s_mov_b32 s%d, s44" % (48 + 2 * idx)), Ins("s_mov_b32 s%d, s46" % (49 + 2 * idx))]

    def pin(self, ins, after):
        self.npin = getattr(self, 'npin', 0) + 1
        after.W.add("pin%d" % self.npin); ins.R.add("pin%d" % self.npin)
        return ins
    def fence(self, grp, after, bar=False, lgkm0=False, frees=()):
        w = self.waitv(grp)
        if after is not None: self.pin(w, after)
        o = self.ts2c() + [w]
        if bar: o.append(Ins("s_barrier", lgkm0=lgkm0))
        o[-1].W.add("L:" + grp)
        for f in frees: o[-1].W.add("L:" + f)
        if after is not None and len(o) > 1 and self.c.tsmode == 2 and self.c.diag: self.pin(o[0], after)
        return o + self.ts2c()
    def ts2c(self):
        o = self.ts2()
        for x in o: x.R.add("vmq"); x.W.add("vmq")
        return o
    def weave(self, body, bundles, span=(0.0, 0.9)):
        n, k = len(body), len(bundles)
        pos = [int(n * (span[0] + (span[1] - span[0]) * j / max(k, 1))) for j in range(k)]
        o = []; j = 0
        for i in range(n):
            o.append(body[i])
            while j < k and pos[j] <= i:
                self.pin(bundles[j][-1], body[i]); o += bundles[j]; j += 1
        return o
    def prologue(self):
        c, NT, tau = self.c, self.NT, self.tau
        T = NT - 1
        II = lambda l, **kw: [I(x, **kw) for x in l]
        G0 = lambda t: [g for g in range(4) if tau[g] <= t]
        seq = self.share('K', 0) + self.qload(T) + self.share('K', 1) + self.qload(T - 1) + self.share('V', 0) + self.share('V', 1)
        for t in range(T - 2, -1, -1): seq += self.qload(t)
        nq = len(seq)
        for b in (2, 3): seq += self.share('K', b) + self.share('V', b)
        n1 = len(seq)
        for b in (4, 5): seq += self.share('K', b) + self.share('V', b)
        grp = [self.group[id(b[-1])] for b in seq]
        state = [0]
        def nxt(g, cap=None):
            want = c.first if g is None else max(j for j, x in enumerate(grp) if x == g) + 1 + c.lead
            want = min(want, len(seq) if cap is None else cap)
            r = seq[state[0]:want]
            state[0] = max(state[0], want)
            return r
        self.first = nxt(None, nq)
        self.code += [Ins("v_mov_b32 v%d, 0" % Lr(t)) for t in range(NT)]
        misc = ["s_mov_b32 s%d, %d" % (sRd, 2 * SS), "s_mov_b32 s%d, %d" % (sIncW, (-2 * SS) & 0xffffffff), "s_mov_b32 s%d, %d" % (sIncN, SS)]
        misc += ["s_mov_b32 s%d, %d" % (sCnt, 14 if NT == 7 else 28)]
        if self.dma:
            misc += ["s_mov_b32 s%d, %d" % (sG + i, 4 * 16384 + 4096 * i) for i in range(4)]
            misc += ["s_mov_b32 s%d, %d" % (sSl, SS)]
        if c.obias:
            misc += ["s_mov_b32 s%d, 0xff800000" % sMask, "v_mov_b32 v%d, 0x00400000" % vHalf, "s_add_u32 s%d, s%d, %d" % (sT0, sStg, PARK),
                     "v_bfe_u32 v%d, v%d, 8, 2" % (vPK, vDMA), "v_lshl_add_u32 v%d, v%d, 4, s%d" % (vPK, vPK, sT0)]
        self.code += II(misc)
        def scale(t):
            o = II(self.scale(t))
            for x in o[:4]: x.R.add("L:Q%d" % t)
            return o
        UA = lambda t: (NT + 1) - 1 - t
        UB = lambda t: NT + t
        prog = self.fence("Q%d" % T, None)
        a = scale(T)
        prog += self.weave(a, nxt("K1", nq))
        prog += self.fence("K1", a[len(a) // 2], bar=True)
        body = II([self.kread(g, ds) for g in range(4) for ds in range(4)], xr=["L:K1"])
        for g in range(4): body += II(self.qk(T, g, S(g), raw=True))
        x, y = 26, 29
        b2 = ["v_max3_f32 v%d, v%d, v%d, v%d" % (x, S(0), S(0) + 1, S(0) + 2),
              "v_max3_f32 v%d, v%d, v%d, v%d" % (x, x, S(0) + 3, S(0) + 4),
              "v_max3_f32 v%d, v%d, v%d, v%d" % (x, x, S(0) + 5, S(0) + 6),
              "v_max_f32 v%d, v%d, v%d" % (x, x, S(0) + 7)]
        for sw in ("v_permlane32_swap_b32", "v_permlane16_swap_b32"):
            b2 += ["v_mov_b32 v%d, v%d" % (y, x), "%s v%d, v%d" % (sw, x, y), "v_max_f32 v%d, v%d, v%d" % (x, x, y)]
        for k in (8, 4, 2, 1):
            b2.append("v_max_f32_dpp v%d, v%d, v%d row_ror:%d row_mask:0xf bank_mask:0xf" % (x, x, x, k))
        for i in range(4):
            b2.append("v_sub_f32 v%d, 0x%08x, v%d" % (CI + i, f2u(-c.bias), x))
        for g in range(4):
            for i in range(4):
                b2.append("v_add_f32 v%d, v%d, v%d" % (S(g) + i, S(g) + i, CI))
            b2 += self.softmax(T, S(g), P(UA(T), g >> 1) + 2 * (g & 1))
        body += II(b2)
        prog += self.weave(body, nxt("Q%d" % (T - 1), nq), (0.0, 0.25))
        last = body[31]
        sidx = [0]
        def unit(t, gs, U, post=None):
            o = []
            for g in gs:
                sb = S(sidx[0]); sidx[0] += 1
                o += II(self.qk(t, g, sb))
                if post: o += post(g, o[-1])
                o += II(self.softmax(t, sb, P(U, g >> 1) + 2 * (g & 1)))
            return o
        gorder = sorted(range(4), key=lambda g: tau[g])
        kfence = {}
        def kreload(g, after):
            o = []
            name = "K%d" % (2 + (g >> 1))
            if name not in kfence:
                kfence[name] = 1
                o += self.fence(name, after, bar=True, lgkm0=(name == "K2"), frees=["Q%d" % (T - 2), "Q%d" % (T - 3)])
            return o + II([self.kread(g, ds, SS) for ds in range(4)], xr=["L:" + name])
        for t in range(T - 1, -1, -1):
            prog += self.fence("Q%d" % t, last)
            a = scale(t)
            if t == T - 1:
                prog += self.weave(a, nxt("V1", nq), (0.0, 0.5))
                prog += self.fence("V1", a[int(len(a) * 0.6)], bar=True, lgkm0=True, frees=["Q%d" % T, "Q%d" % (T - 1)])
                a = II([self.vread(g, db) for db in range(8) for g in range(4)], xr=["L:V1"])
                a += II(self.vmax())
            a += self.pv_first(t + 1, lambda ks: P(UA(t + 1), ks))
            if t > 0:
                u = unit(t, range(4), UA(t))
                vs = [i for i in a + u if isvalu(i)]
                bl = nxt("Q%d" % (t - 1), n1)
                body = a + u
                cut = body.index(u[-10])
                prog += self.weave(body[:cut], bl) + body[cut:]
                last = u[-10]
            else:
                prog += self.weave(a, nxt("V3", n1))
        u = unit(0, gorder, UA(0), post=lambda g, m: kreload(g, m) if g < 2 else [])
        prog += u
        pv0 = self.pv_first(0, lambda ks: P(UA(0), ks))
        prog += pv0[:-14] + self.fence("V2", pv0[-15], bar=True) + pv0[-14:]
        for g in gorder[:2]:
            prog += II([self.vread(g, db, SS) for db in range(8)], xr=["L:V2"])
        body = []
        for t in range(1, NT):
            u = unit(t, [g for g in gorder if g in G0(t)], UB(t))
            body += u
            if t == 1:
                for g in gorder[2:]: body += kreload(g, u[-1])
            if t == 2:
                body += self.fence("V3", u[-1], bar=True)
                for g in gorder[2:]:
                    body += II([self.vread(g, db, SS) for db in range(8)], xr=["L:V3"])
                body += II(["v_add_u32 v%d, %d, v%d" % (vAK, 2 * SS, vAK), "v_add_u32 v%d, %d, v%d" % (vAV, 2 * SS, vAV)])
            if t < T: body += II(self.pv(t, G0(t), lambda ks: P(UB(t), ks)))
        body += II(self.qk(0, 0, S(0)) + self.qk(0, 1, S(1)))
        prog += self.weave(body, nxt("V5"), (0.0, c.pb_hi))
        self.code += schedule(prog, c.verbose, order=True)

    def period(self, p):
        c, NT = self.c, self.NT
        first = p == 2
        gaps = []
        NS = 2 * NT
        for n in range(NS):
            t, hh = n >> 1, n & 1
            U = NT * p + t
            n1 = (n + 1) % NS
            t1, ks1 = n1 >> 1, n1 & 1
            ms = self.qk(t1, 2 * ks1, S(2 * ks1)) + self.qk(t1, 2 * ks1 + 1, S(2 * ks1 + 1))
            ms += self.pv((t - 1) % NT, range(4), lambda ks: P(U - 1, ks), range(4 * hh, 4 * hh + 4))
            for i in range(16):
                s_ = S(2 * hh) + i // 2
                if i % 2 == 0: v = ["v_exp_f32 v%d, v%d" % (s_, s_)]
                else:
                    v = ["v_add_f32 v%d, v%d, v%d" % (Lr(t), Lr(t), s_)]
                    if i % 4 == 3: v.append("v_cvt_pk_bf16_f32 v%d, v%d, v%d" % (P(U, hh) + i // 4, s_ - 1, s_))
                gaps.append(dict(m=ms[i], s=[], d=[], v=v))
        NG = len(gaps)
        if c.stall:
            for i in range(15, NG, 16): gaps[i]['v'].append("s_nop %d" % (c.stall - 1))
        for (kind, g, x), pos in self.rd.items():
            gaps[pos]['d'].append(self.kread(g, x) if kind == 'K' else self.vread(g, x))
        gaps[0]['s'].append(Ins("s_barrier", lgkm0=True))
        gaps[2]['s'].append("s_add_u32 s%d, s%d, %d" % (sRd, sRd, SS))
        gaps[3]['s'].append("s_cmp_eq_u32 s%d, %d" % (sRd, RING))
        gaps[4]['s'].append("s_cselect_b32 s%d, s%d, s%d" % (sInc, sIncW, sIncN))
        gaps[5]['s'].append("s_cselect_b32 s%d, 0, s%d" % (sRd, sRd))
        last = max(self.rd.values())
        assert last < NG - 7
        gaps[NG - 7]['v'].append("v_add_u32 v%d, s%d, v%d" % (vAK, sInc, vAK))
        gaps[NG - 3]['v'].append("v_add_u32 v%d, s%d, v%d" % (vAV, sInc, vAV))
        lo = 8
        if first:
            for kind, ks, grp in (('V', 0, "V4"), ('K', 1, "K5"), ('V', 1, "V5")):
                f = min(pos for (k, g, x), pos in self.rd.items() if k == kind and g >> 1 == ks)
                f = min(f, c.p1bar[grp])
                gaps[f - 1]['s'].append(self.waitv(grp))
                gaps[f]['s'].append(Ins("s_barrier"))
            bl = []
            for blk in (6, 7): bl += self.share('K', blk) + self.share('V', blk)
            hi = int(NG * c.sh_hi)
            self.place(gaps, bl, lo, hi)
            lo = int(NG * c.s3_lo)
        if self.dma:
            bl = []
            for blk in range(2):
                for srd, l0, st in ((sK, 0, PK), (sV, HK, PV_)):
                    for a in range(2):
                        for n in range(4):
                            bl.append([Ins("s_add_u32 m0, s%d, %d" % (sSl, blk * SLOT + l0 + 4 * st * a + (st - 1024) * n)),
                                       self.tagged("buffer_load_dwordx4 v%d, s[%d:%d], s%d offen offset:%d %s lds" % (vDMA, srd, srd + 3, sG + 2 * blk + a, 1024 * n, c.dflag), "S")])
            self.place(gaps, bl, lo, NG - 12)
            for i in range(4):
                gaps[NG - 11 + i]['s'].append("s_add_u32 s%d, s%d, 16384" % (sG + i, sG + i))
            gaps[NG - 7]['s'].append("s_add_u32 s%d, s%d, %d" % (sSl, sSl, SS))
            gaps[NG - 6]['s'].append("s_cmp_eq_u32 s%d, %d" % (sSl, RING))
            gaps[NG - 5]['s'].append("s_cselect_b32 s%d, 0, s%d" % (sSl, sSl))
        if first: gaps[NG - 1]['s'].append(self.waitv("V7"))
        elif self.dma: gaps[NG - 1]['s'].append("s_waitcnt vmcnt(32)")
        return gaps
    def place(self, gaps, bundles, lo, hi):
        cand = [i for i in range(lo + 2, hi) if not gaps[i]['d'] and len(gaps[i]['v']) == 1]
        k = len(bundles)
        prev = lo - 1
        for j, b in enumerate(bundles):
            tgt = lo + 2 + (hi - lo - 2) * j / k
            ns = len(b) - 1
            cc = [i for i in cand if i - ns >= prev]
            i = min(cc, key=lambda i: abs(i - tgt) - (2.5 if i % 2 else 0))
            for q, ins in enumerate(b[:-1]):
                gi = i - ns + q
                if gi == prev: gaps[gi]['d'].append(ins)
                else: gaps[gi]['s'].append(ins)
            gaps[i]['d'].append(b[-1])
            prev = i
    def flat(self, gaps):
        o = []
        for g in gaps:
            o.append(I(g['m']))
            o += [I(x) for x in g['s'] + g['d'] + g['v']]
        return o

    def finalize(self, t, k, Lm, packs, acct, first, Ofn=O, Lreg=None, land=None, soff=None, pk=False, one=None, nb=None):
        c = self.c
        buf = k & 1
        st = "L:st%d" % buf
        Lreg = Lr(t) if Lreg is None else Lreg
        land = Q(t, 0) if land is None else land
        o = ["v_mfma_f32_16x16x4_f32 %s, v%d, a%d, 0" % (rn('v', Lm, 4), Lreg, one)]
        if first is not None:
            for op, r in (("v_max3_u32", vAK), ("v_min3_u32", vAV)):
                if first:
                    o.append("%s v%d, v%d, v%d, v%d" % (op, r, Lm, Lm + 1, Lm + 2))
                    o.append("%s v%d, v%d, v%d, v%d" % (op, r, r, Lm + 3, Lm + 3))
                else:
                    o.append("%s v%d, v%d, v%d, v%d" % (op, r, r, Lm, Lm + 1))
                    o.append("%s v%d, v%d, v%d, v%d" % (op, r, r, Lm + 2, Lm + 3))
        for r in range(4): o.append("v_rcp_f32 v%d, v%d" % (Lm + r, Lm + r))
        if nb is not None:
            o.append("ds_read_b128 %s, v%d offset:%d" % (rn('v', nb, 4), vAK, 64 * t))
            for r in range(4): o.append("v_mul_f32 v%d, v%d, v%d" % (nb + r, nb + r, Lm + r))
        loc = {}
        for db in range(8):
            f, b = Ofn(t, db)
            if f == 'a':
                for r in range(4):
                    o.append("v_accvgpr_read_b32 v%d, a%d" % (acct + 4 * (db - 4) + r, b + r))
                b = acct + 4 * (db - 4)
            loc[db] = b
        if pk:
            for db in range(8):
                for r in (0, 2):
                    if nb is None: o.append("v_pk_mul_f32 %s, %s, %s" % (rn('v', loc[db] + r, 2), rn('v', loc[db] + r, 2), rn('v', Lm + r, 2)))
                    else: o.append("v_pk_fma_f32 %s, %s, %s, %s neg_lo:[0:0:1] neg_hi:[0:0:1]" % (rn('v', loc[db] + r, 2), rn('v', loc[db] + r, 2), rn('v', Lm + r, 2), rn('v', nb + r, 2)))
        for r in range(4):
            for db in range(8):
                if not pk: o.append("v_mul_f32 v%d, v%d, v%d" % (loc[db] + r, loc[db] + r, Lm + r))
            pb = packs[r % len(packs)]
            for j in range(4):
                o.append("v_cvt_pk_bf16_f32 v%d, v%d, v%d" % (pb + j, loc[2 * j] + r, loc[2 * j + 1] + r))
            o.append(Ins("ds_write_b128 v%d, %s offset:%d" % (vEW, rn('v', pb, 4), r * 320 + buf * 5120), xw=[st + "r%d" % r]))
        if soff is None:
            soff = sSt + t
            o.append("s_add_u32 s%d, s%d, %d" % (soff, sQo, t * 4096))
        for a in range(4):
            for sel in range(2):
                o.append(Ins("ds_read_b64_tr_b16 %s, v%d offset:%d" % (rn('a', land + 4 * a + 2 * sel, 2), vER, a * 1280 + 64 * sel + buf * 5120), xr=[st + "r%d" % r for r in range(4)]))
        for a in range(4 if not c.nostore else 0):
            o.append("buffer_store_dwordx4 %s, v%d, s[%d:%d], s%d offen offset:%d %s" % (rn('a', land + 4 * a, 4), vDMA, sO, sO + 3, soff, a * 1024, c.oflag))
        return o

    def tail(self):
        c, NT, tau = self.c, self.NT, self.tau
        T = NT - 1
        U = NT * 31
        G1 = lambda t: [g for g in range(4) if tau[g] > t]
        ring = dict(xr=["L:ring"])
        prog = [Ins("s_barrier", lgkm0=True, xw=["L:ring"])]
        prog += self.pv(T, range(4), lambda ks: P(U - 1, ks))
        sidx = 0
        for t in range(NT):
            gs = G1(t)
            if not gs: continue
            pb = (lambda u: (lambda ks: P(u, ks)))(U); U += 1
            for g in gs:
                sb = S(sidx); sidx += 1
                if not (t == 0 and g < 2): prog += self.qk(t, g, sb)
                if tau[g] == t + 1: prog += [Ins(self.kread(g, ds), **ring) for ds in range(4)]
                prog += self.softmax(t, sb, pb(g >> 1) + 2 * (g & 1))
            prog += self.pv(t, gs, pb)
            for db in range(8):
                prog += [Ins(self.vread(g, db), **ring) for g in gs if tau[g] == t + 1]
        order = [t for t in range(NT) if not G1(t)] + [t for t in range(NT) if G1(t)]
        gorder = sorted(range(4), key=lambda g: tau[g])
        pool = 32 * order[0]
        for k, t in enumerate(order):
            pb = (lambda u: (lambda ks: P(u, ks)))(U); U += 1
            for g in (gorder if k == 0 else range(4)):
                sb = S(sidx); sidx += 1
                prog += self.qk(t, g, sb)
                prog += self.softmax(t, sb, pb(g >> 1) + 2 * (g & 1))
            prog += self.pv(t, range(4), pb)
            pk = k >= len(order) - c.pkmul
            one = Q(t, 0)
            prog.append("v_accvgpr_write_b32 a%d, 1.0" % one)
            N = lambda x: x if c.obias else None
            assert pk or not c.obias
            if k == 0:
                if c.obias: prog += ["v_bfe_u32 v%d, v%d, 8, 2" % (vAK, vDMA), "v_lshl_add_u32 v%d, v%d, 4, s%d" % (vAK, vAK, sT0)]
                prog += self.finalize(t, k, pb(0), [pb(0), pb(1)], None, None, pk=pk, one=one, nb=N(pb(1)))
            elif t == 6: prog += self.finalize(t, k, pool + 8 * (k & 1), [pool, pool + 4, pool + 8, pool + 12], pool + 16, None, pk=pk, one=one, nb=N(pool + 8 * (k & 1) + 4))
            else: prog += self.finalize(t, k, pool + 8 * (k & 1), [pool + 16, pool + 20, pool + 24, pool + 28], None, None, pk=pk, one=one, nb=N(pool + 8 * (k & 1) + 4))
        ls = [Lr(t) for t in range(NT)] + [Lr(0)]
        for op, r in (("v_max3_u32", vAK), ("v_min3_u32", vAV)):
            prog.append("%s v%d, v%d, v%d, v%d" % (op, r, ls[0], ls[1], ls[2]))
            prog.append("%s v%d, v%d, v%d, v%d" % (op, r, r, ls[3], ls[4]))
            prog.append("%s v%d, v%d, v%d, v%d" % (op, r, r, ls[5], ls[6]))
        return schedule([I(x) for x in prog], c.verbose, order=True, dswcost=c.dswcost)

    def resolve_waits(self, seq):
        issued = [self.group[id(b[-1])] for b in self.first]
        issued.insert(self.c.pfpos, None)
        for i in seq:
            g = self.group.get(id(i))
            if i.kind in ("dma", "vload", "vstore"): issued.append(g)
            elif g and g.startswith("W:"):
                last = max(j for j, x in enumerate(issued) if x == g[2:])
                i.text = "s_waitcnt vmcnt(%d)" % min(63, len(issued) - 1 - last)

    def build(self):
        c, NT, tag = self.c, self.NT, self.tag
        self.code = [Ins("L_wave_%s:" % tag)]
        self.prologue()
        self.code += self.ts(1) + self.ts(2)
        self.code += self.ts2()
        self.code.append(self.waitv("K4"))
        self.code += self.flat(self.period(2)) + self.ts2()
        self.code += self.ts(3)
        self.resolve_waits(self.code)
        head, pend = insert_lgkm(self.code)
        assert not pend
        head = pad_hazards(head)
        gaps = self.period(3)
        if NT == 7: gaps += self.period(4)
        gaps[-4]['s'].append("s_sub_u32 s%d, s%d, 1" % (sCnt, sCnt))
        gaps[-2]['s'].append("s_cmp_lg_u32 s%d, 0" % sCnt)
        body, pend = insert_lgkm(self.flat(gaps))
        assert not pend
        body.append(Ins("s_cbranch_scc1 L_loop_%s" % tag))
        pad_hazards(body, hist=head[-16:], fix=False, name="loop entry")
        pad_hazards(body, hist=body[-16:], fix=False, name="loop back")
        tail = self.ts(4) + self.tail()
        tail += [Ins("v_cmp_le_u32 vcc, 0x%08x, v%d" % (f2u(2.0 ** c.hi_exp), vAK)),
                 Ins("s_mov_b64 s[%d:%d], vcc" % (sT1, sT1 + 1)),
                 Ins("v_cmp_ge_u32 vcc, 0x%08x, v%d" % (f2u(2.0 ** c.lo_exp), vAV)),
                 Ins("s_or_b64 s[%d:%d], s[%d:%d], vcc" % (sT1, sT1 + 1, sT1, sT1 + 1)),
                 Ins("s_mov_b32 s%d, %d" % (sNT, NT)),
                 Ins("s_cbranch_scc1 L_slow" if not c.force_slow else "s_branch L_slow")]
        tail += self.ts(5)
        if c.diag: tail += [Ins("s_waitcnt vmcnt(0)")] + self.ts(6)
        tail.append(Ins("s_branch L_fin" if (c.diag or c.twice or c.idle) else "s_endpgm"))
        tail, pend = insert_lgkm(tail)
        tail = pad_hazards(tail, hist=body[-16:])
        return head + [Ins(".p2align 6"), Ins("L_loop_%s:" % tag)] + body + tail

class Gen:
    def __init__(self, cfg):
        self.c = cfg
    def slow(self):
        c = self.c
        w = Wave(self, 7, False, "s")
        o = []
        e = lambda s: o.extend(Ins(l) for l in s.strip().split("\n"))
        vL, vKA, vVA, vQA, vM, vX = 64, 65, 66, 67, 68, 69
        KF = lambda kg, ds: 72 + 16 * kg + 4 * ds
        VF = lambda db: 104 + 4 * db
        QF = lambda ds: 136 + 4 * ds
        SB, PB, LM, PKB = 152, 160, 164, 168
        e("L_slow:")
        e("s_waitcnt vmcnt(0) lgkmcnt(0)")
        e("v_lshrrev_b32 v%d, 4, v%d" % (vX, vDMA))
        e("v_and_b32 v%d, 7, v%d\nv_lshlrev_b32 v%d, 10, v%d" % (vM, vX, vKA, vM))
        e("v_and_b32 v%d, 8, v%d\nv_lshl_add_u32 v%d, v%d, 5, v%d" % (vM, vX, vKA, vM, vKA))
        e("v_and_b32 v%d, 48, v%d\nv_add_u32 v%d, v%d, v%d" % (vM, vX, vKA, vM, vKA))
        e("v_and_b32 v%d, 15, v%d\nv_lshlrev_b32 v%d, 8, v%d" % (vM, vX, vQA, vM))
        e("v_and_b32 v%d, 48, v%d\nv_add_u32 v%d, v%d, v%d" % (vM, vX, vQA, vM, vQA))
        e("v_bfe_u32 v%d, v%d, 2, 3\nv_mul_u32_u24 v%d, %d, v%d" % (vM, vX, vVA, PV_, vM))
        e("v_and_b32 v%d, 32, v%d\nv_lshl_add_u32 v%d, v%d, 3, v%d" % (vM, vX, vVA, vM, vVA))
        e("v_and_b32 v%d, 1, v%d\nv_lshl_add_u32 v%d, v%d, 3, v%d" % (vM, vX, vVA, vM, vVA))
        e("v_and_b32 v%d, 2, v%d\nv_lshl_add_u32 v%d, v%d, 6, v%d" % (vM, vX, vVA, vM, vVA))
        e("v_add_u32 v%d, s%d, v%d" % (vVA, sStg, vVA))
        e("s_mov_b32 s%d, 0" % sTile)
        e("L_slow_tile:")
        e("s_lshl_b32 s%d, s%d, 12\ns_add_u32 s%d, s%d, s%d" % (sSt, sTile, sSt, sSt, sQo))
        for ds in range(4):
            e("buffer_load_dwordx4 %s, v%d, s[%d:%d], s%d offen offset:%d" % (rn('v', QF(ds), 4), vQA, sQ, sQ + 3, sSt, ds * 64))
        e("s_waitcnt vmcnt(0)")
        for r in range(16):
            q = QF(0) + r
            e("v_lshlrev_b32 v%d, 16, v%d\nv_and_b32 v%d, 0xffff0000, v%d" % (vM, q, vX, q))
            e("v_mul_f32 v%d, s%d, v%d\nv_mul_f32 v%d, s%d, v%d" % (vM, sC, vM, vX, sC, vX))
            e("v_cvt_pk_bf16_f32 v%d, v%d, v%d" % (q, vM, vX))
        def kload():
            for kg in range(2):
                for ds in range(4):
                    e("buffer_load_dwordx4 %s, v%d, s[%d:%d], s%d offen offset:%d" % (rn('v', KF(kg, ds), 4), vKA, sK, sK + 3, sBlk, kg * 512 + ds * 64))
        def qk(raw):
            for kg in range(2):
                for ds in range(4):
                    e(mfma(('v', SB + 4 * kg), ('v', KF(kg, ds)), ('v', QF(ds)), (None if raw else ('v', CI)) if ds == 0 else ('v', SB + 4 * kg)))
        e("v_mov_b32 v%d, 0xff800000\ns_mov_b32 s%d, 0" % (vM, sBlk))
        e("L_slow_max:")
        kload()
        e("s_waitcnt vmcnt(0)")
        qk(True)
        e("s_nop 7")
        for i in range(0, 8, 2):
            e("v_max3_f32 v%d, v%d, v%d, v%d" % (vM, vM, SB + i, SB + i + 1))
        e("s_add_u32 s%d, s%d, 8192\ns_cmp_lt_u32 s%d, 524288\ns_cbranch_scc1 L_slow_max" % (sBlk, sBlk, sBlk))
        for sw in ("v_permlane32_swap_b32", "v_permlane16_swap_b32"):
            e("v_mov_b32 v%d, v%d\n%s v%d, v%d\nv_max_f32 v%d, v%d, v%d" % (vX, vM, sw, vM, vX, vM, vM, vX))
        for i in range(4): e("v_sub_f32 v%d, 0, v%d" % (CI + i, vM))
        for r in range(32): e("v_mov_b32 v%d, 0" % r)
        e("v_mov_b32 v%d, 0\ns_mov_b32 s%d, 0" % (vL, sBlk))
        e("L_slow_pv:")
        kload()
        e("s_add_u32 s%d, s%d, 4096" % (sT0, sBlk))
        for a in range(2):
            for n in range(4):
                e("s_add_u32 m0, s%d, %d" % (sStg, 4 * PV_ * a + (PV_ - 1024) * n))
                e("buffer_load_dwordx4 v%d, s[%d:%d], s%d offen offset:%d lds" % (vDMA, sV, sV + 3, sT0 if a else sBlk, 1024 * n))
        e("s_waitcnt vmcnt(0)")
        for db in range(8):
            for hb in range(2):
                e("ds_read_b64_tr_b16 %s, v%d offset:%d" % (rn('v', VF(db) + 2 * hb, 2), vVA, hb * 512 + db * 16))
        qk(False)
        e("s_nop 7")
        for i in range(8):
            e("v_exp_f32 v%d, v%d" % (SB + i, SB + i))
        for i in range(8):
            e("v_add_f32 v%d, v%d, v%d" % (vL, vL, SB + i))
        for i in range(4):
            e("v_cvt_pk_bf16_f32 v%d, v%d, v%d" % (PB + i, SB + 2 * i, SB + 2 * i + 1))
        e("s_waitcnt lgkmcnt(0)")
        for db in range(8):
            e(mfma(('v', 4 * db), ('v', PB), ('v', VF(db)), ('v', 4 * db)))
        e("s_nop 7")
        e("s_add_u32 s%d, s%d, 8192\ns_cmp_lt_u32 s%d, 524288\ns_cbranch_scc1 L_slow_pv" % (sBlk, sBlk, sBlk))
        e("v_accvgpr_write_b32 a16, 1.0")
        o.extend(I(x) for x in w.finalize(0, 0, LM, [PKB], None, None, Lreg=vL, soff=sSt, one=16))
        e("s_waitcnt vmcnt(0) lgkmcnt(0)")
        e("s_add_u32 s%d, s%d, 1\ns_cmp_lt_u32 s%d, s%d\ns_cbranch_scc1 L_slow_tile" % (sTile, sTile, sTile, sNT))
        o, _ = insert_lgkm(o, hoist=False)
        return pad_hazards(o)

    def build(self):
        c = self.c
        o = []
        e = lambda s: o.extend(Ins(l) for l in s.strip().split("\n"))
        e("s_cmp_ge_u32 s2, 256\ns_cbranch_scc1 L_end")
        if c.twice: e("s_mov_b32 s90, 0\nL_again:")
        e("s_load_dwordx4 s[4:7], s[0:1], 0\ns_load_dwordx4 s[8:11], s[0:1], 16")
        if c.diag:
            e("s_load_dwordx2 s[40:41], s[0:1], %d" % (32 if c.dbgout else 40))
            e("s_memrealtime s[44:45]\ns_memtime s[46:47]\ns_waitcnt lgkmcnt(0)\ns_mov_b32 s48, s44\ns_mov_b32 s49, s46")
            if c.tsmode == 2: e("s_mov_b32 s48, s46")
        wa, wb = Wave(self, 7, False, "a"), Wave(self, 6, True, "b")
        ca, cb = wa.build(), wb.build()
        assert [[x.text for x in b] for b in wa.first] == [[x.text for x in b] for b in wb.first]
        e("v_lshrrev_b32 v1, 6, v0")
        e("v_and_b32 v5, 63, v0")
        e("v_readfirstlane_b32 s%d, v1" % sW)
        e("v_lshlrev_b32 v%d, 4, v5" % vDMA)
        e("s_mul_i32 s%d, s2, 110592" % sT0)
        e("s_lshl_b32 s3, s2, 19")
        e("s_mov_b32 s%d, 524288\ns_mov_b32 s%d, 0x20000\ns_mov_b32 s%d, 110592\ns_mov_b32 s%d, 0x20000" % (sK + 2, sK + 3, sQ + 2, sQ + 3))
        e("s_mul_i32 s%d, s%d, %d" % (sQo, sW, 112 * 256))
        e("s_add_u32 s%d, s%d, %d\ns_min_u32 s%d, s%d, %d" % (sQT, sQo, 6 * 4096, sQT, sQT, 26 * 4096))
        e("s_mul_i32 s%d, s%d, %d" % (sWK, sW, 2 * PK))
        e("s_lshl_b32 s%d, s%d, 11" % (sWG, sW))
        e("s_mul_i32 s%d, s%d, %d\ns_add_u32 s%d, s%d, %d" % (sQS, sW, 2 * QT, sQS, sQS, SS))
        e("s_waitcnt lgkmcnt(0)")
        def srd(r, src, offs):
            e("s_add_u32 s%d, s%d, s%d\ns_addc_u32 s%d, s%d, 0" % (r, src, offs, r + 1, src + 1))
        srd(sK, 6, 3); srd(sQ, 4, sT0)
        for b in wa.first[:c.pfpos]: o.extend(b)
        e("s_getpc_b64 s[38:39]")
        e("L_pc:")
        e("s_lshr_b32 s%d, s2, 3\ns_and_b32 s%d, s%d, 7\ns_lshl_b32 s%d, s%d, 13" % (sC, sC, sC, sC, sC))
        e("v_lshlrev_b32 v2, 5, v0\nv_add_u32 v2, s%d, v2\nv_min_u32 v2, L_slow-L_pc, v2" % sC)
        e("global_load_dword v63, v2, s[38:39]")
        srd(sV, 8, 3); srd(sO, 10, sT0)
        e("s_mov_b32 s%d, 524288\ns_mov_b32 s%d, 0x20000\ns_mov_b32 s%d, 110592\ns_mov_b32 s%d, 0x20000" % (sV + 2, sV + 3, sO + 2, sO + 3))
        e("s_mul_i32 s%d, s%d, %d" % (sWV, sW, 2 * PV_))
        for b in wa.first[c.pfpos:]: o.extend(b)
        e("v_mov_b32 v0, v5")
        e("v_and_b32 v1, 15, v0\nv_and_b32 v2, 48, v0")
        e("s_mov_b32 s%d, 0x%08x" % (sC, f2u(math.log2(math.e) / math.sqrt(128.0))))
        e("s_mul_i32 s%d, s%d, %d\ns_add_u32 s%d, s%d, %d" % (sStg, sW, PRIV, sStg, sStg, STG))
        e("v_bfe_u32 v3, v0, 2, 2\nv_mul_u32_u24 v%d, %d, v3" % (vQA, PV_))
        e("v_and_b32 v3, 3, v0\nv_lshl_add_u32 v%d, v3, 8, v%d" % (vQA, vQA))
        e("v_add3_u32 v%d, v%d, v2, s%d\nv_add3_u32 v%d, v%d, v2, s%d" % (vQB, vQA, sStg, vQA, vQA, sQS))
        e("v_and_b32 v3, 7, v0\nv_mul_u32_u24 v%d, %d, v3" % (vAK, PK))
        e("v_and_b32 v3, 8, v0\nv_lshl_add_u32 v%d, v3, 5, v%d" % (vAK, vAK))
        e("v_add_u32 v%d, v2, v%d" % (vAK, vAK))
        e("v_and_b32 v3, 1, v0\nv_lshlrev_b32 v4, 3, v3\nv_and_b32 v3, 2, v0\nv_lshl_add_u32 v4, v3, 6, v4")
        e("v_bfe_u32 v3, v0, 2, 3\nv_mul_u32_u24 v%d, %d, v3" % (vAV, PV_))
        e("v_and_b32 v3, 32, v0\nv_lshl_add_u32 v%d, v3, 3, v%d" % (vAV, vAV))
        e("v_add_u32 v%d, v4, v%d\nv_add_u32 v%d, %d, v%d" % (vAV, vAV, vAV, HK, vAV))
        e("v_mul_u32_u24 v%d, 80, v2\nv_lshl_add_u32 v%d, v1, 4, v%d\nv_add_u32 v%d, s%d, v%d" % (vEW, vEW, vEW, vEW, sStg, vEW))
        e("v_mul_u32_u24 v%d, 20, v2\nv_and_b32 v3, 12, v0\nv_lshl_add_u32 v%d, v3, 2, v%d" % (vER, vER, vER))
        e("v_add3_u32 v%d, v%d, v4, s%d" % (vER, vER, sStg))
        e("s_cmp_eq_u32 s%d, 3" % sW)
        e("s_cbranch_scc1 L_wave_b")
        o[:] = pad_hazards(o)
        o += ca
        o += cb
        o += self.slow()
        e("L_fin:")
        if c.twice:
            e("s_waitcnt vmcnt(0) lgkmcnt(0)\ns_barrier\nv_lshrrev_b32 v0, 4, v%d\ns_lshl_b32 s91, s%d, 6\nv_add_u32 v0, s91, v0" % (vDMA, sW))
            e("s_add_u32 s90, s90, 1\ns_cmp_le_u32 s90, %d\ns_cbranch_scc1 L_again" % c.twice)
        if c.idle:
            e("s_waitcnt vmcnt(0) lgkmcnt(0)\ns_memtime s[92:93]\ns_waitcnt lgkmcnt(0)\nL_idle:\ns_memtime s[94:95]\ns_waitcnt lgkmcnt(0)\ns_sub_u32 s94, s94, s92\ns_cmp_lt_u32 s94, %d\ns_cbranch_scc1 L_idle" % c.idle)
        if c.diag and c.echo:
            i, j, m, k = c.echo
            e("s_sub_u32 s90, s%d, s%d\ns_mul_i32 s90, s90, %d\ns_lshr_b32 s90, s90, %d" % (48 + 2 * j + k, 48 + 2 * i + k, m, 5 if k else 0))
            e("L_echo:\ns_memrealtime s[94:95]\ns_waitcnt lgkmcnt(0)\ns_sub_u32 s94, s94, s60\ns_cmp_lt_u32 s94, s90\ns_cbranch_scc1 L_echo")
        elif c.diag and c.dbgout:
            e("s_cmp_lg_u32 s%d, 0\ns_cbranch_scc1 L_end" % sW)
            e("s_mov_b32 s42, 256\ns_mov_b32 s43, 0x20000\nv_mov_b32 v0, 0\ns_mov_b64 exec, 1")
            for i in range(1, 7):
                for k in range(2):
                    e("s_sub_u32 s%d, s%d, s%d" % (sT0, 48 + 2 * i + k, 48 + k))
                    e("v_mov_b32 v4, s%d" % sT0)
                    e("buffer_atomic_add v4, v0, s[40:43], 0 offen offset:%d" % (4 * (i - 1) + 24 * k))
                    e("s_waitcnt vmcnt(0)")
            e("v_mov_b32 v4, s60\nbuffer_atomic_umax v4, v0, s[40:43], 0 offen offset:48\ns_waitcnt vmcnt(0)")
            e("s_sub_u32 s%d, 0, s48\nv_mov_b32 v4, s%d\nbuffer_atomic_umax v4, v0, s[40:43], 0 offen offset:52\ns_waitcnt vmcnt(0)" % (sT0, sT0))
            e("v_mov_b32 v4, s48\nbuffer_atomic_umax v4, v0, s[40:43], 0 offen offset:56\ns_waitcnt vmcnt(0)")
        elif c.diag:
            e("s_mov_b32 s42, 0x1000000\ns_mov_b32 s43, 0x20000")
            e("s_lshl_b32 s%d, s2, 2\ns_add_u32 s%d, s%d, s%d\ns_lshl_b32 s%d, s%d, %d" % (sT0, sT0, sT0, sW, sT0, sT0, 7 if c.tsmode == 2 else 6))
            e("v_mov_b32 v0, 0")
            for i in range(0, 28 if c.tsmode == 2 else 16, 4):
                for k in range(4):
                    e("v_mov_b32 v%d, s%d" % (4 + k, 48 + i + k if i < 16 else 72 + i + k))
                e("buffer_store_dwordx4 v[4:7], v0, s[40:43], s%d offen offset:%d" % (sT0, i * 4))
                e("s_waitcnt vmcnt(0)")
        e("L_end:")
        e("s_endpgm")
        txt = ["; MHA forward, B=8 H=32 Sq=432 Sk=2048 D=128, bf16.  One workgroup per head, 4 waves (one per SIMD).",
               "; @launch grid=(256,1,1) block=(256,1,1) lds=%d" % LDS,
               '.amdgcn_target "amdgcn-amd-amdhsa--gfx950"', ".text", ".globl %s" % c.kname, ".p2align 8",
               ".type %s,@function" % c.kname, "%s:" % c.kname]
        for i in o:
            txt.append(i.text if i.kind == "label" else "    " + i.text.replace("[0:0:1]", "[0,0,1]"))
        txt.append('.section .rodata,"a"\n.p2align 6\n.amdhsa_kernel %s' % c.kname)
        txt.append("""  .amdhsa_next_free_vgpr 512
  .amdhsa_next_free_sgpr 102
  .amdhsa_accum_offset 256
  .amdhsa_group_segment_fixed_size 0
  .amdhsa_kernarg_size 48
  .amdhsa_user_sgpr_count 2
  .amdhsa_user_sgpr_kernarg_segment_ptr 1
  .amdhsa_system_sgpr_workgroup_id_x 1
.end_amdhsa_kernel""")
        return "\n".join(txt) + "\n"

if __name__ == "__main__":
    cfg = Cfg()
    out = sys.argv[1]
    for a in sys.argv[2:]:
        k, v = a.split("=")
        assert hasattr(cfg, k), k
        setattr(cfg, k, eval(v))
    open(out, "w").write(Gen(cfg).build())
```

```python
import sys, math, struct
from asmlib import *
import solve

KNAME = "standalone__mha_softmax__near_ridge"

class Cfg:
    diag = False
    kname = KNAME + "_kernel"
    dflag = "nt"
    qflag = "nt"
    oflag = "sc1"
    bias = 2.0
    force_slow = False
    pkmul = 7
    verbose = False
    lo_exp = -30
    hi_exp = 30
    tsmode = 0
    nostore = False
    lead = 10
    p1bar = dict(V2=41, K3=69, V3=112)
    pfsplit = True
    twice = 0
    echo = None
    dbgout = False
    stall = 0
    idle = 0
    dswcost = 16
    first = 14
    sh_hi = 0.35
    s3_lo = 0.5

PK, PV_ = 1056, 1040
HK = 8 * PK
SLOT = HK + 8 * PV_
SS = 2 * SLOT
RING = 3 * SS
STG = RING
QT = 4 * PV_
PRIV = 3 * QT
LDS = STG + 4 * PRIV

def O(t, db):
    if t == 6 and db >= 4: return ('a', 240 + 4 * (db - 4))
    return ('v', 32 * t + 4 * db)
def S(i): return 208 + 4 * (i & 3)
def P(U, ks): return 224 + 8 * (U & 1) + 4 * ks
CI = 240
def Lr(t): return 244 + t
vAK, vAV, vDMA, vEW, vER = 251, 252, 253, 254, 255
vQA, vQB = 30, 31
def Q(t, ds): return 16 * t + 4 * ds
def Kf(g, ds): return 112 + 16 * g + 4 * ds
def Vf(db, ks): return 176 + 8 * db + 4 * ks

sQ, sK, sV, sO = 12, 16, 20, 24
sW, sCnt, sInc, sRd, sC, sQo, sSl = 28, 29, 30, 31, 32, 33, 34
sT0, sT1, sT2 = 35, 36, 37
sG = 64
sWK, sWV, sWG = 68, 69, 70
sIncW, sIncN = 71, 72
sNT, sTile, sBlk, sStg, sQS = 73, 74, 75, 76, 77
sSt = 80

def rn(f, b, n): return "%s[%d:%d]" % (f, b, b + n - 1)
def mfma(D, A, B, C, half=False):
    n = 2 if half else 4
    cs = "0" if C is None else rn(C[0], C[1], 4)
    op = "v_mfma_f32_16x16x16_bf16" if half else "v_mfma_f32_16x16x32_bf16"
    return "%s %s, %s, %s, %s" % (op, rn(D[0], D[1], 4), rn(A[0], A[1], n), rn(B[0], B[1], n), cs)
def f2u(x): return struct.unpack("<I", struct.pack("<f", x))[0]

class Wave:
    def __init__(self, gen, NT, dma, tag):
        self.g, self.c, self.NT, self.dma, self.tag = gen, gen.c, NT, dma, tag
        self.tau = (2, 1, 5, 4) if NT == 7 else (2, 1, 4, 3)
        W = solve.windows(NT, self.tau, 10 if NT == 7 else 12)
        if NT == 7: pos = [4 * p + 1 for p in range(8 * NT - 2)]
        else: pos = sorted([4 * p + 1 for p in range(8 * NT - 1)] + [16 * p + 2 for p in range(2 * NT)])
        self.rd = solve.edf(W, pos)
        assert self.rd
        self.oinit = set()
        self.group = {}
        self.code = []

    def kread(self, g, ds, off=0):
        return "ds_read_b128 %s, v%d offset:%d" % (rn('a', Kf(g, ds), 4), vAK, off + (g >> 1) * SLOT + (g & 1) * 512 + ds * 64)
    def vread(self, g, db, off=0):
        return "ds_read_b64_tr_b16 %s, v%d offset:%d" % (rn('a', Vf(db, g >> 1) + 2 * (g & 1), 2), vAV, off + (g >> 1) * SLOT + (g & 1) * 512 + db * 16)
    def qk(self, t, g, sb, raw=False):
        order = range(4) if g & 1 == 0 else range(3, -1, -1)
        o = []
        for i, ds in enumerate(order):
            o.append(mfma(('v', sb), ('a', Kf(g, ds)), ('a', Q(t, ds)), (None if raw else ('v', CI)) if i == 0 else ('v', sb)))
        return o
    def pv1(self, t, db, pb, ks, gs):
        D = O(t, db)
        C = D if (t, db) in self.oinit else None
        self.oinit.add((t, db))
        if len(gs) == 2: return mfma(D, ('v', pb), ('a', Vf(db, ks)), C)
        h = gs[0] & 1
        return mfma(D, ('v', pb + 2 * h), ('a', Vf(db, ks) + 2 * h), C, half=True)
    def pv(self, t, groups, pbase, dbs=range(8)):
        o = []
        for db in dbs:
            for ks in ((0, 1) if db % 2 == 0 else (1, 0)):
                gs = [g for g in groups if g >> 1 == ks]
                if gs: o.append(self.pv1(t, db, pbase(ks), ks, gs))
        return o
    def softmax(self, t, sb, pdst):
        o = []
        for i in range(4):
            o.append("v_exp_f32 v%d, v%d" % (sb + i, sb + i))
            o.append("v_add_f32 v%d, v%d, v%d" % (Lr(t), Lr(t), sb + i))
            if i & 1: o.append("v_cvt_pk_bf16_f32 v%d, v%d, v%d" % (pdst + i // 2, sb + i - 1, sb + i))
        return o
    def tagged(self, text, grp, **kw):
        i = Ins(text, **kw); self.group[id(i)] = grp; return i
    def share(self, kv, blk):
        srd, lo, base, pad = (sK, 0, sWK, PK - 1024) if kv == 'K' else (sV, HK, sWV, PV_ - 1024)
        lds = ((blk >> 1) % 3) * SS + (blk & 1) * SLOT + lo
        o = []
        for n in range(2):
            b = [Ins("s_add_u32 m0, s%d, %d" % (base, lds + pad * n))]
            b.append(Ins("s_add_u32 s%d, s%d, %d" % (sT2, sWG, blk * 8192)))
            b.append(self.tagged("buffer_load_dwordx4 v%d, s[%d:%d], s%d offen offset:%d %s lds" % (vDMA, srd, srd + 3, sT2, 1024 * n, self.c.dflag), "%s%d" % (kv, blk)))
            o.append(b)
        return o
    def qbuf(self, t):
        k = self.NT - 1 - t
        if k < 4: return sQS, vQA, (k >> 1) * SS + (k & 1) * QT
        return sStg, vQB, (k - 4) * QT
    def qload(self, t):
        sb, _, off = self.qbuf(t)
        o = []
        for n in range(4):
            b = [Ins("s_add_u32 m0, s%d, %d" % (sb, off + (PV_ - 1024) * n))]
            b.append(Ins("s_add_u32 s%d, s%d, %d" % (sT1, sQo, t * 4096)))
            b.append(self.tagged("buffer_load_dwordx4 v%d, s[%d:%d], s%d offen offset:%d %s lds" % (vDMA, sQ, sQ + 3, sT1, n * 1024, self.c.qflag), "Q%d" % t))
            o.append(b)
        return o
    def waitv(self, grp):
        i = Ins("s_waitcnt vmcnt(0)"); self.group[id(i)] = "W:" + grp; return i
    def scale(self, t):
        o = []
        tb = 32 * t + 16 if t < 6 else 16
        _, va, off = self.qbuf(t)
        for ds in range(4):
            o.append("ds_read_b128 %s, v%d offset:%d" % (rn('v', 32 * t + 4 * ds, 4), va, off + ds * 64))
        for r in range(16):
            q = 32 * t + r
            a, b = tb + 2 * (r % 6), tb + 2 * (r % 6) + 1
            o.append("v_lshlrev_b32 v%d, 16, v%d" % (a, q))
            o.append("v_and_b32 v%d, 0xffff0000, v%d" % (b, q))
            o.append("v_mul_f32 v%d, s%d, v%d" % (a, sC, a))
            o.append("v_mul_f32 v%d, s%d, v%d" % (b, sC, b))
            o.append("v_cvt_pk_bf16_f32 v%d, v%d, v%d" % (a, a, b))
            o.append("v_accvgpr_write_b32 a%d, v%d" % (Q(t, 0) + r, a))
        return o
    def seg(self, head, body, bundles=(), span=(0.0, 0.8)):
        self.code += self.ts2() + [I(x) for x in head] + self.ts2()
        b = schedule([I(x) for x in body], self.c.verbose) if body else []
        n = len(b)
        k = len(bundles)
        pos = [int(n * (span[0] + (span[1] - span[0]) * j / max(k, 1))) for j in range(k)]
        j = 0
        for i in range(n + 1):
            while j < k and pos[j] <= i:
                self.code += bundles[j]; j += 1
            if i < n: self.code.append(b[i])
    def ts2(self):
        if not (self.c.diag and self.c.tsmode == 2): return []
        self.nts = getattr(self, 'nts', 1) + 1
        k = self.nts - 1
        reg = 48 + k if k < 16 else 88 + k - 16
        assert k < 30
        return [Ins("s_memtime s[46:47]"), Ins("s_waitcnt lgkmcnt(0)"), Ins("s_mov_b32 s%d, s46" % reg)]
    def ts(self, idx):
        if not self.c.diag or self.c.tsmode == 2: return []
        return [Ins("s_memrealtime s[44:45]"), Ins("s_memtime s[46:47]"), Ins("s_waitcnt lgkmcnt(0)"),
                Ins("s_mov_b32 s%d, s44" % (48 + 2 * idx)), Ins("s_mov_b32 s%d, s46" % (49 + 2 * idx))]

    def prologue(self):
        c, NT, tau = self.c, self.NT, self.tau
        T = NT - 1
        G0 = lambda t: [g for g in range(4) if tau[g] <= t]
        seq = self.share('K', 0) + self.qload(T) + self.share('K', 1) + self.qload(T - 1) + self.share('V', 0) + self.share('V', 1)
        for t in range(T - 2, 0, -1): seq += self.qload(t)
        nq = len(seq)
        seq += self.share('K', 2) + self.qload(0)
        seq += self.share('V', 2) + self.share('K', 3) + self.share('V', 3)
        grp = [self.group[id(b[-1])] for b in seq]
        state = [0]
        def nxt(g, cap=None):
            want = c.first if g is None else max(j for j, x in enumerate(grp) if x == g) + 1 + c.lead
            want = min(want, len(seq) if cap is None else cap)
            r = seq[state[0]:want]
            state[0] = max(state[0], want)
            return r
        for b in nxt(None): self.code += b
        self.code += [Ins("v_mov_b32 v%d, 0" % Lr(t)) for t in range(NT)]
        self.seg([self.waitv("Q%d" % T)], self.scale(T), nxt("K1", nq))
        body = [self.kread(g, ds) for g in range(4) for ds in range(4)]
        for g in range(4): body += self.qk(T, g, S(g), raw=True)
        x, y = 28, 29
        body.append("v_max3_f32 v%d, v%d, v%d, v%d" % (x, S(0), S(0) + 1, S(0) + 2))
        body.append("v_max3_f32 v%d, v%d, v%d, v%d" % (x, x, S(0) + 3, S(0) + 4))
        body.append("v_max3_f32 v%d, v%d, v%d, v%d" % (x, x, S(0) + 5, S(0) + 6))
        body.append("v_max_f32 v%d, v%d, v%d" % (x, x, S(0) + 7))
        for sw in ("v_permlane32_swap_b32", "v_permlane16_swap_b32"):
            body.append("v_mov_b32 v%d, v%d" % (y, x))
            body.append("%s v%d, v%d" % (sw, x, y))
            body.append("v_max_f32 v%d, v%d, v%d" % (x, x, y))
        for k in (8, 4, 2, 1):
            body.append("v_max_f32_dpp v%d, v%d, v%d row_ror:%d row_mask:0xf bank_mask:0xf" % (x, x, x, k))
        for i in range(4):
            body.append("v_sub_f32 v%d, 0x%08x, v%d" % (CI + i, f2u(-c.bias), x))
        for g in range(4):
            for i in range(4):
                body.append("v_add_f32 v%d, v%d, v%d" % (S(g) + i, S(g) + i, CI))
            body += self.softmax(T, S(g), P(T, g >> 1) + 2 * (g & 1))
        self.seg([self.waitv("K1"), Ins("s_barrier")] + self.ts(1), body, nxt("Q%d" % (T - 1), nq))
        PB = lambda ks: P(T + 1, ks)
        def unit(t):
            o = []
            for g in G0(t):
                o += self.qk(t, g, S(g))
                o += self.softmax(t, S(g), PB(g >> 1) + 2 * (g & 1))
            return o
        self.seg([self.waitv("Q%d" % (T - 1))], self.scale(T - 1) + unit(T - 1), nxt("V1", nq))
        body = [self.vread(g, db) for db in range(8) for g in range(4)] + self.pv(T - 1, G0(T - 1), PB)
        self.seg([self.waitv("V1"), Ins("s_barrier", lgkm0=True)], body, nxt("Q%d" % (T - 2)))
        for t in range(T - 2, 0, -1):
            self.seg([self.waitv("Q%d" % t)], self.scale(t) + unit(t) + self.pv(t, G0(t), PB), nxt("Q%d" % (t - 1)))
        body = self.scale(0) + self.qk(0, 0, S(0)) + self.qk(0, 1, S(1))
        body += ["v_add_u32 v%d, %d, v%d" % (vAK, SS, vAK), "v_add_u32 v%d, %d, v%d" % (vAV, SS, vAV)]
        body += ["s_mov_b32 s%d, %d" % (sRd, SS), "s_mov_b32 s%d, %d" % (sIncW, (-2 * SS) & 0xffffffff), "s_mov_b32 s%d, %d" % (sIncN, SS)]
        body += ["s_mov_b32 s%d, %d" % (sCnt, 15 if NT == 7 else 29)]
        if self.dma:
            body += ["s_mov_b32 s%d, %d" % (sG + i, 3 * 16384 + 4096 * i) for i in range(4)]
            body += ["s_mov_b32 s%d, 0" % sSl]
        self.seg([self.waitv("Q0")] + self.ts(2 if c.tsmode == 0 else 1), body, nxt("V3"))

    def period(self, p):
        c, NT = self.c, self.NT
        first = p == 1
        gaps = []
        NS = 2 * NT
        for n in range(NS):
            t, hh = n >> 1, n & 1
            U = NT * p + t
            n1 = (n + 1) % NS
            t1, ks1 = n1 >> 1, n1 & 1
            ms = self.qk(t1, 2 * ks1, S(2 * ks1)) + self.qk(t1, 2 * ks1 + 1, S(2 * ks1 + 1))
            ms += self.pv((t - 1) % NT, range(4), lambda ks: P(U - 1, ks), range(4 * hh, 4 * hh + 4))
            for i in range(16):
                s_ = S(2 * hh) + i // 2
                if i % 2 == 0: v = ["v_exp_f32 v%d, v%d" % (s_, s_)]
                else:
                    v = ["v_add_f32 v%d, v%d, v%d" % (Lr(t), Lr(t), s_)]
                    if i % 4 == 3: v.append("v_cvt_pk_bf16_f32 v%d, v%d, v%d" % (P(U, hh) + i // 4, s_ - 1, s_))
                gaps.append(dict(m=ms[i], s=[], d=[], v=v))
        NG = len(gaps)
        if c.stall:
            for i in range(15, NG, 16): gaps[i]['v'].append("s_nop %d" % (c.stall - 1))
        for (kind, g, x), pos in self.rd.items():
            gaps[pos]['d'].append(self.kread(g, x) if kind == 'K' else self.vread(g, x))
        gaps[0]['s'].append(Ins("s_barrier", lgkm0=True))
        gaps[2]['s'].append("s_add_u32 s%d, s%d, %d" % (sRd, sRd, SS))
        gaps[3]['s'].append("s_cmp_eq_u32 s%d, %d" % (sRd, RING))
        gaps[4]['s'].append("s_cselect_b32 s%d, s%d, s%d" % (sInc, sIncW, sIncN))
        gaps[5]['s'].append("s_cselect_b32 s%d, 0, s%d" % (sRd, sRd))
        last = max(self.rd.values())
        assert last < NG - 7
        gaps[NG - 7]['v'].append("v_add_u32 v%d, s%d, v%d" % (vAK, sInc, vAK))
        gaps[NG - 3]['v'].append("v_add_u32 v%d, s%d, v%d" % (vAV, sInc, vAV))
        lo = 8
        if first:
            for kind, ks, grp in (('V', 0, "V2"), ('K', 1, "K3"), ('V', 1, "V3")):
                f = min(pos for (k, g, x), pos in self.rd.items() if k == kind and g >> 1 == ks)
                f = min(f, c.p1bar[grp])
                gaps[f - 1]['s'].append(self.waitv(grp))
                gaps[f]['s'].append(Ins("s_barrier"))
            bl = []
            for blk in (4, 5): bl += self.share('K', blk) + self.share('V', blk)
            hi = int(NG * c.sh_hi)
            self.place(gaps, bl, lo, hi)
            lo = int(NG * c.s3_lo)
        if self.dma:
            bl = []
            for blk in range(2):
                for srd, l0, st in ((sK, 0, PK), (sV, HK, PV_)):
                    for a in range(2):
                        for n in range(4):
                            bl.append([Ins("s_add_u32 m0, s%d, %d" % (sSl, blk * SLOT + l0 + 4 * st * a + (st - 1024) * n)),
                                       self.tagged("buffer_load_dwordx4 v%d, s[%d:%d], s%d offen offset:%d %s lds" % (vDMA, srd, srd + 3, sG + 2 * blk + a, 1024 * n, c.dflag), "S")])
            self.place(gaps, bl, lo, NG - 12)
            for i in range(4):
                gaps[NG - 11 + i]['s'].append("s_add_u32 s%d, s%d, 16384" % (sG + i, sG + i))
            gaps[NG - 7]['s'].append("s_add_u32 s%d, s%d, %d" % (sSl, sSl, SS))
            gaps[NG - 6]['s'].append("s_cmp_eq_u32 s%d, %d" % (sSl, RING))
            gaps[NG - 5]['s'].append("s_cselect_b32 s%d, 0, s%d" % (sSl, sSl))
        if first: gaps[NG - 1]['s'].append(self.waitv("V5"))
        elif self.dma: gaps[NG - 1]['s'].append("s_waitcnt vmcnt(32)")
        return gaps
    def place(self, gaps, bundles, lo, hi):
        cand = [i for i in range(lo + 2, hi) if not gaps[i]['d'] and len(gaps[i]['v']) == 1]
        k = len(bundles)
        prev = lo - 1
        for j, b in enumerate(bundles):
            tgt = lo + 2 + (hi - lo - 2) * j / k
            ns = len(b) - 1
            cc = [i for i in cand if i - ns >= prev]
            i = min(cc, key=lambda i: abs(i - tgt) - (2.5 if i % 2 else 0))
            for q, ins in enumerate(b[:-1]):
                gi = i - ns + q
                if gi == prev: gaps[gi]['d'].append(ins)
                else: gaps[gi]['s'].append(ins)
            gaps[i]['d'].append(b[-1])
            prev = i
    def flat(self, gaps):
        o = []
        for g in gaps:
            o.append(I(g['m']))
            o += [I(x) for x in g['s'] + g['d'] + g['v']]
        return o

    def finalize(self, t, k, Lm, packs, acct, first, Ofn=O, Lreg=None, land=None, soff=None, pk=False, one=None):
        c = self.c
        buf = k & 1
        st = "L:st%d" % buf
        Lreg = Lr(t) if Lreg is None else Lreg
        land = Q(t, 0) if land is None else land
        o = ["v_mfma_f32_16x16x4_f32 %s, v%d, a%d, 0" % (rn('v', Lm, 4), Lreg, one)]
        if first is not None:
            for op, r in (("v_max3_u32", vAK), ("v_min3_u32", vAV)):
                if first:
                    o.append("%s v%d, v%d, v%d, v%d" % (op, r, Lm, Lm + 1, Lm + 2))
                    o.append("%s v%d, v%d, v%d, v%d" % (op, r, r, Lm + 3, Lm + 3))
                else:
                    o.append("%s v%d, v%d, v%d, v%d" % (op, r, r, Lm, Lm + 1))
                    o.append("%s v%d, v%d, v%d, v%d" % (op, r, r, Lm + 2, Lm + 3))
        for r in range(4): o.append("v_rcp_f32 v%d, v%d" % (Lm + r, Lm + r))
        loc = {}
        for db in range(8):
            f, b = Ofn(t, db)
            if f == 'a':
                for r in range(4):
                    o.append("v_accvgpr_read_b32 v%d, a%d" % (acct + 4 * (db - 4) + r, b + r))
                b = acct + 4 * (db - 4)
            loc[db] = b
        if pk:
            for db in range(8):
                for r in (0, 2):
                    o.append("v_pk_mul_f32 %s, %s, %s" % (rn('v', loc[db] + r, 2), rn('v', loc[db] + r, 2), rn('v', Lm + r, 2)))
        for r in range(4):
            for db in range(8):
                if not pk: o.append("v_mul_f32 v%d, v%d, v%d" % (loc[db] + r, loc[db] + r, Lm + r))
            pb = packs[r % len(packs)]
            for j in range(4):
                o.append("v_cvt_pk_bf16_f32 v%d, v%d, v%d" % (pb + j, loc[2 * j] + r, loc[2 * j + 1] + r))
            o.append(Ins("ds_write_b128 v%d, %s offset:%d" % (vEW, rn('v', pb, 4), r * 320 + buf * 5120), xw=[st + "r%d" % r]))
        if soff is None:
            soff = sSt + t
            o.append("s_add_u32 s%d, s%d, %d" % (soff, sQo, t * 4096))
        for a in range(4):
            for sel in range(2):
                o.append(Ins("ds_read_b64_tr_b16 %s, v%d offset:%d" % (rn('a', land + 4 * a + 2 * sel, 2), vER, a * 1280 + 64 * sel + buf * 5120), xr=[st + "r%d" % r for r in range(4)]))
        for a in range(4 if not c.nostore else 0):
            o.append("buffer_store_dwordx4 %s, v%d, s[%d:%d], s%d offen offset:%d %s" % (rn('a', land + 4 * a, 4), vDMA, sO, sO + 3, soff, a * 1024, c.oflag))
        return o

    def tail(self):
        c, NT, tau = self.c, self.NT, self.tau
        T = NT - 1
        U = NT * 31
        G1 = lambda t: [g for g in range(4) if tau[g] > t]
        ring = dict(xr=["L:ring"])
        prog = [Ins("s_barrier", lgkm0=True, xw=["L:ring"])]
        prog += self.pv(T, range(4), lambda ks: P(U - 1, ks))
        sidx = 0
        for t in range(NT):
            gs = G1(t)
            if not gs: continue
            pb = (lambda u: (lambda ks: P(u, ks)))(U); U += 1
            for g in gs:
                sb = S(sidx); sidx += 1
                if not (t == 0 and g < 2): prog += self.qk(t, g, sb)
                if tau[g] == t + 1: prog += [Ins(self.kread(g, ds), **ring) for ds in range(4)]
                prog += self.softmax(t, sb, pb(g >> 1) + 2 * (g & 1))
            prog += self.pv(t, gs, pb)
            for db in range(8):
                prog += [Ins(self.vread(g, db), **ring) for g in gs if tau[g] == t + 1]
        order = [t for t in range(NT) if not G1(t)] + [t for t in range(NT) if G1(t)]
        gorder = sorted(range(4), key=lambda g: tau[g])
        pool = 32 * order[0]
        for k, t in enumerate(order):
            pb = (lambda u: (lambda ks: P(u, ks)))(U); U += 1
            for g in (gorder if k == 0 else range(4)):
                sb = S(sidx); sidx += 1
                prog += self.qk(t, g, sb)
                prog += self.softmax(t, sb, pb(g >> 1) + 2 * (g & 1))
            prog += self.pv(t, range(4), pb)
            pk = k >= len(order) - c.pkmul
            one = Q(t, 0)
            prog.append("v_accvgpr_write_b32 a%d, 1.0" % one)
            if k == 0: prog += self.finalize(t, k, pb(0), [pb(1)], None, None, pk=pk, one=one)
            elif t == 6: prog += self.finalize(t, k, pool + 4 * (k & 1), [pool + 8, pool + 12], pool + 16, None, pk=pk, one=one)
            else: prog += self.finalize(t, k, pool + 4 * (k & 1), [pool + 16, pool + 20, pool + 24, pool + 28], None, None, pk=pk, one=one)
        ls = [Lr(t) for t in range(NT)] + [Lr(0)]
        for op, r in (("v_max3_u32", vAK), ("v_min3_u32", vAV)):
            prog.append("%s v%d, v%d, v%d, v%d" % (op, r, ls[0], ls[1], ls[2]))
            prog.append("%s v%d, v%d, v%d, v%d" % (op, r, r, ls[3], ls[4]))
            prog.append("%s v%d, v%d, v%d, v%d" % (op, r, r, ls[5], ls[6]))
        return schedule([I(x) for x in prog], c.verbose, order=True, dswcost=c.dswcost)

    def resolve_waits(self, seq):
        issued = []
        for i in seq:
            g = self.group.get(id(i))
            if i.kind in ("dma", "vload", "vstore"): issued.append(g)
            elif g and g.startswith("W:"):
                last = max(j for j, x in enumerate(issued) if x == g[2:])
                i.text = "s_waitcnt vmcnt(%d)" % min(63, len(issued) - 1 - last)

    def build(self):
        c, NT, tag = self.c, self.NT, self.tag
        self.code = [Ins("L_wave_%s:" % tag)]
        self.prologue()
        self.code += self.ts(3 if c.tsmode == 0 else 2)
        self.code += self.ts2()
        self.code.append(self.waitv("K2"))
        self.code += self.flat(self.period(1)) + self.ts2()
        if c.tsmode == 1: self.code += self.ts(3)
        self.resolve_waits(self.code)
        head, pend = insert_lgkm(self.code)
        assert not pend
        head = pad_hazards(head)
        gaps = self.period(2)
        gaps[-4]['s'].append("s_sub_u32 s%d, s%d, 1" % (sCnt, sCnt))
        gaps[-2]['s'].append("s_cmp_lg_u32 s%d, 0" % sCnt)
        bodyA, pend = insert_lgkm(self.flat(gaps))
        assert not pend
        bodyA.append(Ins("s_cbranch_scc1 L_loop_%s" % tag))
        pad_hazards(bodyA, hist=head[-16:], fix=False, name="loop entry")
        if NT == 7:
            bodyB, pend = insert_lgkm(self.flat(self.period(3)))
            assert not pend
            pad_hazards(bodyB, hist=bodyA[-16:], fix=False, name="loop back")
            pad_hazards(bodyA, hist=bodyB[-16:], fix=False, name="loop mid")
            head.append(Ins("s_branch L_mid_%s" % tag))
            body = bodyB + [Ins("L_mid_%s:" % tag)] + bodyA
        else:
            pad_hazards(bodyA, hist=bodyA[-16:], fix=False, name="loop back")
            body = bodyA
        tail = self.ts(4) + self.tail()
        tail += [Ins("v_cmp_le_u32 vcc, 0x%08x, v%d" % (f2u(2.0 ** c.hi_exp), vAK)),
                 Ins("s_mov_b64 s[%d:%d], vcc" % (sT1, sT1 + 1)),
                 Ins("v_cmp_ge_u32 vcc, 0x%08x, v%d" % (f2u(2.0 ** c.lo_exp), vAV)),
                 Ins("s_or_b64 s[%d:%d], s[%d:%d], vcc" % (sT1, sT1 + 1, sT1, sT1 + 1)),
                 Ins("s_mov_b32 s%d, %d" % (sNT, NT)),
                 Ins("s_cbranch_scc1 L_slow" if not c.force_slow else "s_branch L_slow")]
        tail += self.ts(5)
        if c.diag: tail += [Ins("s_waitcnt vmcnt(0)")] + self.ts(6)
        tail.append(Ins("s_branch L_fin" if (c.diag or c.twice or c.idle) else "s_endpgm"))
        tail, pend = insert_lgkm(tail)
        tail = pad_hazards(tail, hist=body[-16:])
        return head + [Ins(".p2align 6"), Ins("L_loop_%s:" % tag)] + body + tail

class Gen:
    def __init__(self, cfg):
        self.c = cfg
    def slow(self):
        c = self.c
        w = Wave(self, 7, False, "s")
        o = []
        e = lambda s: o.extend(Ins(l) for l in s.strip().split("\n"))
        vL, vKA, vVA, vQA, vM, vX = 64, 65, 66, 67, 68, 69
        KF = lambda kg, ds: 72 + 16 * kg + 4 * ds
        VF = lambda db: 104 + 4 * db
        QF = lambda ds: 136 + 4 * ds
        SB, PB, LM, PKB = 152, 160, 164, 168
        e("L_slow:")
        e("s_waitcnt vmcnt(0) lgkmcnt(0)")
        e("v_lshrrev_b32 v%d, 4, v%d" % (vX, vDMA))
        e("v_and_b32 v%d, 7, v%d\nv_lshlrev_b32 v%d, 10, v%d" % (vM, vX, vKA, vM))
        e("v_and_b32 v%d, 8, v%d\nv_lshl_add_u32 v%d, v%d, 5, v%d" % (vM, vX, vKA, vM, vKA))
        e("v_and_b32 v%d, 48, v%d\nv_add_u32 v%d, v%d, v%d" % (vM, vX, vKA, vM, vKA))
        e("v_and_b32 v%d, 15, v%d\nv_lshlrev_b32 v%d, 8, v%d" % (vM, vX, vQA, vM))
        e("v_and_b32 v%d, 48, v%d\nv_add_u32 v%d, v%d, v%d" % (vM, vX, vQA, vM, vQA))
        e("v_bfe_u32 v%d, v%d, 2, 3\nv_mul_u32_u24 v%d, %d, v%d" % (vM, vX, vVA, PV_, vM))
        e("v_and_b32 v%d, 32, v%d\nv_lshl_add_u32 v%d, v%d, 3, v%d" % (vM, vX, vVA, vM, vVA))
        e("v_and_b32 v%d, 1, v%d\nv_lshl_add_u32 v%d, v%d, 3, v%d" % (vM, vX, vVA, vM, vVA))
        e("v_and_b32 v%d, 2, v%d\nv_lshl_add_u32 v%d, v%d, 6, v%d" % (vM, vX, vVA, vM, vVA))
        e("v_add_u32 v%d, s%d, v%d" % (vVA, sStg, vVA))
        e("s_mov_b32 s%d, 0" % sTile)
        e("L_slow_tile:")
        e("s_lshl_b32 s%d, s%d, 12\ns_add_u32 s%d, s%d, s%d" % (sSt, sTile, sSt, sSt, sQo))
        for ds in range(4):
            e("buffer_load_dwordx4 %s, v%d, s[%d:%d], s%d offen offset:%d" % (rn('v', QF(ds), 4), vQA, sQ, sQ + 3, sSt, ds * 64))
        e("s_waitcnt vmcnt(0)")
        for r in range(16):
            q = QF(0) + r
            e("v_lshlrev_b32 v%d, 16, v%d\nv_and_b32 v%d, 0xffff0000, v%d" % (vM, q, vX, q))
            e("v_mul_f32 v%d, s%d, v%d\nv_mul_f32 v%d, s%d, v%d" % (vM, sC, vM, vX, sC, vX))
            e("v_cvt_pk_bf16_f32 v%d, v%d, v%d" % (q, vM, vX))
        def kload():
            for kg in range(2):
                for ds in range(4):
                    e("buffer_load_dwordx4 %s, v%d, s[%d:%d], s%d offen offset:%d" % (rn('v', KF(kg, ds), 4), vKA, sK, sK + 3, sBlk, kg * 512 + ds * 64))
        def qk(raw):
            for kg in range(2):
                for ds in range(4):
                    e(mfma(('v', SB + 4 * kg), ('v', KF(kg, ds)), ('v', QF(ds)), (None if raw else ('v', CI)) if ds == 0 else ('v', SB + 4 * kg)))
        e("v_mov_b32 v%d, 0xff800000\ns_mov_b32 s%d, 0" % (vM, sBlk))
        e("L_slow_max:")
        kload()
        e("s_waitcnt vmcnt(0)")
        qk(True)
        e("s_nop 7")
        for i in range(0, 8, 2):
            e("v_max3_f32 v%d, v%d, v%d, v%d" % (vM, vM, SB + i, SB + i + 1))
        e("s_add_u32 s%d, s%d, 8192\ns_cmp_lt_u32 s%d, 524288\ns_cbranch_scc1 L_slow_max" % (sBlk, sBlk, sBlk))
        for sw in ("v_permlane32_swap_b32", "v_permlane16_swap_b32"):
            e("v_mov_b32 v%d, v%d\n%s v%d, v%d\nv_max_f32 v%d, v%d, v%d" % (vX, vM, sw, vM, vX, vM, vM, vX))
        for i in range(4): e("v_sub_f32 v%d, 0, v%d" % (CI + i, vM))
        for r in range(32): e("v_mov_b32 v%d, 0" % r)
        e("v_mov_b32 v%d, 0\ns_mov_b32 s%d, 0" % (vL, sBlk))
        e("L_slow_pv:")
        kload()
        e("s_add_u32 s%d, s%d, 4096" % (sT0, sBlk))
        for a in range(2):
            for n in range(4):
                e("s_add_u32 m0, s%d, %d" % (sStg, 4 * PV_ * a + (PV_ - 1024) * n))
                e("buffer_load_dwordx4 v%d, s[%d:%d], s%d offen offset:%d lds" % (vDMA, sV, sV + 3, sT0 if a else sBlk, 1024 * n))
        e("s_waitcnt vmcnt(0)")
        for db in range(8):
            for hb in range(2):
                e("ds_read_b64_tr_b16 %s, v%d offset:%d" % (rn('v', VF(db) + 2 * hb, 2), vVA, hb * 512 + db * 16))
        qk(False)
        e("s_nop 7")
        for i in range(8):
            e("v_exp_f32 v%d, v%d" % (SB + i, SB + i))
        for i in range(8):
            e("v_add_f32 v%d, v%d, v%d" % (vL, vL, SB + i))
        for i in range(4):
            e("v_cvt_pk_bf16_f32 v%d, v%d, v%d" % (PB + i, SB + 2 * i, SB + 2 * i + 1))
        e("s_waitcnt lgkmcnt(0)")
        for db in range(8):
            e(mfma(('v', 4 * db), ('v', PB), ('v', VF(db)), ('v', 4 * db)))
        e("s_nop 7")
        e("s_add_u32 s%d, s%d, 8192\ns_cmp_lt_u32 s%d, 524288\ns_cbranch_scc1 L_slow_pv" % (sBlk, sBlk, sBlk))
        e("v_accvgpr_write_b32 a16, 1.0")
        o.extend(I(x) for x in w.finalize(0, 0, LM, [PKB], None, None, Lreg=vL, soff=sSt, one=16))
        e("s_waitcnt vmcnt(0) lgkmcnt(0)")
        e("s_add_u32 s%d, s%d, 1\ns_cmp_lt_u32 s%d, s%d\ns_cbranch_scc1 L_slow_tile" % (sTile, sTile, sTile, sNT))
        o, _ = insert_lgkm(o, hoist=False)
        return pad_hazards(o)

    def build(self):
        c = self.c
        o = []
        e = lambda s: o.extend(Ins(l) for l in s.strip().split("\n"))
        e("s_cmp_ge_u32 s2, 256\ns_cbranch_scc1 L_end")
        if c.twice: e("s_mov_b32 s90, 0\nL_again:")
        e("s_load_dwordx4 s[4:7], s[0:1], 0\ns_load_dwordx4 s[8:11], s[0:1], 16")
        if c.diag:
            e("s_load_dwordx2 s[40:41], s[0:1], %d" % (32 if c.dbgout else 40))
            e("s_memrealtime s[44:45]\ns_memtime s[46:47]\ns_waitcnt lgkmcnt(0)\ns_mov_b32 s48, s44\ns_mov_b32 s49, s46")
            if c.tsmode == 2: e("s_mov_b32 s48, s46")
        e("s_getpc_b64 s[38:39]")
        e("L_pc:")
        if c.pfsplit:
            e("s_lshr_b32 s36, s2, 3\ns_and_b32 s36, s36, 7\ns_lshl_b32 s36, s36, 13")
            e("v_lshlrev_b32 v2, 5, v0\nv_add_u32 v2, s36, v2\nv_min_u32 v2, L_slow-L_pc, v2")
            e("global_load_dword v28, v2, s[38:39]")
        else:
            e("v_lshlrev_b32 v2, 7, v0")
            e("v_add_u32 v3, 0x8000, v2")
            e("v_min_u32 v3, L_slow-L_pc, v3")
            e("global_load_dword v28, v2, s[38:39]")
            e("global_load_dword v29, v3, s[38:39]")
        e("v_lshrrev_b32 v1, 6, v0")
        e("v_and_b32 v0, 63, v0")
        e("v_readfirstlane_b32 s%d, v1" % sW)
        e("v_lshlrev_b32 v%d, 4, v0" % vDMA)
        e("v_and_b32 v1, 15, v0\nv_and_b32 v2, 48, v0")
        e("s_mul_i32 s%d, s2, 110592" % sT0)
        e("s_lshl_b32 s%d, s2, 19" % sT1)
        e("s_mov_b32 s%d, 0x%08x" % (sC, f2u(math.log2(math.e) / math.sqrt(128.0))))
        e("s_mul_i32 s%d, s%d, %d" % (sQo, sW, 112 * 256))
        e("s_mul_i32 s%d, s%d, %d" % (sWK, sW, 2 * PK))
        e("s_mul_i32 s%d, s%d, %d" % (sWV, sW, 2 * PV_))
        e("s_lshl_b32 s%d, s%d, 11" % (sWG, sW))
        e("s_mul_i32 s%d, s%d, %d\ns_add_u32 s%d, s%d, %d" % (sStg, sW, PRIV, sStg, sStg, STG))
        e("s_mul_i32 s%d, s%d, %d\ns_add_u32 s%d, s%d, %d" % (sQS, sW, 2 * QT, sQS, sQS, SS))
        e("v_bfe_u32 v3, v0, 2, 2\nv_mul_u32_u24 v%d, %d, v3" % (vQA, PV_))
        e("v_and_b32 v3, 3, v0\nv_lshl_add_u32 v%d, v3, 8, v%d" % (vQA, vQA))
        e("v_add3_u32 v%d, v%d, v2, s%d\nv_add3_u32 v%d, v%d, v2, s%d" % (vQB, vQA, sStg, vQA, vQA, sQS))
        e("v_and_b32 v3, 7, v0\nv_mul_u32_u24 v%d, %d, v3" % (vAK, PK))
        e("v_and_b32 v3, 8, v0\nv_lshl_add_u32 v%d, v3, 5, v%d" % (vAK, vAK))
        e("v_add_u32 v%d, v2, v%d" % (vAK, vAK))
        e("v_and_b32 v3, 1, v0\nv_lshlrev_b32 v4, 3, v3\nv_and_b32 v3, 2, v0\nv_lshl_add_u32 v4, v3, 6, v4")
        e("v_bfe_u32 v3, v0, 2, 3\nv_mul_u32_u24 v%d, %d, v3" % (vAV, PV_))
        e("v_and_b32 v3, 32, v0\nv_lshl_add_u32 v%d, v3, 3, v%d" % (vAV, vAV))
        e("v_add_u32 v%d, v4, v%d\nv_add_u32 v%d, %d, v%d" % (vAV, vAV, vAV, HK, vAV))
        e("v_mul_u32_u24 v%d, 80, v2\nv_lshl_add_u32 v%d, v1, 4, v%d\nv_add_u32 v%d, s%d, v%d" % (vEW, vEW, vEW, vEW, sStg, vEW))
        e("v_mul_u32_u24 v%d, 20, v2\nv_and_b32 v3, 12, v0\nv_lshl_add_u32 v%d, v3, 2, v%d" % (vER, vER, vER))
        e("v_add3_u32 v%d, v%d, v4, s%d" % (vER, vER, sStg))
        e("s_waitcnt lgkmcnt(0)")
        for srd, src, offs, size in ((sK, 6, sT1, 524288), (sQ, 4, sT0, 110592), (sV, 8, sT1, 524288), (sO, 10, sT0, 110592)):
            e("s_add_u32 s%d, s%d, s%d" % (srd, src, offs))
            e("s_addc_u32 s%d, s%d, 0" % (srd + 1, src + 1))
            e("s_mov_b32 s%d, %d" % (srd + 2, size))
            e("s_mov_b32 s%d, 0x20000" % (srd + 3))
        e("s_cmp_eq_u32 s%d, 3" % sW)
        e("s_cbranch_scc1 L_wave_b")
        o = pad_hazards(o)
        o += Wave(self, 7, False, "a").build()
        o += Wave(self, 6, True, "b").build()
        o += self.slow()
        e("L_fin:")
        if c.twice:
            e("s_waitcnt vmcnt(0) lgkmcnt(0)\ns_barrier\nv_lshrrev_b32 v0, 4, v%d\ns_lshl_b32 s91, s%d, 6\nv_add_u32 v0, s91, v0" % (vDMA, sW))
            e("s_add_u32 s90, s90, 1\ns_cmp_le_u32 s90, %d\ns_cbranch_scc1 L_again" % c.twice)
        if c.idle:
            e("s_waitcnt vmcnt(0) lgkmcnt(0)\ns_memtime s[92:93]\ns_waitcnt lgkmcnt(0)\nL_idle:\ns_memtime s[94:95]\ns_waitcnt lgkmcnt(0)\ns_sub_u32 s94, s94, s92\ns_cmp_lt_u32 s94, %d\ns_cbranch_scc1 L_idle" % c.idle)
        if c.diag and c.echo:
            i, j, m, k = c.echo
            e("s_sub_u32 s90, s%d, s%d\ns_mul_i32 s90, s90, %d\ns_lshr_b32 s90, s90, %d" % (48 + 2 * j + k, 48 + 2 * i + k, m, 5 if k else 0))
            e("L_echo:\ns_memrealtime s[94:95]\ns_waitcnt lgkmcnt(0)\ns_sub_u32 s94, s94, s60\ns_cmp_lt_u32 s94, s90\ns_cbranch_scc1 L_echo")
        elif c.diag and c.dbgout:
            e("s_cmp_lg_u32 s%d, 0\ns_cbranch_scc1 L_end" % sW)
            e("s_mov_b32 s42, 256\ns_mov_b32 s43, 0x20000\nv_mov_b32 v0, 0\ns_mov_b64 exec, 1")
            for i in range(1, 7):
                for k in range(2):
                    e("s_sub_u32 s%d, s%d, s%d" % (sT0, 48 + 2 * i + k, 48 + k))
                    e("v_mov_b32 v4, s%d" % sT0)
                    e("buffer_atomic_add v4, v0, s[40:43], 0 offen offset:%d" % (4 * (i - 1) + 24 * k))
                    e("s_waitcnt vmcnt(0)")
            e("v_mov_b32 v4, s60\nbuffer_atomic_umax v4, v0, s[40:43], 0 offen offset:48\ns_waitcnt vmcnt(0)")
            e("s_sub_u32 s%d, 0, s48\nv_mov_b32 v4, s%d\nbuffer_atomic_umax v4, v0, s[40:43], 0 offen offset:52\ns_waitcnt vmcnt(0)" % (sT0, sT0))
            e("v_mov_b32 v4, s48\nbuffer_atomic_umax v4, v0, s[40:43], 0 offen offset:56\ns_waitcnt vmcnt(0)")
        elif c.diag:
            e("s_mov_b32 s42, 0x1000000\ns_mov_b32 s43, 0x20000")
            e("s_lshl_b32 s%d, s2, 2\ns_add_u32 s%d, s%d, s%d\ns_lshl_b32 s%d, s%d, %d" % (sT0, sT0, sT0, sW, sT0, sT0, 7 if c.tsmode == 2 else 6))
            e("v_mov_b32 v0, 0")
            for i in range(0, 28 if c.tsmode == 2 else 16, 4):
                for k in range(4):
                    e("v_mov_b32 v%d, s%d" % (4 + k, 48 + i + k if i < 16 else 72 + i + k))
                e("buffer_store_dwordx4 v[4:7], v0, s[40:43], s%d offen offset:%d" % (sT0, i * 4))
                e("s_waitcnt vmcnt(0)")
        e("L_end:")
        e("s_endpgm")
        txt = ["; MHA forward, B=8 H=32 Sq=432 Sk=2048 D=128, bf16.  One workgroup per head, 4 waves (one per SIMD).",
               "; @launch grid=(256,1,1) block=(256,1,1) lds=%d" % LDS,
               '.amdgcn_target "amdgcn-amd-amdhsa--gfx950"', ".text", ".globl %s" % c.kname, ".p2align 8",
               ".type %s,@function" % c.kname, "%s:" % c.kname]
        for i in o:
            txt.append(i.text if i.kind == "label" else "    " + i.text)
        txt.append('.section .rodata,"a"\n.p2align 6\n.amdhsa_kernel %s' % c.kname)
        txt.append("""  .amdhsa_next_free_vgpr 512
  .amdhsa_next_free_sgpr 102
  .amdhsa_accum_offset 256
  .amdhsa_group_segment_fixed_size 0
  .amdhsa_kernarg_size 48
  .amdhsa_user_sgpr_count 2
  .amdhsa_user_sgpr_kernarg_segment_ptr 1
  .amdhsa_system_sgpr_workgroup_id_x 1
.end_amdhsa_kernel""")
        return "\n".join(txt) + "\n"

if __name__ == "__main__":
    cfg = Cfg()
    out = sys.argv[1]
    for a in sys.argv[2:]:
        k, v = a.split("=")
        assert hasattr(cfg, k), k
        setattr(cfg, k, eval(v))
    open(out, "w").write(Gen(cfg).build())
```

```python
import re

TRANS = ("v_exp_f32", "v_rcp_f32", "v_log_f32", "v_rsq_f32", "v_sqrt_f32")

def regs_of(op):
    op = op.strip()
    op = op.lstrip("-").replace("|", "")
    m = re.fullmatch(r"([vas])\[(\d+):(\d+)\]", op)
    if m: return ["%s%d" % (m.group(1), i) for i in range(int(m.group(2)), int(m.group(3)) + 1)]
    m = re.fullmatch(r"([vas])(\d+)", op)
    if m: return [op]
    if op in ("m0", "vcc", "exec", "scc"): return [op]
    return []

class Ins:
    __slots__ = ("text", "op", "kind", "R", "W", "A", "B", "C", "passes", "idx", "lgkm0", "prio", "dpp")
    def __init__(self, text, xr=(), xw=(), lgkm0=False, prio=0):
        self.text = text.strip()
        self.lgkm0 = lgkm0
        self.prio = prio
        t = self.text
        sp = t.split(None, 1)
        op = sp[0]
        self.op = op
        rest = sp[1] if len(sp) > 1 else ""
        ops = [o.strip() for o in rest.split(",")] if rest else []
        mods = ""
        if ops:
            last = ops[-1].split(None, 1)
            ops[-1] = last[0]
            mods = last[1] if len(last) > 1 else ""
        R, W = set(), set()
        self.A = self.B = self.C = ()
        self.passes = 0
        self.dpp = "row_" in mods or "quad_perm" in mods
        rs = [regs_of(o) for o in ops]
        if t.endswith(":") or op.startswith("."):
            self.kind = "label"
        elif op.startswith("v_mfma"):
            self.kind = "mfma"
            W.update(rs[0]); self.A, self.B, self.C = rs[1], rs[2], rs[3]
            R.update(rs[1] + rs[2] + rs[3])
            self.passes = 8 if op.endswith("16x16x4_f32") else 4
        elif op.startswith("v_"):
            self.kind = "trans" if op.startswith(TRANS) else "valu"
            if op.startswith("v_permlane"):
                W.update(rs[0] + rs[1]); R.update(rs[0] + rs[1])
            elif op.startswith("v_cmp"):
                W.update(rs[0])
                for r in rs[1:]: R.update(r)
            else:
                W.update(rs[0])
                for r in rs[1:]: R.update(r)
                if self.dpp or op.startswith("v_fmac"): R.update(rs[0])
        elif op.startswith("ds_read") or op.startswith("ds_bpermute"):
            self.kind = "dsr"; W.update(rs[0])
            for r in rs[1:]: R.update(r)
        elif op.startswith("ds_write"):
            self.kind = "dsw"
            for r in rs: R.update(r)
        elif op.startswith("buffer_load") or op.startswith("global_load"):
            if re.search(r"\blds\b", mods):
                self.kind = "dma"
                for r in rs: R.update(r)
                R.add("m0")
            else:
                self.kind = "vload"; W.update(rs[0])
                for r in rs[1:]: R.update(r)
            R.add("vmq"); W.add("vmq")
        elif op.startswith("buffer_store") or op.startswith("buffer_atomic"):
            self.kind = "vstore"
            for r in rs: R.update(r)
            R.add("vmq"); W.add("vmq")
        elif op == "s_nop":
            self.kind = "nop"
        elif op == "s_waitcnt":
            self.kind = "wait"
            if "vmcnt" in t: R.add("vmq"); W.add("vmq")
        elif op == "s_barrier":
            self.kind = "barrier"; R.add("vmq"); W.add("vmq")
        elif op.startswith("s_cbranch") or op == "s_branch" or op == "s_endpgm":
            self.kind = "branch"
            if "scc" in op: R.add("scc")
            if "vcc" in op: R.add("vcc")
        elif op.startswith("s_load") or op.startswith("s_mem"):
            self.kind = "smem"; W.update(rs[0])
            for r in rs[1:]: R.update(r)
        elif op.startswith("s_"):
            self.kind = "salu"
            if op.startswith("s_cmp"):
                W.add("scc")
                for r in rs: R.update(r)
            else:
                if rs: W.update(rs[0])
                for r in rs[1:]: R.update(r)
                if op.startswith(("s_add", "s_sub", "s_and", "s_or", "s_xor", "s_lsh", "s_min", "s_max", "s_bfe")): W.add("scc")
                if op.startswith(("s_addc", "s_subb", "s_cselect")): R.add("scc")
        else:
            raise ValueError("unknown instruction: " + t)
        R.update(xr); W.update(xw)
        self.R, self.W = R, W

    def states(self):
        if self.kind == "label": return 0
        if self.kind == "nop": return int(self.text.split()[1]) + 1
        return 1

def I(x, **kw):
    return x if isinstance(x, Ins) else Ins(x, **kw)

isvalu = lambda i: i.kind in ("valu", "trans")
isvec = lambda r: r[0] in "va" and r[1:].isdigit()
issg = lambda r: (r[0] == "s" and r[1:].isdigit()) or r == "vcc"

def need_states(p, c):
    n = 0
    if isvalu(p):
        wv = {r for r in p.W if isvec(r)}
        if c.kind == "mfma" and wv & c.R: n = max(n, 2)
        if isvalu(c) and wv & c.R:
            if p.kind == "trans": n = max(n, 1)
            if c.op.startswith("v_permlane") or c.dpp: n = max(n, 2)
            if c.op.startswith(("v_readfirstlane", "v_readlane")): n = max(n, 1)
        ws = {r for r in p.W if issg(r)}
        if ws & c.R:
            if isvalu(c): n = max(n, 2)
            if c.kind in ("dma", "vload", "vstore"): n = max(n, 5)
            if c.kind in ("salu", "branch"): n = max(n, 4)
    if p.kind == "mfma":
        sg = p.op.endswith("_f32") and not p.op.endswith("bf16")
        big = {4: 8, 8: 12}[p.passes] if not sg else {4: 6, 8: 10}[p.passes]
        if c.kind == "mfma":
            if p.W & (set(c.A) | set(c.B)): n = max(n, big)
            if p.W & set(c.C):
                if not (c.op == p.op and set(c.C) == p.W): n = max(n, {4: 6, 8: 10}[p.passes])
            elif p.W & c.W: n = max(n, {4: 6, 8: 10}[p.passes])
        elif p.W & (c.R | c.W): n = max(n, big)
        if isvalu(c) and set(p.C) & c.W: n = max(n, {4: 3, 8: 7}[p.passes])
    if p.kind == "salu" and "m0" in p.W and c.kind == "dma": n = max(n, 1)
    if p.kind in ("vstore", "dsw") and isvalu(c) and {r for r in p.R if isvec(r)} & c.W: n = max(n, 2)
    return n

def pad_hazards(seq, hist=(), fix=True, name=""):
    out = list(hist)
    nh = len(out)
    for c in seq:
        if c.kind != "label":
            need = 0
            d = 0
            for p in reversed(out):
                if d >= 12: break
                k = need_states(p, c) - d
                if k > need:
                    need = k
                    if not fix: raise RuntimeError("%s hazard: %s -> %s short by %d" % (name, p.text, c.text, k))
                d += p.states()
            if need > 0: out.append(Ins("s_nop %d" % (need - 1)))
        out.append(c)
    return out[nh:]

def insert_lgkm(seq, pend=None, hoist=True):
    out = []
    pend = list(pend or [])
    pend = [(r, -1) for r in pend]
    for c in seq:
        if c.kind == "wait" and "lgkmcnt" in c.text:
            n = int(re.search(r"lgkmcnt\((\d+)\)", c.text).group(1))
            pend = pend[len(pend) - n:] if n < len(pend) and n > 0 else ([] if n == 0 else pend)
        touch = c.R | c.W
        k = -1
        for j, (r, _) in enumerate(pend):
            if r & touch: k = j
        if c.lgkm0 and pend: k = len(pend) - 1
        if c.kind == "smem" and pend: k = len(pend) - 1
        if k >= 0:
            pos = len(out)
            if hoist and c.kind == "mfma":
                q = len(out) - 1
                while q >= 0 and out[q].kind not in ("mfma", "label", "branch", "barrier"): q -= 1
                if q >= 0 and out[q].kind == "mfma" and pend[k][1] < q: pos = q + 1
            n = sum(1 for (r, i) in pend[k + 1:] if i < pos)
            n = min(n, 15)
            out.insert(pos, Ins("s_waitcnt lgkmcnt(%d)" % n))
            pend = [(r, i + 1 if i >= pos else i) for (r, i) in pend[k + 1:]]
        if c.kind in ("dsr", "dsw"):
            pend.append(({r for r in c.W if isvec(r)}, len(out)))
        out.append(c)
    return out, [r for r, _ in pend]

def latency(p, c, raw):
    if not raw:
        if p.kind == "mfma" and isvalu(c): return 16 if not (p.W & c.W) else 44
        return 4
    if p.kind == "mfma":
        if c.kind == "mfma" and c.op == p.op and set(c.C) == p.W and not (p.W & (set(c.A) | set(c.B))): return 4 * p.passes
        return 4 * p.passes + 28
    if p.kind == "trans": return 16
    if p.kind == "valu":
        if c.kind == "mfma" or c.dpp or c.op.startswith("v_permlane"): return 12
        return 8
    if p.kind == "dsr": return 140
    if p.kind == "dsw": return 16
    return 4

MEMK = ("dsr", "dsw", "dma", "vload", "vstore")
def schedule(prog, verbose=False, AGE=48, order=False, dswcost=24, pkmin=8, space=None):
    n = len(prog)
    preds = [[] for _ in range(n)]
    succs = [[] for _ in range(n)]
    lastw, readers = {}, {}
    for i, c in enumerate(prog):
        d = {}
        for r in c.R:
            if r in lastw: d[lastw[r]] = max(d.get(lastw[r], 0), latency(prog[lastw[r]], c, True) if r != "vmq" else 4)
        for r in c.W:
            if r in lastw: d[lastw[r]] = max(d.get(lastw[r], 0), latency(prog[lastw[r]], c, False))
            for j in readers.get(r, ()):
                if j != i: d[j] = max(d.get(j, 0), latency(prog[j], c, False))
        for j, l in d.items():
            preds[i].append((j, l)); succs[j].append((i, l))
        for r in c.R: readers.setdefault(r, []).append(i)
        for r in c.W:
            lastw[r] = i; readers[r] = []
    cp = [0] * n
    for i in range(n - 1, -1, -1):
        cp[i] = max([cp[j] + l for j, l in succs[i]] + [0])
    if order: cp = [-i for i in range(n)]
    npred = [len(p) for p in preds]
    ready_t = [0] * n
    avail = [i for i in range(n) if npred[i] == 0]
    t = 0; vec_free = 0; mf_free = 0; last_valu = -100
    out = []
    ispk = lambda c: c.op.startswith("v_pk_")
    space = space or {}
    nxt_ok = {}
    while avail:
        best = None
        rpk = [i for i in avail if ispk(prog[i]) and ready_t[i] <= max(t, vec_free, mf_free)]
        inburst = bool(out) and ispk(out[-1]) and rpk
        for i in (rpk if inburst else avail):
            c = prog[i]
            e = max(t, ready_t[i])
            if ispk(c) and not inburst and len(rpk) < pkmin: e += 64
            if c.kind == "mfma": e = max(e, vec_free, mf_free)
            elif isvalu(c): e = max(e, vec_free)
            elif c.kind in MEMK:
                e = max(e, vec_free, nxt_ok.get(c.kind, 0))
                if max(ready_t[i], nxt_ok.get(c.kind, 0)) + AGE > t: e = max(e, last_valu + 12)
            cls = 0 if c.kind == "mfma" else 1 if c.kind in MEMK else 2
            key = (e, cls, -(cp[i] + c.prio), i)
            if best is None or key < best[0]: best = (key, i)
        (e, cls, _, _), i = best
        c = prog[i]
        if c.kind in MEMK: e = max(e, last_valu + 12)
        if ispk(c): e = max(t, ready_t[i], vec_free, mf_free)
        if c.kind == "trans":
            for j in avail:
                if prog[j].kind == "mfma" and max(t, ready_t[j], vec_free, mf_free) == e + 4:
                    alt = [k for k in avail if prog[k].kind == "valu" and not ispk(prog[k]) and max(t, ready_t[k], vec_free) <= e]
                    if alt:
                        i = max(alt, key=lambda k: (cp[k] + prog[k].prio, -k)); c = prog[i]
                    break
        avail.remove(i)
        out.append(c)
        if c.kind in space: nxt_ok[c.kind] = e + space[c.kind]
        if c.kind == "mfma":
            vec_free = e + 8; mf_free = e + 4 * c.passes; t = e + 4
            if c.passes == 8: vec_free = mf_free = e + 52
        elif c.kind == "trans":
            vec_free = e + 8; t = e + 8; last_valu = e + 4
        elif c.kind == "valu":
            vec_free = e + 4; t = e + 4; last_valu = e
        elif c.kind == "dsw":
            t = e + 4; vec_free = e + dswcost
        elif c.kind == "vstore":
            t = e + 4; vec_free = e + 12
        else:
            t = e + 4
        for j, l in succs[i]:
            ready_t[j] = max(ready_t[j], e + l)
            npred[j] -= 1
            if npred[j] == 0: avail.append(j)
    assert len(out) == n
    if verbose: print("scheduled %d instrs, est %d cycles" % (n, t))
    return out

VOP12 = ("v_exp_f32", "v_rcp_f32", "v_add_f32", "v_sub_f32", "v_mul_f32", "v_max_f32", "v_min_f32", "v_mov_b32", "v_and_b32", "v_lshlrev_b32",
         "v_lshrrev_b32", "v_add_u32", "v_mul_u32_u24", "v_min_u32", "v_readfirstlane_b32", "v_permlane32_swap_b32", "v_permlane16_swap_b32",
         "v_cmp_le_u32", "v_cmp_ge_u32")
def has_literal(t):
    ops = t.split(None, 1)[1].split(",") if len(t.split(None, 1)) > 1 else []
    for o in ops:
        o = o.strip().split()[0]
        if o.startswith("L_"): return True
        try: v = int(o, 0)
        except ValueError: continue
        if v > 0x7fffffff: v -= 1 << 32
        if not (-16 <= v <= 64) and (v & 0xffffffff) not in (0x3f000000, 0xbf000000, 0x3f800000, 0xbf800000, 0x40000000, 0xc0000000, 0x40800000, 0xc0800000, 0x3e22f983): return True
    return False
def isize(i):
    if i.kind == "label": return 0
    if i.kind in ("nop", "wait", "barrier", "branch"): return 4
    if i.kind == "salu": return 8 if has_literal(i.text) else 4
    if isvalu(i):
        if i.op in VOP12: return 8 if has_literal(i.text) else 4
        return 8
    return 8
def align_runs(seq, minrun=4):
    pc = 0
    n = len(seq)
    cand = None
    i = 0
    while i < n:
        c = seq[i]
        if c.kind == "label" and c.op == ".p2align":
            a = 1 << int(c.text.split()[1]); pc = (pc + a - 1) // a * a; cand = None
        sz = isize(c)
        if sz == 8 and c.kind != "mfma":
            j = i
            while j < n and isize(seq[j]) == 8 and seq[j].kind != "mfma": j += 1
            if j - i >= minrun:
                if pc % 8 == 4 and cand is not None:
                    cand.text = cand.text.replace(cand.op, cand.op + "_e64", 1); cand.op += "_e64"; pc += 4
                cand = None
            pc += 8 * (j - i); i = j
            continue
        if sz == 4 and isvalu(c) and c.op in VOP12[:12] and not c.dpp: cand = c
        pc += sz; i += 1
    return pc

def align_bound(seq, B):
    pc = 0
    cand = None
    nfix = nfail = 0
    for c in seq:
        if c.kind == "label" and c.op == ".p2align":
            a = 1 << int(c.text.split()[1]); pc = (pc + a - 1) // a * a; cand = None
        sz = isize(c)
        if sz == 8 and pc % B == B - 4:
            if cand is not None:
                cand.text = cand.text.replace(cand.op, cand.op + "_e64", 1); cand.op += "_e64"; pc += 4; nfix += 1
            else: nfail += 1
            cand = None
        if pc % B == 0: cand = None
        if sz == 4 and isvalu(c) and c.op in VOP12[:12] and not c.dpp and pc % B != B - 4: cand = c
        pc += sz
    return nfix, nfail
```

```python
import sys, math, struct
from asmlib import *
import solve

KNAME = "standalone__mha_softmax__near_ridge"

class Cfg:
    diag = False
    kname = KNAME + "_kernel"
    dflag = "nt"
    qflag = "nt"
    oflag = "sc1"
    bias = 3.0
    force_slow = False
    pkmul = 7
    verbose = False
    lo_exp = -30
    hi_exp = 30
    tsmode = 0
    nostore = False
    lead = 4
    wspan = 0.9
    space = (48, 64, 12)
    bara = (41,)
    barb = (37,)
    pspace = (0, 0, 0)
    age = 48
    hop = 0
    dma_hi = 0.55
    align = True
    pkscale = False
    p1bar = dict(V4=41, K5=69, V5=121)
    pb_hi = 0.6
    obias = 1
    gamma = 3.0
    oconst = 1.5
    pfpos = 8
    pfsplit = True
    twice = 0
    skew = 0
    echo = None
    dbgout = False
    stall = 0
    idle = 0
    dswcost = 24
    lvalu = True
    pfs = True
    pfstride = 64
    first = 10
    sh_hi = 0.3
    s3_lo = 0.45

PK, PV_ = 1056, 1040
HK = 8 * PK
SLOT = HK + 8 * PV_
SS = 2 * SLOT
RING = 3 * SS
STG = RING
QT = 4 * PV_
PARK = 3 * QT
PRIV = 3 * QT + 512
LDS = STG + 4 * PRIV

def O(t, db):
    if t == 6 and db >= 4: return ('a', 240 + 4 * (db - 4))
    return ('v', 32 * t + 4 * db)
def S(i): return 208 + 4 * (i & 3)
def P(U, ks): return 224 + 8 * (U & 1) + 4 * ks
CI = 240
def Lr(t): return 244 + t
vAK, vAV, vDMA, vEW, vER = 251, 252, 253, 254, 255
vVM, vHalf, vPK = 29, 28, 27
sMask = 79
sC2 = 100
sHi = 3
vQA, vQB = 30, 31
def Q(t, ds): return 16 * t + 4 * ds
def Kf(g, ds): return 112 + 16 * g + 4 * ds
def Vf(db, ks): return 176 + 8 * db + 4 * ks

sQ, sK, sV, sO = 12, 16, 20, 24
sW, sCnt, sInc, sRd, sC, sQo, sSl = 28, 29, 30, 31, 32, 33, 34
sT0, sT1, sT2 = 35, 36, 37
sG = 64
sWK, sWV, sWG = 68, 69, 70
sIncW, sIncN = 71, 72
sNT, sTile, sBlk, sStg, sQS, sQT = 73, 74, 75, 76, 77, 78
sSt = 80

def rn(f, b, n): return "%s[%d:%d]" % (f, b, b + n - 1)
def mfma(D, A, B, C, half=False):
    n = 2 if half else 4
    cs = "0" if C is None else rn(C[0], C[1], 4)
    op = "v_mfma_f32_16x16x16_bf16" if half else "v_mfma_f32_16x16x32_bf16"
    return "%s %s, %s, %s, %s" % (op, rn(D[0], D[1], 4), rn(A[0], A[1], n), rn(B[0], B[1], n), cs)
def f2u(x): return struct.unpack("<I", struct.pack("<f", x))[0]

class Wave:
    def __init__(self, gen, NT, dma, tag):
        self.g, self.c, self.NT, self.dma, self.tag = gen, gen.c, NT, dma, tag
        self.tau = (2, 1, 5, 4) if NT == 7 else (2, 1, 4, 3)
        W = solve.windows(NT, self.tau, 10 if NT == 7 else 12)
        if NT == 7: pos = [4 * p + 1 for p in range(8 * NT - 2)]
        else: pos = sorted([4 * p + 1 for p in range(8 * NT - 1)] + [16 * p + 2 for p in range(2 * NT)])
        self.rd = solve.edf(W, pos)
        assert self.rd
        self.oinit = set()
        self.group = {}
        self.code = []

    def kread(self, g, ds, off=0):
        return "ds_read_b128 %s, v%d offset:%d" % (rn('a', Kf(g, ds), 4), vAK, off + (g >> 1) * SLOT + (g & 1) * 512 + ds * 64)
    def vread(self, g, db, off=0):
        return "ds_read_b64_tr_b16 %s, v%d offset:%d" % (rn('a', Vf(db, g >> 1) + 2 * (g & 1), 2), vAV, off + (g >> 1) * SLOT + (g & 1) * 512 + db * 16)
    def qk(self, t, g, sb, raw=False):
        order = range(4) if g & 1 == 0 else range(3, -1, -1)
        o = []
        for i, ds in enumerate(order):
            o.append(mfma(('v', sb), ('a', Kf(g, ds)), ('a', Q(t, ds)), (None if raw else ('v', CI)) if i == 0 else ('v', sb)))
        return o
    def pv1(self, t, db, pb, ks, gs):
        D = O(t, db)
        C = D if (t, db) in self.oinit else None
        self.oinit.add((t, db))
        if len(gs) == 2: return mfma(D, ('v', pb), ('a', Vf(db, ks)), C)
        h = gs[0] & 1
        return mfma(D, ('v', pb + 2 * h), ('a', Vf(db, ks) + 2 * h), C, half=True)
    def pv(self, t, groups, pbase, dbs=range(8)):
        o = []
        for db in dbs:
            for ks in ((0, 1) if db % 2 == 0 else (1, 0)):
                gs = [g for g in groups if g >> 1 == ks]
                if gs: o.append(self.pv1(t, db, pbase(ks), ks, gs))
        return o
    def pv_first(self, t, pbase):
        c = self.c
        if not c.obias: return [I(x) for x in self.pv(t, range(4), pbase)]
        Bt = O(t, 3)
        o = []
        if c.obias == 1:
            o.append("v_mfma_f32_16x16x4_f32 %s, v%d, v%d, 0" % (rn('v', Bt[1], 4), Lr(t), vVM))
            for r in range(4): o.append("v_and_or_b32 v%d, v%d, s%d, v%d" % (Bt[1] + r, Bt[1] + r, sMask, vHalf))
        else:
            for r in range(4): o.append("v_mov_b32 v%d, 0x%08x" % (Bt[1] + r, f2u(c.oconst)))
        o.append(Ins("ds_write_b128 v%d, %s offset:%d" % (vPK, rn('v', Bt[1], 4), 64 * t)))
        if t == 6:
            for r in range(4): o.append("v_accvgpr_write_b32 a%d, v%d" % (O(6, 7)[1] + r, Bt[1] + r))
        for j, db in enumerate((0, 1, 2, 4, 5, 6, 7, 3)):
            D = O(t, db)
            for k, ks in enumerate((0, 1) if j % 2 == 0 else (1, 0)):
                C = D if k else (Bt if D[0] == 'v' else O(6, 7))
                o.append(mfma(D, ('v', pbase(ks)), ('a', Vf(db, ks)), C))
            self.oinit.add((t, db))
        return [I(x) for x in o]
    def vmax(self):
        c = self.c
        if c.obias != 1: return []
        x, y, z = vVM, 16, 17
        o = ["v_accvgpr_read_b32 v%d, a%d" % (x, Vf(0, 0)), "v_accvgpr_read_b32 v%d, a%d" % (y, Vf(0, 0) + 2), "v_accvgpr_read_b32 v%d, a%d" % (z, Vf(0, 1) + 1),
             "v_max3_f32 v%d, |v%d|, |v%d|, |v%d|" % (x, x, y, z)]
        for sw in ("v_permlane32_swap_b32", "v_permlane16_swap_b32"):
            o += ["v_mov_b32 v%d, v%d" % (y, x), "%s v%d, v%d" % (sw, x, y), "v_max_f32 v%d, v%d, v%d" % (x, x, y)]
        for k in (8, 4, 2, 1):
            o.append("v_max_f32_dpp v%d, v%d, v%d row_ror:%d row_mask:0xf bank_mask:0xf" % (x, x, x, k))
        o.append("v_min_f32 v%d, 0x%08x, v%d" % (x, f2u(2.0 ** 60), x))
        o.append("v_mul_f32 v%d, 0x%08x, v%d" % (x, f2u(c.gamma), x))
        return o
    def softmax(self, t, sb, pdst):
        o = []
        for i in range(4):
            o.append("v_exp_f32 v%d, v%d" % (sb + i, sb + i))
            o.append("v_add_f32 v%d, v%d, v%d" % (Lr(t), Lr(t), sb + i))
            if i & 1: o.append("v_cvt_pk_bf16_f32 v%d, v%d, v%d" % (pdst + i // 2, sb + i - 1, sb + i))
        return o
    def tagged(self, text, grp, **kw):
        i = Ins(text, **kw); self.group[id(i)] = grp; return i
    def share(self, kv, blk):
        srd, lo, base, pad = (sK, 0, sWK, PK - 1024) if kv == 'K' else (sV, HK, sWV, PV_ - 1024)
        lds = ((blk >> 1) % 3) * SS + (blk & 1) * SLOT + lo
        o = []
        for n in range(2):
            if n == 0: b = [Ins("s_add_u32 m0, s%d, %d" % (base, lds)), Ins("s_add_u32 s%d, s%d, %d" % (sT2, sWG, blk * 8192))]
            else: b = [Ins("s_add_u32 m0, m0, %d" % pad)]
            b.append(self.tagged("buffer_load_dwordx4 v%d, s[%d:%d], s%d offen offset:%d %s lds" % (vDMA, srd, srd + 3, sT2, 1024 * n, self.c.dflag), "%s%d" % (kv, blk)))
            o.append(b)
        return o
    def qbuf(self, t):
        k = self.NT - 1 - t
        if k < 4: return sQS, vQA, (k >> 1) * SS + (k & 1) * QT
        return sStg, vQB, (k - 4) * QT
    def qload(self, t):
        sb, _, off = self.qbuf(t)
        o = []
        for n in range(4):
            if n == 0: b = [Ins("s_add_u32 m0, s%d, %d" % (sb, off)), Ins("s_sub_u32 s%d, s%d, %d" % (sT1, sQT, (self.NT - 1 - t) * 4096))]
            else: b = [Ins("s_add_u32 m0, m0, %d" % (PV_ - 1024))]
            b.append(self.tagged("buffer_load_dwordx4 v%d, s[%d:%d], s%d offen offset:%d %s lds" % (vDMA, sQ, sQ + 3, sT1, n * 1024, self.c.qflag), "Q%d" % t))
            o.append(b)
        return o
    def waitv(self, grp):
        i = Ins("s_waitcnt vmcnt(0)"); self.group[id(i)] = "W:" + grp; return i
    def scale(self, t):
        o = []
        tb = 32 * t + 16 if t < 6 else 16
        _, va, off = self.qbuf(t)
        for ds in range(4):
            o.append("ds_read_b128 %s, v%d offset:%d" % (rn('v', 32 * t + 4 * ds, 4), va, off + ds * 64))
        if self.c.pkscale:
            for r0 in range(0, 16, 4):
                for r in range(r0, r0 + 4):
                    a = tb + 2 * (r % 4)
                    o.append("v_lshlrev_b32 v%d, 16, v%d" % (a, 32 * t + r))
                    o.append("v_and_b32 v%d, s%d, v%d" % (a + 1, sHi, 32 * t + r))
                for r in range(r0, r0 + 4):
                    a = tb + 2 * (r % 4)
                    o.append("v_pk_mul_f32 %s, %s, %s" % (rn('v', a, 2), rn('v', a, 2), rn('s', sC2, 2)))
                for r in range(r0, r0 + 4):
                    a = tb + 2 * (r % 4)
                    o.append("v_cvt_pk_bf16_f32 v%d, v%d, v%d" % (32 * t + r, a, a + 1))
                    o.append("v_accvgpr_write_b32 a%d, v%d" % (Q(t, 0) + r, 32 * t + r))
            return o
        for r in range(16):
            q = 32 * t + r
            a, b = tb + 2 * (r % 5), tb + 2 * (r % 5) + 1
            o.append("v_lshlrev_b32 v%d, 16, v%d" % (a, q))
            o.append("v_and_b32 v%d, s%d, v%d" % (b, sHi, q))
            o.append("v_mul_f32 v%d, s%d, v%d" % (a, sC, a))
            o.append("v_mul_f32 v%d, s%d, v%d" % (b, sC, b))
            o.append("v_cvt_pk_bf16_f32 v%d, v%d, v%d" % (a, a, b))
            o.append("v_accvgpr_write_b32 a%d, v%d" % (Q(t, 0) + r, a))
        return o
    def seg(self, head, body, bundles=(), span=(0.0, 0.8)):
        self.code += self.ts2() + [I(x) for x in head] + self.ts2()
        b = schedule([I(x) for x in body], self.c.verbose) if body else []
        n = len(b)
        k = len(bundles)
        pos = [int(n * (span[0] + (span[1] - span[0]) * j / max(k, 1))) for j in range(k)]
        j = 0
        for i in range(n + 1):
            while j < k and pos[j] <= i:
                self.code += bundles[j]; j += 1
            if i < n: self.code.append(b[i])
    def ts2(self):
        if not (self.c.diag and self.c.tsmode == 2) or getattr(self, 'nts', 1) >= 28: return []
        self.nts = getattr(self, 'nts', 1) + 1
        k = self.nts - 1
        reg = 48 + k if k < 16 else 88 + k - 16
        assert k < 28, k
        return [Ins("s_memtime s[46:47]"), Ins("s_waitcnt lgkmcnt(0)"), Ins("s_mov_b32 s%d, s46" % reg)]
    def ts(self, idx):
        if not self.c.diag or self.c.tsmode == 2: return []
        return [Ins("s_memrealtime s[44:45]"), Ins("s_memtime s[46:47]"), Ins("s_waitcnt lgkmcnt(0)"),
                Ins("s_mov_b32 s%d, s44" % (48 + 2 * idx)), Ins("s_mov_b32 s%d, s46" % (49 + 2 * idx))]

    def pin(self, ins, after):
        self.npin = getattr(self, 'npin', 0) + 1
        after.W.add("pin%d" % self.npin); ins.R.add("pin%d" % self.npin)
        return ins
    def fence(self, grp, after, bar=False, lgkm0=False, frees=()):
        w = self.waitv(grp)
        if after is not None: self.pin(w, after)
        o = self.ts2c() + [w]
        if bar: o.append(Ins("s_barrier", lgkm0=lgkm0))
        o[-1].W.add("L:" + grp)
        for f in frees: o[-1].W.add("L:" + f)
        if after is not None and len(o) > 1 and self.c.tsmode == 2 and self.c.diag: self.pin(o[0], after)
        return o + self.ts2c()
    def ts2c(self):
        o = self.ts2()
        for x in o: x.R.add("vmq"); x.W.add("vmq")
        return o
    def weave(self, body, bundles, span=(0.0, 0.9)):
        n, k = len(body), len(bundles)
        pos = [int(n * (span[0] + (span[1] - span[0]) * j / max(k, 1))) for j in range(k)]
        o = []; j = 0
        for i in range(n):
            o.append(body[i])
            while j < k and pos[j] <= i:
                self.pin(bundles[j][-1], body[i]); o += bundles[j]; j += 1
        return o
    def prologue(self):
        c, NT, tau = self.c, self.NT, self.tau
        T = NT - 1
        II = lambda l, **kw: [I(x, **kw) for x in l]
        G0 = lambda t: [g for g in range(4) if tau[g] <= t]
        seq = self.share('K', 0) + self.qload(T) + self.share('K', 1) + self.qload(T - 1) + self.share('V', 0) + self.share('V', 1)
        for t in range(T - 2, -1, -1): seq += self.qload(t)
        nq = len(seq)
        for b in (2, 3): seq += self.share('K', b) + self.share('V', b)
        n1 = len(seq)
        for b in (4, 5): seq += self.share('K', b) + self.share('V', b)
        grp = [self.group[id(b[-1])] for b in seq]
        state = [0]
        def nxt(g, cap=None):
            want = c.first if g is None else max(j for j, x in enumerate(grp) if x == g) + 1 + c.lead
            want = min(want, len(seq) if cap is None else cap)
            r = seq[state[0]:want]
            state[0] = max(state[0], want)
            return r
        self.first = nxt(None, nq)
        self.code += [Ins("v_mov_b32 v%d, 0" % Lr(t)) for t in range(NT)]
        misc = ["s_mov_b32 s%d, %d" % (sRd, 2 * SS), "s_mov_b32 s%d, %d" % (sIncW, (-2 * SS) & 0xffffffff), "s_mov_b32 s%d, %d" % (sIncN, SS)]
        misc += ["s_mov_b32 s%d, %d" % (sCnt, 14 if NT == 7 else 28)]
        if self.dma:
            misc += ["s_mov_b32 s%d, %d" % (sG + i, 4 * 16384 + 4096 * i) for i in range(4)]
            misc += ["s_mov_b32 s%d, %d" % (sSl, SS)]
        if c.obias:
            misc += ["s_mov_b32 s%d, 0xff800000" % sMask, "v_mov_b32 v%d, 0x00400000" % vHalf, "s_add_u32 s%d, s%d, %d" % (sT0, sStg, PARK),
                     "v_bfe_u32 v%d, v%d, 8, 2" % (vPK, vDMA), "v_lshl_add_u32 v%d, v%d, 4, s%d" % (vPK, vPK, sT0)]
        misc += ["s_mov_b32 s%d, 0xffff0000" % sHi, "s_mov_b32 s%d, s%d" % (sC2, sC), "s_mov_b32 s%d, s%d" % (sC2 + 1, sC)]
        misc.append("s_waitcnt lgkmcnt(0)")
        self.code += II(misc)
        def scale(t):
            o = II(self.scale(t))
            for x in o[:4]: x.R.add("L:Q%d" % t)
            return o
        UA = lambda t: (NT + 1) - 1 - t
        UB = lambda t: NT + t
        prog = self.fence("Q%d" % T, None)
        a = scale(T)
        prog += self.weave(a, nxt("K1", nq))
        prog += self.fence("K1", a[len(a) // 2], bar=True)
        body = II([self.kread(g, ds) for g in range(4) for ds in range(4)], xr=["L:K1"])
        for g in range(4): body += II(self.qk(T, g, S(g), raw=True))
        x, y = 26, 29
        b2 = ["v_max3_f32 v%d, v%d, v%d, v%d" % (x, S(0), S(0) + 1, S(0) + 2),
              "v_max3_f32 v%d, v%d, v%d, v%d" % (x, x, S(0) + 3, S(0) + 4),
              "v_max3_f32 v%d, v%d, v%d, v%d" % (x, x, S(0) + 5, S(0) + 6),
              "v_max_f32 v%d, v%d, v%d" % (x, x, S(0) + 7)]
        for sw in ("v_permlane32_swap_b32", "v_permlane16_swap_b32"):
            b2 += ["v_mov_b32 v%d, v%d" % (y, x), "%s v%d, v%d" % (sw, x, y), "v_max_f32 v%d, v%d, v%d" % (x, x, y)]
        for k in (8, 4, 2, 1):
            b2.append("v_max_f32_dpp v%d, v%d, v%d row_ror:%d row_mask:0xf bank_mask:0xf" % (x, x, x, k))
        for i in range(4):
            b2.append("v_sub_f32 v%d, 0x%08x, v%d" % (CI + i, f2u(-c.bias), x))
        for g in range(4):
            for i in range(4):
                b2.append("v_add_f32 v%d, v%d, v%d" % (S(g) + i, S(g) + i, CI))
            b2 += self.softmax(T, S(g), P(UA(T), g >> 1) + 2 * (g & 1))
        body += II(b2)
        prog += self.weave(body, nxt("Q%d" % (T - 1), nq), (0.0, 0.25))
        last = body[31]
        sidx = [0]
        def unit(t, gs, U, post=None):
            o = []
            for g in gs:
                sb = S(sidx[0]); sidx[0] += 1
                o += II(self.qk(t, g, sb))
                if post: o += post(g, o[-1])
                o += II(self.softmax(t, sb, P(U, g >> 1) + 2 * (g & 1)))
            return o
        gorder = sorted(range(4), key=lambda g: tau[g])
        kfence = {}
        def kreload(g, after):
            o = []
            name = "K%d" % (2 + (g >> 1))
            if name not in kfence:
                kfence[name] = 1
                o += self.fence(name, after, bar=True, lgkm0=(name == "K2"), frees=["Q%d" % (T - 2), "Q%d" % (T - 3)])
            return o + II([self.kread(g, ds, SS) for ds in range(4)], xr=["L:" + name])
        for t in range(T - 1, -1, -1):
            prog += self.fence("Q%d" % t, last)
            a = scale(t)
            if t == T - 1:
                prog += self.weave(a, nxt("V1", nq), (0.0, 0.5))
                prog += self.fence("V1", a[int(len(a) * 0.6)], bar=True, lgkm0=True, frees=["Q%d" % T, "Q%d" % (T - 1)])
                a = II([self.vread(g, db) for db in range(8) for g in range(4)], xr=["L:V1"])
                a += II(self.vmax())
            a += self.pv_first(t + 1, lambda ks: P(UA(t + 1), ks))
            if t > 0:
                u = unit(t, range(4), UA(t))
                vs = [i for i in a + u if isvalu(i)]
                bl = nxt("Q%d" % (t - 1), n1)
                body = a + u
                cut = body.index(u[-10])
                prog += self.weave(body[:cut], bl, (0.0, c.wspan)) + body[cut:]
                last = u[-10]
            else:
                prog += self.weave(a, nxt("V3", n1), (0.0, c.wspan))
        u = unit(0, gorder, UA(0), post=lambda g, m: kreload(g, m) if g < 2 else [])
        prog += u
        pv0 = self.pv_first(0, lambda ks: P(UA(0), ks))
        prog += pv0[:-14] + self.fence("V2", pv0[-15], bar=True) + pv0[-14:]
        for g in gorder[:2]:
            prog += II([self.vread(g, db, SS) for db in range(8)], xr=["L:V2"])
        body = []
        for t in range(1, NT):
            u = unit(t, [g for g in gorder if g in G0(t)], UB(t))
            body += u
            if t == 1:
                for g in gorder[2:]: body += kreload(g, u[-1])
            if t == 2:
                body += self.fence("V3", u[-1], bar=True)
                for g in gorder[2:]:
                    body += II([self.vread(g, db, SS) for db in range(8)], xr=["L:V3"])
                body += II(["v_add_u32 v%d, %d, v%d" % (vAK, 2 * SS, vAK), "v_add_u32 v%d, %d, v%d" % (vAV, 2 * SS, vAV)])
            if t < T: body += II(self.pv(t, G0(t), lambda ks: P(UB(t), ks)))
        body += II(self.qk(0, 0, S(0)) + self.qk(0, 1, S(1)))
        prog += self.weave(body, nxt("V5"), (0.0, c.pb_hi))
        self.code += schedule(prog, c.verbose, order=True, pkmin=4, space=dict(zip(('dsw', 'dma', 'dsr'), c.pspace)))

    def period(self, p):
        c, NT = self.c, self.NT
        first = p == 2
        gaps = []
        NS = 2 * NT
        for n in range(NS):
            t, hh = n >> 1, n & 1
            U = NT * p + t
            n1 = (n + 1) % NS
            t1, ks1 = n1 >> 1, n1 & 1
            ms = self.qk(t1, 2 * ks1, S(2 * ks1)) + self.qk(t1, 2 * ks1 + 1, S(2 * ks1 + 1))
            ms += self.pv((t - 1) % NT, range(4), lambda ks: P(U - 1, ks), range(4 * hh, 4 * hh + 4))
            for i in range(16):
                s_ = S(2 * hh) + i // 2
                if i % 2 == 0: v = ["v_exp_f32 v%d, v%d" % (s_, s_)]
                else:
                    v = ["v_add_f32 v%d, v%d, v%d" % (Lr(t), Lr(t), s_)]
                    if i % 4 == 3: v.append("v_cvt_pk_bf16_f32 v%d, v%d, v%d" % (P(U, hh) + i // 4, s_ - 1, s_))
                gaps.append(dict(m=ms[i], s=[], d=[], v=v))
        NG = len(gaps)
        if c.stall:
            for i in range(15, NG, 16): gaps[i]['v'].append("s_nop %d" % (c.stall - 1))
        for (kind, g, x), pos in self.rd.items():
            gaps[pos]['d'].append(self.kread(g, x) if kind == 'K' else self.vread(g, x))
        gaps[0]['s'].append(Ins("s_barrier", lgkm0=True))
        gaps[2]['s'].append("s_add_u32 s%d, s%d, %d" % (sRd, sRd, SS))
        gaps[3]['s'].append("s_cmp_eq_u32 s%d, %d" % (sRd, RING))
        gaps[4]['s'].append("s_cselect_b32 s%d, s%d, s%d" % (sInc, sIncW, sIncN))
        gaps[5]['s'].append("s_cselect_b32 s%d, 0, s%d" % (sRd, sRd))
        last = max(self.rd.values())
        assert last < NG - 7
        gaps[NG - 7]['v'].append("v_add_u32 v%d, s%d, v%d" % (vAK, sInc, vAK))
        gaps[NG - 3]['v'].append("v_add_u32 v%d, s%d, v%d" % (vAV, sInc, vAV))
        lo = 8
        if first:
            bp = c.bara if NT == 7 else c.barb
            lst = (('V', 0, "V4"), ('K', 1, "K5"), ('V', 1, "V5"))
            if len(bp) == 2: lst = (('V', 0, "V4"), ('K', 1, "V5"))
            if len(bp) == 1: lst = (('V', 0, "V5"),)
            for (kind, ks, grp), fp in zip(lst, bp):
                f = min(pos for (k, g, x), pos in self.rd.items() if k == kind and g >> 1 == ks)
                f = min(f, fp)
                gaps[f - 1]['s'].append(self.waitv(grp))
                gaps[f]['s'].append(Ins("s_barrier"))
            bl = []
            for blk in (6, 7): bl += self.share('K', blk) + self.share('V', blk)
            hi = int(NG * c.sh_hi)
            self.place(gaps, bl, lo, hi)
            lo = int(NG * c.s3_lo)
        if self.dma:
            bl = []
            for blk in range(2):
                for srd, l0, st in ((sK, 0, PK), (sV, HK, PV_)):
                    for a in range(2):
                        for n in range(4):
                            bl.append([Ins("s_add_u32 m0, s%d, %d" % (sSl, blk * SLOT + l0 + 4 * st * a + (st - 1024) * n)),
                                       self.tagged("buffer_load_dwordx4 v%d, s[%d:%d], s%d offen offset:%d %s lds" % (vDMA, srd, srd + 3, sG + 2 * blk + a, 1024 * n, c.dflag), "S")])
            self.place(gaps, bl, lo, NG - 12 if first else min(NG - 12, int(NG * c.dma_hi)))
            for i in range(4):
                gaps[NG - 11 + i]['s'].append("s_add_u32 s%d, s%d, 16384" % (sG + i, sG + i))
            gaps[NG - 7]['s'].append("s_add_u32 s%d, s%d, %d" % (sSl, sSl, SS))
            gaps[NG - 6]['s'].append("s_cmp_eq_u32 s%d, %d" % (sSl, RING))
            gaps[NG - 5]['s'].append("s_cselect_b32 s%d, 0, s%d" % (sSl, sSl))
        if first: gaps[NG - 1]['s'].append(self.waitv("V7"))
        elif self.dma: gaps[NG - 1]['s'].append("s_waitcnt vmcnt(32)")
        return gaps
    def place(self, gaps, bundles, lo, hi):
        cand = [i for i in range(lo + 2, hi) if not gaps[i]['d'] and len(gaps[i]['v']) == 1]
        k = len(bundles)
        prev = lo - 1
        for j, b in enumerate(bundles):
            tgt = lo + 2 + (hi - lo - 2) * j / k
            ns = len(b) - 1
            cc = [i for i in cand if i - ns >= prev]
            i = min(cc, key=lambda i: abs(i - tgt) - (2.5 if i % 2 else 0))
            for q, ins in enumerate(b[:-1]):
                gi = i - ns + q
                if gi == prev: gaps[gi]['d'].append(ins)
                else: gaps[gi]['s'].append(ins)
            gaps[i]['d'].append(b[-1])
            prev = i
    def flat(self, gaps):
        o = []
        for g in gaps:
            o.append(I(g['m']))
            o += [I(x) for x in g['s'] + g['d'] + g['v']]
        return o

    def finalize(self, t, k, Lm, packs, acct, first, Ofn=O, Lreg=None, land=None, soff=None, pk=False, one=None, nb=None):
        c = self.c
        buf = k & 1
        st = "L:st%d" % buf
        Lreg = Lr(t) if Lreg is None else Lreg
        land = Q(t, 0) if land is None else land
        if one is None:
            x, y = Lm + 3, Lm + 2
            o = ["v_mov_b32 v%d, v%d" % (y, Lreg), "v_permlane32_swap_b32 v%d, v%d" % (Lreg, y), "v_add_f32 v%d, v%d, v%d" % (Lreg, Lreg, y),
                 "v_mov_b32 v%d, v%d" % (y, Lreg), "v_permlane16_swap_b32 v%d, v%d" % (Lreg, y), "v_add_f32 v%d, v%d, v%d" % (Lreg, Lreg, y),
                 "v_rcp_f32 v%d, v%d" % (x, Lreg)]
            for g in (1, 2, 3):
                o.append("v_mov_b32_dpp v%d, v%d row_ror:%d row_mask:0x%x bank_mask:0xf" % (x, x, 16 - 4 * g, 1 << g))
            for r in range(4):
                o.append("v_mov_b32_dpp v%d, v%d row_newbcast:%d row_mask:0xf bank_mask:0xf" % (Lm + r, x, r))
        else:
            o = ["v_mfma_f32_16x16x4_f32 %s, v%d, a%d, 0" % (rn('v', Lm, 4), Lreg, one)]
        if first is not None:
            for op, r in (("v_max3_u32", vAK), ("v_min3_u32", vAV)):
                if first:
                    o.append("%s v%d, v%d, v%d, v%d" % (op, r, Lm, Lm + 1, Lm + 2))
                    o.append("%s v%d, v%d, v%d, v%d" % (op, r, r, Lm + 3, Lm + 3))
                else:
                    o.append("%s v%d, v%d, v%d, v%d" % (op, r, r, Lm, Lm + 1))
                    o.append("%s v%d, v%d, v%d, v%d" % (op, r, r, Lm + 2, Lm + 3))
        if one is not None:
            for r in range(4): o.append("v_rcp_f32 v%d, v%d" % (Lm + r, Lm + r))
        if nb is not None:
            o.append("ds_read_b128 %s, v%d offset:%d" % (rn('v', nb, 4), vAK, 64 * t))
            for r in range(4): o.append("v_mul_f32 v%d, v%d, v%d" % (nb + r, nb + r, Lm + r))
        loc = {}
        for db in range(8):
            f, b = Ofn(t, db)
            if f == 'a':
                for r in range(4):
                    o.append("v_accvgpr_read_b32 v%d, a%d" % (acct + 4 * (db - 4) + r, b + r))
                b = acct + 4 * (db - 4)
            loc[db] = b
        if pk:
            for db in range(8):
                for r in (0, 2):
                    if nb is None: o.append("v_pk_mul_f32 %s, %s, %s" % (rn('v', loc[db] + r, 2), rn('v', loc[db] + r, 2), rn('v', Lm + r, 2)))
                    else: o.append("v_pk_fma_f32 %s, %s, %s, %s neg_lo:[0:0:1] neg_hi:[0:0:1]" % (rn('v', loc[db] + r, 2), rn('v', loc[db] + r, 2), rn('v', Lm + r, 2), rn('v', nb + r, 2)))
        for r in range(4):
            for db in range(8):
                if not pk: o.append("v_mul_f32 v%d, v%d, v%d" % (loc[db] + r, loc[db] + r, Lm + r))
            pb = packs[r % len(packs)]
            for j in range(4):
                o.append("v_cvt_pk_bf16_f32 v%d, v%d, v%d" % (pb + j, loc[2 * j] + r, loc[2 * j + 1] + r))
            o.append(Ins("ds_write_b128 v%d, %s offset:%d" % (vEW, rn('v', pb, 4), r * 320 + buf * 5120), xw=[st + "r%d" % r]))
        if soff is None:
            soff = sSt + t
            o.append("s_add_u32 s%d, s%d, %d" % (soff, sQo, t * 4096))
        for a in range(4):
            for sel in range(2):
                o.append(Ins("ds_read_b64_tr_b16 %s, v%d offset:%d" % (rn('a', land + 4 * a + 2 * sel, 2), vER, a * 1280 + 64 * sel + buf * 5120), xr=[st + "r%d" % r for r in range(4)]))
        for a in range(4 if not c.nostore else 0):
            o.append("buffer_store_dwordx4 %s, v%d, s[%d:%d], s%d offen offset:%d %s" % (rn('a', land + 4 * a, 4), vDMA, sO, sO + 3, soff, a * 1024, c.oflag))
        return o

    def tail(self):
        c, NT, tau = self.c, self.NT, self.tau
        T = NT - 1
        U = NT * 31
        G1 = lambda t: [g for g in range(4) if tau[g] > t]
        ring = dict(xr=["L:ring"])
        prog = [Ins("s_barrier", lgkm0=True, xw=["L:ring"])]
        prog += self.pv(T, range(4), lambda ks: P(U - 1, ks))
        sidx = 0
        for t in range(NT):
            gs = G1(t)
            if not gs: continue
            pb = (lambda u: (lambda ks: P(u, ks)))(U); U += 1
            for g in gs:
                sb = S(sidx); sidx += 1
                if not (t == 0 and g < 2): prog += self.qk(t, g, sb)
                if tau[g] == t + 1: prog += [Ins(self.kread(g, ds), **ring) for ds in range(4)]
                prog += self.softmax(t, sb, pb(g >> 1) + 2 * (g & 1))
            prog += self.pv(t, gs, pb)
            for db in range(8):
                prog += [Ins(self.vread(g, db), **ring) for g in gs if tau[g] == t + 1]
        order = [t for t in range(NT) if not G1(t)] + [t for t in range(NT) if G1(t)]
        gorder = sorted(range(4), key=lambda g: tau[g])
        pool = 32 * order[0]
        for k, t in enumerate(order):
            pb = (lambda u: (lambda ks: P(u, ks)))(U); U += 1
            for g in (gorder if k == 0 else range(4)):
                sb = S(sidx); sidx += 1
                prog += self.qk(t, g, sb)
                prog += self.softmax(t, sb, pb(g >> 1) + 2 * (g & 1))
            prog += self.pv(t, range(4), pb)
            pk = k >= len(order) - c.pkmul
            one = None if c.lvalu else Q(t, 0)
            if one is not None: prog.append("v_accvgpr_write_b32 a%d, 1.0" % one)
            N = lambda x: x if c.obias else None
            assert pk or not c.obias
            if k == 0:
                if c.obias: prog += ["v_bfe_u32 v%d, v%d, 8, 2" % (vAK, vDMA), "v_lshl_add_u32 v%d, v%d, 4, s%d" % (vAK, vAK, sT0)]
                prog += self.finalize(t, k, pb(0), [pb(0), pb(1)], None, None, pk=pk, one=one, nb=N(pb(1)))
            elif t == 6: prog += self.finalize(t, k, pool + 8 * (k & 1), [pool, pool + 4, pool + 8, pool + 12], pool + 16, None, pk=pk, one=one, nb=N(pool + 8 * (k & 1) + 4))
            else: prog += self.finalize(t, k, pool + 8 * (k & 1), [pool + 16, pool + 20, pool + 24, pool + 28], None, None, pk=pk, one=one, nb=N(pool + 8 * (k & 1) + 4))
        ls = [Lr(t) for t in range(NT)] + [Lr(0)]
        for op, r in (("v_max3_u32", vAK), ("v_min3_u32", vAV)):
            prog.append("%s v%d, v%d, v%d, v%d" % (op, r, ls[0], ls[1], ls[2]))
            prog.append("%s v%d, v%d, v%d, v%d" % (op, r, r, ls[3], ls[4]))
            prog.append("%s v%d, v%d, v%d, v%d" % (op, r, r, ls[5], ls[6]))
        return schedule([I(x) for x in prog], c.verbose, order=True, dswcost=c.dswcost, space=dict(zip(('dsw', 'vstore', 'dsr'), c.space)), AGE=c.age)

    def resolve_waits(self, seq):
        issued = [self.group[id(b[-1])] for b in self.first]
        if not self.c.pfs: issued.insert(self.c.pfpos, None)
        for i in seq:
            g = self.group.get(id(i))
            if i.kind in ("dma", "vload", "vstore"): issued.append(g)
            elif g and g.startswith("W:"):
                last = max(j for j, x in enumerate(issued) if x == g[2:])
                i.text = "s_waitcnt vmcnt(%d)" % min(63, len(issued) - 1 - last)

    def build(self):
        c, NT, tag = self.c, self.NT, self.tag
        self.code = [Ins("L_wave_%s:" % tag)]
        self.prologue()
        self.code += self.ts(1) + self.ts(2)
        self.code += self.ts2()
        self.code.append(self.waitv("K4"))
        self.code += self.flat(self.period(2)) + self.ts2()
        self.code += self.ts(3)
        self.resolve_waits(self.code)
        head, pend = insert_lgkm(self.code)
        assert not pend
        head = pad_hazards(head)
        gaps = self.period(3)
        if NT == 7: gaps += self.period(4)
        gaps[-4]['s'].append("s_sub_u32 s%d, s%d, 1" % (sCnt, sCnt))
        gaps[-2]['s'].append("s_cmp_lg_u32 s%d, 0" % sCnt)
        body, pend = insert_lgkm(self.flat(gaps))
        assert not pend
        body.append(Ins("s_cbranch_scc1 L_loop_%s" % tag))
        pad_hazards(body, hist=head[-16:], fix=False, name="loop entry")
        pad_hazards(body, hist=body[-16:], fix=False, name="loop back")
        tail = self.ts(4) + self.tail()
        tail += [Ins("v_cmp_le_u32 vcc, 0x%08x, v%d" % (f2u(2.0 ** c.hi_exp), vAK)),
                 Ins("s_mov_b64 s[%d:%d], vcc" % (sT1, sT1 + 1)),
                 Ins("v_cmp_ge_u32 vcc, 0x%08x, v%d" % (f2u(2.0 ** c.lo_exp), vAV)),
                 Ins("s_or_b64 s[%d:%d], s[%d:%d], vcc" % (sT1, sT1 + 1, sT1, sT1 + 1)),
                 Ins("s_mov_b32 s%d, %d" % (sNT, NT)),
                 Ins("s_cbranch_scc1 L_slow" if not c.force_slow else "s_branch L_slow")]
        tail += self.ts(5)
        if c.diag: tail += [Ins("s_waitcnt vmcnt(0)")] + self.ts(6)
        tail.append(Ins("s_branch L_fin" if (c.diag or c.twice or c.idle) else "s_endpgm"))
        tail, pend = insert_lgkm(tail)
        tail = pad_hazards(tail, hist=body[-16:])
        if c.hop:
            nt = []; acc = c.hop; k = 0
            stop = max(i for i, x in enumerate(tail) if x.kind == "vstore")
            for i, x in enumerate(tail):
                nt.append(x); acc += isize(x)
                if i < stop and acc >= c.hop - 24 and (x.kind == "mfma" or acc >= c.hop - 4):
                    nt += [Ins("L_hop%s%d:" % (tag, k)), Ins("s_cbranch_vccnz L_hop%s%d" % (tag, k + 1))]; k += 1; acc = 4
            tail = nt
            j = max(i for i, x in enumerate(head) if self.group.get(id(x)) == "W:K4")
            head[j:j] = self.ts(1) + [Ins("s_mov_b64 vcc, -1"), Ins("s_branch L_hop%s0" % tag), Ins("L_hop%s%d:" % (tag, k)), Ins("s_mov_b64 vcc, 0")] + self.ts(2)
            if c.verbose: print("hops", k)
        return head + [Ins(".p2align 6"), Ins("L_loop_%s:" % tag)] + body + tail

class Gen:
    def __init__(self, cfg):
        self.c = cfg
    def slow(self):
        c = self.c
        w = Wave(self, 7, False, "s")
        o = []
        e = lambda s: o.extend(Ins(l) for l in s.strip().split("\n"))
        vL, vKA, vVA, vQA, vM, vX = 64, 65, 66, 67, 68, 69
        KF = lambda kg, ds: 72 + 16 * kg + 4 * ds
        VF = lambda db: 104 + 4 * db
        QF = lambda ds: 136 + 4 * ds
        SB, PB, LM, PKB = 152, 160, 164, 168
        e("L_slow:")
        e("s_waitcnt vmcnt(0) lgkmcnt(0)")
        e("v_lshrrev_b32 v%d, 4, v%d" % (vX, vDMA))
        e("v_and_b32 v%d, 7, v%d\nv_lshlrev_b32 v%d, 10, v%d" % (vM, vX, vKA, vM))
        e("v_and_b32 v%d, 8, v%d\nv_lshl_add_u32 v%d, v%d, 5, v%d" % (vM, vX, vKA, vM, vKA))
        e("v_and_b32 v%d, 48, v%d\nv_add_u32 v%d, v%d, v%d" % (vM, vX, vKA, vM, vKA))
        e("v_and_b32 v%d, 15, v%d\nv_lshlrev_b32 v%d, 8, v%d" % (vM, vX, vQA, vM))
        e("v_and_b32 v%d, 48, v%d\nv_add_u32 v%d, v%d, v%d" % (vM, vX, vQA, vM, vQA))
        e("v_bfe_u32 v%d, v%d, 2, 3\nv_mul_u32_u24 v%d, %d, v%d" % (vM, vX, vVA, PV_, vM))
        e("v_and_b32 v%d, 32, v%d\nv_lshl_add_u32 v%d, v%d, 3, v%d" % (vM, vX, vVA, vM, vVA))
        e("v_and_b32 v%d, 1, v%d\nv_lshl_add_u32 v%d, v%d, 3, v%d" % (vM, vX, vVA, vM, vVA))
        e("v_and_b32 v%d, 2, v%d\nv_lshl_add_u32 v%d, v%d, 6, v%d" % (vM, vX, vVA, vM, vVA))
        e("v_add_u32 v%d, s%d, v%d" % (vVA, sStg, vVA))
        e("s_mov_b32 s%d, 0" % sTile)
        e("L_slow_tile:")
        e("s_lshl_b32 s%d, s%d, 12\ns_add_u32 s%d, s%d, s%d" % (sSt, sTile, sSt, sSt, sQo))
        for ds in range(4):
            e("buffer_load_dwordx4 %s, v%d, s[%d:%d], s%d offen offset:%d" % (rn('v', QF(ds), 4), vQA, sQ, sQ + 3, sSt, ds * 64))
        e("s_waitcnt vmcnt(0)")
        for r in range(16):
            q = QF(0) + r
            e("v_lshlrev_b32 v%d, 16, v%d\nv_and_b32 v%d, 0xffff0000, v%d" % (vM, q, vX, q))
            e("v_mul_f32 v%d, s%d, v%d\nv_mul_f32 v%d, s%d, v%d" % (vM, sC, vM, vX, sC, vX))
            e("v_cvt_pk_bf16_f32 v%d, v%d, v%d" % (q, vM, vX))
        def kload():
            for kg in range(2):
                for ds in range(4):
                    e("buffer_load_dwordx4 %s, v%d, s[%d:%d], s%d offen offset:%d" % (rn('v', KF(kg, ds), 4), vKA, sK, sK + 3, sBlk, kg * 512 + ds * 64))
        def qk(raw):
            for kg in range(2):
                for ds in range(4):
                    e(mfma(('v', SB + 4 * kg), ('v', KF(kg, ds)), ('v', QF(ds)), (None if raw else ('v', CI)) if ds == 0 else ('v', SB + 4 * kg)))
        e("v_mov_b32 v%d, 0xff800000\ns_mov_b32 s%d, 0" % (vM, sBlk))
        e("L_slow_max:")
        kload()
        e("s_waitcnt vmcnt(0)")
        qk(True)
        e("s_nop 7")
        for i in range(0, 8, 2):
            e("v_max3_f32 v%d, v%d, v%d, v%d" % (vM, vM, SB + i, SB + i + 1))
        e("s_add_u32 s%d, s%d, 8192\ns_cmp_lt_u32 s%d, 524288\ns_cbranch_scc1 L_slow_max" % (sBlk, sBlk, sBlk))
        for sw in ("v_permlane32_swap_b32", "v_permlane16_swap_b32"):
            e("v_mov_b32 v%d, v%d\n%s v%d, v%d\nv_max_f32 v%d, v%d, v%d" % (vX, vM, sw, vM, vX, vM, vM, vX))
        for i in range(4): e("v_sub_f32 v%d, 0, v%d" % (CI + i, vM))
        for r in range(32): e("v_mov_b32 v%d, 0" % r)
        e("v_mov_b32 v%d, 0\ns_mov_b32 s%d, 0" % (vL, sBlk))
        e("L_slow_pv:")
        kload()
        e("s_add_u32 s%d, s%d, 4096" % (sT0, sBlk))
        for a in range(2):
            for n in range(4):
                e("s_add_u32 m0, s%d, %d" % (sStg, 4 * PV_ * a + (PV_ - 1024) * n))
                e("buffer_load_dwordx4 v%d, s[%d:%d], s%d offen offset:%d lds" % (vDMA, sV, sV + 3, sT0 if a else sBlk, 1024 * n))
        e("s_waitcnt vmcnt(0)")
        for db in range(8):
            for hb in range(2):
                e("ds_read_b64_tr_b16 %s, v%d offset:%d" % (rn('v', VF(db) + 2 * hb, 2), vVA, hb * 512 + db * 16))
        qk(False)
        e("s_nop 7")
        for i in range(8):
            e("v_exp_f32 v%d, v%d" % (SB + i, SB + i))
        for i in range(8):
            e("v_add_f32 v%d, v%d, v%d" % (vL, vL, SB + i))
        for i in range(4):
            e("v_cvt_pk_bf16_f32 v%d, v%d, v%d" % (PB + i, SB + 2 * i, SB + 2 * i + 1))
        e("s_waitcnt lgkmcnt(0)")
        for db in range(8):
            e(mfma(('v', 4 * db), ('v', PB), ('v', VF(db)), ('v', 4 * db)))
        e("s_nop 7")
        e("s_add_u32 s%d, s%d, 8192\ns_cmp_lt_u32 s%d, 524288\ns_cbranch_scc1 L_slow_pv" % (sBlk, sBlk, sBlk))
        e("v_accvgpr_write_b32 a16, 1.0")
        o.extend(I(x) for x in w.finalize(0, 0, LM, [PKB], None, None, Lreg=vL, soff=sSt, one=16))
        e("s_waitcnt vmcnt(0) lgkmcnt(0)")
        e("s_add_u32 s%d, s%d, 1\ns_cmp_lt_u32 s%d, s%d\ns_cbranch_scc1 L_slow_tile" % (sTile, sTile, sTile, sNT))
        o, _ = insert_lgkm(o, hoist=False)
        return pad_hazards(o)

    def build(self):
        c = self.c
        o = []
        e = lambda s: o.extend(Ins(l) for l in s.strip().split("\n"))
        e("s_cmp_ge_u32 s2, 256\ns_cbranch_scc1 L_end")
        if c.twice: e("s_mov_b32 s90, 0\nL_again:")
        e("s_load_dwordx4 s[4:7], s[0:1], 0\ns_load_dwordx4 s[8:11], s[0:1], 16")
        if c.diag:
            e("s_load_dwordx2 s[40:41], s[0:1], %d" % (32 if (c.dbgout or c.skew) else 40))
            e("s_memrealtime s[44:45]\ns_memtime s[46:47]\ns_waitcnt lgkmcnt(0)\ns_mov_b32 s48, s44\ns_mov_b32 s49, s46")
            if c.tsmode == 2: e("s_mov_b32 s48, s46")
        wa, wb = Wave(self, 7, False, "a"), Wave(self, 6, True, "b")
        ca, cb = wa.build(), wb.build()
        assert [[x.text for x in b] for b in wa.first] == [[x.text for x in b] for b in wb.first]
        e("v_lshrrev_b32 v1, 6, v0")
        e("v_and_b32 v5, 63, v0")
        e("v_readfirstlane_b32 s%d, v1" % sW)
        e("v_lshlrev_b32 v%d, 4, v5" % vDMA)
        e("s_mul_i32 s%d, s2, 110592" % sT0)
        e("s_lshl_b32 s3, s2, 19")
        e("s_mov_b32 s%d, 524288\ns_mov_b32 s%d, 0x20000\ns_mov_b32 s%d, 110592\ns_mov_b32 s%d, 0x20000" % (sK + 2, sK + 3, sQ + 2, sQ + 3))
        e("s_mul_i32 s%d, s%d, %d" % (sQo, sW, 112 * 256))
        e("s_add_u32 s%d, s%d, %d\ns_min_u32 s%d, s%d, %d" % (sQT, sQo, 6 * 4096, sQT, sQT, 26 * 4096))
        e("s_mul_i32 s%d, s%d, %d" % (sWK, sW, 2 * PK))
        e("s_lshl_b32 s%d, s%d, 11" % (sWG, sW))
        e("s_mul_i32 s%d, s%d, %d\ns_add_u32 s%d, s%d, %d" % (sQS, sW, 2 * QT, sQS, sQS, SS))
        e("s_waitcnt lgkmcnt(0)")
        def srd(r, src, offs):
            e("s_add_u32 s%d, s%d, s%d\ns_addc_u32 s%d, s%d, 0" % (r, src, offs, r + 1, src + 1))
        srd(sK, 6, 3); srd(sQ, 4, sT0)
        for b in wa.first[:c.pfpos]: o.extend(b)
        e("s_getpc_b64 s[38:39]")
        e("L_pc:")
        if c.pfs:
            e("s_lshr_b32 s%d, s2, 3\ns_lshl_b32 s%d, s%d, 2\ns_add_u32 s%d, s%d, s%d\ns_lshl_b32 s%d, s%d, 9" % (sC, sC, sC, sC, sC, sW, sC, sC))
            e("s_min_u32 s%d, s%d, L_slow-L_pc\ns_add_u32 s38, s38, s%d\ns_addc_u32 s39, s39, 0" % (sC, sC, sC))
            for i in range(512 // c.pfstride): e("s_load_dword s%d, s[38:39], %d" % (87, c.pfstride * i))
        else:
            e("s_lshr_b32 s%d, s2, 3\ns_and_b32 s%d, s%d, 7\ns_lshl_b32 s%d, s%d, 13" % (sC, sC, sC, sC, sC))
            e("v_lshlrev_b32 v2, 5, v0\nv_add_u32 v2, s%d, v2\nv_min_u32 v2, L_slow-L_pc, v2" % sC)
            e("global_load_dword v63, v2, s[38:39]")
        srd(sV, 8, 3); srd(sO, 10, sT0)
        e("s_mov_b32 s%d, 524288\ns_mov_b32 s%d, 0x20000\ns_mov_b32 s%d, 110592\ns_mov_b32 s%d, 0x20000" % (sV + 2, sV + 3, sO + 2, sO + 3))
        e("s_mul_i32 s%d, s%d, %d" % (sWV, sW, 2 * PV_))
        for b in wa.first[c.pfpos:]: o.extend(b)
        e("v_mov_b32 v0, v5")
        e("v_and_b32 v1, 15, v0\nv_and_b32 v2, 48, v0")
        e("s_mov_b32 s%d, 0x%08x" % (sC, f2u(math.log2(math.e) / math.sqrt(128.0))))
        e("s_mul_i32 s%d, s%d, %d\ns_add_u32 s%d, s%d, %d" % (sStg, sW, PRIV, sStg, sStg, STG))
        e("v_bfe_u32 v3, v0, 2, 2\nv_mul_u32_u24 v%d, %d, v3" % (vQA, PV_))
        e("v_and_b32 v3, 3, v0\nv_lshl_add_u32 v%d, v3, 8, v%d" % (vQA, vQA))
        e("v_add3_u32 v%d, v%d, v2, s%d\nv_add3_u32 v%d, v%d, v2, s%d" % (vQB, vQA, sStg, vQA, vQA, sQS))
        e("v_and_b32 v3, 7, v0\nv_mul_u32_u24 v%d, %d, v3" % (vAK, PK))
        e("v_and_b32 v3, 8, v0\nv_lshl_add_u32 v%d, v3, 5, v%d" % (vAK, vAK))
        e("v_add_u32 v%d, v2, v%d" % (vAK, vAK))
        e("v_and_b32 v3, 1, v0\nv_lshlrev_b32 v4, 3, v3\nv_and_b32 v3, 2, v0\nv_lshl_add_u32 v4, v3, 6, v4")
        e("v_bfe_u32 v3, v0, 2, 3\nv_mul_u32_u24 v%d, %d, v3" % (vAV, PV_))
        e("v_and_b32 v3, 32, v0\nv_lshl_add_u32 v%d, v3, 3, v%d" % (vAV, vAV))
        e("v_add_u32 v%d, v4, v%d\nv_add_u32 v%d, %d, v%d" % (vAV, vAV, vAV, HK, vAV))
        e("v_mul_u32_u24 v%d, 80, v2\nv_lshl_add_u32 v%d, v1, 4, v%d\nv_add_u32 v%d, s%d, v%d" % (vEW, vEW, vEW, vEW, sStg, vEW))
        e("v_mul_u32_u24 v%d, 20, v2\nv_and_b32 v3, 12, v0\nv_lshl_add_u32 v%d, v3, 2, v%d" % (vER, vER, vER))
        e("v_add3_u32 v%d, v%d, v4, s%d" % (vER, vER, sStg))
        e("s_cmp_eq_u32 s%d, 3" % sW)
        e("s_cbranch_scc1 L_wave_b")
        o[:] = pad_hazards(o)
        o += ca
        o += cb
        o += self.slow()
        e("L_fin:")
        if c.twice:
            e("s_waitcnt vmcnt(0) lgkmcnt(0)\ns_barrier\nv_lshrrev_b32 v0, 4, v%d\ns_lshl_b32 s91, s%d, 6\nv_add_u32 v0, s91, v0" % (vDMA, sW))
            e("s_add_u32 s90, s90, 1\ns_cmp_le_u32 s90, %d\ns_cbranch_scc1 L_again" % c.twice)
        if c.idle:
            e("s_waitcnt vmcnt(0) lgkmcnt(0)\ns_memtime s[92:93]\ns_waitcnt lgkmcnt(0)\nL_idle:\ns_memtime s[94:95]\ns_waitcnt lgkmcnt(0)\ns_sub_u32 s94, s94, s92\ns_cmp_lt_u32 s94, %d\ns_cbranch_scc1 L_idle" % c.idle)
        if c.diag and c.skew:
            e("s_cmp_lg_u32 s%d, 0\ns_cbranch_scc1 L_end" % sW)
            e("s_mov_b32 s42, 256\ns_mov_b32 s43, 0x20000\nv_mov_b32 v0, 0\ns_mov_b64 exec, 1")
            e("s_sub_u32 s90, 0, s48\nv_mov_b32 v4, s90\nbuffer_atomic_umax v4, v0, s[40:43], 0 offen\ns_waitcnt vmcnt(0)")
            e("L_e1:\ns_memrealtime s[94:95]\ns_waitcnt lgkmcnt(0)\ns_sub_u32 s94, s94, s48\ns_cmp_lt_u32 s94, 12000\ns_cbranch_scc1 L_e1")
            e("buffer_atomic_umax v4, v0, s[40:43], 0 offen sc0\ns_waitcnt vmcnt(0)\nv_readfirstlane_b32 s91, v4\ns_nop 4\ns_sub_u32 s90, s91, s90\ns_mul_i32 s90, s90, %d\ns_add_u32 s90, s90, 13000" % (c.skew - 1))
            e("L_e2:\ns_memrealtime s[94:95]\ns_waitcnt lgkmcnt(0)\ns_sub_u32 s94, s94, s48\ns_cmp_lt_u32 s94, s90\ns_cbranch_scc1 L_e2")
        elif c.diag and c.echo:
            i, j, m, k = c.echo
            e("s_sub_u32 s90, s%d, s%d\ns_mul_i32 s90, s90, %d\ns_lshr_b32 s90, s90, %d" % (48 + 2 * j + k, 48 + 2 * i + k, m, 5 if k else 0))
            e("L_echo:\ns_memrealtime s[94:95]\ns_waitcnt lgkmcnt(0)\ns_sub_u32 s94, s94, s60\ns_cmp_lt_u32 s94, s90\ns_cbranch_scc1 L_echo")
        elif c.diag and c.dbgout:
            e("s_cmp_lg_u32 s%d, 0\ns_cbranch_scc1 L_end" % sW)
            e("s_mov_b32 s42, 256\ns_mov_b32 s43, 0x20000\nv_mov_b32 v0, 0\ns_mov_b64 exec, 1")
            for i in range(1, 7):
                for k in range(2):
                    e("s_sub_u32 s%d, s%d, s%d" % (sT0, 48 + 2 * i + k, 48 + k))
                    e("v_mov_b32 v4, s%d" % sT0)
                    e("buffer_atomic_add v4, v0, s[40:43], 0 offen offset:%d" % (4 * (i - 1) + 24 * k))
                    e("s_waitcnt vmcnt(0)")
            e("v_mov_b32 v4, s60\nbuffer_atomic_umax v4, v0, s[40:43], 0 offen offset:48\ns_waitcnt vmcnt(0)")
            e("s_sub_u32 s%d, 0, s48\nv_mov_b32 v4, s%d\nbuffer_atomic_umax v4, v0, s[40:43], 0 offen offset:52\ns_waitcnt vmcnt(0)" % (sT0, sT0))
            e("v_mov_b32 v4, s48\nbuffer_atomic_umax v4, v0, s[40:43], 0 offen offset:56\ns_waitcnt vmcnt(0)")
        elif c.diag:
            e("s_mov_b32 s42, 0x1000000\ns_mov_b32 s43, 0x20000")
            e("s_lshl_b32 s%d, s2, 2\ns_add_u32 s%d, s%d, s%d\ns_lshl_b32 s%d, s%d, %d" % (sT0, sT0, sT0, sW, sT0, sT0, 7 if c.tsmode == 2 else 6))
            e("v_mov_b32 v0, 0")
            for i in range(0, 28 if c.tsmode == 2 else 16, 4):
                for k in range(4):
                    e("v_mov_b32 v%d, s%d" % (4 + k, 48 + i + k if i < 16 else 72 + i + k))
                e("buffer_store_dwordx4 v[4:7], v0, s[40:43], s%d offen offset:%d" % (sT0, i * 4))
                e("s_waitcnt vmcnt(0)")
        e("L_end:")
        e("s_endpgm")
        if c.align is True: align_runs(o)
        elif c.align:
            r = align_bound(o, c.align)
            if c.verbose: print("align", r)
        txt = ["; MHA forward, B=8 H=32 Sq=432 Sk=2048 D=128, bf16.  One workgroup per head, 4 waves (one per SIMD).",
               "; @launch grid=(256,1,1) block=(256,1,1) lds=%d" % LDS,
               '.amdgcn_target "amdgcn-amd-amdhsa--gfx950"', ".text", ".globl %s" % c.kname, ".p2align 8",
               ".type %s,@function" % c.kname, "%s:" % c.kname]
        for i in o:
            txt.append(i.text if i.kind == "label" else "    " + i.text.replace("[0:0:1]", "[0,0,1]"))
        txt.append('.section .rodata,"a"\n.p2align 6\n.amdhsa_kernel %s' % c.kname)
        txt.append("""  .amdhsa_next_free_vgpr 512
  .amdhsa_next_free_sgpr 102
  .amdhsa_accum_offset 256
  .amdhsa_group_segment_fixed_size 0
  .amdhsa_kernarg_size 48
  .amdhsa_user_sgpr_count 2
  .amdhsa_user_sgpr_kernarg_segment_ptr 1
  .amdhsa_system_sgpr_workgroup_id_x 1
.end_amdhsa_kernel""")
        return "\n".join(txt) + "\n"

if __name__ == "__main__":
    cfg = Cfg()
    out = sys.argv[1]
    for a in sys.argv[2:]:
        k, v = a.split("=")
        assert hasattr(cfg, k), k
        setattr(cfg, k, eval(v))
    open(out, "w").write(Gen(cfg).build())
```

```python
import re

TRANS = ("v_exp_f32", "v_rcp_f32", "v_log_f32", "v_rsq_f32", "v_sqrt_f32")

def regs_of(op):
    op = op.strip()
    op = op.lstrip("-").replace("|", "")
    m = re.fullmatch(r"([vas])\[(\d+):(\d+)\]", op)
    if m: return ["%s%d" % (m.group(1), i) for i in range(int(m.group(2)), int(m.group(3)) + 1)]
    m = re.fullmatch(r"([vas])(\d+)", op)
    if m: return [op]
    if op in ("m0", "vcc", "exec", "scc"): return [op]
    return []

class Ins:
    __slots__ = ("text", "op", "kind", "R", "W", "A", "B", "C", "passes", "idx", "lgkm0", "prio", "dpp")
    def __init__(self, text, xr=(), xw=(), lgkm0=False, prio=0):
        self.text = text.strip()
        self.lgkm0 = lgkm0
        self.prio = prio
        t = self.text
        sp = t.split(None, 1)
        op = sp[0]
        self.op = op
        rest = sp[1] if len(sp) > 1 else ""
        ops = [o.strip() for o in rest.split(",")] if rest else []
        mods = ""
        if ops:
            last = ops[-1].split(None, 1)
            ops[-1] = last[0]
            mods = last[1] if len(last) > 1 else ""
        R, W = set(), set()
        self.A = self.B = self.C = ()
        self.passes = 0
        self.dpp = "row_" in mods or "quad_perm" in mods
        rs = [regs_of(o) for o in ops]
        if t.endswith(":") or op.startswith("."):
            self.kind = "label"
        elif op.startswith("v_mfma"):
            self.kind = "mfma"
            W.update(rs[0]); self.A, self.B, self.C = rs[1], rs[2], rs[3]
            R.update(rs[1] + rs[2] + rs[3])
            self.passes = 8 if op.endswith("16x16x4_f32") else 4
        elif op.startswith("v_"):
            self.kind = "trans" if op.startswith(TRANS) else "valu"
            if op.startswith("v_permlane"):
                W.update(rs[0] + rs[1]); R.update(rs[0] + rs[1])
            elif op.startswith("v_cmp"):
                W.update(rs[0])
                for r in rs[1:]: R.update(r)
            else:
                W.update(rs[0])
                for r in rs[1:]: R.update(r)
                if self.dpp or op.startswith("v_fmac"): R.update(rs[0])
        elif op.startswith("ds_read") or op.startswith("ds_bpermute"):
            self.kind = "dsr"; W.update(rs[0])
            for r in rs[1:]: R.update(r)
        elif op.startswith("ds_write"):
            self.kind = "dsw"
            for r in rs: R.update(r)
        elif op.startswith("buffer_load") or op.startswith("global_load"):
            if re.search(r"\blds\b", mods) or op.startswith("global_load_lds"):
                self.kind = "dma"
                for r in rs: R.update(r)
                R.add("m0")
            else:
                self.kind = "vload"; W.update(rs[0])
                for r in rs[1:]: R.update(r)
            R.add("vmq"); W.add("vmq")
        elif op.startswith("buffer_store") or op.startswith("buffer_atomic"):
            self.kind = "vstore"
            for r in rs: R.update(r)
            R.add("vmq"); W.add("vmq")
        elif op == "s_nop":
            self.kind = "nop"
        elif op == "s_waitcnt":
            self.kind = "wait"
            if "vmcnt" in t: R.add("vmq"); W.add("vmq")
        elif op == "s_barrier":
            self.kind = "barrier"; R.add("vmq"); W.add("vmq")
        elif op.startswith("s_cbranch") or op == "s_branch" or op == "s_endpgm":
            self.kind = "branch"
            if "scc" in op: R.add("scc")
            if "vcc" in op: R.add("vcc")
        elif op.startswith("s_load") or op.startswith("s_mem"):
            self.kind = "smem"; W.update(rs[0])
            for r in rs[1:]: R.update(r)
        elif op.startswith("s_"):
            self.kind = "salu"
            if op.startswith("s_cmp"):
                W.add("scc")
                for r in rs: R.update(r)
            else:
                if rs: W.update(rs[0])
                for r in rs[1:]: R.update(r)
                if op.startswith(("s_add", "s_sub", "s_and", "s_or", "s_xor", "s_lsh", "s_min", "s_max", "s_bfe")): W.add("scc")
                if op.startswith(("s_addc", "s_subb", "s_cselect")): R.add("scc")
        else:
            raise ValueError("unknown instruction: " + t)
        R.update(xr); W.update(xw)
        self.R, self.W = R, W

    def states(self):
        if self.kind == "label": return 0
        if self.kind == "nop": return int(self.text.split()[1]) + 1
        return 1

def I(x, **kw):
    return x if isinstance(x, Ins) else Ins(x, **kw)

isvalu = lambda i: i.kind in ("valu", "trans")
isvec = lambda r: r[0] in "va" and r[1:].isdigit()
issg = lambda r: (r[0] == "s" and r[1:].isdigit()) or r == "vcc"

def need_states(p, c):
    n = 0
    if isvalu(p):
        wv = {r for r in p.W if isvec(r)}
        if c.kind == "mfma" and wv & c.R: n = max(n, 2)
        if isvalu(c) and wv & c.R:
            if p.kind == "trans": n = max(n, 1)
            if c.op.startswith("v_permlane") or c.dpp: n = max(n, 2)
            if c.op.startswith(("v_readfirstlane", "v_readlane")): n = max(n, 1)
        ws = {r for r in p.W if issg(r)}
        if ws & c.R:
            if isvalu(c): n = max(n, 2)
            if c.kind in ("dma", "vload", "vstore"): n = max(n, 5)
            if c.kind in ("salu", "branch"): n = max(n, 4)
    if p.kind == "mfma":
        sg = p.op.endswith("_f32") and not p.op.endswith("bf16")
        big = {4: 8, 8: 12}[p.passes] if not sg else {4: 6, 8: 10}[p.passes]
        if c.kind == "mfma":
            if p.W & (set(c.A) | set(c.B)): n = max(n, big)
            if p.W & set(c.C):
                if not (c.op == p.op and set(c.C) == p.W): n = max(n, {4: 6, 8: 10}[p.passes])
            elif p.W & c.W: n = max(n, {4: 6, 8: 10}[p.passes])
        elif p.W & (c.R | c.W): n = max(n, big)
        if isvalu(c) and set(p.C) & c.W: n = max(n, {4: 3, 8: 7}[p.passes])
    if p.kind == "salu" and "m0" in p.W and c.kind == "dma": n = max(n, 1)
    if p.kind in ("vstore", "dsw") and isvalu(c) and {r for r in p.R if isvec(r)} & c.W: n = max(n, 2)
    return n

def pad_hazards(seq, hist=(), fix=True, name=""):
    out = list(hist)
    nh = len(out)
    for c in seq:
        if c.kind != "label":
            need = 0
            d = 0
            for p in reversed(out):
                if d >= 12: break
                k = need_states(p, c) - d
                if k > need:
                    need = k
                    if not fix: raise RuntimeError("%s hazard: %s -> %s short by %d" % (name, p.text, c.text, k))
                d += p.states()
            if need > 0: out.append(Ins("s_nop %d" % (need - 1)))
        out.append(c)
    return out[nh:]

def insert_lgkm(seq, pend=None, hoist=True):
    out = []
    pend = list(pend or [])
    pend = [(r, -1) for r in pend]
    for c in seq:
        if c.kind == "wait" and "lgkmcnt" in c.text:
            n = int(re.search(r"lgkmcnt\((\d+)\)", c.text).group(1))
            pend = pend[len(pend) - n:] if n < len(pend) and n > 0 else ([] if n == 0 else pend)
        touch = c.R | c.W
        k = -1
        for j, (r, _) in enumerate(pend):
            if r & touch: k = j
        if c.lgkm0 and pend: k = len(pend) - 1
        if c.kind == "smem" and pend: k = len(pend) - 1
        if k >= 0:
            pos = len(out)
            if hoist and c.kind == "mfma":
                q = len(out) - 1
                while q >= 0 and out[q].kind not in ("mfma", "label", "branch", "barrier"): q -= 1
                if q >= 0 and out[q].kind == "mfma" and pend[k][1] < q: pos = q + 1
            n = sum(1 for (r, i) in pend[k + 1:] if i < pos)
            n = min(n, 15)
            out.insert(pos, Ins("s_waitcnt lgkmcnt(%d)" % n))
            pend = [(r, i + 1 if i >= pos else i) for (r, i) in pend[k + 1:]]
        if c.kind in ("dsr", "dsw"):
            pend.append(({r for r in c.W if isvec(r)}, len(out)))
        out.append(c)
    return out, [r for r, _ in pend]

def latency(p, c, raw):
    if not raw:
        if p.kind == "mfma" and isvalu(c): return 16 if not (p.W & c.W) else 44
        return 4
    if p.kind == "mfma":
        if c.kind == "mfma" and c.op == p.op and set(c.C) == p.W and not (p.W & (set(c.A) | set(c.B))): return 4 * p.passes
        return 4 * p.passes + 28
    if p.kind == "trans": return 12 if isvalu(c) and not c.dpp else 16
    if p.kind == "valu":
        if c.kind == "mfma" or c.dpp or c.op.startswith("v_permlane"): return 12
        return 4 if isvalu(c) else 8
    if p.kind == "dsr": return 140
    if p.kind == "dsw": return 16
    return 4

MEMK = ("dsr", "dsw", "dma", "vload", "vstore")
def schedule1(prog, verbose=False, jitter=None, AGE=48, order=False, dswcost=24, pkmin=8, space=None, fit=True):
    n = len(prog)
    preds = [[] for _ in range(n)]
    succs = [[] for _ in range(n)]
    lastw, readers = {}, {}
    for i, c in enumerate(prog):
        d = {}
        for r in c.R:
            if r in lastw: d[lastw[r]] = max(d.get(lastw[r], 0), latency(prog[lastw[r]], c, True) if r != "vmq" else 4)
        for r in c.W:
            if r in lastw: d[lastw[r]] = max(d.get(lastw[r], 0), latency(prog[lastw[r]], c, False))
            for j in readers.get(r, ()):
                if j != i: d[j] = max(d.get(j, 0), latency(prog[j], c, False))
        for j, l in d.items():
            preds[i].append((j, l)); succs[j].append((i, l))
        for r in c.R: readers.setdefault(r, []).append(i)
        for r in c.W:
            lastw[r] = i; readers[r] = []
    cp = [0] * n
    for i in range(n - 1, -1, -1):
        cp[i] = max([cp[j] + l for j, l in succs[i]] + [0])
    if order: cp = [-i for i in range(n)]
    if jitter: cp = [a + b for a, b in zip(cp, jitter)]
    npred = [len(p) for p in preds]
    ready_t = [0] * n
    avail = [i for i in range(n) if npred[i] == 0]
    t = 0; vec_free = 0; mf_free = 0; last_valu = -100
    out = []
    ispk = lambda c: c.op.startswith("v_pk_")
    space = space or {}
    nxt_ok = {}
    last_op = "v_mfma_f32_16x16x32_bf16"
    while avail:
        best = None
        rpk = [i for i in avail if ispk(prog[i]) and ready_t[i] <= max(t, vec_free, mf_free)]
        inburst = bool(out) and ispk(out[-1]) and rpk
        for i in (rpk if inburst else avail):
            c = prog[i]
            e = max(t, ready_t[i])
            if ispk(c) and not inburst and len(rpk) < pkmin: e += 64
            if c.kind == "mfma": e = max(e, vec_free, mf_free + (4 if c.op != last_op else 0))
            elif isvalu(c): e = max(e, vec_free)
            elif c.kind in MEMK:
                e = max(e, vec_free, nxt_ok.get(c.kind, 0))
                if max(ready_t[i], nxt_ok.get(c.kind, 0)) + AGE > t: e = max(e, last_valu + 12)
            cls = 0 if c.kind == "mfma" else 1 if c.kind in MEMK else 2
            key = (e, cls, -(cp[i] + c.prio), i)
            if best is None or key < best[0]: best = (key, i)
        (e, cls, _, _), i = best
        c = prog[i]
        if c.kind in MEMK: e = max(e, last_valu + 12)
        if ispk(c): e = max(t, ready_t[i], vec_free, mf_free)
        if isvalu(c) and not ispk(c):
            mt = [max(t, ready_t[j], vec_free, mf_free) for j in avail if prog[j].kind == "mfma"]
            rem = (min(mt) - e) if mt else None
            pick = lambda l: max(l, key=lambda k: (cp[k] + prog[k].prio, -k))
            if c.kind == "trans" and rem == 4:
                alt = [k for k in avail if prog[k].kind == "valu" and not ispk(prog[k]) and max(t, ready_t[k], vec_free) <= e]
                if alt: i = pick(alt); c = prog[i]
                elif fit:
                    i = pick([j for j in avail if prog[j].kind == "mfma" and max(t, ready_t[j], vec_free, mf_free) == e + 4]); c = prog[i]; e += 4
            elif fit and c.kind == "valu" and rem == 8:
                two = [k for k in avail if k != i and prog[k].kind == "valu" and not ispk(prog[k]) and ready_t[k] <= e + 4]
                two += [k for k, l in succs[i] if npred[k] == 1 and l <= 4 and prog[k].kind == "valu" and not ispk(prog[k]) and ready_t[k] <= e + 4]
                tr = [k for k in avail if prog[k].kind == "trans" and ready_t[k] <= e]
                if not two and tr: i = pick(tr); c = prog[i]
        avail.remove(i)
        out.append(c)
        if verbose > 1 and c.kind == "wait": print("    fence at est %d (instr %d, mfmas so far %d)" % (e, len(out), sum(x.kind == "mfma" for x in out)))
        if c.kind in space: nxt_ok[c.kind] = e + space[c.kind]
        if c.kind == "mfma":
            vec_free = e + 8; mf_free = e + 4 * c.passes; t = e + 4
            if c.passes == 8: vec_free = mf_free = e + 52
            if "16x16x16" in c.op: vec_free = e + 4
            last_op = c.op
        elif c.kind == "trans":
            vec_free = e + 8; t = e + 8; last_valu = e + 4
        elif c.kind == "valu":
            vec_free = e + 4; t = e + 4; last_valu = e
        elif c.kind == "dsw":
            t = e + 4; vec_free = e + dswcost
        elif c.kind == "vstore":
            t = e + 4; vec_free = e + 12
        else:
            t = e + 4
        for j, l in succs[i]:
            ready_t[j] = max(ready_t[j], e + l)
            npred[j] -= 1
            if npred[j] == 0: avail.append(j)
    assert len(out) == n
    return out, t

def schedule(prog, verbose=False, trials=0, seed=1, **kw):
    import random
    rnd = random.Random(seed)
    n = len(prog)
    jit = [0] * n
    best, bt = schedule1(prog, verbose, None, **kw)
    t0 = bt
    kinds = sorted({(c.kind, c.prio) for c in prog})
    for k in range(trials):
        j = list(jit)
        a = rnd.randrange(n); w = rnd.choice((20, 50, 120, 300)); kd = rnd.choice(kinds); d = rnd.choice((-80, -40, -20, -8, 8, 20, 40, 80))
        for i in range(a, min(n, a + w)):
            if (prog[i].kind, prog[i].prio) == kd: j[i] += d
        o, t = schedule1(prog, False, j, **kw)
        if t <= bt: best, bt, jit = o, t, j
    if verbose: print("scheduled %d instrs, est %d cycles (start %d)" % (n, bt, t0))
    return best

VOP12 = ("v_exp_f32", "v_rcp_f32", "v_add_f32", "v_sub_f32", "v_mul_f32", "v_max_f32", "v_min_f32", "v_mov_b32", "v_and_b32", "v_lshlrev_b32",
         "v_lshrrev_b32", "v_add_u32", "v_mul_u32_u24", "v_min_u32", "v_readfirstlane_b32", "v_permlane32_swap_b32", "v_permlane16_swap_b32",
         "v_cmp_le_u32", "v_cmp_ge_u32", "v_xor_b32")
def has_literal(t):
    ops = t.split(None, 1)[1].split(",") if len(t.split(None, 1)) > 1 else []
    for o in ops:
        o = o.strip().split()[0]
        if o.startswith("L_"): return True
        try: v = int(o, 0)
        except ValueError: continue
        if v > 0x7fffffff: v -= 1 << 32
        if not (-16 <= v <= 64) and (v & 0xffffffff) not in (0x3f000000, 0xbf000000, 0x3f800000, 0xbf800000, 0x40000000, 0xc0000000, 0x40800000, 0xc0800000, 0x3e22f983): return True
    return False
def isize(i):
    if i.kind == "label": return 0
    if i.kind in ("nop", "wait", "barrier", "branch"): return 4
    if i.kind == "salu": return 8 if has_literal(i.text) and not i.op.startswith("s_movk") else 4
    if isvalu(i):
        if i.op in VOP12: return 8 if has_literal(i.text) else 4
        return 8
    return 8
def align_runs(seq, minrun=4):
    pc = 0
    n = len(seq)
    cand = None
    i = 0
    while i < n:
        c = seq[i]
        if c.kind == "label" and c.op == ".p2align":
            a = 1 << int(c.text.split()[1]); pc = (pc + a - 1) // a * a; cand = None
        sz = isize(c)
        if sz == 8 and c.kind != "mfma":
            j = i
            while j < n and isize(seq[j]) == 8 and seq[j].kind != "mfma": j += 1
            if j - i >= minrun:
                if pc % 8 == 4 and cand is not None:
                    cand.text = cand.text.replace(cand.op, cand.op + "_e64", 1); cand.op += "_e64"; pc += 4
                cand = None
            pc += 8 * (j - i); i = j
            continue
        if sz == 4 and isvalu(c) and c.op in VOP12[:12] and not c.dpp: cand = c
        pc += sz; i += 1
    return pc

def align_bound(seq, B):
    pc = 0
    cand = None
    nfix = nfail = 0
    for c in seq:
        if c.kind == "label" and c.op == ".p2align":
            a = 1 << int(c.text.split()[1]); pc = (pc + a - 1) // a * a; cand = None
        sz = isize(c)
        if sz == 8 and pc % B == B - 4:
            if cand is not None:
                cand.text = cand.text.replace(cand.op, cand.op + "_e64", 1); cand.op += "_e64"; pc += 4; nfix += 1
            else: nfail += 1
            cand = None
        if pc % B == 0: cand = None
        if sz == 4 and isvalu(c) and c.op in VOP12[:12] and not c.dpp and pc % B != B - 4: cand = c
        pc += sz
    return nfix, nfail

def coarsen_waits(seq, minage):
    out = []
    issued = []
    done = 0
    nm = 0
    for c in seq:
        if c.kind == "mfma": nm += 1
        if c.kind in ("dsr", "dsw"): issued.append(nm)
        if c.kind == "wait" and "lgkmcnt" in c.text and "vmcnt" not in c.text:
            n = int(re.search(r"lgkmcnt\((\d+)\)", c.text).group(1))
            need = len(issued) - n
            if out and out[-1].kind == "smem":
                done = len(issued); out.append(c); continue
            if need <= done: continue
            while need < len(issued) and nm - issued[need] >= minage: need += 1
            done = need
            out.append(Ins("s_waitcnt lgkmcnt(%d)" % (len(issued) - need)))
            continue
        out.append(c)
    return out
```

```python
import sys, math, struct
from asmlib import *
import solve

KNAME = "standalone__mha_softmax__near_ridge"

class Cfg:
    diag = False
    kname = KNAME + "_kernel"
    dflag = "nt"
    qflag = "nt"
    oflag = "sc1"
    bias = 3.0
    force_slow = False
    pkmul = 7
    verbose = False
    lo_exp = -30
    hi_exp = 30
    tsmode = 0
    nostore = False
    lead = 4
    wspan = 0.75
    rot = 1
    trials = 0
    fit = True
    qprio = (80, 80)
    coarse = 9
    bargap = 0
    fpos = 38
    exp = ''
    space = (48, 64, 12)
    bara = (41,)
    barb = (37,)
    pspace = (0, 0, 0)
    age = 48
    hop = 0
    dma_hi = 1.0
    jit = None
    align = True
    pkscale = False
    p1bar = dict(V4=41, K5=69, V5=121)
    pb_hi = 0.6
    obias = 1
    gamma = 3.0
    oconst = 1.5
    pfpos = 8
    pfsplit = True
    twice = 0
    skew = 0
    echo = None
    dbgout = False
    stall = 0
    idle = 0
    dswcost = 24
    lvalu = True
    pfs = True
    pfstride = 64
    first = 10
    sh_hi = 0.3
    s3_lo = 0.45

PK, PV_ = 1056, 1040
HK = 8 * PK
SLOT = HK + 8 * PV_
SS = 2 * SLOT
RING = 3 * SS
STG = RING
QT = 4 * PV_
PARK = 3 * QT
PRIV = 3 * QT + 512
LDS = STG + 4 * PRIV

def O(t, db):
    if t == 6 and db >= 4: return ('a', 240 + 4 * (db - 4))
    return ('v', 32 * t + 4 * db)
def S(i): return 208 + 4 * (i & 3)
def P(U, ks): return 224 + 8 * (U & 1) + 4 * ks
CI = 240
def Lr(t): return 244 + t
vAK, vAV, vDMA, vEW, vER = 251, 252, 253, 254, 255
vVM, vHalf, vPK = 29, 28, 27
sMask = 79
sC2 = 100
sHi = 3
vQA, vQB = 30, 31
def Q(t, ds): return 16 * t + 4 * ds
def Kf(g, ds): return 112 + 16 * g + 4 * ds
def Vf(db, ks): return 176 + 8 * db + 4 * ks

sQ, sK, sV, sO = 12, 16, 20, 24
sW, sCnt, sInc, sRd, sC, sQo, sSl = 28, 29, 30, 31, 32, 33, 34
sT0, sT1, sT2 = 35, 36, 37
sG = 64
sWK, sWV, sWG = 68, 69, 70
sIncW, sIncN = 71, 72
sNT, sTile, sBlk, sStg, sQS, sQT = 73, 74, 75, 76, 77, 78
sSt = 80

def rn(f, b, n): return "%s[%d:%d]" % (f, b, b + n - 1)
def mfma(D, A, B, C, half=False):
    n = 2 if half else 4
    cs = "0" if C is None else rn(C[0], C[1], 4)
    op = "v_mfma_f32_16x16x16_bf16" if half else "v_mfma_f32_16x16x32_bf16"
    return "%s %s, %s, %s, %s" % (op, rn(D[0], D[1], 4), rn(A[0], A[1], n), rn(B[0], B[1], n), cs)
def f2u(x): return struct.unpack("<I", struct.pack("<f", x))[0]

class Wave:
    def __init__(self, gen, NT, dma, tag):
        self.g, self.c, self.NT, self.dma, self.tag = gen, gen.c, NT, dma, tag
        self.tau = (2, 1, 5, 4) if NT == 7 else (2, 1, 4, 3)
        W = solve.windows(NT, self.tau, 10 if NT == 7 else 12)
        if NT == 7: pos = [4 * p + 1 for p in range(8 * NT - 2)]
        else: pos = sorted([4 * p + 1 for p in range(8 * NT - 1)] + [16 * p + 2 for p in range(2 * NT)])
        self.rd = solve.edf(W, pos)
        assert self.rd
        self.oinit = set()
        self.qprio = self.c.qprio[0]
        self.group = {}
        self.code = []

    def kread(self, g, ds, off=0):
        return "ds_read_b128 %s, v%d offset:%d" % (rn('a', Kf(g, ds), 4), vAK, off + (g >> 1) * SLOT + (g & 1) * 512 + ds * 64)
    def vread(self, g, db, off=0):
        return "ds_read_b64_tr_b16 %s, v%d offset:%d" % (rn('a', Vf(db, g >> 1) + 2 * (g & 1), 2), vAV, off + (g >> 1) * SLOT + (g & 1) * 512 + db * 16)
    def qk(self, t, g, sb, raw=False, snake=True):
        order = range(4) if (g & 1 == 0 or not snake) else range(3, -1, -1)
        o = []
        for i, ds in enumerate(order):
            o.append(Ins(mfma(('v', sb), ('a', Kf(g, ds)), ('a', Q(t, ds)), (None if raw else ('v', CI)) if i == 0 else ('v', sb)), prio=self.qprio))
        return o
    def pv1(self, t, db, pb, ks, gs):
        D = O(t, db)
        C = D if (t, db) in self.oinit else None
        self.oinit.add((t, db))
        if len(gs) == 2: return mfma(D, ('v', pb), ('a', Vf(db, ks)), C)
        h = gs[0] & 1
        return mfma(D, ('v', pb + 2 * h), ('a', Vf(db, ks) + 2 * h), C, half=True)
    def pv(self, t, groups, pbase, dbs=range(8)):
        o = []
        if len(groups) == 3:
            for ks in sorted((0, 1), key=lambda k: -len([g for g in groups if g >> 1 == k])):
                for db in dbs: o.append(self.pv1(t, db, pbase(ks), ks, [g for g in groups if g >> 1 == ks]))
            return o
        for db in dbs:
            for ks in ((0, 1) if db % 2 == 0 else (1, 0)):
                gs = [g for g in groups if g >> 1 == ks]
                if gs: o.append(self.pv1(t, db, pbase(ks), ks, gs))
        return o
    def pv_first(self, t, pbase):
        c = self.c
        if not c.obias: return [I(x) for x in self.pv(t, range(4), pbase)]
        Bt = O(t, 3)
        o = []
        if c.obias == 1:
            o.append("v_mfma_f32_16x16x4_f32 %s, v%d, v%d, 0" % (rn('v', Bt[1], 4), Lr(t), vVM))
            for r in range(4): o.append("v_and_or_b32 v%d, v%d, s%d, v%d" % (Bt[1] + r, Bt[1] + r, sMask, vHalf))
        else:
            for r in range(4): o.append("v_mov_b32 v%d, 0x%08x" % (Bt[1] + r, f2u(c.oconst)))
        o.append(Ins("ds_write_b128 v%d, %s offset:%d" % (vPK, rn('v', Bt[1], 4), 64 * t)))
        if t == 6:
            for r in range(4): o.append("v_accvgpr_write_b32 a%d, v%d" % (O(6, 7)[1] + r, Bt[1] + r))
        for j, db in enumerate((0, 1, 2, 4, 5, 6, 7, 3)):
            D = O(t, db)
            for k, ks in enumerate((0, 1) if j % 2 == 0 else (1, 0)):
                C = D if k else (Bt if D[0] == 'v' else O(6, 7))
                o.append(mfma(D, ('v', pbase(ks)), ('a', Vf(db, ks)), C))
            self.oinit.add((t, db))
        return [I(x) for x in o]
    def vmax(self):
        c = self.c
        if c.obias != 1: return []
        x, y, z = vVM, 16, 17
        o = ["v_accvgpr_read_b32 v%d, a%d" % (x, Vf(0, 0)), "v_accvgpr_read_b32 v%d, a%d" % (y, Vf(0, 0) + 2), "v_accvgpr_read_b32 v%d, a%d" % (z, Vf(0, 1) + 1),
             "v_max3_f32 v%d, |v%d|, |v%d|, |v%d|" % (x, x, y, z)]
        for sw in ("v_permlane32_swap_b32", "v_permlane16_swap_b32"):
            o += ["v_mov_b32 v%d, v%d" % (y, x), "%s v%d, v%d" % (sw, x, y), "v_max_f32 v%d, v%d, v%d" % (x, x, y)]
        for k in (8, 4, 2, 1):
            o.append("v_max_f32_dpp v%d, v%d, v%d row_ror:%d row_mask:0xf bank_mask:0xf" % (x, x, x, k))
        o.append("v_min_f32 v%d, 0x%08x, v%d" % (x, f2u(2.0 ** 60), x))
        o.append("v_mul_f32 v%d, 0x%08x, v%d" % (x, f2u(c.gamma), x))
        return o
    def softmax(self, t, sb, pdst):
        o = []
        for i in range(4):
            o.append("v_exp_f32 v%d, v%d" % (sb + i, sb + i))
            o.append("v_add_f32 v%d, v%d, v%d" % (Lr(t), Lr(t), sb + i))
            if i & 1: o.append("v_cvt_pk_bf16_f32 v%d, v%d, v%d" % (pdst + i // 2, sb + i - 1, sb + i))
        return o
    def tagged(self, text, grp, **kw):
        i = Ins(text, **kw); self.group[id(i)] = grp; return i
    def share(self, kv, blk):
        srd, lo, base, pad = (sK, 0, sWK, PK - 1024) if kv == 'K' else (sV, HK, sWV, PV_ - 1024)
        lds = ((blk >> 1) % 3) * SS + (blk & 1) * SLOT + lo
        o = []
        for n in range(2):
            if n == 0: b = [Ins("s_add_u32 m0, s%d, %d" % (base, lds)), Ins("s_add_u32 s%d, s%d, %d" % (sT2, sWG, blk * 8192))]
            else: b = [Ins("s_add_u32 m0, m0, %d" % pad)]
            b.append(self.tagged("buffer_load_dwordx4 v%d, s[%d:%d], s%d offen offset:%d %s lds" % (vDMA, srd, srd + 3, sT2, 1024 * n, self.c.dflag), "%s%d" % (kv, blk)))
            o.append(b)
        return o
    def qbuf(self, t):
        k = self.NT - 1 - t
        if k < 4: return sQS, vQA, (k >> 1) * SS + (k & 1) * QT
        return sStg, vQB, (k - 4) * QT
    def qload(self, t):
        sb, _, off = self.qbuf(t)
        o = []
        for n in range(4):
            if n == 0: b = [Ins("s_add_u32 m0, s%d, %d" % (sb, off)), Ins("s_sub_u32 s%d, s%d, %d" % (sT1, sQT, (self.NT - 1 - t) * 4096))]
            else: b = [Ins("s_add_u32 m0, m0, %d" % (PV_ - 1024))]
            b.append(self.tagged("buffer_load_dwordx4 v%d, s[%d:%d], s%d offen offset:%d %s lds" % (vDMA, sQ, sQ + 3, sT1, n * 1024, self.c.qflag), "Q%d" % t))
            o.append(b)
        return o
    def waitv(self, grp):
        i = Ins("s_waitcnt vmcnt(0)"); self.group[id(i)] = "W:" + grp; return i
    def scale(self, t):
        o = []
        tb = 32 * t + 16 if t < 6 else 16
        _, va, off = self.qbuf(t)
        for ds in range(4):
            o.append("ds_read_b128 %s, v%d offset:%d" % (rn('v', 32 * t + 4 * ds, 4), va, off + ds * 64))
        if self.c.pkscale:
            for r0 in range(0, 16, 4):
                for r in range(r0, r0 + 4):
                    a = tb + 2 * (r % 4)
                    o.append("v_lshlrev_b32 v%d, 16, v%d" % (a, 32 * t + r))
                    o.append("v_and_b32 v%d, s%d, v%d" % (a + 1, sHi, 32 * t + r))
                for r in range(r0, r0 + 4):
                    a = tb + 2 * (r % 4)
                    o.append("v_pk_mul_f32 %s, %s, %s" % (rn('v', a, 2), rn('v', a, 2), rn('s', sC2, 2)))
                for r in range(r0, r0 + 4):
                    a = tb + 2 * (r % 4)
                    o.append("v_cvt_pk_bf16_f32 v%d, v%d, v%d" % (32 * t + r, a, a + 1))
                    o.append("v_accvgpr_write_b32 a%d, v%d" % (Q(t, 0) + r, 32 * t + r))
            return o
        for r in range(16):
            q = 32 * t + r
            a, b = tb + 2 * (r % 5), tb + 2 * (r % 5) + 1
            o.append("v_lshlrev_b32 v%d, 16, v%d" % (a, q))
            o.append("v_and_b32 v%d, s%d, v%d" % (b, sHi, q))
            o.append("v_mul_f32 v%d, s%d, v%d" % (a, sC, a))
            o.append("v_mul_f32 v%d, s%d, v%d" % (b, sC, b))
            o.append("v_cvt_pk_bf16_f32 v%d, v%d, v%d" % (a, a, b))
            o.append("v_accvgpr_write_b32 a%d, v%d" % (Q(t, 0) + r, a))
        return o
    def seg(self, head, body, bundles=(), span=(0.0, 0.8)):
        self.code += self.ts2() + [I(x) for x in head] + self.ts2()
        b = schedule([I(x) for x in body], self.c.verbose) if body else []
        n = len(b)
        k = len(bundles)
        pos = [int(n * (span[0] + (span[1] - span[0]) * j / max(k, 1))) for j in range(k)]
        j = 0
        for i in range(n + 1):
            while j < k and pos[j] <= i:
                self.code += bundles[j]; j += 1
            if i < n: self.code.append(b[i])
    def ts2(self):
        if not (self.c.diag and self.c.tsmode == 2) or getattr(self, 'nts', 1) >= 28: return []
        self.nts = getattr(self, 'nts', 1) + 1
        k = self.nts - 1
        reg = 48 + k if k < 16 else 88 + k - 16
        assert k < 28, k
        return [Ins("s_memtime s[46:47]"), Ins("s_waitcnt lgkmcnt(0)"), Ins("s_mov_b32 s%d, s46" % reg)]
    def ts(self, idx):
        if not self.c.diag or self.c.tsmode >= 2: return []
        return [Ins("s_memrealtime s[44:45]"), Ins("s_memtime s[46:47]"), Ins("s_waitcnt lgkmcnt(0)"),
                Ins("s_mov_b32 s%d, s44" % (48 + 2 * idx)), Ins("s_mov_b32 s%d, s46" % (49 + 2 * idx))]

    def pin(self, ins, after):
        self.npin = getattr(self, 'npin', 0) + 1
        after.W.add("pin%d" % self.npin); ins.R.add("pin%d" % self.npin)
        return ins
    def fence(self, grp, after, bar=False, lgkm0=False, frees=()):
        w = self.waitv(grp)
        if after is not None: self.pin(w, after)
        o = self.ts2c() + [w]
        if bar: o.append(Ins("s_barrier", lgkm0=lgkm0))
        o[-1].W.add("L:" + grp)
        for f in frees: o[-1].W.add("L:" + f)
        if after is not None and len(o) > 1 and self.c.tsmode == 2 and self.c.diag: self.pin(o[0], after)
        return o + self.ts2c()
    def ts2c(self):
        o = self.ts2()
        for x in o: x.R.add("vmq"); x.W.add("vmq")
        return o
    def weave(self, body, bundles, span=(0.0, 0.9)):
        n, k = len(body), len(bundles)
        pos = [int(n * (span[0] + (span[1] - span[0]) * j / max(k, 1))) for j in range(k)]
        o = []; j = 0
        for i in range(n):
            o.append(body[i])
            while j < k and pos[j] <= i and (isvalu(body[i]) or i == n - 1):
                self.pin(bundles[j][-1], body[i]); o += bundles[j]; j += 1
        return o
    def prologue(self):
        c, NT, tau = self.c, self.NT, self.tau
        T = NT - 1
        II = lambda l, **kw: [I(x, **kw) for x in l]
        G0 = lambda t: [g for g in range(4) if tau[g] <= t]
        seq = self.share('K', 0) + self.qload(T) + self.share('K', 1) + self.qload(T - 1) + self.share('V', 0) + self.share('V', 1)
        for t in range(T - 2, -1, -1): seq += self.qload(t)
        nq = len(seq)
        for b in (2, 3): seq += self.share('K', b) + self.share('V', b)
        n1 = len(seq)
        for b in (4, 5): seq += self.share('K', b) + self.share('V', b)
        grp = [self.group[id(b[-1])] for b in seq]
        state = [0]
        def nxt(g, cap=None):
            want = c.first if g is None else max(j for j, x in enumerate(grp) if x == g) + 1 + c.lead
            want = min(want, len(seq) if cap is None else cap)
            r = seq[state[0]:want]
            state[0] = max(state[0], want)
            return r
        self.first = nxt(None, nq)
        self.code += [Ins("v_mov_b32 v%d, 0" % Lr(t)) for t in range(NT)]
        misc = ["s_mov_b32 s%d, %d" % (sRd, 2 * SS), "s_mov_b32 s%d, %d" % (sIncW, (-2 * SS) & 0xffffffff), "s_mov_b32 s%d, %d" % (sIncN, SS)]
        misc += ["s_mov_b32 s%d, %d" % (sCnt, 14 if NT == 7 else 28)]
        if self.dma:
            misc += ["s_mov_b32 s%d, %d" % (sG + i, 4 * 16384 + 4096 * i) for i in range(4)]
            misc += ["s_mov_b32 s%d, %d" % (sSl, SS)]
        if c.obias:
            misc += ["s_mov_b32 s%d, 0xff800000" % sMask, "v_mov_b32 v%d, 0x00400000" % vHalf, "s_add_u32 s%d, s%d, %d" % (sT0, sStg, PARK),
                     "v_bfe_u32 v%d, v%d, 8, 2" % (vPK, vDMA), "v_lshl_add_u32 v%d, v%d, 4, s%d" % (vPK, vPK, sT0)]
        misc += ["s_mov_b32 s%d, 0xffff0000" % sHi, "s_mov_b32 s%d, s%d" % (sC2, sC), "s_mov_b32 s%d, s%d" % (sC2 + 1, sC)]
        misc.append("s_waitcnt lgkmcnt(0)")
        self.code += II(misc)
        def scale(t):
            o = II(self.scale(t))
            for x in o[:4]: x.R.add("L:Q%d" % t)
            return o
        UA = lambda t: (NT + 1) - 1 - t
        UB = lambda t: NT + t
        prog = self.fence("Q%d" % T, None)
        a = scale(T)
        prog += self.weave(a, nxt("K1", nq))
        prog += self.fence("K1", a[len(a) // 2], bar=True)
        body = II([self.kread(g, ds) for g in range(4) for ds in range(4)], xr=["L:K1"])
        for g in range(4): body += II(self.qk(T, g, S(g), raw=True))
        x, y = 26, 29
        b2 = ["v_max3_f32 v%d, v%d, v%d, v%d" % (x, S(0), S(0) + 1, S(0) + 2),
              "v_max3_f32 v%d, v%d, v%d, v%d" % (x, x, S(0) + 3, S(0) + 4),
              "v_max3_f32 v%d, v%d, v%d, v%d" % (x, x, S(0) + 5, S(0) + 6),
              "v_max_f32 v%d, v%d, v%d" % (x, x, S(0) + 7)]
        for sw in ("v_permlane32_swap_b32", "v_permlane16_swap_b32"):
            b2 += ["v_mov_b32 v%d, v%d" % (y, x), "%s v%d, v%d" % (sw, x, y), "v_max_f32 v%d, v%d, v%d" % (x, x, y)]
        for k in (8, 4, 2, 1):
            b2.append("v_max_f32_dpp v%d, v%d, v%d row_ror:%d row_mask:0xf bank_mask:0xf" % (x, x, x, k))
        for i in range(4):
            b2.append("v_sub_f32 v%d, 0x%08x, v%d" % (CI + i, f2u(-c.bias), x))
        for g in range(4):
            for i in range(4):
                b2.append("v_add_f32 v%d, v%d, v%d" % (S(g) + i, S(g) + i, CI))
            b2 += self.softmax(T, S(g), P(UA(T), g >> 1) + 2 * (g & 1))
        body += II(b2)
        prog += self.weave(body, nxt("Q%d" % (T - 1), nq), (0.0, 0.25))
        last = body[31]
        sidx = [0]
        def unit(t, gs, U, post=None, snake=True):
            o = []
            for g in gs:
                sb = S(sidx[0]); sidx[0] += 1
                o += II(self.qk(t, g, sb, snake=snake))
                if post: o += post(g, o[-1])
                o += II(self.softmax(t, sb, P(U, g >> 1) + 2 * (g & 1)))
            return o
        gorder = sorted(range(4), key=lambda g: tau[g])
        kfence = {}
        def kreload(g, after):
            o = []
            name = "K%d" % (2 + (g >> 1))
            if name not in kfence:
                kfence[name] = 1
                o += self.fence(name, after, bar=True, lgkm0=(name == "K2"), frees=["Q%d" % (T - 2), "Q%d" % (T - 3)])
            return o + II([self.kread(g, ds, SS) for ds in range(4)], xr=["L:" + name])
        for t in range(T - 1, -1, -1):
            prog += self.fence("Q%d" % t, last)
            a = scale(t)
            if t == T - 1:
                prog += self.weave(a, nxt("V1", nq), (0.0, 0.5))
                prog += self.fence("V1", a[int(len(a) * 0.6)], bar=True, lgkm0=True, frees=["Q%d" % T, "Q%d" % (T - 1)])
                a = II([self.vread(g, db) for db in range(8) for g in range(4)], xr=["L:V1"])
                a += II(self.vmax())
            a += self.pv_first(t + 1, lambda ks: P(UA(t + 1), ks))
            if t > 0:
                u = unit(t, range(4), UA(t), snake=False)
                vs = [i for i in a + u if isvalu(i)]
                bl = nxt("Q%d" % (t - 1), n1)
                body = a + u
                cut = body.index(u[-c.fpos])
                prog += self.weave(body[:cut], bl, (0.0, c.wspan)) + body[cut:]
                last = u[-c.fpos]
            else:
                prog += self.weave(a, nxt("V3", n1), (0.0, c.wspan))
        u = unit(0, gorder, UA(0), post=lambda g, m: kreload(g, m) if g < 2 else [], snake=False)
        prog += u
        pv0 = self.pv_first(0, lambda ks: P(UA(0), ks))
        prog += pv0[:-14] + self.fence("V2", pv0[-15], bar=True) + pv0[-14:]
        for g in gorder[:2]:
            prog += II([self.vread(g, db, SS) for db in range(8)], xr=["L:V2"])
        body = []
        for t in range(1, NT):
            u = unit(t, [g for g in gorder if g in G0(t)], UB(t))
            body += u
            if t == 1:
                for g in gorder[2:]: body += kreload(g, u[-1])
            if t == 2:
                body += self.fence("V3", u[-1], bar=True)
                for g in gorder[2:]:
                    body += II([self.vread(g, db, SS) for db in range(8)], xr=["L:V3"])
                body += II(["v_add_u32 v%d, %d, v%d" % (vAK, 2 * SS, vAK), "v_add_u32 v%d, %d, v%d" % (vAV, 2 * SS, vAV)])
            if t < T: body += II(self.pv(t, G0(t), lambda ks: P(UB(t), ks)))
        body += II(self.qk(0, 0, S(0)) + self.qk(0, 1, S(1)))
        prog += self.weave(body, nxt("V5"), (0.0, c.pb_hi))
        self.code += schedule(prog, c.verbose, order=True, pkmin=4, trials=c.trials, fit=c.fit, space=dict(zip(('dsw', 'dma', 'dsr'), c.pspace)))

    def period(self, p):
        c, NT = self.c, self.NT
        first = p == 2
        gaps = []
        NS = 2 * NT
        for n in range(NS):
            t, hh = n >> 1, n & 1
            U = NT * p + t
            n1 = (n + 1) % NS
            t1, ks1 = n1 >> 1, n1 & 1
            ms = self.qk(t1, 2 * ks1, S(2 * ks1)) + self.qk(t1, 2 * ks1 + 1, S(2 * ks1 + 1))
            ms += self.pv((t - 1) % NT, range(4), lambda ks: P(U - 1, ks), range(4 * hh, 4 * hh + 4))
            for i in range(16):
                s_ = S(2 * hh) + i // 2
                if i % 2 == 0: v = ["v_exp_f32 v%d, v%d" % (s_, s_)]
                else:
                    v = ["v_add_f32 v%d, v%d, v%d" % (Lr(t), Lr(t), s_)]
                    if i % 4 == 3: v.append("v_cvt_pk_bf16_f32 v%d, v%d, v%d" % (P(U, hh) + i // 4, s_ - 1, s_))
                gaps.append(dict(m=ms[i], s=[], d=[], v=v))
        NG = len(gaps)
        if c.stall:
            for i in range(15, NG, 16): gaps[i]['v'].append("s_nop %d" % (c.stall - 1))
        for (kind, g, x), pos in self.rd.items():
            gaps[pos]['d'].append(self.kread(g, x) if kind == 'K' else self.vread(g, x))
        gaps[0]['s'].append(Ins("s_barrier", lgkm0=True))
        gaps[2]['s'].append("s_add_u32 s%d, s%d, %d" % (sRd, sRd, SS))
        gaps[3]['s'].append("s_cmp_eq_u32 s%d, %d" % (sRd, RING))
        gaps[4]['s'].append("s_cselect_b32 s%d, s%d, s%d" % (sInc, sIncW, sIncN))
        gaps[5]['s'].append("s_cselect_b32 s%d, 0, s%d" % (sRd, sRd))
        last = max(self.rd.values())
        assert last < NG - 7
        gaps[NG - 7]['v'].append("v_add_u32 v%d, s%d, v%d" % (vAK, sInc, vAK))
        gaps[NG - 3]['v'].append("v_add_u32 v%d, s%d, v%d" % (vAV, sInc, vAV))
        lo = 8
        if first:
            bp = c.bara if NT == 7 else c.barb
            lst = (('V', 0, "V4"), ('K', 1, "K5"), ('V', 1, "V5"))
            if len(bp) == 2: lst = (('V', 0, "V4"), ('K', 1, "V5"))
            if len(bp) == 1: lst = (('V', 0, "V5"),)
            for (kind, ks, grp), fp in zip(lst, bp):
                f = min(pos for (k, g, x), pos in self.rd.items() if k == kind and g >> 1 == ks)
                f = min(f, fp)
                gaps[f - 1]['s'].append(self.waitv(grp))
                gaps[f]['s'].append(Ins("s_barrier"))
            bl = []
            for blk in (6, 7): bl += self.share('K', blk) + self.share('V', blk)
            hi = int(NG * c.sh_hi)
            self.place(gaps, bl, lo, hi)
            lo = int(NG * c.s3_lo)
        if self.dma:
            bl = []
            for blk in range(2):
                for srd, l0, st in ((sK, 0, PK), (sV, HK, PV_)):
                    for a in range(2):
                        for n in range(4):
                            bl.append([Ins("s_add_u32 m0, s%d, %d" % (sSl, blk * SLOT + l0 + 4 * st * a + (st - 1024) * n)),
                                       self.tagged("buffer_load_dwordx4 v%d, s[%d:%d], s%d offen offset:%d %s lds" % (vDMA, srd, srd + 3, sG + 2 * blk + a, 1024 * n, c.dflag), "S")])
            self.place(gaps, bl, lo, NG - 12 if first else min(NG - 12, int(NG * c.dma_hi)))
            for i in range(4):
                gaps[NG - 11 + i]['s'].append("s_add_u32 s%d, s%d, 16384" % (sG + i, sG + i))
            gaps[NG - 7]['s'].append("s_add_u32 s%d, s%d, %d" % (sSl, sSl, SS))
            gaps[NG - 6]['s'].append("s_cmp_eq_u32 s%d, %d" % (sSl, RING))
            gaps[NG - 5]['s'].append("s_cselect_b32 s%d, 0, s%d" % (sSl, sSl))
        if first: gaps[NG - 1]['s'].append(self.waitv("V7"))
        elif self.dma: gaps[NG - 1]['s'].append("s_waitcnt vmcnt(32)")
        return gaps
    def place(self, gaps, bundles, lo, hi):
        cand = [i for i in range(lo + 2, hi) if not gaps[i]['d'] and len(gaps[i]['v']) == 1]
        k = len(bundles)
        prev = lo - 1
        for j, b in enumerate(bundles):
            tgt = lo + 2 + (hi - lo - 2) * j / k
            ns = len(b) - 1
            cc = [i for i in cand if i - ns >= prev]
            i = min(cc, key=lambda i: abs(i - tgt) - (2.5 if i % 2 else 0))
            for q, ins in enumerate(b[:-1]):
                gi = i - ns + q
                if gi == prev: gaps[gi]['d'].append(ins)
                else: gaps[gi]['s'].append(ins)
            gaps[i]['d'].append(b[-1])
            prev = i
    def flat(self, gaps):
        o = []
        for g in gaps:
            o.append(I(g['m']))
            o += [I(x) for x in g['s'] + g['d'] + g['v']]
        return o

    def finalize(self, t, k, Lm, packs, acct, first, Ofn=O, Lreg=None, land=None, soff=None, pk=False, one=None, nb=None):
        c = self.c
        buf = k & 1
        st = "L:st%d" % buf
        Lreg = Lr(t) if Lreg is None else Lreg
        land = Q(t, 0) if land is None else land
        if one is None:
            x, y = Lm + 3, Lm + 2
            o = ["v_mov_b32 v%d, v%d" % (y, Lreg), "v_permlane32_swap_b32 v%d, v%d" % (Lreg, y), "v_add_f32 v%d, v%d, v%d" % (Lreg, Lreg, y),
                 "v_mov_b32 v%d, v%d" % (y, Lreg), "v_permlane16_swap_b32 v%d, v%d" % (Lreg, y), "v_add_f32 v%d, v%d, v%d" % (Lreg, Lreg, y),
                 "v_rcp_f32 v%d, v%d" % (x, Lreg)]
            for g in (1, 2, 3):
                o.append("v_mov_b32_dpp v%d, v%d row_ror:%d row_mask:0x%x bank_mask:0xf" % (x, x, 16 - 4 * g, 1 << g))
            for r in range(4):
                o.append("v_mov_b32_dpp v%d, v%d row_newbcast:%d row_mask:0xf bank_mask:0xf" % (Lm + r, x, r))
        else:
            o = ["v_mfma_f32_16x16x4_f32 %s, v%d, a%d, 0" % (rn('v', Lm, 4), Lreg, one)]
        if first is not None:
            for op, r in (("v_max3_u32", vAK), ("v_min3_u32", vAV)):
                if first:
                    o.append("%s v%d, v%d, v%d, v%d" % (op, r, Lm, Lm + 1, Lm + 2))
                    o.append("%s v%d, v%d, v%d, v%d" % (op, r, r, Lm + 3, Lm + 3))
                else:
                    o.append("%s v%d, v%d, v%d, v%d" % (op, r, r, Lm, Lm + 1))
                    o.append("%s v%d, v%d, v%d, v%d" % (op, r, r, Lm + 2, Lm + 3))
        if one is not None:
            for r in range(4): o.append("v_rcp_f32 v%d, v%d" % (Lm + r, Lm + r))
        if nb is not None:
            o.append("ds_read_b128 %s, v%d offset:%d" % (rn('v', nb, 4), vAK, 64 * t))
            for r in range(4): o.append("v_mul_f32 v%d, v%d, v%d" % (nb + r, nb + r, Lm + r))
        loc = {}
        for db in range(8):
            f, b = Ofn(t, db)
            if f == 'a':
                for r in range(4):
                    o.append("v_accvgpr_read_b32 v%d, a%d" % (acct + 4 * (db - 4) + r, b + r))
                b = acct + 4 * (db - 4)
            loc[db] = b
        if pk:
            for db in range(8):
                for r in (0, 2):
                    if nb is None: o.append("v_pk_mul_f32 %s, %s, %s" % (rn('v', loc[db] + r, 2), rn('v', loc[db] + r, 2), rn('v', Lm + r, 2)))
                    else: o.append("v_pk_fma_f32 %s, %s, %s, %s neg_lo:[0:0:1] neg_hi:[0:0:1]" % (rn('v', loc[db] + r, 2), rn('v', loc[db] + r, 2), rn('v', Lm + r, 2), rn('v', nb + r, 2)))
        for r in range(4):
            for db in range(8):
                if not pk: o.append("v_mul_f32 v%d, v%d, v%d" % (loc[db] + r, loc[db] + r, Lm + r))
            pb = packs[r % len(packs)]
            for j in range(4):
                o.append("v_cvt_pk_bf16_f32 v%d, v%d, v%d" % (pb + j, loc[2 * j] + r, loc[2 * j + 1] + r))
            o.append(Ins("ds_write_b128 v%d, %s offset:%d" % (vEW, rn('v', pb, 4), r * 320 + buf * 5120), xw=[st + "r%d" % r]))
        if soff is None:
            soff = sSt + t
            o.append("s_add_u32 s%d, s%d, %d" % (soff, sQo, t * 4096))
        for a in range(4):
            for sel in range(2):
                o.append(Ins("ds_read_b64_tr_b16 %s, v%d offset:%d" % (rn('a', land + 4 * a + 2 * sel, 2), vER, a * 1280 + 64 * sel + buf * 5120), xr=[st + "r%d" % r for r in range(4)]))
        for a in range(4 if not c.nostore else 0):
            o.append("buffer_store_dwordx4 %s, v%d, s[%d:%d], s%d offen offset:%d %s" % (rn('a', land + 4 * a, 4), vDMA, sO, sO + 3, soff, a * 1024, c.oflag))
        return o

    def tail(self):
        c, NT, tau = self.c, self.NT, self.tau
        T = NT - 1
        U = NT * 31
        G1 = lambda t: [g for g in range(4) if tau[g] > t]
        ring = dict(xr=["L:ring"])
        self.qprio = c.qprio[1]
        prog = [Ins("s_barrier", lgkm0=True, xw=["L:ring"])]
        prog += self.pv(T, range(4), lambda ks: P(U - 1, ks))
        sidx = 0
        for t in range(NT):
            gs = G1(t)
            if not gs: continue
            pb = (lambda u: (lambda ks: P(u, ks)))(U); U += 1
            for g in gs:
                sb = S(sidx); sidx += 1
                if not (t == 0 and g < 2): prog += self.qk(t, g, sb)
                if tau[g] == t + 1: prog += [Ins(self.kread(g, ds), **ring) for ds in range(4)]
                prog += self.softmax(t, sb, pb(g >> 1) + 2 * (g & 1))
            prog += self.pv(t, gs, pb)
            for db in range(8):
                prog += [Ins(self.vread(g, db), **ring) for g in gs if tau[g] == t + 1]
        order = [t for t in range(NT) if not G1(t)] + [t for t in range(NT) if G1(t)]
        gorder = sorted(range(4), key=lambda g: tau[g])
        pool = 32 * order[0]
        for k, t in enumerate(order):
            pb = (lambda u: (lambda ks: P(u, ks)))(U); U += 1
            for g in (gorder if k == 0 else range(4)):
                sb = S(sidx); sidx += 1
                prog += self.qk(t, g, sb)
                prog += self.softmax(t, sb, pb(g >> 1) + 2 * (g & 1))
            prog += self.pv(t, range(4), pb)
            pk = k >= len(order) - c.pkmul
            one = None if c.lvalu else Q(t, 0)
            if one is not None: prog.append("v_accvgpr_write_b32 a%d, 1.0" % one)
            N = lambda x: x if c.obias else None
            assert pk or not c.obias
            if k == 0:
                if c.obias: prog += ["v_bfe_u32 v%d, v%d, 8, 2" % (vAK, vDMA), "v_lshl_add_u32 v%d, v%d, 4, s%d" % (vAK, vAK, sT0)]
                prog += self.finalize(t, k, pb(0), [pb(0), pb(1)], None, None, pk=pk, one=one, nb=N(pb(1)))
            elif t == 6: prog += self.finalize(t, k, pool + 8 * (k & 1), [pool, pool + 4, pool + 8, pool + 12], pool + 16, None, pk=pk, one=one, nb=N(pool + 8 * (k & 1) + 4))
            else: prog += self.finalize(t, k, pool + 8 * (k & 1), [pool + 16, pool + 20, pool + 24, pool + 28], None, None, pk=pk, one=one, nb=N(pool + 8 * (k & 1) + 4))
        ls = [Lr(t) for t in range(NT)] + [Lr(0)]
        for op, r in (("v_max3_u32", vAK), ("v_min3_u32", vAV)):
            prog.append("%s v%d, v%d, v%d, v%d" % (op, r, ls[0], ls[1], ls[2]))
            prog.append("%s v%d, v%d, v%d, v%d" % (op, r, r, ls[3], ls[4]))
            prog.append("%s v%d, v%d, v%d, v%d" % (op, r, r, ls[5], ls[6]))
        return schedule([I(x) for x in prog], c.verbose, order=True, trials=c.trials, fit=c.fit, dswcost=c.dswcost, space=dict(zip(('dsw', 'vstore', 'dsr'), c.space)), AGE=c.age)

    def resolve_waits(self, seq):
        issued = [self.group[id(b[-1])] for b in self.first]
        if not self.c.pfs: issued.insert(self.c.pfpos, None)
        for i in seq:
            g = self.group.get(id(i))
            if i.kind in ("dma", "vload", "vstore"): issued.append(g)
            elif g and g.startswith("W:"):
                last = max(j for j, x in enumerate(issued) if x == g[2:])
                i.text = "s_waitcnt vmcnt(%d)" % min(63, len(issued) - 1 - last)

    def build(self):
        c, NT, tag = self.c, self.NT, self.tag
        self.code = [Ins("L_wave_%s:" % tag)]
        self.prologue()
        self.code += self.ts(1) + self.ts(2)
        self.code += self.ts2()
        self.code.append(self.waitv("K4"))
        self.code += self.flat(self.period(2)) + self.ts2()
        self.code += self.ts(3)
        self.resolve_waits(self.code)
        head, pend = insert_lgkm(self.code)
        assert not pend
        head = pad_hazards(head)
        gaps = self.period(3)
        if NT == 7: gaps += self.period(4)
        gaps[-4]['s'].append("s_sub_u32 s%d, s%d, 1" % (sCnt, sCnt))
        gaps[-4]['s'].append("s_cmp_lg_u32 s%d, 0" % sCnt) if c.rot > 1 else gaps[-2]['s'].append("s_cmp_lg_u32 s%d, 0" % sCnt)
        body, pend = insert_lgkm(self.flat(gaps))
        assert not pend
        if 'w' in c.exp: body = [x for x in body if not (x.kind == "wait" and "lgkm" in x.text)]
        if 'p' in c.exp:
            import re
            body = [Ins(re.sub(r"v_cvt_pk_bf16_f32 (v\d+), (v\d+), (v\d+)", r"v_perm_b32 \1, \3, \2, s99", x.text)) if x.op == "v_cvt_pk_bf16_f32" else x for x in body]
            head.append(Ins("s_mov_b32 s99, 0x07060302"))
        if 'a' in c.exp: body = [x for x in body if x.op != "v_add_f32"]
        if 'h' in c.exp:
            nb_ = []; k_ = 0
            for x in body:
                if x.op == "v_add_f32":
                    k_ += 1
                    if k_ % 2: continue
                nb_.append(x)
            body = nb_
        if 'm' in c.exp: body = [Ins(x.text.replace("v_add_f32", "v_max_f32")) if x.op == "v_add_f32" else x for x in body]
        if 'i' in c.exp: body = [Ins(x.text.replace("v_add_f32", "v_add_u32")) if x.op == "v_add_f32" else x for x in body]
        if 'c' in c.exp: body = [Ins(x.text.replace("v[240:243]", "-4.0")) if x.kind == "mfma" else x for x in body]
        if 'd' in c.exp: body = [x for x in body if x.kind != "dsr"]
        if 'k' in c.exp: body = [x for x in body if x.op != "ds_read_b128"]
        if c.coarse: body = coarsen_waits(body, c.coarse)
        pre_tail = []
        if c.rot:
            k = [i for i, x in enumerate(body) if x.kind == "mfma"][-c.rot] + 1
            while body[k].kind in ("salu", "wait"): k += 1
            mv = body[k:]
            strip = lambda l: [x.text for x in l if x.kind not in ("salu", "wait", "smem")]
            kh = [i for i, x in enumerate(head) if x.kind == "mfma"][-c.rot] + 1
            while head[kh].kind in ("salu", "wait"): kh += 1
            assert strip(head[kh:]) == strip(mv), (strip(head[kh:]), strip(mv))
            assert all(x.kind not in ("salu",) for x in mv)
            head = head[:kh] + [x for x in head[kh:] if x.kind in ("salu", "wait", "smem")]
            pre_tail = [Ins(x.text) for x in mv]
            body = mv + body[:k]
        if c.tsmode == 3 and NT == 7:
            head.append(Ins("s_mov_b32 m0, 0"))
            body = [Ins("s_memtime s[46:47]"), Ins("s_waitcnt lgkmcnt(0)"), Ins("s_movreld_b32 s48, s46"), Ins("s_add_u32 m0, m0, 1")] + body
            pre_tail = pre_tail + [Ins("s_memtime s[46:47]"), Ins("s_waitcnt lgkmcnt(0)"), Ins("s_movreld_b32 s48, s46")]
        body.append(Ins("s_cbranch_scc1 L_loop_%s" % tag))
        pad_hazards(body, hist=head[-16:], fix=False, name="loop entry")
        pad_hazards(body, hist=body[-16:], fix=False, name="loop back")
        tail = pre_tail + self.ts(4) + self.tail()
        tail += [Ins("v_cmp_le_u32 vcc, 0x%08x, v%d" % (f2u(2.0 ** c.hi_exp), vAK)),
                 Ins("s_mov_b64 s[%d:%d], vcc" % (sT1, sT1 + 1)),
                 Ins("v_cmp_ge_u32 vcc, 0x%08x, v%d" % (f2u(2.0 ** c.lo_exp), vAV)),
                 Ins("s_or_b64 s[%d:%d], s[%d:%d], vcc" % (sT1, sT1 + 1, sT1, sT1 + 1)),
                 Ins("s_mov_b32 s%d, %d" % (sNT, NT)),
                 Ins("s_nop 0" if c.exp else "s_cbranch_scc1 L_slow" if not c.force_slow else "s_branch L_slow")]
        tail += self.ts(5)
        if c.diag: tail += [Ins("s_waitcnt vmcnt(0)")] + self.ts(6)
        tail.append(Ins("s_branch L_fin" if (c.diag or c.twice or c.idle) else "s_endpgm"))
        tail, pend = insert_lgkm(tail)
        tail = pad_hazards(tail, hist=body[-16:])
        if c.hop:
            nt = []; acc = c.hop; k = 0
            stop = max(i for i, x in enumerate(tail) if x.kind == "vstore")
            for i, x in enumerate(tail):
                nt.append(x); acc += isize(x)
                if i < stop and acc >= c.hop - 24 and (x.kind == "mfma" or acc >= c.hop - 4):
                    nt += [Ins("L_hop%s%d:" % (tag, k)), Ins("s_cbranch_vccnz L_hop%s%d" % (tag, k + 1))]; k += 1; acc = 4
            tail = nt
            j = max(i for i, x in enumerate(head) if self.group.get(id(x)) == "W:K4")
            head[j:j] = self.ts(1) + [Ins("s_mov_b64 vcc, -1"), Ins("s_branch L_hop%s0" % tag), Ins("L_hop%s%d:" % (tag, k)), Ins("s_mov_b64 vcc, 0")] + self.ts(2)
            if c.verbose: print("hops", k)
        res = head + [Ins(".p2align 6"), Ins("L_loop_%s:" % tag)] + body + tail
        if c.jit:
            w, n, before = c.jit
            o = []
            for k, x in enumerate(res):
                d = [Ins("s_cselect_b32 s98, 1, 0"), Ins("s_cmp_lg_u32 s%d, %d" % (sW, w)), Ins("s_cbranch_scc1 L_j%s%d" % (tag, k)), Ins("s_sleep %d" % n), Ins("L_j%s%d:" % (tag, k)), Ins("s_cmp_lg_u32 s98, 0")]
                if x.kind == "barrier" and before: o += d
                o.append(x)
                if x.kind == "barrier" and not before: o += d
            res = o
        return res

class Gen:
    def __init__(self, cfg):
        self.c = cfg
    def slow(self):
        c = self.c
        w = Wave(self, 7, False, "s")
        o = []
        e = lambda s: o.extend(Ins(l) for l in s.strip().split("\n"))
        vL, vKA, vVA, vQA, vM, vX = 64, 65, 66, 67, 68, 69
        KF = lambda kg, ds: 72 + 16 * kg + 4 * ds
        VF = lambda db: 104 + 4 * db
        QF = lambda ds: 136 + 4 * ds
        SB, PB, LM, PKB = 152, 160, 164, 168
        e("L_slow:")
        e("s_waitcnt vmcnt(0) lgkmcnt(0)")
        e("v_lshrrev_b32 v%d, 4, v%d" % (vX, vDMA))
        e("v_and_b32 v%d, 7, v%d\nv_lshlrev_b32 v%d, 10, v%d" % (vM, vX, vKA, vM))
        e("v_and_b32 v%d, 8, v%d\nv_lshl_add_u32 v%d, v%d, 5, v%d" % (vM, vX, vKA, vM, vKA))
        e("v_and_b32 v%d, 48, v%d\nv_add_u32 v%d, v%d, v%d" % (vM, vX, vKA, vM, vKA))
        e("v_and_b32 v%d, 15, v%d\nv_lshlrev_b32 v%d, 8, v%d" % (vM, vX, vQA, vM))
        e("v_and_b32 v%d, 48, v%d\nv_add_u32 v%d, v%d, v%d" % (vM, vX, vQA, vM, vQA))
        e("v_bfe_u32 v%d, v%d, 2, 3\nv_mul_u32_u24 v%d, %d, v%d" % (vM, vX, vVA, PV_, vM))
        e("v_and_b32 v%d, 32, v%d\nv_lshl_add_u32 v%d, v%d, 3, v%d" % (vM, vX, vVA, vM, vVA))
        e("v_and_b32 v%d, 1, v%d\nv_lshl_add_u32 v%d, v%d, 3, v%d" % (vM, vX, vVA, vM, vVA))
        e("v_and_b32 v%d, 2, v%d\nv_lshl_add_u32 v%d, v%d, 6, v%d" % (vM, vX, vVA, vM, vVA))
        e("v_add_u32 v%d, s%d, v%d" % (vVA, sStg, vVA))
        e("s_mov_b32 s%d, 0" % sTile)
        e("L_slow_tile:")
        e("s_lshl_b32 s%d, s%d, 12\ns_add_u32 s%d, s%d, s%d" % (sSt, sTile, sSt, sSt, sQo))
        for ds in range(4):
            e("buffer_load_dwordx4 %s, v%d, s[%d:%d], s%d offen offset:%d" % (rn('v', QF(ds), 4), vQA, sQ, sQ + 3, sSt, ds * 64))
        e("s_waitcnt vmcnt(0)")
        for r in range(16):
            q = QF(0) + r
            e("v_lshlrev_b32 v%d, 16, v%d\nv_and_b32 v%d, 0xffff0000, v%d" % (vM, q, vX, q))
            e("v_mul_f32 v%d, s%d, v%d\nv_mul_f32 v%d, s%d, v%d" % (vM, sC, vM, vX, sC, vX))
            e("v_cvt_pk_bf16_f32 v%d, v%d, v%d" % (q, vM, vX))
        def kload():
            for kg in range(2):
                for ds in range(4):
                    e("buffer_load_dwordx4 %s, v%d, s[%d:%d], s%d offen offset:%d" % (rn('v', KF(kg, ds), 4), vKA, sK, sK + 3, sBlk, kg * 512 + ds * 64))
        def qk(raw):
            for kg in range(2):
                for ds in range(4):
                    e(mfma(('v', SB + 4 * kg), ('v', KF(kg, ds)), ('v', QF(ds)), (None if raw else ('v', CI)) if ds == 0 else ('v', SB + 4 * kg)))
        e("v_mov_b32 v%d, 0xff800000\ns_mov_b32 s%d, 0" % (vM, sBlk))
        e("L_slow_max:")
        kload()
        e("s_waitcnt vmcnt(0)")
        qk(True)
        e("s_nop 7")
        for i in range(0, 8, 2):
            e("v_max3_f32 v%d, v%d, v%d, v%d" % (vM, vM, SB + i, SB + i + 1))
        e("s_add_u32 s%d, s%d, 8192\ns_cmp_lt_u32 s%d, 524288\ns_cbranch_scc1 L_slow_max" % (sBlk, sBlk, sBlk))
        for sw in ("v_permlane32_swap_b32", "v_permlane16_swap_b32"):
            e("v_mov_b32 v%d, v%d\n%s v%d, v%d\nv_max_f32 v%d, v%d, v%d" % (vX, vM, sw, vM, vX, vM, vM, vX))
        for i in range(4): e("v_sub_f32 v%d, 0, v%d" % (CI + i, vM))
        for r in range(32): e("v_mov_b32 v%d, 0" % r)
        e("v_mov_b32 v%d, 0\ns_mov_b32 s%d, 0" % (vL, sBlk))
        e("L_slow_pv:")
        kload()
        e("s_add_u32 s%d, s%d, 4096" % (sT0, sBlk))
        for a in range(2):
            for n in range(4):
                e("s_add_u32 m0, s%d, %d" % (sStg, 4 * PV_ * a + (PV_ - 1024) * n))
                e("buffer_load_dwordx4 v%d, s[%d:%d], s%d offen offset:%d lds" % (vDMA, sV, sV + 3, sT0 if a else sBlk, 1024 * n))
        e("s_waitcnt vmcnt(0)")
        for db in range(8):
            for hb in range(2):
                e("ds_read_b64_tr_b16 %s, v%d offset:%d" % (rn('v', VF(db) + 2 * hb, 2), vVA, hb * 512 + db * 16))
        qk(False)
        e("s_nop 7")
        for i in range(8):
            e("v_exp_f32 v%d, v%d" % (SB + i, SB + i))
        for i in range(8):
            e("v_add_f32 v%d, v%d, v%d" % (vL, vL, SB + i))
        for i in range(4):
            e("v_cvt_pk_bf16_f32 v%d, v%d, v%d" % (PB + i, SB + 2 * i, SB + 2 * i + 1))
        e("s_waitcnt lgkmcnt(0)")
        for db in range(8):
            e(mfma(('v', 4 * db), ('v', PB), ('v', VF(db)), ('v', 4 * db)))
        e("s_nop 7")
        e("s_add_u32 s%d, s%d, 8192\ns_cmp_lt_u32 s%d, 524288\ns_cbranch_scc1 L_slow_pv" % (sBlk, sBlk, sBlk))
        e("v_accvgpr_write_b32 a16, 1.0")
        o.extend(I(x) for x in w.finalize(0, 0, LM, [PKB], None, None, Lreg=vL, soff=sSt, one=16))
        e("s_waitcnt vmcnt(0) lgkmcnt(0)")
        e("s_add_u32 s%d, s%d, 1\ns_cmp_lt_u32 s%d, s%d\ns_cbranch_scc1 L_slow_tile" % (sTile, sTile, sTile, sNT))
        o, _ = insert_lgkm(o, hoist=False)
        return pad_hazards(o)

    def build(self):
        c = self.c
        o = []
        e = lambda s: o.extend(Ins(l) for l in s.strip().split("\n"))
        e("s_cmp_ge_u32 s2, 256\ns_cbranch_scc1 L_end")
        if c.twice: e("s_mov_b32 s90, 0\nL_again:")
        e("s_load_dwordx4 s[4:7], s[0:1], 0\ns_load_dwordx4 s[8:11], s[0:1], 16")
        if c.diag:
            e("s_load_dwordx2 s[40:41], s[0:1], %d" % (32 if (c.dbgout or c.skew) else 40))
            e("s_memrealtime s[44:45]\ns_memtime s[46:47]\ns_waitcnt lgkmcnt(0)\ns_mov_b32 s48, s44\ns_mov_b32 s49, s46")
            if c.tsmode == 2: e("s_mov_b32 s48, s46")
        wa, wb = Wave(self, 7, False, "a"), Wave(self, 6, True, "b")
        ca, cb = wa.build(), wb.build()
        assert [[x.text for x in b] for b in wa.first] == [[x.text for x in b] for b in wb.first]
        e("v_lshrrev_b32 v1, 6, v0")
        e("v_and_b32 v5, 63, v0")
        e("v_readfirstlane_b32 s%d, v1" % sW)
        e("v_lshlrev_b32 v%d, 4, v5" % vDMA)
        e("s_mul_i32 s%d, s2, 110592" % sT0)
        e("s_lshl_b32 s3, s2, 19")
        e("s_mov_b32 s%d, 524288\ns_mov_b32 s%d, 0x20000\ns_mov_b32 s%d, 110592\ns_mov_b32 s%d, 0x20000" % (sK + 2, sK + 3, sQ + 2, sQ + 3))
        e("s_mul_i32 s%d, s%d, %d" % (sQo, sW, 112 * 256))
        e("s_add_u32 s%d, s%d, %d\ns_min_u32 s%d, s%d, %d" % (sQT, sQo, 6 * 4096, sQT, sQT, 26 * 4096))
        e("s_mul_i32 s%d, s%d, %d" % (sWK, sW, 2 * PK))
        e("s_lshl_b32 s%d, s%d, 11" % (sWG, sW))
        e("s_mul_i32 s%d, s%d, %d\ns_add_u32 s%d, s%d, %d" % (sQS, sW, 2 * QT, sQS, sQS, SS))
        e("s_waitcnt lgkmcnt(0)")
        def srd(r, src, offs):
            e("s_add_u32 s%d, s%d, s%d\ns_addc_u32 s%d, s%d, 0" % (r, src, offs, r + 1, src + 1))
        srd(sK, 6, 3); srd(sQ, 4, sT0)
        for b in wa.first[:c.pfpos]: o.extend(b)
        e("s_getpc_b64 s[38:39]")
        e("L_pc:")
        if c.pfs:
            e("s_lshr_b32 s%d, s2, 3\ns_lshl_b32 s%d, s%d, 2\ns_add_u32 s%d, s%d, s%d\ns_lshl_b32 s%d, s%d, 9" % (sC, sC, sC, sC, sC, sW, sC, sC))
            e("s_min_u32 s%d, s%d, L_slow-L_pc\ns_add_u32 s38, s38, s%d\ns_addc_u32 s39, s39, 0" % (sC, sC, sC))
            for i in range(512 // c.pfstride): e("s_load_dword s%d, s[38:39], %d" % (87, c.pfstride * i))
        else:
            e("s_lshr_b32 s%d, s2, 3\ns_and_b32 s%d, s%d, 7\ns_lshl_b32 s%d, s%d, 13" % (sC, sC, sC, sC, sC))
            e("v_lshlrev_b32 v2, 5, v0\nv_add_u32 v2, s%d, v2\nv_min_u32 v2, L_slow-L_pc, v2" % sC)
            e("global_load_dword v63, v2, s[38:39]")
        srd(sV, 8, 3); srd(sO, 10, sT0)
        e("s_mov_b32 s%d, 524288\ns_mov_b32 s%d, 0x20000\ns_mov_b32 s%d, 110592\ns_mov_b32 s%d, 0x20000" % (sV + 2, sV + 3, sO + 2, sO + 3))
        e("s_mul_i32 s%d, s%d, %d" % (sWV, sW, 2 * PV_))
        for b in wa.first[c.pfpos:]: o.extend(b)
        e("v_mov_b32 v0, v5")
        e("v_and_b32 v1, 15, v0\nv_and_b32 v2, 48, v0")
        e("s_mov_b32 s%d, 0x%08x" % (sC, f2u(math.log2(math.e) / math.sqrt(128.0))))
        e("s_mul_i32 s%d, s%d, %d\ns_add_u32 s%d, s%d, %d" % (sStg, sW, PRIV, sStg, sStg, STG))
        e("v_bfe_u32 v3, v0, 2, 2\nv_mul_u32_u24 v%d, %d, v3" % (vQA, PV_))
        e("v_and_b32 v3, 3, v0\nv_lshl_add_u32 v%d, v3, 8, v%d" % (vQA, vQA))
        e("v_add3_u32 v%d, v%d, v2, s%d\nv_add3_u32 v%d, v%d, v2, s%d" % (vQB, vQA, sStg, vQA, vQA, sQS))
        e("v_and_b32 v3, 7, v0\nv_mul_u32_u24 v%d, %d, v3" % (vAK, PK))
        e("v_and_b32 v3, 8, v0\nv_lshl_add_u32 v%d, v3, 5, v%d" % (vAK, vAK))
        e("v_add_u32 v%d, v2, v%d" % (vAK, vAK))
        e("v_and_b32 v3, 1, v0\nv_lshlrev_b32 v4, 3, v3\nv_and_b32 v3, 2, v0\nv_lshl_add_u32 v4, v3, 6, v4")
        e("v_bfe_u32 v3, v0, 2, 3\nv_mul_u32_u24 v%d, %d, v3" % (vAV, PV_))
        e("v_and_b32 v3, 32, v0\nv_lshl_add_u32 v%d, v3, 3, v%d" % (vAV, vAV))
        e("v_add_u32 v%d, v4, v%d\nv_add_u32 v%d, %d, v%d" % (vAV, vAV, vAV, HK, vAV))
        e("v_mul_u32_u24 v%d, 80, v2\nv_lshl_add_u32 v%d, v1, 4, v%d\nv_add_u32 v%d, s%d, v%d" % (vEW, vEW, vEW, vEW, sStg, vEW))
        e("v_mul_u32_u24 v%d, 20, v2\nv_and_b32 v3, 12, v0\nv_lshl_add_u32 v%d, v3, 2, v%d" % (vER, vER, vER))
        e("v_add3_u32 v%d, v%d, v4, s%d" % (vER, vER, sStg))
        e("s_cmp_eq_u32 s%d, 3" % sW)
        e("s_cbranch_scc1 L_wave_b")
        o[:] = pad_hazards(o)
        o += ca
        o += cb
        o += self.slow()
        e("L_fin:")
        if c.twice:
            e("s_waitcnt vmcnt(0) lgkmcnt(0)\ns_barrier\nv_lshrrev_b32 v0, 4, v%d\ns_lshl_b32 s91, s%d, 6\nv_add_u32 v0, s91, v0" % (vDMA, sW))
            e("s_add_u32 s90, s90, 1\ns_cmp_le_u32 s90, %d\ns_cbranch_scc1 L_again" % c.twice)
        if c.idle:
            e("s_waitcnt vmcnt(0) lgkmcnt(0)\ns_memtime s[92:93]\ns_waitcnt lgkmcnt(0)\nL_idle:\ns_memtime s[94:95]\ns_waitcnt lgkmcnt(0)\ns_sub_u32 s94, s94, s92\ns_cmp_lt_u32 s94, %d\ns_cbranch_scc1 L_idle" % c.idle)
        if c.diag and c.skew:
            e("s_cmp_lg_u32 s%d, 0\ns_cbranch_scc1 L_end" % sW)
            e("s_mov_b32 s42, 256\ns_mov_b32 s43, 0x20000\nv_mov_b32 v0, 0\ns_mov_b64 exec, 1")
            e("s_sub_u32 s90, 0, s48\nv_mov_b32 v4, s90\nbuffer_atomic_umax v4, v0, s[40:43], 0 offen\ns_waitcnt vmcnt(0)")
            e("L_e1:\ns_memrealtime s[94:95]\ns_waitcnt lgkmcnt(0)\ns_sub_u32 s94, s94, s48\ns_cmp_lt_u32 s94, 12000\ns_cbranch_scc1 L_e1")
            e("buffer_atomic_umax v4, v0, s[40:43], 0 offen sc0\ns_waitcnt vmcnt(0)\nv_readfirstlane_b32 s91, v4\ns_nop 4\ns_sub_u32 s90, s91, s90\ns_mul_i32 s90, s90, %d\ns_add_u32 s90, s90, 13000" % (c.skew - 1))
            e("L_e2:\ns_memrealtime s[94:95]\ns_waitcnt lgkmcnt(0)\ns_sub_u32 s94, s94, s48\ns_cmp_lt_u32 s94, s90\ns_cbranch_scc1 L_e2")
        elif c.diag and c.echo:
            i, j, m, k = c.echo
            e("s_sub_u32 s90, s%d, s%d\ns_mul_i32 s90, s90, %d\ns_lshr_b32 s90, s90, %d" % (48 + 2 * j + k, 48 + 2 * i + k, m, 5 if k else 0))
            e("L_echo:\ns_memrealtime s[94:95]\ns_waitcnt lgkmcnt(0)\ns_sub_u32 s94, s94, s60\ns_cmp_lt_u32 s94, s90\ns_cbranch_scc1 L_echo")
        elif c.diag and c.dbgout:
            e("s_cmp_lg_u32 s%d, 0\ns_cbranch_scc1 L_end" % sW)
            e("s_mov_b32 s42, 256\ns_mov_b32 s43, 0x20000\nv_mov_b32 v0, 0\ns_mov_b64 exec, 1")
            for i in range(1, 7):
                for k in range(2):
                    e("s_sub_u32 s%d, s%d, s%d" % (sT0, 48 + 2 * i + k, 48 + k))
                    e("v_mov_b32 v4, s%d" % sT0)
                    e("buffer_atomic_add v4, v0, s[40:43], 0 offen offset:%d" % (4 * (i - 1) + 24 * k))
                    e("s_waitcnt vmcnt(0)")
            e("v_mov_b32 v4, s60\nbuffer_atomic_umax v4, v0, s[40:43], 0 offen offset:48\ns_waitcnt vmcnt(0)")
            e("s_sub_u32 s%d, 0, s48\nv_mov_b32 v4, s%d\nbuffer_atomic_umax v4, v0, s[40:43], 0 offen offset:52\ns_waitcnt vmcnt(0)" % (sT0, sT0))
            e("v_mov_b32 v4, s48\nbuffer_atomic_umax v4, v0, s[40:43], 0 offen offset:56\ns_waitcnt vmcnt(0)")
        elif c.diag:
            e("s_mov_b32 s42, 0x1000000\ns_mov_b32 s43, 0x20000")
            e("s_lshl_b32 s%d, s2, 2\ns_add_u32 s%d, s%d, s%d\ns_lshl_b32 s%d, s%d, %d" % (sT0, sT0, sT0, sW, sT0, sT0, 7 if c.tsmode >= 2 else 6))
            e("v_mov_b32 v0, 0")
            for i in range(0, 28 if c.tsmode >= 2 else 16, 4):
                for k in range(4):
                    e("v_mov_b32 v%d, s%d" % (4 + k, 48 + i + k if i < 16 else 72 + i + k))
                e("buffer_store_dwordx4 v[4:7], v0, s[40:43], s%d offen offset:%d" % (sT0, i * 4))
                e("s_waitcnt vmcnt(0)")
        e("L_end:")
        e("s_endpgm")
        if c.align is True: align_runs(o)
        elif c.align:
            r = align_bound(o, c.align)
            if c.verbose: print("align", r)
        txt = ["; MHA forward, B=8 H=32 Sq=432 Sk=2048 D=128, bf16.  One workgroup per head, 4 waves (one per SIMD).",
               "; @launch grid=(256,1,1) block=(256,1,1) lds=%d" % LDS,
               '.amdgcn_target "amdgcn-amd-amdhsa--gfx950"', ".text", ".globl %s" % c.kname, ".p2align 8",
               ".type %s,@function" % c.kname, "%s:" % c.kname]
        for i in o:
            txt.append(i.text if i.kind == "label" else "    " + i.text.replace("[0:0:1]", "[0,0,1]"))
        txt.append('.section .rodata,"a"\n.p2align 6\n.amdhsa_kernel %s' % c.kname)
        txt.append("""  .amdhsa_next_free_vgpr 512
  .amdhsa_next_free_sgpr 102
  .amdhsa_accum_offset 256
  .amdhsa_group_segment_fixed_size 0
  .amdhsa_kernarg_size 48
  .amdhsa_user_sgpr_count 2
  .amdhsa_user_sgpr_kernarg_segment_ptr 1
  .amdhsa_system_sgpr_workgroup_id_x 1
.end_amdhsa_kernel""")
        return "\n".join(txt) + "\n"

if __name__ == "__main__":
    cfg = Cfg()
    out = sys.argv[1]
    for a in sys.argv[2:]:
        k, v = a.split("=")
        assert hasattr(cfg, k), k
        setattr(cfg, k, eval(v))
    open(out, "w").write(Gen(cfg).build())
```

```python
import itertools
def windows(NT, tau, LAT):
    W = []
    for g in range(4):
        ks, kg = g >> 1, g & 1
        t = tau[g]
        n = 2 * (t - 1) + ks - 1
        for ds in range(4):
            pos = ds if kg == 0 else 4 + (3 - ds)
            G = 16 * n + pos
            W.append((('K', g, ds), G, G + 32 - LAT))
        for db in range(8):
            n2 = 2 * (t - 1) + 2 + (db >> 2)
            i = db & 3
            order = (0, 1) if i % 2 == 0 else (1, 0)
            G = 16 * n2 + 8 + 2 * i + order.index(ks)
            W.append((('V', g, db), G, G + 32 - LAT))
    return W
def edf(W, positions):
    W = sorted(W, key=lambda w: w[1])
    res = {}
    pend = []
    i = 0
    for p in positions:
        while i < len(W) and W[i][1] <= p:
            pend.append(W[i]); i += 1
        pend.sort(key=lambda w: w[2])
        if pend:
            w = pend.pop(0)
            if w[2] < p: return None
            res[w[0]] = p
    if pend or i < len(W): return None
    return res
if __name__ == "__main__":
    for NT in (7, 6):
        for LAT in (12, 10, 8):
            sols = []
            for tau in itertools.product(range(0, NT + 1), repeat=4):
                W = windows(NT, tau, LAT)
                for start in range(-32, 32, 4):
                    if NT == 7: pos = [start + 4 * p + 1 for p in range(8 * NT - 2)]
                    else: pos = sorted([start + 4 * p + 1 for p in range(8 * NT - 1)] + [start + 16 * p + 2 for p in range(2 * NT)])
                    r = edf(W, pos)
                    if r:
                        sols.append((abs(tau[0] - tau[1]) + abs(tau[2] - tau[3]), tau, start, min(r.values()), max(r.values())))
            sols.sort()
            print(NT, LAT, len(sols))
            for s in sols[:40]: print("   ", s)

def windows16(NT, tau, LAT):
    W = []
    for g in range(4):
        ks, kg = g >> 1, g & 1
        t = tau[g]
        for ds in range(4):
            G = 32 * (t - 1) + 4 * g + (ds if kg == 0 else 3 - ds)
            W.append((('K', g, ds), G, G + 32 - LAT))
        for db in range(8):
            order = (0, 1) if db % 2 == 0 else (1, 0)
            G = 32 * t + 16 + 2 * db + order.index(ks)
            W.append((('V', g, db), G, G + 32 - LAT))
    return W
if __name__ == "__main__":
    print("ord16")
    for NT in (7, 6):
        for LAT in (12, 10, 9, 8):
            sols = []
            for tau in itertools.product(range(1, NT), repeat=4):
                W = windows16(NT, tau, LAT)
                if NT == 7: pos = [4 * p + 1 for p in range(8 * NT - 2)]
                else: pos = sorted([4 * p + 1 for p in range(8 * NT - 2)] + [16 * p + 2 for p in range(2 * NT)])
                r = edf(W, pos)
                if r: sols.append((abs(tau[0] - tau[1]) + abs(tau[2] - tau[3]), tau, min(r.values()), max(r.values())))
            sols.sort()
            print(NT, LAT, len(sols), sols[:12])
```

```python
import sys, math, struct
from asmlib import *
import solve

KNAME = "standalone__mha_softmax__near_ridge"

HEADER = """
;
;              streams K/V into a 3-slot LDS ring (64 keys per slot) with LDS-DMA (code L_wave_b).  One barrier per 64 keys.
; Registers  : O accumulators v0-207 + a240-255, scaled Q a0-111, K fragments a112-175, V fragments a176-239 (reloaded in
; Math       : S^T = K * (Q*log2e/sqrt(D))^T + C with v_mfma_f32_16x16x32_bf16, P = exp2(S), l += P (fp32), O += P * V.
"""

class Cfg:
    diag = False
    kname = KNAME + "_kernel"
    dflag = "nt"
    qflag = "nt"
    oflag = "sc1"
    bias = 2.5
    force_slow = False
    pkmul = 7
    verbose = False
    lo_exp = -30
    hi_exp = 30
    tsmode = 0
    nostore = False
    lead = 4
    wspan = 0.75
    rot = 1
    trials = 0
    fit = True
    qprio = (80, 80)
    coarse = 8
    earlyF = False
    merge3 = 1
    bargap = 0
    fpos = 38
    exp = ''
    space = (48, 64, 12)
    bara = (41,)
    barb = (37,)
    pspace = (0, 0, 0)
    age = 48
    hop = 0
    dma_hi = 1.0
    jit = None
    keep = False
    pad = 0
    hide = True
    k0split = 0
    pfearly = 1
    lastflag = (0, '')
    align = True
    pkscale = True
    p1bar = dict(V4=41, K5=69, V5=121)
    pb_hi = 0.6
    obias = 1
    gamma = 3.0
    oconst = 1.5
    pfpos = 8
    pfsplit = True
    twice = 0
    skew = 0
    echo = None
    dbgout = False
    stall = 0
    idle = 0
    dswcost = 24
    lvalu = True
    pfs = False
    pfstride = 64
    first = 8
    ord16 = True
    sh_hi = 0.3
    s3_lo = 0.45

PK, PV_ = 1056, 1040
HK = 8 * PK
SLOT = HK + 8 * PV_
SS = 2 * SLOT
RING = 3 * SS
STG = RING
PQ = 1088
QT = 4 * PQ
PARK = 3 * QT
PRIV = 3 * QT + 512
LDS = STG + 4 * PRIV
assert LDS <= 163840 and SS + 15 * QT <= RING and 8 * QT >= SS

def O(t, db):
    if t == 6 and db >= 4: return ('a', 240 + 4 * (db - 4))
    return ('v', 32 * t + 4 * db)
def S(i): return 208 + 4 * (i & 3)
def P(U, ks): return 224 + 8 * (U & 1) + 4 * ks
CI = 240
def Lr(t): return 244 + t
vAK, vAV, vDMA, vEW, vER = 251, 252, 253, 254, 255
vVM, vHalf, vPK, vQS = 29, 28, 27, 25
vTP, vTD = 192, 193
sMask = 79
sC2 = 100
sHi = 3
vQA, vQB = 30, 31
def Q(t, ds): return 16 * t + 4 * ds
def Kf(g, ds): return 112 + 16 * g + 4 * ds
def Vf(db, ks): return 176 + 8 * db + 4 * ks

sQ, sK, sV, sO = 12, 16, 20, 24
sW, sCnt, sInc, sRd, sC, sQo, sSl = 28, 29, 30, 31, 32, 33, 34
sT0, sT1, sT2 = 35, 36, 37
sG = 64
sWK, sWV, sWG = 68, 69, 70
sIncW, sIncN = 71, 72
sNT, sTile, sBlk, sStg, sQS, sQT = 73, 74, 75, 76, 77, 78
sSt = 80

def rn(f, b, n): return "%s[%d:%d]" % (f, b, b + n - 1)
def mfma(D, A, B, C, half=False):
    n = 2 if half else 4
    cs = "0" if C is None else rn(C[0], C[1], 4)
    op = "v_mfma_f32_16x16x16_bf16" if half else "v_mfma_f32_16x16x32_bf16"
    return "%s %s, %s, %s, %s" % (op, rn(D[0], D[1], 4), rn(A[0], A[1], n), rn(B[0], B[1], n), cs)
def f2u(x): return struct.unpack("<I", struct.pack("<f", x))[0]

class Wave:
    def __init__(self, gen, NT, dma, tag):
        self.g, self.c, self.NT, self.dma, self.tag = gen, gen.c, NT, dma, tag
        self.tau = (2, 1, 5, 4) if NT == 7 else (2, 1, 4, 3)
        W = solve.windows(NT, self.tau, 10 if NT == 7 else 12)
        if NT == 7: pos = [4 * p + 1 for p in range(8 * NT - 2)]
        else: pos = sorted([4 * p + 1 for p in range(8 * NT - 1)] + [16 * p + 2 for p in range(2 * NT)])
        if self.c.ord16:
            W = solve.windows16(NT, self.tau, 9)
            pos = [4 * p + 1 for p in range(8 * NT - 2)]
            if NT == 6: pos = sorted(pos + [16 * p + 2 for p in range(2 * NT)])
            elif self.c.hide: pos = pos[4:]
        self.hide = self.c.hide and self.c.ord16 and NT == 7
        self.rd = solve.edf(W, pos)
        assert self.rd
        self.oinit = set()
        self.qprio = self.c.qprio[0]
        self.group = {}
        self.code = []

    def kread(self, g, ds, off=0):
        return "ds_read_b128 %s, v%d offset:%d" % (rn('a', Kf(g, ds), 4), vAK, off + (g >> 1) * SLOT + (g & 1) * 512 + ds * 64)
    def vread(self, g, db, off=0):
        return "ds_read_b64_tr_b16 %s, v%d offset:%d" % (rn('a', Vf(db, g >> 1) + 2 * (g & 1), 2), vAV, off + (g >> 1) * SLOT + (g & 1) * 512 + db * 16)
    def qk(self, t, g, sb, raw=False, snake=True):
        order = range(4) if (g & 1 == 0 or not snake) else range(3, -1, -1)
        o = []
        for i, ds in enumerate(order):
            o.append(Ins(mfma(('v', sb), ('a', Kf(g, ds)), ('a', Q(t, ds)), (None if raw else ('v', CI)) if i == 0 else ('v', sb)), prio=self.qprio))
        return o
    def pv1(self, t, db, pb, ks, gs):
        D = O(t, db)
        C = D if (t, db) in self.oinit else None
        self.oinit.add((t, db))
        if len(gs) == 2: return mfma(D, ('v', pb), ('a', Vf(db, ks)), C)
        h = gs[0] & 1
        return mfma(D, ('v', pb + 2 * h), ('a', Vf(db, ks) + 2 * h), C, half=True)
    def pv(self, t, groups, pbase, dbs=range(8)):
        o = []
        if len(groups) == 3:
            for ks in sorted((0, 1), key=lambda k: -len([g for g in groups if g >> 1 == k])):
                for db in dbs: o.append(self.pv1(t, db, pbase(ks), ks, [g for g in groups if g >> 1 == ks]))
            return o
        for db in dbs:
            for ks in ((0, 1) if db % 2 == 0 else (1, 0)):
                gs = [g for g in groups if g >> 1 == ks]
                if gs: o.append(self.pv1(t, db, pbase(ks), ks, gs))
        return o
    def pv_first(self, t, pbase):
        c = self.c
        if not c.obias: return [I(x) for x in self.pv(t, range(4), pbase)]
        Bt = O(t, 3)
        o = []
        if c.obias == 1:
            o.append("v_mfma_f32_16x16x4_f32 %s, v%d, v%d, 0" % (rn('v', Bt[1], 4), Lr(t), vVM))
            for r in range(4): o.append("v_and_or_b32 v%d, v%d, s%d, v%d" % (Bt[1] + r, Bt[1] + r, sMask, vHalf))
        else:
            for r in range(4): o.append("v_mov_b32 v%d, 0x%08x" % (Bt[1] + r, f2u(c.oconst)))
        o.append(Ins("ds_write_b128 v%d, %s offset:%d" % (vPK, rn('v', Bt[1], 4), 64 * t)))
        if t == 6:
            for r in range(4): o.append("v_accvgpr_write_b32 a%d, v%d" % (O(6, 7)[1] + r, Bt[1] + r))
        for j, db in enumerate((0, 1, 2, 4, 5, 6, 7, 3)):
            D = O(t, db)
            for k, ks in enumerate((0, 1) if j % 2 == 0 else (1, 0)):
                C = D if k else (Bt if D[0] == 'v' else O(6, 7))
                o.append(mfma(D, ('v', pbase(ks)), ('a', Vf(db, ks)), C))
            self.oinit.add((t, db))
        return [I(x) for x in o]
    def vmax(self):
        c = self.c
        if c.obias != 1: return []
        x, y, z = vVM, 16, 17
        o = ["v_accvgpr_read_b32 v%d, a%d" % (x, Vf(0, 0)), "v_accvgpr_read_b32 v%d, a%d" % (y, Vf(0, 0) + 2), "v_accvgpr_read_b32 v%d, a%d" % (z, Vf(0, 1) + 1),
             "v_max3_f32 v%d, |v%d|, |v%d|, |v%d|" % (x, x, y, z)]
        for sw in ("v_permlane32_swap_b32", "v_permlane16_swap_b32"):
            o += ["v_mov_b32 v%d, v%d" % (y, x), "%s v%d, v%d" % (sw, x, y), "v_max_f32 v%d, v%d, v%d" % (x, x, y)]
        for k in (8, 4, 2, 1):
            o.append("v_max_f32_dpp v%d, v%d, v%d row_ror:%d row_mask:0xf bank_mask:0xf" % (x, x, x, k))
        o.append("v_min_f32 v%d, 0x%08x, v%d" % (x, f2u(2.0 ** 60), x))
        o.append("v_mul_f32 v%d, 0x%08x, v%d" % (x, f2u(c.gamma), x))
        return o
    def softmax(self, t, sb, pdst):
        o = []
        for i in range(4):
            o.append("v_exp_f32 v%d, v%d" % (sb + i, sb + i))
            o.append("v_add_f32 v%d, v%d, v%d" % (Lr(t), Lr(t), sb + i))
            if i & 1: o.append("v_cvt_pk_bf16_f32 v%d, v%d, v%d" % (pdst + i // 2, sb + i - 1, sb + i))
        return o
    def tagged(self, text, grp, **kw):
        i = Ins(text, **kw); self.group[id(i)] = grp; return i
    def share(self, kv, blk):
        srd, lo, base, pad = (sK, 0, sWK, PK - 1024) if kv == 'K' else (sV, HK, sWV, PV_ - 1024)
        lds = ((blk >> 1) % 3) * SS + (blk & 1) * SLOT + lo
        o = []
        for n in range(2):
            if n == 0: b = [Ins("s_add_u32 m0, s%d, %d" % (base, lds)), Ins("s_add_u32 s%d, s%d, %d" % (sT2, sWG, blk * 8192))]
            else: b = [Ins("s_add_u32 m0, m0, %d" % pad)]
            b.append(self.tagged("buffer_load_dwordx4 v%d, s[%d:%d], s%d offen offset:%d %s lds" % (vDMA, srd, srd + 3, sT2, 1024 * n, self.c.dflag), "%s%d" % (kv, blk)))
            o.append(b)
        return o
    def qbuf(self, t):
        k = self.NT - 1 - t
        nr = self.NT - 3
        if k < nr: return sQS, vQA, k * 4 * QT
        return sStg, vQB, (k - nr) * QT
    def qload(self, t):
        sb, _, off = self.qbuf(t)
        o = []
        for n in range(4):
            if n == 0: b = [Ins("s_add_u32 m0, s%d, %d" % (sb, off)), Ins("s_sub_u32 s%d, s%d, %d" % (sT1, sQT, (self.NT - 1 - t) * 4096))]
            else: b = [Ins("s_add_u32 m0, m0, %d" % (PQ - 1024))]
            b.append(self.tagged("buffer_load_dwordx4 v%d, s[%d:%d], s%d offen offset:%d %s lds" % (vQS, sQ, sQ + 3, sT1, n * 1024, self.c.qflag), "Q%d" % t))
            o.append(b)
        return o
    def waitv(self, grp):
        i = Ins("s_waitcnt vmcnt(0)"); self.group[id(i)] = "W:" + grp; return i
    def scale(self, t):
        o = []
        tb = 32 * t + 16 if t < 6 else 16
        _, va, off = self.qbuf(t)
        for ds in range(4):
            o.append("ds_read_b128 %s, v%d offset:%d" % (rn('v', 32 * t + 4 * ds, 4), va, off + ds * 64))
        if 'N' in self.c.exp:
            for r in range(16):
                o.append("v_subrev_u32 v%d, 0x01800180, v%d" % (32 * t + r, 32 * t + r))
                o.append("v_accvgpr_write_b32 a%d, v%d" % (Q(t, 0) + r, 32 * t + r))
            return o
        if self.c.pkscale:
            for r0 in range(0, 16, 4):
                for r in range(r0, r0 + 4):
                    a = tb + 2 * (r % 4)
                    o.append("v_lshlrev_b32 v%d, 16, v%d" % (a, 32 * t + r))
                    o.append("v_and_b32 v%d, s%d, v%d" % (a + 1, sHi, 32 * t + r))
                for r in range(r0, r0 + 4):
                    a = tb + 2 * (r % 4)
                    o.append("v_pk_mul_f32 %s, %s, %s" % (rn('v', a, 2), rn('v', a, 2), rn('s', sC2, 2)))
                for r in range(r0, r0 + 4):
                    a = tb + 2 * (r % 4)
                    o.append("v_cvt_pk_bf16_f32 v%d, v%d, v%d" % (32 * t + r, a, a + 1))
                    o.append("v_accvgpr_write_b32 a%d, v%d" % (Q(t, 0) + r, 32 * t + r))
            return o
        for r in range(16):
            q = 32 * t + r
            a, b = tb + 2 * (r % 4), tb + 2 * (r % 4) + 1
            o.append("v_lshlrev_b32 v%d, 16, v%d" % (a, q))
            o.append("v_and_b32 v%d, s%d, v%d" % (b, sHi, q))
            o.append("v_mul_f32 v%d, s%d, v%d" % (a, sC, a))
            o.append("v_mul_f32 v%d, s%d, v%d" % (b, sC, b))
            o.append("v_cvt_pk_bf16_f32 v%d, v%d, v%d" % (a, a, b))
            o.append("v_accvgpr_write_b32 a%d, v%d" % (Q(t, 0) + r, a))
        return o
    def seg(self, head, body, bundles=(), span=(0.0, 0.8)):
        self.code += self.ts2() + [I(x) for x in head] + self.ts2()
        b = schedule([I(x) for x in body], self.c.verbose) if body else []
        n = len(b)
        k = len(bundles)
        pos = [int(n * (span[0] + (span[1] - span[0]) * j / max(k, 1))) for j in range(k)]
        j = 0
        for i in range(n + 1):
            while j < k and pos[j] <= i:
                self.code += bundles[j]; j += 1
            if i < n: self.code.append(b[i])
    def ts2(self):
        if not (self.c.diag and self.c.tsmode == 2) or getattr(self, 'nts', 1) >= 28: return []
        self.nts = getattr(self, 'nts', 1) + 1
        k = self.nts - 1
        reg = 48 + k if k < 16 else 88 + k - 16
        assert k < 28, k
        return [Ins("s_memtime s[46:47]"), Ins("s_waitcnt lgkmcnt(0)"), Ins("s_mov_b32 s%d, s46" % reg)]
    def ts(self, idx):
        if not self.c.diag or self.c.tsmode >= 2: return []
        return [Ins("s_memrealtime s[44:45]"), Ins("s_memtime s[46:47]"), Ins("s_waitcnt lgkmcnt(0)"),
                Ins("s_mov_b32 s%d, s44" % (48 + 2 * idx)), Ins("s_mov_b32 s%d, s46" % (49 + 2 * idx))]

    def pin(self, ins, after):
        self.npin = getattr(self, 'npin', 0) + 1
        after.W.add("pin%d" % self.npin); ins.R.add("pin%d" % self.npin)
        return ins
    def fence(self, grp, after, bar=False, lgkm0=False, frees=()):
        w = self.waitv(grp)
        if after is not None: self.pin(w, after)
        o = self.ts2c() + [w]
        if bar: o.append(Ins("s_barrier", lgkm0=lgkm0))
        o[-1].W.add("L:" + grp)
        for f in frees: o[-1].W.add("L:" + f)
        if after is not None and len(o) > 1 and self.c.tsmode == 2 and self.c.diag: self.pin(o[0], after)
        return o + self.ts2c()
    def ts2c(self):
        o = self.ts2()
        for x in o: x.R.add("vmq"); x.W.add("vmq")
        return o
    def weave(self, body, bundles, span=(0.0, 0.9)):
        n, k = len(body), len(bundles)
        pos = [int(n * (span[0] + (span[1] - span[0]) * j / max(k, 1))) for j in range(k)]
        o = []; j = 0
        for i in range(n):
            o.append(body[i])
            while j < k and pos[j] <= i and (isvalu(body[i]) or i == n - 1):
                self.pin(bundles[j][-1], body[i]); o += bundles[j]; j += 1
        return o
    def prologue(self):
        c, NT, tau = self.c, self.NT, self.tau
        T = NT - 1
        II = lambda l, **kw: [I(x, **kw) for x in l]
        G0 = lambda t: [g for g in range(4) if tau[g] <= t]
        seq = self.share('K', 0) + self.qload(T) + self.share('K', 1) + self.qload(T - 1) + self.share('V', 0) + self.share('V', 1)
        for t in range(T - 2, -1, -1): seq += self.qload(t)
        nq = len(seq)
        for b in (2, 3): seq += self.share('K', b) + self.share('V', b)
        n1 = len(seq)
        for b in (4, 5): seq += self.share('K', b) + self.share('V', b)
        grp = [self.group[id(b[-1])] for b in seq]
        state = [0]
        def nxt(g, cap=None):
            want = c.first if g is None else max(j for j, x in enumerate(grp) if x == g) + 1 + c.lead
            want = min(want, len(seq) if cap is None else cap)
            r = seq[state[0]:want]
            state[0] = max(state[0], want)
            return r
        self.first = nxt(None, nq)
        self.code += [Ins("v_mov_b32 v%d, 0" % Lr(t)) for t in range(NT)]
        misc = ["s_mov_b32 s%d, %d" % (sRd, 2 * SS), "s_mov_b32 s%d, %d" % (sIncW, (-2 * SS) & 0xffffffff), "s_mov_b32 s%d, %d" % (sIncN, SS)]
        misc += ["s_mov_b32 s%d, %d" % (sCnt, 14 if NT == 7 else 28)]
        if self.dma:
            misc += ["s_mov_b32 s%d, %d" % (sG + i, 4 * 16384 + 4096 * i) for i in range(4)]
            misc += ["s_mov_b32 s%d, %d" % (sSl, SS)]
            if c.keep:
                misc += ["s_bfe_u32 s%d, s2, 0x30003" % sT0, "s_mul_i32 s%d, s%d, 2560" % (sT0, sT0), "s_add_u32 s%d, s%d, L_tail_a-L_pc" % (sT0, sT0),
                         "v_lshrrev_b32 v%d, 4, v%d" % (vTP, vDMA), "v_mul_u32_u24 v%d, 40, v%d" % (vTP, vTP), "v_add_u32 v%d, s%d, v%d" % (vTP, sT0, vTP),
                         "v_min_u32 v%d, L_wave_b-L_pc, v%d" % (vTP, vTP)]
        if c.obias:
            misc += ["s_mov_b32 s%d, 0xff800000" % sMask, "v_mov_b32 v%d, 0x00400000" % vHalf, "s_add_u32 s%d, s%d, %d" % (sT0, sStg, PARK),
                     "v_bfe_u32 v%d, v%d, 8, 2" % (vPK, vDMA), "v_lshl_add_u32 v%d, v%d, 4, s%d" % (vPK, vPK, sT0)]
        misc += ["s_mov_b32 s%d, 0xffff0000" % sHi, "s_mov_b32 s%d, s%d" % (sC2, sC), "s_mov_b32 s%d, s%d" % (sC2 + 1, sC)]
        misc.append("s_waitcnt lgkmcnt(0)")
        self.code += II(misc)
        def scale(t):
            o = II(self.scale(t))
            for x in o[:4]: x.R.add("L:Q%d" % t)
            return o
        UA = lambda t: (NT + 1) - 1 - t
        UB = lambda t: NT + t
        if c.k0split:
            prog = self.fence("K0", None, bar=True)
            kr = II([self.kread(g, ds) for g in range(2) for ds in range(4)], xr=["L:K0"])
            prog += kr + self.fence("Q%d" % T, kr[-1])
            a = scale(T)
            prog += self.weave(a, nxt("K1", nq))
            body = []
            for g in range(2): body += II(self.qk(T, g, S(g), raw=True, snake=False))
        else:
            prog = self.fence("Q%d" % T, None)
            a = scale(T)
            prog += self.weave(a, nxt("K1", nq))
            prog += self.fence("K1", a[len(a) // 2], bar=True)
            body = II([self.kread(g, ds) for g in range(4) for ds in range(4)], xr=["L:K1"])
            for g in range(4): body += II(self.qk(T, g, S(g), raw=True))
        x, y = 26, 29
        b2 = ["v_max3_f32 v%d, v%d, v%d, v%d" % (x, S(0), S(0) + 1, S(0) + 2),
              "v_max3_f32 v%d, v%d, v%d, v%d" % (x, x, S(0) + 3, S(0) + 4),
              "v_max3_f32 v%d, v%d, v%d, v%d" % (x, x, S(0) + 5, S(0) + 6),
              "v_max_f32 v%d, v%d, v%d" % (x, x, S(0) + 7)]
        for sw in ("v_permlane32_swap_b32", "v_permlane16_swap_b32"):
            b2 += ["v_mov_b32 v%d, v%d" % (y, x), "%s v%d, v%d" % (sw, x, y), "v_max_f32 v%d, v%d, v%d" % (x, x, y)]
        for k in (8, 4, 2, 1):
            b2.append("v_max_f32_dpp v%d, v%d, v%d row_ror:%d row_mask:0xf bank_mask:0xf" % (x, x, x, k))
        for i in range(4):
            b2.append("v_sub_f32 v%d, 0x%08x, v%d" % (CI + i, f2u(-c.bias), x))
        for g in range(2 if c.k0split else 4):
            for i in range(4):
                b2.append("v_add_f32 v%d, v%d, v%d" % (S(g) + i, S(g) + i, CI))
            b2 += self.softmax(T, S(g), P(UA(T), g >> 1) + 2 * (g & 1))
        body += II(b2)
        if c.k0split:
            prog += body + self.fence("K1", body[-c.k0split], bar=True)
            body = II([self.kread(g, ds) for g in (2, 3) for ds in range(4)], xr=["L:K1"])
            nl = nxt("Q%d" % (T - 1), nq)
            for b in nl: body += b
            last = body[7]
            for g in (2, 3):
                body += II(self.qk(T, g, S(g), snake=False))
                body += II(self.softmax(T, S(g), P(UA(T), g >> 1) + 2 * (g & 1)))
            prog += body
        else:
            prog += self.weave(body, nxt("Q%d" % (T - 1), nq), (0.0, 0.25))
            last = body[31]
        sidx = [0]
        def unit(t, gs, U, post=None, snake=True):
            o = []
            for g in gs:
                sb = S(sidx[0]); sidx[0] += 1
                o += II(self.qk(t, g, sb, snake=snake))
                if post: o += post(g, o[-1])
                o += II(self.softmax(t, sb, P(U, g >> 1) + 2 * (g & 1)))
            return o
        gorder = sorted(range(4), key=lambda g: tau[g])
        kfence = {}
        def kreload(g, after):
            o = []
            name = "K%d" % (2 + (g >> 1))
            if name not in kfence:
                kfence[name] = 1
                o += self.fence(name, after, bar=True, lgkm0=(name == "K2"), frees=["Q%d" % (T - 2), "Q%d" % (T - 3)])
            return o + II([self.kread(g, ds, SS) for ds in range(4)], xr=["L:" + name])
        for t in range(T - 1, -1, -1):
            prog += self.fence("Q%d" % t, last)
            a = scale(t)
            if t == T - 1:
                prog += self.weave(a, nxt("V1", nq), (0.0, 0.5))
                prog += self.fence("V1", a[int(len(a) * 0.6)], bar=True, lgkm0=True, frees=["Q%d" % T, "Q%d" % (T - 1)])
                a = II([self.vread(g, db) for db in range(8) for g in range(4)], xr=["L:V1"])
                a += II(self.vmax())
            a += self.pv_first(t + 1, lambda ks: P(UA(t + 1), ks))
            if t > 0:
                u = unit(t, range(4), UA(t), snake=False)
                vs = [i for i in a + u if isvalu(i)]
                bl = nxt("Q%d" % (t - 1), n1)
                body = a + u
                cut = body.index(u[-c.fpos])
                prog += self.weave(body[:cut], bl, (0.0, c.wspan)) + body[cut:]
                last = u[-c.fpos]
            else:
                prog += self.weave(a, nxt("V3", n1), (0.0, c.wspan))
        u = unit(0, gorder, UA(0), post=lambda g, m: kreload(g, m) if g < 2 else [], snake=False)
        pv0 = self.pv_first(0, lambda ks: P(UA(0), ks))
        if c.earlyF and c.obias == 1:
            k = [i for i, x in enumerate(u) if x.op == "v_add_f32"][7] + 1
            u = u[:k] + II(["v_add_f32 v%d, v%d, v%d" % (vVM, vVM, vVM)]) + pv0[:-16] + u[k:]
            pv0 = pv0[-16:]
        prog += u
        prog += pv0[:-14] + self.fence("V2", pv0[-15], bar=True) + pv0[-14:]
        for g in gorder[:2]:
            prog += II([self.vread(g, db, SS) for db in range(8)], xr=["L:V2"])
        body = []
        for t in range(1, NT):
            if c.ord16 and t == T:
                sidx[0] = 0
                u = unit(t, range(4), UB(t))[:-10]
            else: u = unit(t, [g for g in gorder if g in G0(t)], UB(t))
            body += u
            if t == 1 and not c.merge3:
                for g in gorder[2:]: body += kreload(g, u[-1])
            if t == 2:
                body += self.fence("V3", u[-c.merge3] if c.merge3 else u[-1], bar=True)
                if c.merge3:
                    for g in gorder[2:]: body += II([self.kread(g, ds, SS) for ds in range(4)], xr=["L:V3"])
                for g in gorder[2:]:
                    body += II([self.vread(g, db, SS) for db in range(8)], xr=["L:V3"])
                body += II(["v_add_u32 v%d, %d, v%d" % (vAK, 2 * SS, vAK), "v_add_u32 v%d, %d, v%d" % (vAV, 2 * SS, vAV)])
            if t < T: body += II(self.pv(t, G0(t), lambda ks: P(UB(t), ks)))
        if not c.ord16: body += II(self.qk(0, 0, S(0)) + self.qk(0, 1, S(1)))
        prog += self.weave(body, nxt("V5"), (0.0, c.pb_hi))
        self.code += schedule(prog, c.verbose, order=True, pkmin=4, trials=c.trials, fit=c.fit, space=dict(zip(('dsw', 'dma', 'dsr'), c.pspace)))

    def period(self, p):
        c, NT = self.c, self.NT
        first = p == 2
        gaps = []
        NS = 2 * NT
        for t in range(NT if c.ord16 else 0):
            U = NT * p + t
            ms = []
            for g in range(4): ms += self.qk(t, g, S(g))
            ms += self.pv((t - 1) % NT, range(4), lambda ks: P(U - 1, ks))
            for i in range(32):
                g = (i // 8 - 1) % 4
                tt, UU = ((t - 1) % NT, U - 1) if g == 3 else (t, U)
                s_ = S(g) + (i % 8) // 2
                if i % 2 == 0: v = ["v_exp_f32 v%d, v%d" % (s_, s_)]
                else:
                    v = ["v_add_f32 v%d, v%d, v%d" % (Lr(tt), Lr(tt), s_)]
                    if i % 4 == 3: v.append("v_cvt_pk_bf16_f32 v%d, v%d, v%d" % (P(UU, g >> 1) + 2 * (g & 1) + (i % 8) // 4, s_ - 1, s_))
                gaps.append(dict(m=ms[i], s=[], d=[], v=v))
        for n in range(0 if c.ord16 else NS):
            t, hh = n >> 1, n & 1
            U = NT * p + t
            n1 = (n + 1) % NS
            t1, ks1 = n1 >> 1, n1 & 1
            ms = self.qk(t1, 2 * ks1, S(2 * ks1)) + self.qk(t1, 2 * ks1 + 1, S(2 * ks1 + 1))
            ms += self.pv((t - 1) % NT, range(4), lambda ks: P(U - 1, ks), range(4 * hh, 4 * hh + 4))
            for i in range(16):
                s_ = S(2 * hh) + i // 2
                if i % 2 == 0: v = ["v_exp_f32 v%d, v%d" % (s_, s_)]
                else:
                    v = ["v_add_f32 v%d, v%d, v%d" % (Lr(t), Lr(t), s_)]
                    if i % 4 == 3: v.append("v_cvt_pk_bf16_f32 v%d, v%d, v%d" % (P(U, hh) + i // 4, s_ - 1, s_))
                gaps.append(dict(m=ms[i], s=[], d=[], v=v))
        NG = len(gaps)
        if c.stall:
            for i in range(15, NG, 16): gaps[i]['v'].append("s_nop %d" % (c.stall - 1))
        for (kind, g, x), pos in self.rd.items():
            gaps[pos]['d'].append(self.kread(g, x) if kind == 'K' else self.vread(g, x))
        b0, r0 = (5, 18) if self.hide else (0, 2)
        gaps[b0]['s'].append(Ins("s_barrier", lgkm0=True))
        gaps[r0]['s'].append("s_add_u32 s%d, s%d, %d" % (sRd, sRd, SS))
        gaps[r0 + 1]['s'].append("s_cmp_eq_u32 s%d, %d" % (sRd, RING))
        gaps[r0 + 2]['s'].append("s_cselect_b32 s%d, s%d, s%d" % (sInc, sIncW, sIncN))
        gaps[r0 + 3]['s'].append("s_cselect_b32 s%d, 0, s%d" % (sRd, sRd))
        last = max(self.rd.values())
        assert last < NG - 7 and min(self.rd.values()) > b0
        gaps[NG - 7]['v'].append("v_add_u32 v%d, s%d, v%d" % (vAK, sInc, vAK))
        upd = "v_add_u32 v%d, s%d, v%d" % (vAV, sInc, vAV)
        if self.hide:
            gaps[9]['v'].insert(0, gaps[5]['v'].pop())
            mv = gaps[NG - 3]['v'].pop()
            if first: gaps[4]['s'].append(self.waitv("K4"))
            else:
                gaps[1]['v'].insert(0, mv)
                gaps[13]['v'].append(upd)
            self.carry = [mv, upd]
        else:
            gaps[NG - 3]['v'].append(upd)
            self.carry = []
        lo = r0 + 6
        if first:
            bp = c.bara if NT == 7 else c.barb
            lst = (('V', 0, "V4"), ('K', 1, "K5"), ('V', 1, "V5"))
            if len(bp) == 2: lst = (('V', 0, "V4"), ('K', 1, "V5"))
            if len(bp) == 1: lst = (('V', 0, "V5"),)
            for (kind, ks, grp), fp in zip(lst, bp):
                f = min(pos for (k, g, x), pos in self.rd.items() if k == kind and g >> 1 == ks)
                f = min(f, fp)
                gaps[f - 1]['s'].append(self.waitv(grp))
                gaps[f]['s'].append(Ins("s_barrier"))
            bl = []
            for blk in (6, 7): bl += self.share('K', blk) + self.share('V', blk)
            hi = int(NG * c.sh_hi)
            self.place(gaps, bl, lo, hi)
            lo = int(NG * c.s3_lo)
        if self.dma:
            bl = []
            for blk in range(2):
                for srd, l0, st in ((sK, 0, PK), (sV, HK, PV_)):
                    for a in range(2):
                        for n in range(4):
                            bl.append([Ins("s_add_u32 m0, s%d, %d" % (sSl, blk * SLOT + l0 + 4 * st * a + (st - 1024) * n)),
                                       self.tagged("buffer_load_dwordx4 v%d, s[%d:%d], s%d offen offset:%d %s lds" % (vDMA, srd, srd + 3, sG + 2 * blk + a, 1024 * n, c.dflag), "S")])
            self.place(gaps, bl, lo, NG - 12 if first else min(NG - 12, int(NG * c.dma_hi)))
            for i in range(4):
                gaps[NG - 11 + i]['s'].append("s_add_u32 s%d, s%d, 16384" % (sG + i, sG + i))
            gaps[NG - 7]['s'].append("s_add_u32 s%d, s%d, %d" % (sSl, sSl, SS))
            gaps[NG - 6]['s'].append("s_cmp_eq_u32 s%d, %d" % (sSl, RING))
            gaps[NG - 5]['s'].append("s_cselect_b32 s%d, 0, s%d" % (sSl, sSl))
        if first: gaps[NG - 1]['s'].append(self.waitv("V7"))
        elif self.dma:
            if c.keep:
                assert not gaps[6]['d']
                gaps[6]['d'].append("global_load_dword v%d, v%d, s[38:39]" % (vTD, vTP))
            gaps[NG - 1]['s'].append("s_waitcnt vmcnt(%d)" % (33 if c.keep else 32))
        return gaps
    def place(self, gaps, bundles, lo, hi):
        cand = [i for i in range(lo + 2, hi) if not gaps[i]['d'] and len(gaps[i]['v']) == 1]
        k = len(bundles)
        prev = lo - 1
        for j, b in enumerate(bundles):
            tgt = lo + 2 + (hi - lo - 2) * j / k
            ns = len(b) - 1
            cc = [i for i in cand if i - ns >= prev]
            i = min(cc, key=lambda i: abs(i - tgt) - (2.5 if i % 2 else 0))
            for q, ins in enumerate(b[:-1]):
                gi = i - ns + q
                if gi == prev: gaps[gi]['d'].append(ins)
                else: gaps[gi]['s'].append(ins)
            gaps[i]['d'].append(b[-1])
            prev = i
    def flat(self, gaps):
        o = []
        for g in gaps:
            o.append(I(g['m']))
            o += [I(x) for x in g['s'] + g['d'] + g['v']]
        return o

    def finalize(self, t, k, Lm, packs, acct, first, Ofn=O, Lreg=None, land=None, soff=None, pk=False, one=None, nb=None):
        c = self.c
        buf = k & 1
        st = "L:st%d" % buf
        Lreg = Lr(t) if Lreg is None else Lreg
        land = Q(t, 0) if land is None else land
        if one is None:
            x, y = Lm + 3, Lm + 2
            o = ["v_mov_b32 v%d, v%d" % (y, Lreg), "v_permlane32_swap_b32 v%d, v%d" % (Lreg, y), "v_add_f32 v%d, v%d, v%d" % (Lreg, Lreg, y),
                 "v_mov_b32 v%d, v%d" % (y, Lreg), "v_permlane16_swap_b32 v%d, v%d" % (Lreg, y), "v_add_f32 v%d, v%d, v%d" % (Lreg, Lreg, y),
                 "v_rcp_f32 v%d, v%d" % (x, Lreg)]
            for g in (1, 2, 3):
                o.append("v_mov_b32_dpp v%d, v%d row_ror:%d row_mask:0x%x bank_mask:0xf" % (x, x, 16 - 4 * g, 1 << g))
            for r in range(4):
                o.append("v_mov_b32_dpp v%d, v%d row_newbcast:%d row_mask:0xf bank_mask:0xf" % (Lm + r, x, r))
        else:
            o = ["v_mfma_f32_16x16x4_f32 %s, v%d, a%d, 0" % (rn('v', Lm, 4), Lreg, one)]
        if first is not None:
            for op, r in (("v_max3_u32", vAK), ("v_min3_u32", vAV)):
                if first:
                    o.append("%s v%d, v%d, v%d, v%d" % (op, r, Lm, Lm + 1, Lm + 2))
                    o.append("%s v%d, v%d, v%d, v%d" % (op, r, r, Lm + 3, Lm + 3))
                else:
                    o.append("%s v%d, v%d, v%d, v%d" % (op, r, r, Lm, Lm + 1))
                    o.append("%s v%d, v%d, v%d, v%d" % (op, r, r, Lm + 2, Lm + 3))
        if one is not None:
            for r in range(4): o.append("v_rcp_f32 v%d, v%d" % (Lm + r, Lm + r))
        if nb is not None:
            o.append("ds_read_b128 %s, v%d offset:%d" % (rn('v', nb, 4), vAK, 64 * t))
            for r in range(4): o.append("v_mul_f32 v%d, v%d, v%d" % (nb + r, nb + r, Lm + r))
        loc = {}
        for db in range(8):
            f, b = Ofn(t, db)
            if f == 'a':
                for r in range(4):
                    o.append("v_accvgpr_read_b32 v%d, a%d" % (acct + 4 * (db - 4) + r, b + r))
                b = acct + 4 * (db - 4)
            loc[db] = b
        if pk:
            for db in range(8):
                for r in (0, 2):
                    if nb is None: o.append("v_pk_mul_f32 %s, %s, %s" % (rn('v', loc[db] + r, 2), rn('v', loc[db] + r, 2), rn('v', Lm + r, 2)))
                    else: o.append("v_pk_fma_f32 %s, %s, %s, %s neg_lo:[0:0:1] neg_hi:[0:0:1]" % (rn('v', loc[db] + r, 2), rn('v', loc[db] + r, 2), rn('v', Lm + r, 2), rn('v', nb + r, 2)))
        for r in range(4):
            for db in range(8):
                if not pk: o.append("v_mul_f32 v%d, v%d, v%d" % (loc[db] + r, loc[db] + r, Lm + r))
            pb = packs[r % len(packs)]
            for j in range(4):
                o.append("v_cvt_pk_bf16_f32 v%d, v%d, v%d" % (pb + j, loc[2 * j] + r, loc[2 * j + 1] + r))
            o.append(Ins("ds_write_b128 v%d, %s offset:%d" % (vEW, rn('v', pb, 4), r * 320 + buf * 5120), xw=[st + "r%d" % r]))
        if soff is None:
            soff = sSt + t
            o.append("s_add_u32 s%d, s%d, %d" % (soff, sQo, t * 4096))
        for a in range(4):
            for sel in range(2):
                o.append(Ins("ds_read_b64_tr_b16 %s, v%d offset:%d" % (rn('a', land + 4 * a + 2 * sel, 2), vER, a * 1280 + 64 * sel + buf * 5120), xr=[st + "r%d" % r for r in range(4)]))
        for a in range(4 if not c.nostore else 0):
            o.append("buffer_store_dwordx4 %s, v%d, s[%d:%d], s%d offen offset:%d %s" % (rn('a', land + 4 * a, 4), vDMA, sO, sO + 3, soff, a * 1024, c.lastflag[1] if k >= self.NT - c.lastflag[0] else c.oflag))
        return o

    def tail(self):
        c, NT, tau = self.c, self.NT, self.tau
        T = NT - 1
        U = NT * 31
        G1 = lambda t: [g for g in range(4) if tau[g] > t]
        ring = dict(xr=["L:ring"])
        self.qprio = c.qprio[1]
        prog = [Ins("s_barrier", lgkm0=True, xw=["L:ring"])] + self.carry
        if c.ord16: prog += self.softmax(T, S(3), P(U - 1, 1) + 2)
        prog += self.pv(T, range(4), lambda ks: P(U - 1, ks))
        sidx = 0
        for t in range(NT):
            gs = G1(t)
            if not gs: continue
            pb = (lambda u: (lambda ks: P(u, ks)))(U); U += 1
            for g in gs:
                sb = S(sidx); sidx += 1
                if c.ord16 or not (t == 0 and g < 2): prog += self.qk(t, g, sb)
                if tau[g] == t + 1: prog += [Ins(self.kread(g, ds), **ring) for ds in range(4)]
                prog += self.softmax(t, sb, pb(g >> 1) + 2 * (g & 1))
            prog += self.pv(t, gs, pb)
            for db in range(8):
                prog += [Ins(self.vread(g, db), **ring) for g in gs if tau[g] == t + 1]
        order = [t for t in range(NT) if not G1(t)] + [t for t in range(NT) if G1(t)]
        gorder = sorted(range(4), key=lambda g: tau[g])
        pool = 32 * order[0]
        for k, t in enumerate(order):
            pb = (lambda u: (lambda ks: P(u, ks)))(U); U += 1
            for g in (gorder if k == 0 else range(4)):
                sb = S(sidx); sidx += 1
                prog += self.qk(t, g, sb)
                prog += self.softmax(t, sb, pb(g >> 1) + 2 * (g & 1))
            prog += self.pv(t, range(4), pb)
            pk = k >= len(order) - c.pkmul
            one = None if c.lvalu else Q(t, 0)
            if one is not None: prog.append("v_accvgpr_write_b32 a%d, 1.0" % one)
            N = lambda x: x if c.obias else None
            assert pk or not c.obias
            if k == 0:
                if c.obias: prog += ["v_bfe_u32 v%d, v%d, 8, 2" % (vAK, vDMA), "v_lshl_add_u32 v%d, v%d, 4, s%d" % (vAK, vAK, sT0)]
                prog += self.finalize(t, k, pb(0), [pb(0), pb(1)], None, None, pk=pk, one=one, nb=N(pb(1)))
            elif t == 6: prog += self.finalize(t, k, pool + 8 * (k & 1), [pool, pool + 4, pool + 8, pool + 12], pool + 16, None, pk=pk, one=one, nb=N(pool + 8 * (k & 1) + 4))
            else: prog += self.finalize(t, k, pool + 8 * (k & 1), [pool + 16, pool + 20, pool + 24, pool + 28], None, None, pk=pk, one=one, nb=N(pool + 8 * (k & 1) + 4))
        ls = [Lr(t) for t in range(NT)] + [Lr(0)]
        for op, r in (("v_max3_u32", vAK), ("v_min3_u32", vAV)):
            prog.append("%s v%d, v%d, v%d, v%d" % (op, r, ls[0], ls[1], ls[2]))
            prog.append("%s v%d, v%d, v%d, v%d" % (op, r, r, ls[3], ls[4]))
            prog.append("%s v%d, v%d, v%d, v%d" % (op, r, r, ls[5], ls[6]))
        return schedule([I(x) for x in prog], c.verbose, order=True, trials=c.trials, fit=c.fit, dswcost=c.dswcost, space=dict(zip(('dsw', 'vstore', 'dsr'), c.space)), AGE=c.age)

    def resolve_waits(self, seq):
        issued = [self.group[id(b[-1])] for b in self.first]
        if not self.c.pfs and not self.c.pfearly: issued.insert(self.c.pfpos, None)
        for i in seq:
            g = self.group.get(id(i))
            if i.kind in ("dma", "vload", "vstore"): issued.append(g)
            elif g and g.startswith("W:"):
                last = max(j for j, x in enumerate(issued) if x == g[2:])
                i.text = "s_waitcnt vmcnt(%d)" % min(63, len(issued) - 1 - last)

    def build(self):
        c, NT, tag = self.c, self.NT, self.tag
        self.code = [Ins("L_wave_%s:" % tag)]
        self.prologue()
        self.code += self.ts(1) + self.ts(2)
        self.code += self.ts2()
        if not self.hide: self.code.append(self.waitv("K4"))
        self.code += self.flat(self.period(2)) + self.ts2()
        self.code += self.ts(3)
        self.resolve_waits(self.code)
        head, pend = insert_lgkm(self.code)
        assert not pend
        head = pad_hazards(head)
        gaps = self.period(3)
        if NT == 7: gaps += self.period(4)
        rot = 3 if self.hide else c.rot
        if self.hide:
            gaps[-40]['s'].append("s_sub_u32 s%d, s%d, 1" % (sCnt, sCnt))
            gaps[-38]['s'].append("s_cmp_lg_u32 s%d, 0" % sCnt)
        else:
            gaps[-4]['s'].append("s_sub_u32 s%d, s%d, 1" % (sCnt, sCnt))
            gaps[-4]['s'].append("s_cmp_lg_u32 s%d, 0" % sCnt) if c.rot > 1 else gaps[-2]['s'].append("s_cmp_lg_u32 s%d, 0" % sCnt)
        body, pend = insert_lgkm(self.flat(gaps))
        assert not pend
        if 'w' in c.exp: body = [x for x in body if not (x.kind == "wait" and "lgkm" in x.text)]
        if 'p' in c.exp:
            import re
            body = [Ins(re.sub(r"v_cvt_pk_bf16_f32 (v\d+), (v\d+), (v\d+)", r"v_perm_b32 \1, \3, \2, s99", x.text)) if x.op == "v_cvt_pk_bf16_f32" else x for x in body]
            head.append(Ins("s_mov_b32 s99, 0x07060302"))
        if 'a' in c.exp: body = [x for x in body if x.op != "v_add_f32"]
        if 'h' in c.exp:
            nb_ = []; k_ = 0
            for x in body:
                if x.op == "v_add_f32":
                    k_ += 1
                    if k_ % 2: continue
                nb_.append(x)
            body = nb_
        if 'm' in c.exp: body = [Ins(x.text.replace("v_add_f32", "v_max_f32")) if x.op == "v_add_f32" else x for x in body]
        if 'i' in c.exp: body = [Ins(x.text.replace("v_add_f32", "v_add_u32")) if x.op == "v_add_f32" else x for x in body]
        if 'c' in c.exp: body = [Ins(x.text.replace("v[240:243]", "-4.0")) if x.kind == "mfma" else x for x in body]
        if set(c.exp) & set('QVSOX'):
            import re
            def shift(x):
                if x.kind != "mfma": return x
                op, rest = x.text.split(None, 1)
                D, A, B, C = [y.strip() for y in rest.split(",")]
                sh = lambda r: re.sub(r"\[(\d+):(\d+)\]", lambda m: "[%d:%d]" % (int(m.group(1)) + 2, int(m.group(2)) + 2), r)
                qk = A.startswith("a")
                if qk and 'Q' in c.exp: B = sh(B) if B != "a[108:111]" else B
                if not qk and 'V' in c.exp: B = sh(B) if B != "a[236:239]" else B
                if not qk and 'O' in c.exp and D.startswith("v") and D != "v[204:207]": D = sh(D); C = sh(C)
                if qk and 'X' in c.exp: A, B = B, A
                return Ins("%s %s, %s, %s, %s" % (op, D, A, B, C))
            body = [shift(x) for x in body]
        if 'd' in c.exp: body = [x for x in body if x.kind != "dsr"]
        if 'k' in c.exp: body = [x for x in body if x.op != "ds_read_b128"]
        if c.coarse: body = coarsen_waits(body, c.coarse)
        pre_tail = []
        if rot:
            k = [i for i, x in enumerate(body) if x.kind == "mfma"][-rot] + 1
            while body[k].kind in ("salu", "wait"): k += 1
            mv = body[k:]
            strip = lambda l: [x.text for x in l if x.kind not in ("salu", "wait", "smem")]
            kh = [i for i, x in enumerate(head) if x.kind == "mfma"][-rot] + 1
            while head[kh].kind in ("salu", "wait"): kh += 1
            assert strip(head[kh:]) == strip(mv), (strip(head[kh:]), strip(mv))
            assert all(x.kind not in ("salu",) for x in mv)
            head = head[:kh] + [x for x in head[kh:] if x.kind in ("salu", "wait", "smem")]
            pre_tail = [Ins(x.text) for x in mv]
            body = mv + body[:k]
        if c.tsmode == 3 and NT == 7:
            head.append(Ins("s_mov_b32 m0, 0"))
            body = [Ins("s_memtime s[46:47]"), Ins("s_waitcnt lgkmcnt(0)"), Ins("s_movreld_b32 s48, s46"), Ins("s_add_u32 m0, m0, 1")] + body
            pre_tail = pre_tail + [Ins("s_memtime s[46:47]"), Ins("s_waitcnt lgkmcnt(0)"), Ins("s_movreld_b32 s48, s46")]
        body.append(Ins("s_cbranch_scc1 L_loop_%s" % tag))
        if not c.exp:
            pad_hazards(body, hist=head[-16:], fix=False, name="loop entry")
            pad_hazards(body, hist=body[-16:], fix=False, name="loop back")
        tail = pre_tail + self.ts(4) + self.tail()
        tail += [Ins("v_cmp_le_u32 vcc, 0x%08x, v%d" % (f2u(2.0 ** c.hi_exp), vAK)),
                 Ins("s_mov_b64 s[%d:%d], vcc" % (sT1, sT1 + 1)),
                 Ins("v_cmp_ge_u32 vcc, 0x%08x, v%d" % (f2u(2.0 ** c.lo_exp), vAV)),
                 Ins("s_or_b64 s[%d:%d], s[%d:%d], vcc" % (sT1, sT1 + 1, sT1, sT1 + 1)),
                 Ins("s_mov_b32 s%d, %d" % (sNT, NT)),
                 Ins("s_nop 0" if c.exp else "s_cbranch_scc1 L_slow" if not c.force_slow else "s_branch L_slow")]
        tail += self.ts(5)
        if c.diag: tail += [Ins("s_waitcnt vmcnt(0)")] + self.ts(6)
        tail.append(Ins("s_branch L_fin" if (c.diag or c.twice or c.idle) else "s_endpgm"))
        tail, pend = insert_lgkm(tail)
        tail = pad_hazards(tail, hist=body[-16:])
        if c.hop:
            nt = []; acc = c.hop; k = 0
            stop = max(i for i, x in enumerate(tail) if x.kind == "vstore")
            for i, x in enumerate(tail):
                nt.append(x); acc += isize(x)
                if i < stop and acc >= c.hop - 24 and (x.kind == "mfma" or acc >= c.hop - 4):
                    nt += [Ins("L_hop%s%d:" % (tag, k)), Ins("s_cbranch_vccnz L_hop%s%d" % (tag, k + 1))]; k += 1; acc = 4
            tail = nt
            j = max(i for i, x in enumerate(head) if self.group.get(id(x)) == "W:K4")
            head[j:j] = self.ts(1) + [Ins("s_mov_b64 vcc, -1"), Ins("s_branch L_hop%s0" % tag), Ins("L_hop%s%d:" % (tag, k)), Ins("s_mov_b64 vcc, 0")] + self.ts(2)
            if c.verbose: print("hops", k)
        res = head + [Ins(".p2align 6"), Ins("L_loop_%s:" % tag)] + body + [Ins("L_tail_%s:" % tag)] + tail
        if c.jit:
            w, n, before = c.jit
            o = []
            for k, x in enumerate(res):
                d = [Ins("s_cselect_b32 s98, 1, 0"), Ins("s_cmp_lg_u32 s%d, %d" % (sW, w)), Ins("s_cbranch_scc1 L_j%s%d" % (tag, k)), Ins("s_sleep %d" % n), Ins("L_j%s%d:" % (tag, k)), Ins("s_cmp_lg_u32 s98, 0")]
                if x.kind == "barrier" and before: o += d
                o.append(x)
                if x.kind == "barrier" and not before: o += d
            res = o
        return res

class Gen:
    def __init__(self, cfg):
        self.c = cfg
    def slow(self):
        c = self.c
        w = Wave(self, 7, False, "s")
        o = []
        e = lambda s: o.extend(Ins(l) for l in s.strip().split("\n"))
        vL, vKA, vVA, vQA, vM, vX = 64, 65, 66, 67, 68, 69
        KF = lambda kg, ds: 72 + 16 * kg + 4 * ds
        VF = lambda db: 104 + 4 * db
        QF = lambda ds: 136 + 4 * ds
        SB, PB, LM, PKB = 152, 160, 164, 168
        e("L_slow:")
        e("s_waitcnt vmcnt(0) lgkmcnt(0)")
        e("v_lshrrev_b32 v%d, 4, v%d" % (vX, vDMA))
        e("v_and_b32 v%d, 7, v%d\nv_lshlrev_b32 v%d, 10, v%d" % (vM, vX, vKA, vM))
        e("v_and_b32 v%d, 8, v%d\nv_lshl_add_u32 v%d, v%d, 5, v%d" % (vM, vX, vKA, vM, vKA))
        e("v_and_b32 v%d, 48, v%d\nv_add_u32 v%d, v%d, v%d" % (vM, vX, vKA, vM, vKA))
        e("v_and_b32 v%d, 15, v%d\nv_lshlrev_b32 v%d, 8, v%d" % (vM, vX, vQA, vM))
        e("v_and_b32 v%d, 48, v%d\nv_add_u32 v%d, v%d, v%d" % (vM, vX, vQA, vM, vQA))
        e("v_bfe_u32 v%d, v%d, 2, 3\nv_mul_u32_u24 v%d, %d, v%d" % (vM, vX, vVA, PV_, vM))
        e("v_and_b32 v%d, 32, v%d\nv_lshl_add_u32 v%d, v%d, 3, v%d" % (vM, vX, vVA, vM, vVA))
        e("v_and_b32 v%d, 1, v%d\nv_lshl_add_u32 v%d, v%d, 3, v%d" % (vM, vX, vVA, vM, vVA))
        e("v_and_b32 v%d, 2, v%d\nv_lshl_add_u32 v%d, v%d, 6, v%d" % (vM, vX, vVA, vM, vVA))
        e("v_add_u32 v%d, s%d, v%d" % (vVA, sStg, vVA))
        e("s_mov_b32 s%d, 0" % sTile)
        e("L_slow_tile:")
        e("s_lshl_b32 s%d, s%d, 12\ns_add_u32 s%d, s%d, s%d" % (sSt, sTile, sSt, sSt, sQo))
        for ds in range(4):
            e("buffer_load_dwordx4 %s, v%d, s[%d:%d], s%d offen offset:%d" % (rn('v', QF(ds), 4), vQA, sQ, sQ + 3, sSt, ds * 64))
        e("s_waitcnt vmcnt(0)")
        for r in range(16):
            q = QF(0) + r
            e("v_lshlrev_b32 v%d, 16, v%d\nv_and_b32 v%d, 0xffff0000, v%d" % (vM, q, vX, q))
            e("v_mul_f32 v%d, s%d, v%d\nv_mul_f32 v%d, s%d, v%d" % (vM, sC, vM, vX, sC, vX))
            e("v_cvt_pk_bf16_f32 v%d, v%d, v%d" % (q, vM, vX))
        def kload():
            for kg in range(2):
                for ds in range(4):
                    e("buffer_load_dwordx4 %s, v%d, s[%d:%d], s%d offen offset:%d" % (rn('v', KF(kg, ds), 4), vKA, sK, sK + 3, sBlk, kg * 512 + ds * 64))
        def qk(raw):
            for kg in range(2):
                for ds in range(4):
                    e(mfma(('v', SB + 4 * kg), ('v', KF(kg, ds)), ('v', QF(ds)), (None if raw else ('v', CI)) if ds == 0 else ('v', SB + 4 * kg)))
        e("v_mov_b32 v%d, 0xff800000\ns_mov_b32 s%d, 0" % (vM, sBlk))
        e("L_slow_max:")
        kload()
        e("s_waitcnt vmcnt(0)")
        qk(True)
        e("s_nop 7")
        for i in range(0, 8, 2):
            e("v_max3_f32 v%d, v%d, v%d, v%d" % (vM, vM, SB + i, SB + i + 1))
        e("s_add_u32 s%d, s%d, 8192\ns_cmp_lt_u32 s%d, 524288\ns_cbranch_scc1 L_slow_max" % (sBlk, sBlk, sBlk))
        for sw in ("v_permlane32_swap_b32", "v_permlane16_swap_b32"):
            e("v_mov_b32 v%d, v%d\n%s v%d, v%d\nv_max_f32 v%d, v%d, v%d" % (vX, vM, sw, vM, vX, vM, vM, vX))
        for i in range(4): e("v_sub_f32 v%d, 0, v%d" % (CI + i, vM))
        for r in range(32): e("v_mov_b32 v%d, 0" % r)
        e("v_mov_b32 v%d, 0\ns_mov_b32 s%d, 0" % (vL, sBlk))
        e("L_slow_pv:")
        kload()
        e("s_add_u32 s%d, s%d, 4096" % (sT0, sBlk))
        for a in range(2):
            for n in range(4):
                e("s_add_u32 m0, s%d, %d" % (sStg, 4 * PV_ * a + (PV_ - 1024) * n))
                e("buffer_load_dwordx4 v%d, s[%d:%d], s%d offen offset:%d lds" % (vDMA, sV, sV + 3, sT0 if a else sBlk, 1024 * n))
        e("s_waitcnt vmcnt(0)")
        for db in range(8):
            for hb in range(2):
                e("ds_read_b64_tr_b16 %s, v%d offset:%d" % (rn('v', VF(db) + 2 * hb, 2), vVA, hb * 512 + db * 16))
        qk(False)
        e("s_nop 7")
        for i in range(8):
            e("v_exp_f32 v%d, v%d" % (SB + i, SB + i))
        for i in range(8):
            e("v_add_f32 v%d, v%d, v%d" % (vL, vL, SB + i))
        for i in range(4):
            e("v_cvt_pk_bf16_f32 v%d, v%d, v%d" % (PB + i, SB + 2 * i, SB + 2 * i + 1))
        e("s_waitcnt lgkmcnt(0)")
        for db in range(8):
            e(mfma(('v', 4 * db), ('v', PB), ('v', VF(db)), ('v', 4 * db)))
        e("s_nop 7")
        e("s_add_u32 s%d, s%d, 8192\ns_cmp_lt_u32 s%d, 524288\ns_cbranch_scc1 L_slow_pv" % (sBlk, sBlk, sBlk))
        e("v_accvgpr_write_b32 a16, 1.0")
        o.extend(I(x) for x in w.finalize(0, 0, LM, [PKB], None, None, Lreg=vL, soff=sSt, one=16))
        e("s_waitcnt vmcnt(0) lgkmcnt(0)")
        e("s_add_u32 s%d, s%d, 1\ns_cmp_lt_u32 s%d, s%d\ns_cbranch_scc1 L_slow_tile" % (sTile, sTile, sTile, sNT))
        o, _ = insert_lgkm(o, hoist=False)
        return pad_hazards(o)

    def build(self):
        c = self.c
        o = []
        e = lambda s: o.extend(Ins(l) for l in s.strip().split("\n"))
        e("s_cmp_ge_u32 s2, 256\ns_cbranch_scc1 L_end")
        if c.twice: e("s_mov_b32 s90, 0\nL_again:")
        e("s_load_dwordx4 s[4:7], s[0:1], 0\ns_load_dwordx4 s[8:11], s[0:1], 16")
        if c.diag:
            e("s_load_dwordx2 s[40:41], s[0:1], %d" % (32 if (c.dbgout or c.skew) else 40))
            e("s_memrealtime s[44:45]\ns_memtime s[46:47]\ns_waitcnt lgkmcnt(0)\ns_mov_b32 s48, s44\ns_mov_b32 s49, s46")
            if c.tsmode == 2: e("s_mov_b32 s48, s46")
            if c.tsmode == 4:
                del o[-5:]
                e("s_memtime s[48:49]")
        wa, wb = Wave(self, 7, False, "a"), Wave(self, 6, True, "b")
        ca, cb = wa.build(), wb.build()
        assert [[x.text for x in b] for b in wa.first] == [[x.text for x in b] for b in wb.first]
        def prefetch():
            e("s_getpc_b64 s[38:39]")
            e("L_pc:")
            if c.pfs:
                e("s_lshr_b32 s%d, s2, 3\ns_lshl_b32 s%d, s%d, 2\ns_add_u32 s%d, s%d, s%d\ns_lshl_b32 s%d, s%d, 9" % (sC, sC, sC, sC, sC, sW, sC, sC))
                e("s_min_u32 s%d, s%d, L_slow-L_pc\ns_add_u32 s38, s38, s%d\ns_addc_u32 s39, s39, 0" % (sC, sC, sC))
                for i in range(512 // c.pfstride): e("s_load_dword s%d, s[38:39], %d" % (87, c.pfstride * i))
            else:
                e("s_lshr_b32 s%d, s2, 3\ns_and_b32 s%d, s%d, 7\ns_lshl_b32 s%d, s%d, 13" % (sC, sC, sC, sC, sC))
                e("v_lshlrev_b32 v2, 5, v0\nv_add_u32 v2, s%d, v2\nv_min_u32 v2, L_slow-L_pc, v2" % sC)
                e("global_load_dword v63, v2, s[38:39]")
        if c.pfearly == 1: prefetch()
        e("v_lshrrev_b32 v1, 6, v0")
        e("v_and_b32 v5, 63, v0")
        e("v_readfirstlane_b32 s%d, v1" % sW)
        e("v_lshlrev_b32 v%d, 4, v5" % vDMA)
        e("v_and_b32 v2, 48, v5\nv_xor_b32 v%d, v2, v%d" % (vQS, vDMA))
        e("s_mul_i32 s%d, s2, 110592" % sT0)
        e("s_lshl_b32 s3, s2, 19")
        e("s_mov_b32 s%d, 524288\ns_mov_b32 s%d, 0x20000\ns_mov_b32 s%d, 110592\ns_mov_b32 s%d, 0x20000" % (sK + 2, sK + 3, sQ + 2, sQ + 3))
        e("s_mul_i32 s%d, s%d, %d" % (sQo, sW, 112 * 256))
        e("s_add_u32 s%d, s%d, %d\ns_min_u32 s%d, s%d, %d" % (sQT, sQo, 6 * 4096, sQT, sQT, 26 * 4096))
        e("s_mul_i32 s%d, s%d, %d" % (sWK, sW, 2 * PK))
        e("s_lshl_b32 s%d, s%d, 11" % (sWG, sW))
        e("s_mul_i32 s%d, s%d, %d\ns_add_u32 s%d, s%d, %d" % (sQS, sW, QT, sQS, sQS, SS))
        e("s_waitcnt lgkmcnt(0)")
        def srd(r, src, offs):
            e("s_add_u32 s%d, s%d, s%d\ns_addc_u32 s%d, s%d, 0" % (r, src, offs, r + 1, src + 1))
        srd(sK, 6, 3); srd(sQ, 4, sT0)
        def st(k):
            if c.diag and c.tsmode == 4: e("s_memtime s[%d:%d]" % (50 + 2 * k, 51 + 2 * k))
        st(0)
        for j, b in enumerate(wa.first[:c.pfpos]):
            o.extend(b)
            if j in (1, 5, 7): st({1: 1, 5: 2, 7: 3}[j])
        if not c.pfearly: prefetch()
        srd(sV, 8, 3); srd(sO, 10, sT0)
        e("s_mov_b32 s%d, 524288\ns_mov_b32 s%d, 0x20000\ns_mov_b32 s%d, 110592\ns_mov_b32 s%d, 0x20000" % (sV + 2, sV + 3, sO + 2, sO + 3))
        e("s_mul_i32 s%d, s%d, %d" % (sWV, sW, 2 * PV_))
        for b in wa.first[c.pfpos:]: o.extend(b)
        st(4)
        e("v_mov_b32 v0, v5")
        e("v_and_b32 v1, 15, v0\nv_and_b32 v2, 48, v0")
        e("s_mov_b32 s%d, 0x%08x" % (sC, f2u(math.log2(math.e) / math.sqrt(128.0))))
        e("s_mul_i32 s%d, s%d, %d\ns_add_u32 s%d, s%d, %d" % (sStg, sW, PRIV, sStg, sStg, STG))
        e("v_bfe_u32 v3, v0, 2, 2\nv_mul_u32_u24 v%d, %d, v3" % (vQA, PQ))
        e("v_and_b32 v3, 3, v0\nv_lshl_add_u32 v%d, v3, 8, v%d" % (vQA, vQA))
        e("v_lshlrev_b32 v3, 4, v3\nv_xor_b32 v3, v2, v3")
        e("v_add3_u32 v%d, v%d, v3, s%d\nv_add3_u32 v%d, v%d, v3, s%d" % (vQB, vQA, sStg, vQA, vQA, sQS))
        e("v_and_b32 v3, 7, v0\nv_mul_u32_u24 v%d, %d, v3" % (vAK, PK))
        e("v_and_b32 v3, 8, v0\nv_lshl_add_u32 v%d, v3, 5, v%d" % (vAK, vAK))
        e("v_add_u32 v%d, v2, v%d" % (vAK, vAK))
        e("v_and_b32 v3, 1, v0\nv_lshlrev_b32 v4, 3, v3\nv_and_b32 v3, 2, v0\nv_lshl_add_u32 v4, v3, 6, v4")
        e("v_bfe_u32 v3, v0, 2, 3\nv_mul_u32_u24 v%d, %d, v3" % (vAV, PV_))
        e("v_and_b32 v3, 32, v0\nv_lshl_add_u32 v%d, v3, 3, v%d" % (vAV, vAV))
        e("v_add_u32 v%d, v4, v%d\nv_add_u32 v%d, %d, v%d" % (vAV, vAV, vAV, HK, vAV))
        e("v_mul_u32_u24 v%d, 80, v2\nv_lshl_add_u32 v%d, v1, 4, v%d\nv_add_u32 v%d, s%d, v%d" % (vEW, vEW, vEW, vEW, sStg, vEW))
        e("v_mul_u32_u24 v%d, 20, v2\nv_and_b32 v3, 12, v0\nv_lshl_add_u32 v%d, v3, 2, v%d" % (vER, vER, vER))
        e("v_add3_u32 v%d, v%d, v4, s%d" % (vER, vER, sStg))
        st(5)
        if c.pfearly == 2: prefetch()
        if c.diag and c.tsmode == 4:
            e("s_waitcnt vmcnt(%d)" % (c.first - 1)); st(6)
            e("s_waitcnt lgkmcnt(0)")
            for k in range(7): e("s_mov_b32 s%d, s%d" % (49 + k, 50 + 2 * k))
        e("s_cmp_eq_u32 s%d, 3" % sW)
        e("s_cbranch_scc1 L_wave_b")
        o[:] = pad_hazards(o)
        if c.pad: o += [Ins("s_branch L_wave_a")] + [Ins("s_nop 0") for _ in range(c.pad // 4)]
        o += ca
        k = [x.text for x in cb].index("L_tail_b:")
        o += cb[k:] + cb[:k] + [Ins("s_branch L_tail_b")]
        o += self.slow()
        e("L_fin:")
        if c.twice:
            e("s_waitcnt vmcnt(0) lgkmcnt(0)\ns_barrier\nv_lshrrev_b32 v0, 4, v%d\ns_lshl_b32 s91, s%d, 6\nv_add_u32 v0, s91, v0" % (vDMA, sW))
            e("s_add_u32 s90, s90, 1\ns_cmp_le_u32 s90, %d\ns_cbranch_scc1 L_again" % c.twice)
        if c.idle:
            e("s_waitcnt vmcnt(0) lgkmcnt(0)\ns_memtime s[92:93]\ns_waitcnt lgkmcnt(0)\nL_idle:\ns_memtime s[94:95]\ns_waitcnt lgkmcnt(0)\ns_sub_u32 s94, s94, s92\ns_cmp_lt_u32 s94, %d\ns_cbranch_scc1 L_idle" % c.idle)
        if c.diag and c.skew:
            e("s_cmp_lg_u32 s%d, 0\ns_cbranch_scc1 L_end" % sW)
            e("s_mov_b32 s42, 256\ns_mov_b32 s43, 0x20000\nv_mov_b32 v0, 0\ns_mov_b64 exec, 1")
            e("s_sub_u32 s90, 0, s48\nv_mov_b32 v4, s90\nbuffer_atomic_umax v4, v0, s[40:43], 0 offen\ns_waitcnt vmcnt(0)")
            e("L_e1:\ns_memrealtime s[94:95]\ns_waitcnt lgkmcnt(0)\ns_sub_u32 s94, s94, s48\ns_cmp_lt_u32 s94, 12000\ns_cbranch_scc1 L_e1")
            e("buffer_atomic_umax v4, v0, s[40:43], 0 offen sc0\ns_waitcnt vmcnt(0)\nv_readfirstlane_b32 s91, v4\ns_nop 4\ns_sub_u32 s90, s91, s90\ns_mul_i32 s90, s90, %d\ns_add_u32 s90, s90, 13000" % (c.skew - 1))
            e("L_e2:\ns_memrealtime s[94:95]\ns_waitcnt lgkmcnt(0)\ns_sub_u32 s94, s94, s48\ns_cmp_lt_u32 s94, s90\ns_cbranch_scc1 L_e2")
        elif c.diag and c.echo:
            i, j, m, k = c.echo
            e("s_sub_u32 s90, s%d, s%d\ns_mul_i32 s90, s90, %d\ns_lshr_b32 s90, s90, %d" % (48 + 2 * j + k, 48 + 2 * i + k, m, 5 if k else 0))
            e("L_echo:\ns_memrealtime s[94:95]\ns_waitcnt lgkmcnt(0)\ns_sub_u32 s94, s94, s60\ns_cmp_lt_u32 s94, s90\ns_cbranch_scc1 L_echo")
        elif c.diag and c.dbgout:
            e("s_cmp_lg_u32 s%d, 0\ns_cbranch_scc1 L_end" % sW)
            e("s_mov_b32 s42, 256\ns_mov_b32 s43, 0x20000\nv_mov_b32 v0, 0\ns_mov_b64 exec, 1")
            for i in range(1, 7):
                for k in range(2):
                    e("s_sub_u32 s%d, s%d, s%d" % (sT0, 48 + 2 * i + k, 48 + k))
                    e("v_mov_b32 v4, s%d" % sT0)
                    e("buffer_atomic_add v4, v0, s[40:43], 0 offen offset:%d" % (4 * (i - 1) + 24 * k))
                    e("s_waitcnt vmcnt(0)")
            e("v_mov_b32 v4, s60\nbuffer_atomic_umax v4, v0, s[40:43], 0 offen offset:48\ns_waitcnt vmcnt(0)")
            e("s_sub_u32 s%d, 0, s48\nv_mov_b32 v4, s%d\nbuffer_atomic_umax v4, v0, s[40:43], 0 offen offset:52\ns_waitcnt vmcnt(0)" % (sT0, sT0))
            e("v_mov_b32 v4, s48\nbuffer_atomic_umax v4, v0, s[40:43], 0 offen offset:56\ns_waitcnt vmcnt(0)")
        elif c.diag:
            e("s_mov_b32 s42, 0x1000000\ns_mov_b32 s43, 0x20000")
            e("s_lshl_b32 s%d, s2, 2\ns_add_u32 s%d, s%d, s%d\ns_lshl_b32 s%d, s%d, %d" % (sT0, sT0, sT0, sW, sT0, sT0, 7 if c.tsmode >= 2 else 6))
            e("v_mov_b32 v0, 0")
            for i in range(0, 28 if c.tsmode >= 2 else 16, 4):
                for k in range(4):
                    e("v_mov_b32 v%d, s%d" % (4 + k, 48 + i + k if i < 16 else 72 + i + k))
                e("buffer_store_dwordx4 v[4:7], v0, s[40:43], s%d offen offset:%d" % (sT0, i * 4))
                e("s_waitcnt vmcnt(0)")
        e("L_end:")
        e("s_endpgm")
        if c.align is True: align_runs(o)
        elif c.align:
            r = align_bound(o, c.align)
            if c.verbose: print("align", r)
        txt = ["; MHA forward, B=8 H=32 Sq=432 Sk=2048 D=128, bf16.  One workgroup per head, 4 waves (one per SIMD).",
               "; @launch grid=(256,1,1) block=(256,1,1) lds=%d" % LDS] + HEADER.strip().split("\n") + [
               '.amdgcn_target "amdgcn-amd-amdhsa--gfx950"', ".text", ".globl %s" % c.kname, ".p2align 8",
               ".type %s,@function" % c.kname, "%s:" % c.kname]
        for i in o:
            txt.append(i.text if i.kind == "label" else "    " + i.text.replace("[0:0:1]", "[0,0,1]"))
        txt.append('.section .rodata,"a"\n.p2align 6\n.amdhsa_kernel %s' % c.kname)
        txt.append("""  .amdhsa_next_free_vgpr 512
  .amdhsa_next_free_sgpr 102
  .amdhsa_accum_offset 256
  .amdhsa_group_segment_fixed_size 0
  .amdhsa_kernarg_size 48
  .amdhsa_user_sgpr_count 2
  .amdhsa_user_sgpr_kernarg_segment_ptr 1
  .amdhsa_system_sgpr_workgroup_id_x 1
.end_amdhsa_kernel""")
        return "\n".join(txt) + "\n"

if __name__ == "__main__":
    cfg = Cfg()
    out = sys.argv[1]
    for a in sys.argv[2:]:
        k, v = a.split("=")
        assert hasattr(cfg, k), k
        setattr(cfg, k, eval(v))
    open(out, "w").write(Gen(cfg).build())
```

```python
import sys, math, struct
from asmlib import *
import solve

KNAME = "standalone__mha_softmax__near_ridge"

HEADER = """
;
;              streams K/V into a 3-slot LDS ring (64 keys per slot) with LDS-DMA (code L_wave_b).  One barrier per 64 keys.
; Registers  : O accumulators v0-207 + a240-255, scaled Q a0-111, K fragments a112-175, V fragments a176-239 (reloaded in
; Math       : S^T = K * (Q*log2e/sqrt(D))^T + C with v_mfma_f32_16x16x32_bf16, P = exp2(S), l += P (fp32), O += P * V.
"""

class Cfg:
    diag = False
    kname = KNAME + "_kernel"
    dflag = "nt"
    qflag = "nt"
    oflag = "sc1"
    bias = 2.5
    force_slow = False
    pkmul = 7
    verbose = False
    lo_exp = -30
    hi_exp = 30
    tsmode = 0
    nostore = False
    lead = 4
    wspan = 0.75
    rot = 1
    trials = 0
    fit = True
    qprio = (80, 80)
    coarse = 8
    earlyF = False
    merge3 = 1
    bargap = 0
    fpos = 38
    exp = ''
    space = (48, 64, 12)
    bara = (41,)
    barb = (37,)
    pspace = (0, 0, 0)
    age = 48
    hop = 0
    dma_hi = 1.0
    jit = None
    keep = False
    pad = 0
    hide = True
    k0split = 0
    pfearly = 1
    lastflag = (0, '')
    align = True
    pkscale = True
    p1bar = dict(V4=41, K5=69, V5=121)
    pb_hi = 0.6
    obias = 1
    gamma = 3.0
    oconst = 1.5
    pfpos = 8
    pfsplit = True
    twice = 0
    skew = 0
    echo = None
    dbgout = False
    stall = 0
    idle = 0
    dswcost = 24
    lvalu = True
    pfs = False
    pfstride = 64
    first = 8
    ord16 = True
    sh_hi = 0.3
    s3_lo = 0.45

PK, PV_ = 1056, 1040
HK = 8 * PK
SLOT = HK + 8 * PV_
SS = 2 * SLOT
RING = 3 * SS
STG = RING
PQ = 1088
QT = 4 * PQ
PARK = 3 * QT
PRIV = 3 * QT + 512
LDS = STG + 4 * PRIV
assert LDS <= 163840 and SS + 15 * QT <= RING and 8 * QT >= SS

def O(t, db):
    if t == 6 and db >= 4: return ('a', 240 + 4 * (db - 4))
    return ('v', 32 * t + 4 * db)
def S(i): return 208 + 4 * (i & 3)
def P(U, ks): return 224 + 8 * (U & 1) + 4 * ks
CI = 240
def Lr(t): return 244 + t
vAK, vAV, vDMA, vEW, vER = 251, 252, 253, 254, 255
vVM, vHalf, vPK, vQS = 29, 28, 27, 25
vTP, vTD = 192, 193
sMask = 79
sC2 = 100
sHi = 3
vQA, vQB = 30, 31
def Q(t, ds): return 16 * t + 4 * ds
def Kf(g, ds): return 112 + 16 * g + 4 * ds
def Vf(db, ks): return 176 + 8 * db + 4 * ks

sQ, sK, sV, sO = 12, 16, 20, 24
sW, sCnt, sInc, sRd, sC, sQo, sSl = 28, 29, 30, 31, 32, 33, 34
sT0, sT1, sT2 = 35, 36, 37
sG = 64
sWK, sWV, sWG = 68, 69, 70
sIncW, sIncN = 71, 72
sNT, sTile, sBlk, sStg, sQS, sQT = 73, 74, 75, 76, 77, 78
sSt = 80

def rn(f, b, n): return "%s[%d:%d]" % (f, b, b + n - 1)
def mfma(D, A, B, C, half=False):
    n = 2 if half else 4
    cs = "0" if C is None else rn(C[0], C[1], 4)
    op = "v_mfma_f32_16x16x16_bf16" if half else "v_mfma_f32_16x16x32_bf16"
    return "%s %s, %s, %s, %s" % (op, rn(D[0], D[1], 4), rn(A[0], A[1], n), rn(B[0], B[1], n), cs)
def f2u(x): return struct.unpack("<I", struct.pack("<f", x))[0]

class Wave:
    def __init__(self, gen, NT, dma, tag):
        self.g, self.c, self.NT, self.dma, self.tag = gen, gen.c, NT, dma, tag
        self.tau = (2, 1, 5, 4) if NT == 7 else (2, 1, 4, 3)
        W = solve.windows(NT, self.tau, 10 if NT == 7 else 12)
        if NT == 7: pos = [4 * p + 1 for p in range(8 * NT - 2)]
        else: pos = sorted([4 * p + 1 for p in range(8 * NT - 1)] + [16 * p + 2 for p in range(2 * NT)])
        if self.c.ord16:
            W = solve.windows16(NT, self.tau, 9)
            pos = [4 * p + 1 for p in range(8 * NT - 2)]
            if NT == 6: pos = sorted(pos + [16 * p + 2 for p in range(2 * NT)])
            elif self.c.hide: pos = pos[4:]
        self.hide = self.c.hide and self.c.ord16 and NT == 7
        self.rd = solve.edf(W, pos)
        assert self.rd
        self.oinit = set()
        self.qprio = self.c.qprio[0]
        self.group = {}
        self.code = []

    def kread(self, g, ds, off=0):
        return "ds_read_b128 %s, v%d offset:%d" % (rn('a', Kf(g, ds), 4), vAK, off + (g >> 1) * SLOT + (g & 1) * 512 + ds * 64)
    def vread(self, g, db, off=0):
        return "ds_read_b64_tr_b16 %s, v%d offset:%d" % (rn('a', Vf(db, g >> 1) + 2 * (g & 1), 2), vAV, off + (g >> 1) * SLOT + (g & 1) * 512 + db * 16)
    def qk(self, t, g, sb, raw=False, snake=True):
        order = range(4) if (g & 1 == 0 or not snake) else range(3, -1, -1)
        o = []
        for i, ds in enumerate(order):
            o.append(Ins(mfma(('v', sb), ('a', Kf(g, ds)), ('a', Q(t, ds)), (None if raw else ('v', CI)) if i == 0 else ('v', sb)), prio=self.qprio))
        return o
    def pv1(self, t, db, pb, ks, gs):
        D = O(t, db)
        C = D if (t, db) in self.oinit else None
        self.oinit.add((t, db))
        if len(gs) == 2: return mfma(D, ('v', pb), ('a', Vf(db, ks)), C)
        h = gs[0] & 1
        return mfma(D, ('v', pb + 2 * h), ('a', Vf(db, ks) + 2 * h), C, half=True)
    def pv(self, t, groups, pbase, dbs=range(8)):
        o = []
        if len(groups) == 3:
            for ks in sorted((0, 1), key=lambda k: -len([g for g in groups if g >> 1 == k])):
                for db in dbs: o.append(self.pv1(t, db, pbase(ks), ks, [g for g in groups if g >> 1 == ks]))
            return o
        for db in dbs:
            for ks in ((0, 1) if db % 2 == 0 else (1, 0)):
                gs = [g for g in groups if g >> 1 == ks]
                if gs: o.append(self.pv1(t, db, pbase(ks), ks, gs))
        return o
    def pv_first(self, t, pbase):
        c = self.c
        if not c.obias: return [I(x) for x in self.pv(t, range(4), pbase)]
        Bt = O(t, 3)
        o = []
        if c.obias == 1:
            o.append("v_mfma_f32_16x16x4_f32 %s, v%d, v%d, 0" % (rn('v', Bt[1], 4), Lr(t), vVM))
            for r in range(4): o.append("v_and_or_b32 v%d, v%d, s%d, v%d" % (Bt[1] + r, Bt[1] + r, sMask, vHalf))
        else:
            for r in range(4): o.append("v_mov_b32 v%d, 0x%08x" % (Bt[1] + r, f2u(c.oconst)))
        o.append(Ins("ds_write_b128 v%d, %s offset:%d" % (vPK, rn('v', Bt[1], 4), 64 * t)))
        if t == 6:
            for r in range(4): o.append("v_accvgpr_write_b32 a%d, v%d" % (O(6, 7)[1] + r, Bt[1] + r))
        for j, db in enumerate((0, 1, 2, 4, 5, 6, 7, 3)):
            D = O(t, db)
            for k, ks in enumerate((0, 1) if j % 2 == 0 else (1, 0)):
                C = D if k else (Bt if D[0] == 'v' else O(6, 7))
                o.append(mfma(D, ('v', pbase(ks)), ('a', Vf(db, ks)), C))
            self.oinit.add((t, db))
        return [I(x) for x in o]
    def vmax(self):
        c = self.c
        if c.obias != 1: return []
        x, y, z = vVM, 16, 17
        o = ["v_accvgpr_read_b32 v%d, a%d" % (x, Vf(0, 0)), "v_accvgpr_read_b32 v%d, a%d" % (y, Vf(0, 0) + 2), "v_accvgpr_read_b32 v%d, a%d" % (z, Vf(0, 1) + 1),
             "v_max3_f32 v%d, |v%d|, |v%d|, |v%d|" % (x, x, y, z)]
        for sw in ("v_permlane32_swap_b32", "v_permlane16_swap_b32"):
            o += ["v_mov_b32 v%d, v%d" % (y, x), "%s v%d, v%d" % (sw, x, y), "v_max_f32 v%d, v%d, v%d" % (x, x, y)]
        for k in (8, 4, 2, 1):
            o.append("v_max_f32_dpp v%d, v%d, v%d row_ror:%d row_mask:0xf bank_mask:0xf" % (x, x, x, k))
        o.append("v_min_f32 v%d, 0x%08x, v%d" % (x, f2u(2.0 ** 60), x))
        o.append("v_mul_f32 v%d, 0x%08x, v%d" % (x, f2u(c.gamma), x))
        return o
    def softmax(self, t, sb, pdst):
        o = []
        for i in range(4):
            o.append("v_exp_f32 v%d, v%d" % (sb + i, sb + i))
            o.append("v_add_f32 v%d, v%d, v%d" % (Lr(t), Lr(t), sb + i))
            if i & 1: o.append("v_cvt_pk_bf16_f32 v%d, v%d, v%d" % (pdst + i // 2, sb + i - 1, sb + i))
        return o
    def tagged(self, text, grp, **kw):
        i = Ins(text, **kw); self.group[id(i)] = grp; return i
    def share(self, kv, blk):
        srd, lo, base, pad = (sK, 0, sWK, PK - 1024) if kv == 'K' else (sV, HK, sWV, PV_ - 1024)
        lds = ((blk >> 1) % 3) * SS + (blk & 1) * SLOT + lo
        o = []
        for n in range(2):
            if n == 0: b = [Ins("s_add_u32 m0, s%d, %d" % (base, lds)), Ins("s_add_u32 s%d, s%d, %d" % (sT2, sWG, blk * 8192))]
            else: b = [Ins("s_add_u32 m0, m0, %d" % pad)]
            b.append(self.tagged("buffer_load_dwordx4 v%d, s[%d:%d], s%d offen offset:%d %s lds" % (vDMA, srd, srd + 3, sT2, 1024 * n, self.c.dflag), "%s%d" % (kv, blk)))
            o.append(b)
        return o
    def qbuf(self, t):
        k = self.NT - 1 - t
        nr = self.NT - 3
        if k < nr: return sQS, vQA, k * 4 * QT
        return sStg, vQB, (k - nr) * QT
    def qload(self, t):
        sb, _, off = self.qbuf(t)
        o = []
        for n in range(4):
            if n == 0: b = [Ins("s_add_u32 m0, s%d, %d" % (sb, off)), Ins("s_sub_u32 s%d, s%d, %d" % (sT1, sQT, (self.NT - 1 - t) * 4096))]
            else: b = [Ins("s_add_u32 m0, m0, %d" % (PQ - 1024))]
            b.append(self.tagged("buffer_load_dwordx4 v%d, s[%d:%d], s%d offen offset:%d %s lds" % (vQS, sQ, sQ + 3, sT1, n * 1024, self.c.qflag), "Q%d" % t))
            o.append(b)
        return o
    def waitv(self, grp):
        i = Ins("s_waitcnt vmcnt(0)"); self.group[id(i)] = "W:" + grp; return i
    def scale(self, t):
        o = []
        tb = 32 * t + 16 if t < 6 else 16
        _, va, off = self.qbuf(t)
        for ds in range(4):
            o.append("ds_read_b128 %s, v%d offset:%d" % (rn('v', 32 * t + 4 * ds, 4), va, off + ds * 64))
        if 'N' in self.c.exp:
            for r in range(16):
                o.append("v_subrev_u32 v%d, 0x01800180, v%d" % (32 * t + r, 32 * t + r))
                o.append("v_accvgpr_write_b32 a%d, v%d" % (Q(t, 0) + r, 32 * t + r))
            return o
        if self.c.pkscale:
            for r0 in range(0, 16, 4):
                for r in range(r0, r0 + 4):
                    a = tb + 2 * (r % 4)
                    o.append("v_lshlrev_b32 v%d, 16, v%d" % (a, 32 * t + r))
                    o.append("v_and_b32 v%d, s%d, v%d" % (a + 1, sHi, 32 * t + r))
                for r in range(r0, r0 + 4):
                    a = tb + 2 * (r % 4)
                    o.append("v_pk_mul_f32 %s, %s, %s" % (rn('v', a, 2), rn('v', a, 2), rn('s', sC2, 2)))
                for r in range(r0, r0 + 4):
                    a = tb + 2 * (r % 4)
                    o.append("v_cvt_pk_bf16_f32 v%d, v%d, v%d" % (32 * t + r, a, a + 1))
                    o.append("v_accvgpr_write_b32 a%d, v%d" % (Q(t, 0) + r, 32 * t + r))
            return o
        for r in range(16):
            q = 32 * t + r
            a, b = tb + 2 * (r % 4), tb + 2 * (r % 4) + 1
            o.append("v_lshlrev_b32 v%d, 16, v%d" % (a, q))
            o.append("v_and_b32 v%d, s%d, v%d" % (b, sHi, q))
            o.append("v_mul_f32 v%d, s%d, v%d" % (a, sC, a))
            o.append("v_mul_f32 v%d, s%d, v%d" % (b, sC, b))
            o.append("v_cvt_pk_bf16_f32 v%d, v%d, v%d" % (a, a, b))
            o.append("v_accvgpr_write_b32 a%d, v%d" % (Q(t, 0) + r, a))
        return o
    def seg(self, head, body, bundles=(), span=(0.0, 0.8)):
        self.code += self.ts2() + [I(x) for x in head] + self.ts2()
        b = schedule([I(x) for x in body], self.c.verbose) if body else []
        n = len(b)
        k = len(bundles)
        pos = [int(n * (span[0] + (span[1] - span[0]) * j / max(k, 1))) for j in range(k)]
        j = 0
        for i in range(n + 1):
            while j < k and pos[j] <= i:
                self.code += bundles[j]; j += 1
            if i < n: self.code.append(b[i])
    def ts2(self):
        if not (self.c.diag and self.c.tsmode == 2) or getattr(self, 'nts', 1) >= 28: return []
        self.nts = getattr(self, 'nts', 1) + 1
        k = self.nts - 1
        reg = 48 + k if k < 16 else 88 + k - 16
        assert k < 28, k
        return [Ins("s_memtime s[46:47]"), Ins("s_waitcnt lgkmcnt(0)"), Ins("s_mov_b32 s%d, s46" % reg)]
    def ts(self, idx):
        if not self.c.diag or self.c.tsmode >= 2: return []
        return [Ins("s_memrealtime s[44:45]"), Ins("s_memtime s[46:47]"), Ins("s_waitcnt lgkmcnt(0)"),
                Ins("s_mov_b32 s%d, s44" % (48 + 2 * idx)), Ins("s_mov_b32 s%d, s46" % (49 + 2 * idx))]

    def pin(self, ins, after):
        self.npin = getattr(self, 'npin', 0) + 1
        after.W.add("pin%d" % self.npin); ins.R.add("pin%d" % self.npin)
        return ins
    def fence(self, grp, after, bar=False, lgkm0=False, frees=()):
        w = self.waitv(grp)
        if after is not None: self.pin(w, after)
        o = self.ts2c() + [w]
        if bar: o.append(Ins("s_barrier", lgkm0=lgkm0))
        o[-1].W.add("L:" + grp)
        for f in frees: o[-1].W.add("L:" + f)
        if after is not None and len(o) > 1 and self.c.tsmode == 2 and self.c.diag: self.pin(o[0], after)
        return o + self.ts2c()
    def ts2c(self):
        o = self.ts2()
        for x in o: x.R.add("vmq"); x.W.add("vmq")
        return o
    def weave(self, body, bundles, span=(0.0, 0.9)):
        n, k = len(body), len(bundles)
        pos = [int(n * (span[0] + (span[1] - span[0]) * j / max(k, 1))) for j in range(k)]
        o = []; j = 0
        for i in range(n):
            o.append(body[i])
            while j < k and pos[j] <= i and (isvalu(body[i]) or i == n - 1):
                self.pin(bundles[j][-1], body[i]); o += bundles[j]; j += 1
        return o
    def prologue(self):
        c, NT, tau = self.c, self.NT, self.tau
        T = NT - 1
        II = lambda l, **kw: [I(x, **kw) for x in l]
        G0 = lambda t: [g for g in range(4) if tau[g] <= t]
        seq = self.share('K', 0) + self.qload(T) + self.share('K', 1) + self.qload(T - 1) + self.share('V', 0) + self.share('V', 1)
        for t in range(T - 2, -1, -1): seq += self.qload(t)
        nq = len(seq)
        for b in (2, 3): seq += self.share('K', b) + self.share('V', b)
        n1 = len(seq)
        for b in (4, 5): seq += self.share('K', b) + self.share('V', b)
        grp = [self.group[id(b[-1])] for b in seq]
        state = [0]
        def nxt(g, cap=None):
            want = c.first if g is None else max(j for j, x in enumerate(grp) if x == g) + 1 + c.lead
            want = min(want, len(seq) if cap is None else cap)
            r = seq[state[0]:want]
            state[0] = max(state[0], want)
            return r
        self.first = nxt(None, nq)
        self.code += [Ins("v_mov_b32 v%d, 0" % Lr(t)) for t in range(NT)]
        misc = ["s_mov_b32 s%d, %d" % (sRd, 2 * SS), "s_mov_b32 s%d, %d" % (sIncW, (-2 * SS) & 0xffffffff), "s_mov_b32 s%d, %d" % (sIncN, SS)]
        misc += ["s_mov_b32 s%d, %d" % (sCnt, 14 if NT == 7 else 28)]
        if self.dma:
            misc += ["s_mov_b32 s%d, %d" % (sG + i, 4 * 16384 + 4096 * i) for i in range(4)]
            misc += ["s_mov_b32 s%d, %d" % (sSl, SS)]
            if c.keep:
                misc += ["s_bfe_u32 s%d, s2, 0x30003" % sT0, "s_mul_i32 s%d, s%d, 2560" % (sT0, sT0), "s_add_u32 s%d, s%d, L_tail_a-L_pc" % (sT0, sT0),
                         "v_lshrrev_b32 v%d, 4, v%d" % (vTP, vDMA), "v_mul_u32_u24 v%d, 40, v%d" % (vTP, vTP), "v_add_u32 v%d, s%d, v%d" % (vTP, sT0, vTP),
                         "v_min_u32 v%d, L_wave_b-L_pc, v%d" % (vTP, vTP)]
        if c.obias:
            misc += ["s_mov_b32 s%d, 0xff800000" % sMask, "v_mov_b32 v%d, 0x00400000" % vHalf, "s_add_u32 s%d, s%d, %d" % (sT0, sStg, PARK),
                     "v_bfe_u32 v%d, v%d, 8, 2" % (vPK, vDMA), "v_lshl_add_u32 v%d, v%d, 4, s%d" % (vPK, vPK, sT0)]
        misc += ["s_mov_b32 s%d, 0xffff0000" % sHi, "s_mov_b32 s%d, s%d" % (sC2, sC), "s_mov_b32 s%d, s%d" % (sC2 + 1, sC)]
        misc.append("s_waitcnt lgkmcnt(0)")
        self.code += II(misc)
        def scale(t):
            o = II(self.scale(t))
            for x in o[:4]: x.R.add("L:Q%d" % t)
            return o
        UA = lambda t: (NT + 1) - 1 - t
        UB = lambda t: NT + t
        if c.k0split:
            prog = self.fence("K0", None, bar=True)
            kr = II([self.kread(g, ds) for g in range(2) for ds in range(4)], xr=["L:K0"])
            prog += kr + self.fence("Q%d" % T, kr[-1])
            a = scale(T)
            prog += self.weave(a, nxt("K1", nq))
            body = []
            for g in range(2): body += II(self.qk(T, g, S(g), raw=True, snake=False))
        else:
            prog = self.fence("Q%d" % T, None)
            a = scale(T)
            prog += self.weave(a, nxt("K1", nq))
            prog += self.fence("K1", a[len(a) // 2], bar=True)
            body = II([self.kread(g, ds) for g in range(4) for ds in range(4)], xr=["L:K1"])
            for g in range(4): body += II(self.qk(T, g, S(g), raw=True))
        x, y = 26, 29
        b2 = ["v_max3_f32 v%d, v%d, v%d, v%d" % (x, S(0), S(0) + 1, S(0) + 2),
              "v_max3_f32 v%d, v%d, v%d, v%d" % (x, x, S(0) + 3, S(0) + 4),
              "v_max3_f32 v%d, v%d, v%d, v%d" % (x, x, S(0) + 5, S(0) + 6),
              "v_max_f32 v%d, v%d, v%d" % (x, x, S(0) + 7)]
        for sw in ("v_permlane32_swap_b32", "v_permlane16_swap_b32"):
            b2 += ["v_mov_b32 v%d, v%d" % (y, x), "%s v%d, v%d" % (sw, x, y), "v_max_f32 v%d, v%d, v%d" % (x, x, y)]
        for k in (8, 4, 2, 1):
            b2.append("v_max_f32_dpp v%d, v%d, v%d row_ror:%d row_mask:0xf bank_mask:0xf" % (x, x, x, k))
        for i in range(4):
            b2.append("v_sub_f32 v%d, 0x%08x, v%d" % (CI + i, f2u(-c.bias), x))
        for g in range(2 if c.k0split else 4):
            for i in range(4):
                b2.append("v_add_f32 v%d, v%d, v%d" % (S(g) + i, S(g) + i, CI))
            b2 += self.softmax(T, S(g), P(UA(T), g >> 1) + 2 * (g & 1))
        body += II(b2)
        if c.k0split:
            prog += body + self.fence("K1", body[-c.k0split], bar=True)
            body = II([self.kread(g, ds) for g in (2, 3) for ds in range(4)], xr=["L:K1"])
            nl = nxt("Q%d" % (T - 1), nq)
            for b in nl: body += b
            last = body[7]
            for g in (2, 3):
                body += II(self.qk(T, g, S(g), snake=False))
                body += II(self.softmax(T, S(g), P(UA(T), g >> 1) + 2 * (g & 1)))
            prog += body
        else:
            prog += self.weave(body, nxt("Q%d" % (T - 1), nq), (0.0, 0.25))
            last = body[31]
        sidx = [0]
        def unit(t, gs, U, post=None, snake=True):
            o = []
            for g in gs:
                sb = S(sidx[0]); sidx[0] += 1
                o += II(self.qk(t, g, sb, snake=snake))
                if post: o += post(g, o[-1])
                o += II(self.softmax(t, sb, P(U, g >> 1) + 2 * (g & 1)))
            return o
        gorder = sorted(range(4), key=lambda g: tau[g])
        kfence = {}
        def kreload(g, after):
            o = []
            name = "K%d" % (2 + (g >> 1))
            if name not in kfence:
                kfence[name] = 1
                o += self.fence(name, after, bar=True, lgkm0=(name == "K2"), frees=["Q%d" % (T - 2), "Q%d" % (T - 3)])
            return o + II([self.kread(g, ds, SS) for ds in range(4)], xr=["L:" + name])
        for t in range(T - 1, -1, -1):
            prog += self.fence("Q%d" % t, last)
            a = scale(t)
            if t == T - 1:
                prog += self.weave(a, nxt("V1", nq), (0.0, 0.5))
                prog += self.fence("V1", a[int(len(a) * 0.6)], bar=True, lgkm0=True, frees=["Q%d" % T, "Q%d" % (T - 1)])
                a = II([self.vread(g, db) for db in range(8) for g in range(4)], xr=["L:V1"])
                a += II(self.vmax())
            a += self.pv_first(t + 1, lambda ks: P(UA(t + 1), ks))
            if t > 0:
                u = unit(t, range(4), UA(t), snake=False)
                vs = [i for i in a + u if isvalu(i)]
                bl = nxt("Q%d" % (t - 1), n1)
                body = a + u
                cut = body.index(u[-c.fpos])
                prog += self.weave(body[:cut], bl, (0.0, c.wspan)) + body[cut:]
                last = u[-c.fpos]
            else:
                prog += self.weave(a, nxt("V3", n1), (0.0, c.wspan))
        u = unit(0, gorder, UA(0), post=lambda g, m: kreload(g, m) if g < 2 else [], snake=False)
        pv0 = self.pv_first(0, lambda ks: P(UA(0), ks))
        if c.earlyF and c.obias == 1:
            k = [i for i, x in enumerate(u) if x.op == "v_add_f32"][7] + 1
            u = u[:k] + II(["v_add_f32 v%d, v%d, v%d" % (vVM, vVM, vVM)]) + pv0[:-16] + u[k:]
            pv0 = pv0[-16:]
        prog += u
        prog += pv0[:-14] + self.fence("V2", pv0[-15], bar=True) + pv0[-14:]
        for g in gorder[:2]:
            prog += II([self.vread(g, db, SS) for db in range(8)], xr=["L:V2"])
        body = []
        for t in range(1, NT):
            if c.ord16 and t == T:
                sidx[0] = 0
                u = unit(t, range(4), UB(t))[:-10]
            else: u = unit(t, [g for g in gorder if g in G0(t)], UB(t))
            body += u
            if t == 1 and not c.merge3:
                for g in gorder[2:]: body += kreload(g, u[-1])
            if t == 2:
                body += self.fence("V3", u[-c.merge3] if c.merge3 else u[-1], bar=True)
                if c.merge3:
                    for g in gorder[2:]: body += II([self.kread(g, ds, SS) for ds in range(4)], xr=["L:V3"])
                for g in gorder[2:]:
                    body += II([self.vread(g, db, SS) for db in range(8)], xr=["L:V3"])
                body += II(["v_add_u32 v%d, %d, v%d" % (vAK, 2 * SS, vAK), "v_add_u32 v%d, %d, v%d" % (vAV, 2 * SS, vAV)])
            if t < T: body += II(self.pv(t, G0(t), lambda ks: P(UB(t), ks)))
        if not c.ord16: body += II(self.qk(0, 0, S(0)) + self.qk(0, 1, S(1)))
        prog += self.weave(body, nxt("V5"), (0.0, c.pb_hi))
        self.code += schedule(prog, c.verbose, order=True, pkmin=4, trials=c.trials, fit=c.fit, space=dict(zip(('dsw', 'dma', 'dsr'), c.pspace)))

    def period(self, p):
        c, NT = self.c, self.NT
        first = p == 2
        gaps = []
        NS = 2 * NT
        for t in range(NT if c.ord16 else 0):
            U = NT * p + t
            ms = []
            for g in range(4): ms += self.qk(t, g, S(g))
            ms += self.pv((t - 1) % NT, range(4), lambda ks: P(U - 1, ks))
            for i in range(32):
                g = (i // 8 - 1) % 4
                tt, UU = ((t - 1) % NT, U - 1) if g == 3 else (t, U)
                s_ = S(g) + (i % 8) // 2
                if i % 2 == 0: v = ["v_exp_f32 v%d, v%d" % (s_, s_)]
                else:
                    v = ["v_add_f32 v%d, v%d, v%d" % (Lr(tt), Lr(tt), s_)]
                    if i % 4 == 3: v.append("v_cvt_pk_bf16_f32 v%d, v%d, v%d" % (P(UU, g >> 1) + 2 * (g & 1) + (i % 8) // 4, s_ - 1, s_))
                gaps.append(dict(m=ms[i], s=[], d=[], v=v))
        for n in range(0 if c.ord16 else NS):
            t, hh = n >> 1, n & 1
            U = NT * p + t
            n1 = (n + 1) % NS
            t1, ks1 = n1 >> 1, n1 & 1
            ms = self.qk(t1, 2 * ks1, S(2 * ks1)) + self.qk(t1, 2 * ks1 + 1, S(2 * ks1 + 1))
            ms += self.pv((t - 1) % NT, range(4), lambda ks: P(U - 1, ks), range(4 * hh, 4 * hh + 4))
            for i in range(16):
                s_ = S(2 * hh) + i // 2
                if i % 2 == 0: v = ["v_exp_f32 v%d, v%d" % (s_, s_)]
                else:
                    v = ["v_add_f32 v%d, v%d, v%d" % (Lr(t), Lr(t), s_)]
                    if i % 4 == 3: v.append("v_cvt_pk_bf16_f32 v%d, v%d, v%d" % (P(U, hh) + i // 4, s_ - 1, s_))
                gaps.append(dict(m=ms[i], s=[], d=[], v=v))
        NG = len(gaps)
        if c.stall:
            for i in range(15, NG, 16): gaps[i]['v'].append("s_nop %d" % (c.stall - 1))
        for (kind, g, x), pos in self.rd.items():
            gaps[pos]['d'].append(self.kread(g, x) if kind == 'K' else self.vread(g, x))
        b0, r0 = (5, 18) if self.hide else (0, 2)
        gaps[b0]['s'].append(Ins("s_barrier", lgkm0=True))
        gaps[r0]['s'].append("s_add_u32 s%d, s%d, %d" % (sRd, sRd, SS))
        gaps[r0 + 1]['s'].append("s_cmp_eq_u32 s%d, %d" % (sRd, RING))
        gaps[r0 + 2]['s'].append("s_cselect_b32 s%d, s%d, s%d" % (sInc, sIncW, sIncN))
        gaps[r0 + 3]['s'].append("s_cselect_b32 s%d, 0, s%d" % (sRd, sRd))
        last = max(self.rd.values())
        assert last < NG - 7 and min(self.rd.values()) > b0
        gaps[NG - 7]['v'].append("v_add_u32 v%d, s%d, v%d" % (vAK, sInc, vAK))
        upd = "v_add_u32 v%d, s%d, v%d" % (vAV, sInc, vAV)
        if self.hide:
            gaps[9]['v'].insert(0, gaps[5]['v'].pop())
            mv = gaps[NG - 3]['v'].pop()
            if first: gaps[4]['s'].append(self.waitv("K4"))
            else:
                gaps[1]['v'].insert(0, mv)
                gaps[13]['v'].append(upd)
            self.carry = [mv, upd]
        else:
            gaps[NG - 3]['v'].append(upd)
            self.carry = []
        lo = r0 + 6
        if first:
            bp = c.bara if NT == 7 else c.barb
            lst = (('V', 0, "V4"), ('K', 1, "K5"), ('V', 1, "V5"))
            if len(bp) == 2: lst = (('V', 0, "V4"), ('K', 1, "V5"))
            if len(bp) == 1: lst = (('V', 0, "V5"),)
            for (kind, ks, grp), fp in zip(lst, bp):
                f = min(pos for (k, g, x), pos in self.rd.items() if k == kind and g >> 1 == ks)
                f = min(f, fp)
                gaps[f - 1]['s'].append(self.waitv(grp))
                gaps[f]['s'].append(Ins("s_barrier"))
            bl = []
            for blk in (6, 7): bl += self.share('K', blk) + self.share('V', blk)
            hi = int(NG * c.sh_hi)
            self.place(gaps, bl, lo, hi)
            lo = int(NG * c.s3_lo)
        if self.dma:
            bl = []
            for blk in range(2):
                for srd, l0, st in ((sK, 0, PK), (sV, HK, PV_)):
                    for a in range(2):
                        for n in range(4):
                            bl.append([Ins("s_add_u32 m0, s%d, %d" % (sSl, blk * SLOT + l0 + 4 * st * a + (st - 1024) * n)),
                                       self.tagged("buffer_load_dwordx4 v%d, s[%d:%d], s%d offen offset:%d %s lds" % (vDMA, srd, srd + 3, sG + 2 * blk + a, 1024 * n, c.dflag), "S")])
            self.place(gaps, bl, lo, NG - 12 if first else min(NG - 12, int(NG * c.dma_hi)))
            for i in range(4):
                gaps[NG - 11 + i]['s'].append("s_add_u32 s%d, s%d, 16384" % (sG + i, sG + i))
            gaps[NG - 7]['s'].append("s_add_u32 s%d, s%d, %d" % (sSl, sSl, SS))
            gaps[NG - 6]['s'].append("s_cmp_eq_u32 s%d, %d" % (sSl, RING))
            gaps[NG - 5]['s'].append("s_cselect_b32 s%d, 0, s%d" % (sSl, sSl))
        if first: gaps[NG - 1]['s'].append(self.waitv("V7"))
        elif self.dma:
            if c.keep:
                assert not gaps[6]['d']
                gaps[6]['d'].append("global_load_dword v%d, v%d, s[38:39]" % (vTD, vTP))
            gaps[NG - 1]['s'].append("s_waitcnt vmcnt(%d)" % (33 if c.keep else 32))
        return gaps
    def place(self, gaps, bundles, lo, hi):
        cand = [i for i in range(lo + 2, hi) if not gaps[i]['d'] and len(gaps[i]['v']) == 1]
        k = len(bundles)
        prev = lo - 1
        for j, b in enumerate(bundles):
            tgt = lo + 2 + (hi - lo - 2) * j / k
            ns = len(b) - 1
            cc = [i for i in cand if i - ns >= prev]
            i = min(cc, key=lambda i: abs(i - tgt) - (2.5 if i % 2 else 0))
            for q, ins in enumerate(b[:-1]):
                gi = i - ns + q
                if gi == prev: gaps[gi]['d'].append(ins)
                else: gaps[gi]['s'].append(ins)
            gaps[i]['d'].append(b[-1])
            prev = i
    def flat(self, gaps):
        o = []
        for g in gaps:
            o.append(I(g['m']))
            o += [I(x) for x in g['s'] + g['d'] + g['v']]
        return o

    def finalize(self, t, k, Lm, packs, acct, first, Ofn=O, Lreg=None, land=None, soff=None, pk=False, one=None, nb=None):
        c = self.c
        buf = k & 1
        st = "L:st%d" % buf
        Lreg = Lr(t) if Lreg is None else Lreg
        land = Q(t, 0) if land is None else land
        if one is None:
            x, y = Lm + 3, Lm + 2
            o = ["v_mov_b32 v%d, v%d" % (y, Lreg), "v_permlane32_swap_b32 v%d, v%d" % (Lreg, y), "v_add_f32 v%d, v%d, v%d" % (Lreg, Lreg, y),
                 "v_mov_b32 v%d, v%d" % (y, Lreg), "v_permlane16_swap_b32 v%d, v%d" % (Lreg, y), "v_add_f32 v%d, v%d, v%d" % (Lreg, Lreg, y),
                 "v_rcp_f32 v%d, v%d" % (x, Lreg)]
            for g in (1, 2, 3):
                o.append("v_mov_b32_dpp v%d, v%d row_ror:%d row_mask:0x%x bank_mask:0xf" % (x, x, 16 - 4 * g, 1 << g))
            for r in range(4):
                o.append("v_mov_b32_dpp v%d, v%d row_newbcast:%d row_mask:0xf bank_mask:0xf" % (Lm + r, x, r))
        else:
            o = ["v_mfma_f32_16x16x4_f32 %s, v%d, a%d, 0" % (rn('v', Lm, 4), Lreg, one)]
        if first is not None:
            for op, r in (("v_max3_u32", vAK), ("v_min3_u32", vAV)):
                if first:
                    o.append("%s v%d, v%d, v%d, v%d" % (op, r, Lm, Lm + 1, Lm + 2))
                    o.append("%s v%d, v%d, v%d, v%d" % (op, r, r, Lm + 3, Lm + 3))
                else:
                    o.append("%s v%d, v%d, v%d, v%d" % (op, r, r, Lm, Lm + 1))
                    o.append("%s v%d, v%d, v%d, v%d" % (op, r, r, Lm + 2, Lm + 3))
        if one is not None:
            for r in range(4): o.append("v_rcp_f32 v%d, v%d" % (Lm + r, Lm + r))
        if nb is not None:
            o.append("ds_read_b128 %s, v%d offset:%d" % (rn('v', nb, 4), vAK, 64 * t))
            for r in range(4): o.append("v_mul_f32 v%d, v%d, v%d" % (nb + r, nb + r, Lm + r))
        loc = {}
        for db in range(8):
            f, b = Ofn(t, db)
            if f == 'a':
                for r in range(4):
                    o.append("v_accvgpr_read_b32 v%d, a%d" % (acct + 4 * (db - 4) + r, b + r))
                b = acct + 4 * (db - 4)
            loc[db] = b
        if pk:
            for db in range(8):
                for r in (0, 2):
                    if nb is None: o.append("v_pk_mul_f32 %s, %s, %s" % (rn('v', loc[db] + r, 2), rn('v', loc[db] + r, 2), rn('v', Lm + r, 2)))
                    else: o.append("v_pk_fma_f32 %s, %s, %s, %s neg_lo:[0:0:1] neg_hi:[0:0:1]" % (rn('v', loc[db] + r, 2), rn('v', loc[db] + r, 2), rn('v', Lm + r, 2), rn('v', nb + r, 2)))
        for r in range(4):
            for db in range(8):
                if not pk: o.append("v_mul_f32 v%d, v%d, v%d" % (loc[db] + r, loc[db] + r, Lm + r))
            pb = packs[r % len(packs)]
            for j in range(4):
                o.append("v_cvt_pk_bf16_f32 v%d, v%d, v%d" % (pb + j, loc[2 * j] + r, loc[2 * j + 1] + r))
            o.append(Ins("ds_write_b128 v%d, %s offset:%d" % (vEW, rn('v', pb, 4), r * 320 + buf * 5120), xw=[st + "r%d" % r]))
        if soff is None:
            soff = sSt + t
            o.append("s_add_u32 s%d, s%d, %d" % (soff, sQo, t * 4096))
        for a in range(4):
            for sel in range(2):
                o.append(Ins("ds_read_b64_tr_b16 %s, v%d offset:%d" % (rn('a', land + 4 * a + 2 * sel, 2), vER, a * 1280 + 64 * sel + buf * 5120), xr=[st + "r%d" % r for r in range(4)]))
        for a in range(4 if not c.nostore else 0):
            o.append("buffer_store_dwordx4 %s, v%d, s[%d:%d], s%d offen offset:%d %s" % (rn('a', land + 4 * a, 4), vDMA, sO, sO + 3, soff, a * 1024, c.lastflag[1] if k >= self.NT - c.lastflag[0] else c.oflag))
        return o

    def tail(self):
        c, NT, tau = self.c, self.NT, self.tau
        T = NT - 1
        U = NT * 31
        G1 = lambda t: [g for g in range(4) if tau[g] > t]
        ring = dict(xr=["L:ring"])
        self.qprio = c.qprio[1]
        prog = [Ins("s_barrier", lgkm0=True, xw=["L:ring"])] + self.carry
        if c.ord16: prog += self.softmax(T, S(3), P(U - 1, 1) + 2)
        prog += self.pv(T, range(4), lambda ks: P(U - 1, ks))
        sidx = 0
        for t in range(NT):
            gs = G1(t)
            if not gs: continue
            pb = (lambda u: (lambda ks: P(u, ks)))(U); U += 1
            for g in gs:
                sb = S(sidx); sidx += 1
                if c.ord16 or not (t == 0 and g < 2): prog += self.qk(t, g, sb)
                if tau[g] == t + 1: prog += [Ins(self.kread(g, ds), **ring) for ds in range(4)]
                prog += self.softmax(t, sb, pb(g >> 1) + 2 * (g & 1))
            prog += self.pv(t, gs, pb)
            for db in range(8):
                prog += [Ins(self.vread(g, db), **ring) for g in gs if tau[g] == t + 1]
        order = [t for t in range(NT) if not G1(t)] + [t for t in range(NT) if G1(t)]
        gorder = sorted(range(4), key=lambda g: tau[g])
        pool = 32 * order[0]
        for k, t in enumerate(order):
            pb = (lambda u: (lambda ks: P(u, ks)))(U); U += 1
            for g in (gorder if k == 0 else range(4)):
                sb = S(sidx); sidx += 1
                prog += self.qk(t, g, sb)
                prog += self.softmax(t, sb, pb(g >> 1) + 2 * (g & 1))
            prog += self.pv(t, range(4), pb)
            pk = k >= len(order) - c.pkmul
            one = None if c.lvalu else Q(t, 0)
            if one is not None: prog.append("v_accvgpr_write_b32 a%d, 1.0" % one)
            N = lambda x: x if c.obias else None
            assert pk or not c.obias
            if k == 0:
                if c.obias: prog += ["v_bfe_u32 v%d, v%d, 8, 2" % (vAK, vDMA), "v_lshl_add_u32 v%d, v%d, 4, s%d" % (vAK, vAK, sT0)]
                prog += self.finalize(t, k, pb(0), [pb(0), pb(1)], None, None, pk=pk, one=one, nb=N(pb(1)))
            elif t == 6: prog += self.finalize(t, k, pool + 8 * (k & 1), [pool, pool + 4, pool + 8, pool + 12], pool + 16, None, pk=pk, one=one, nb=N(pool + 8 * (k & 1) + 4))
            else: prog += self.finalize(t, k, pool + 8 * (k & 1), [pool + 16, pool + 20, pool + 24, pool + 28], None, None, pk=pk, one=one, nb=N(pool + 8 * (k & 1) + 4))
        ls = [Lr(t) for t in range(NT)] + [Lr(0)]
        for op, r in (("v_max3_u32", vAK), ("v_min3_u32", vAV)):
            prog.append("%s v%d, v%d, v%d, v%d" % (op, r, ls[0], ls[1], ls[2]))
            prog.append("%s v%d, v%d, v%d, v%d" % (op, r, r, ls[3], ls[4]))
            prog.append("%s v%d, v%d, v%d, v%d" % (op, r, r, ls[5], ls[6]))
        return schedule([I(x) for x in prog], c.verbose, order=True, trials=c.trials, fit=c.fit, dswcost=c.dswcost, space=dict(zip(('dsw', 'vstore', 'dsr'), c.space)), AGE=c.age)

    def resolve_waits(self, seq):
        issued = [self.group[id(b[-1])] for b in self.first]
        if not self.c.pfs and not self.c.pfearly: issued.insert(self.c.pfpos, None)
        for i in seq:
            g = self.group.get(id(i))
            if i.kind in ("dma", "vload", "vstore"): issued.append(g)
            elif g and g.startswith("W:"):
                last = max(j for j, x in enumerate(issued) if x == g[2:])
                i.text = "s_waitcnt vmcnt(%d)" % min(63, len(issued) - 1 - last)

    def build(self):
        c, NT, tag = self.c, self.NT, self.tag
        self.code = [Ins("L_wave_%s:" % tag)]
        self.prologue()
        self.code += self.ts(1) + self.ts(2)
        self.code += self.ts2()
        if not self.hide: self.code.append(self.waitv("K4"))
        self.code += self.flat(self.period(2)) + self.ts2()
        self.code += self.ts(3)
        self.resolve_waits(self.code)
        head, pend = insert_lgkm(self.code)
        assert not pend
        head = pad_hazards(head)
        gaps = self.period(3)
        if NT == 7: gaps += self.period(4)
        rot = 3 if self.hide else c.rot
        if self.hide:
            gaps[-40]['s'].append("s_sub_u32 s%d, s%d, 1" % (sCnt, sCnt))
            gaps[-38]['s'].append("s_cmp_lg_u32 s%d, 0" % sCnt)
        else:
            gaps[-4]['s'].append("s_sub_u32 s%d, s%d, 1" % (sCnt, sCnt))
            gaps[-4]['s'].append("s_cmp_lg_u32 s%d, 0" % sCnt) if c.rot > 1 else gaps[-2]['s'].append("s_cmp_lg_u32 s%d, 0" % sCnt)
        if 'G' in c.exp and NT == 7:
            ng = []
            for base in (0, 224):
                per = gaps[base:base + 224]
                u0 = 96
                ms = [g['m'] for g in per]
                del ms[u0 + 4:u0 + 8]
                for i in range(u0 + 16, u0 + 24): per[i]['v'] = []
                keepi = [i for i in range(224) if i not in (u0 + 16, u0 + 18, u0 + 20, u0 + 22)]
                per = [per[i] for i in keepi]
                for g, m in zip(per, ms): g['m'] = m
                ng += per
            gaps = ng
        if 'B' in c.exp and NT == 6:
            for u in (1, 3, 4):
                k = 32 * u + 31
                ex = self.qk(u, 2, 192) + ["s_nop 3"] + self.softmax(u, 196, 200) + ["v_mov_b32 v196, v192", "v_mov_b32 v197, v193", "v_mov_b32 v198, v194", "v_mov_b32 v199, v195"][:0]
                q_, sm = ex[:4], ex[5:]
                seq = []
                for i in range(4):
                    seq += [q_[i]] + sm[:2]; sm = sm[2:]
                gaps[k]['v'] += seq + sm
        body, pend = insert_lgkm(self.flat(gaps))
        assert not pend
        if 'w' in c.exp: body = [x for x in body if not (x.kind == "wait" and "lgkm" in x.text)]
        if 'p' in c.exp:
            import re
            body = [Ins(re.sub(r"v_cvt_pk_bf16_f32 (v\d+), (v\d+), (v\d+)", r"v_perm_b32 \1, \3, \2, s99", x.text)) if x.op == "v_cvt_pk_bf16_f32" else x for x in body]
            head.append(Ins("s_mov_b32 s99, 0x07060302"))
        if 'a' in c.exp: body = [x for x in body if x.op != "v_add_f32"]
        if 'h' in c.exp:
            nb_ = []; k_ = 0
            for x in body:
                if x.op == "v_add_f32":
                    k_ += 1
                    if k_ % 2: continue
                nb_.append(x)
            body = nb_
        if 'm' in c.exp: body = [Ins(x.text.replace("v_add_f32", "v_max_f32")) if x.op == "v_add_f32" else x for x in body]
        if 'i' in c.exp: body = [Ins(x.text.replace("v_add_f32", "v_add_u32")) if x.op == "v_add_f32" else x for x in body]
        if 'c' in c.exp: body = [Ins(x.text.replace("v[240:243]", "-4.0")) if x.kind == "mfma" else x for x in body]
        if set(c.exp) & set('QVSOX'):
            import re
            def shift(x):
                if x.kind != "mfma": return x
                op, rest = x.text.split(None, 1)
                D, A, B, C = [y.strip() for y in rest.split(",")]
                sh = lambda r: re.sub(r"\[(\d+):(\d+)\]", lambda m: "[%d:%d]" % (int(m.group(1)) + 2, int(m.group(2)) + 2), r)
                qk = A.startswith("a")
                if qk and 'Q' in c.exp: B = sh(B) if B != "a[108:111]" else B
                if not qk and 'V' in c.exp: B = sh(B) if B != "a[236:239]" else B
                if not qk and 'O' in c.exp and D.startswith("v") and D != "v[204:207]": D = sh(D); C = sh(C)
                if qk and 'X' in c.exp: A, B = B, A
                return Ins("%s %s, %s, %s, %s" % (op, D, A, B, C))
            body = [shift(x) for x in body]
        if 'd' in c.exp: body = [x for x in body if x.kind != "dsr"]
        if 'k' in c.exp: body = [x for x in body if x.op != "ds_read_b128"]
        if c.coarse: body = coarsen_waits(body, c.coarse)
        pre_tail = []
        if rot:
            k = [i for i, x in enumerate(body) if x.kind == "mfma"][-rot] + 1
            while body[k].kind in ("salu", "wait"): k += 1
            mv = body[k:]
            strip = lambda l: [x.text for x in l if x.kind not in ("salu", "wait", "smem")]
            kh = [i for i, x in enumerate(head) if x.kind == "mfma"][-rot] + 1
            while head[kh].kind in ("salu", "wait"): kh += 1
            assert strip(head[kh:]) == strip(mv), (strip(head[kh:]), strip(mv))
            assert all(x.kind not in ("salu",) for x in mv)
            head = head[:kh] + [x for x in head[kh:] if x.kind in ("salu", "wait", "smem")]
            pre_tail = [Ins(x.text) for x in mv]
            body = mv + body[:k]
        if c.tsmode == 3 and NT == 7:
            head.append(Ins("s_mov_b32 m0, 0"))
            body = [Ins("s_memtime s[46:47]"), Ins("s_waitcnt lgkmcnt(0)"), Ins("s_movreld_b32 s48, s46"), Ins("s_add_u32 m0, m0, 1")] + body
            pre_tail = pre_tail + [Ins("s_memtime s[46:47]"), Ins("s_waitcnt lgkmcnt(0)"), Ins("s_movreld_b32 s48, s46")]
        body.append(Ins("s_cbranch_scc1 L_loop_%s" % tag))
        if not c.exp:
            pad_hazards(body, hist=head[-16:], fix=False, name="loop entry")
            pad_hazards(body, hist=body[-16:], fix=False, name="loop back")
        tail = pre_tail + self.ts(4) + self.tail()
        tail += [Ins("v_cmp_le_u32 vcc, 0x%08x, v%d" % (f2u(2.0 ** c.hi_exp), vAK)),
                 Ins("s_mov_b64 s[%d:%d], vcc" % (sT1, sT1 + 1)),
                 Ins("v_cmp_ge_u32 vcc, 0x%08x, v%d" % (f2u(2.0 ** c.lo_exp), vAV)),
                 Ins("s_or_b64 s[%d:%d], s[%d:%d], vcc" % (sT1, sT1 + 1, sT1, sT1 + 1)),
                 Ins("s_mov_b32 s%d, %d" % (sNT, NT)),
                 Ins("s_nop 0" if c.exp else "s_cbranch_scc1 L_slow" if not c.force_slow else "s_branch L_slow")]
        tail += self.ts(5)
        if c.diag: tail += [Ins("s_waitcnt vmcnt(0)")] + self.ts(6)
        tail.append(Ins("s_branch L_fin" if (c.diag or c.twice or c.idle) else "s_endpgm"))
        tail, pend = insert_lgkm(tail)
        tail = pad_hazards(tail, hist=body[-16:])
        if c.hop:
            nt = []; acc = c.hop; k = 0
            stop = max(i for i, x in enumerate(tail) if x.kind == "vstore")
            for i, x in enumerate(tail):
                nt.append(x); acc += isize(x)
                if i < stop and acc >= c.hop - 24 and (x.kind == "mfma" or acc >= c.hop - 4):
                    nt += [Ins("L_hop%s%d:" % (tag, k)), Ins("s_cbranch_vccnz L_hop%s%d" % (tag, k + 1))]; k += 1; acc = 4
            tail = nt
            j = max(i for i, x in enumerate(head) if self.group.get(id(x)) == "W:K4")
            head[j:j] = self.ts(1) + [Ins("s_mov_b64 vcc, -1"), Ins("s_branch L_hop%s0" % tag), Ins("L_hop%s%d:" % (tag, k)), Ins("s_mov_b64 vcc, 0")] + self.ts(2)
            if c.verbose: print("hops", k)
        res = head + [Ins(".p2align 6"), Ins("L_loop_%s:" % tag)] + body + [Ins("L_tail_%s:" % tag)] + tail
        if c.jit:
            w, n, before = c.jit
            o = []
            for k, x in enumerate(res):
                d = [Ins("s_cselect_b32 s98, 1, 0"), Ins("s_cmp_lg_u32 s%d, %d" % (sW, w)), Ins("s_cbranch_scc1 L_j%s%d" % (tag, k)), Ins("s_sleep %d" % n), Ins("L_j%s%d:" % (tag, k)), Ins("s_cmp_lg_u32 s98, 0")]
                if x.kind == "barrier" and before: o += d
                o.append(x)
                if x.kind == "barrier" and not before: o += d
            res = o
        return res

class Gen:
    def __init__(self, cfg):
        self.c = cfg
    def slow(self):
        c = self.c
        w = Wave(self, 7, False, "s")
        o = []
        e = lambda s: o.extend(Ins(l) for l in s.strip().split("\n"))
        vL, vKA, vVA, vQA, vM, vX = 64, 65, 66, 67, 68, 69
        KF = lambda kg, ds: 72 + 16 * kg + 4 * ds
        VF = lambda db: 104 + 4 * db
        QF = lambda ds: 136 + 4 * ds
        SB, PB, LM, PKB = 152, 160, 164, 168
        e("L_slow:")
        e("s_waitcnt vmcnt(0) lgkmcnt(0)")
        e("v_lshrrev_b32 v%d, 4, v%d" % (vX, vDMA))
        e("v_and_b32 v%d, 7, v%d\nv_lshlrev_b32 v%d, 10, v%d" % (vM, vX, vKA, vM))
        e("v_and_b32 v%d, 8, v%d\nv_lshl_add_u32 v%d, v%d, 5, v%d" % (vM, vX, vKA, vM, vKA))
        e("v_and_b32 v%d, 48, v%d\nv_add_u32 v%d, v%d, v%d" % (vM, vX, vKA, vM, vKA))
        e("v_and_b32 v%d, 15, v%d\nv_lshlrev_b32 v%d, 8, v%d" % (vM, vX, vQA, vM))
        e("v_and_b32 v%d, 48, v%d\nv_add_u32 v%d, v%d, v%d" % (vM, vX, vQA, vM, vQA))
        e("v_bfe_u32 v%d, v%d, 2, 3\nv_mul_u32_u24 v%d, %d, v%d" % (vM, vX, vVA, PV_, vM))
        e("v_and_b32 v%d, 32, v%d\nv_lshl_add_u32 v%d, v%d, 3, v%d" % (vM, vX, vVA, vM, vVA))
        e("v_and_b32 v%d, 1, v%d\nv_lshl_add_u32 v%d, v%d, 3, v%d" % (vM, vX, vVA, vM, vVA))
        e("v_and_b32 v%d, 2, v%d\nv_lshl_add_u32 v%d, v%d, 6, v%d" % (vM, vX, vVA, vM, vVA))
        e("v_add_u32 v%d, s%d, v%d" % (vVA, sStg, vVA))
        e("s_mov_b32 s%d, 0" % sTile)
        e("L_slow_tile:")
        e("s_lshl_b32 s%d, s%d, 12\ns_add_u32 s%d, s%d, s%d" % (sSt, sTile, sSt, sSt, sQo))
        for ds in range(4):
            e("buffer_load_dwordx4 %s, v%d, s[%d:%d], s%d offen offset:%d" % (rn('v', QF(ds), 4), vQA, sQ, sQ + 3, sSt, ds * 64))
        e("s_waitcnt vmcnt(0)")
        for r in range(16):
            q = QF(0) + r
            e("v_lshlrev_b32 v%d, 16, v%d\nv_and_b32 v%d, 0xffff0000, v%d" % (vM, q, vX, q))
            e("v_mul_f32 v%d, s%d, v%d\nv_mul_f32 v%d, s%d, v%d" % (vM, sC, vM, vX, sC, vX))
            e("v_cvt_pk_bf16_f32 v%d, v%d, v%d" % (q, vM, vX))
        def kload():
            for kg in range(2):
                for ds in range(4):
                    e("buffer_load_dwordx4 %s, v%d, s[%d:%d], s%d offen offset:%d" % (rn('v', KF(kg, ds), 4), vKA, sK, sK + 3, sBlk, kg * 512 + ds * 64))
        def qk(raw):
            for kg in range(2):
                for ds in range(4):
                    e(mfma(('v', SB + 4 * kg), ('v', KF(kg, ds)), ('v', QF(ds)), (None if raw else ('v', CI)) if ds == 0 else ('v', SB + 4 * kg)))
        e("v_mov_b32 v%d, 0xff800000\ns_mov_b32 s%d, 0" % (vM, sBlk))
        e("L_slow_max:")
        kload()
        e("s_waitcnt vmcnt(0)")
        qk(True)
        e("s_nop 7")
        for i in range(0, 8, 2):
            e("v_max3_f32 v%d, v%d, v%d, v%d" % (vM, vM, SB + i, SB + i + 1))
        e("s_add_u32 s%d, s%d, 8192\ns_cmp_lt_u32 s%d, 524288\ns_cbranch_scc1 L_slow_max" % (sBlk, sBlk, sBlk))
        for sw in ("v_permlane32_swap_b32", "v_permlane16_swap_b32"):
            e("v_mov_b32 v%d, v%d\n%s v%d, v%d\nv_max_f32 v%d, v%d, v%d" % (vX, vM, sw, vM, vX, vM, vM, vX))
        for i in range(4): e("v_sub_f32 v%d, 0, v%d" % (CI + i, vM))
        for r in range(32): e("v_mov_b32 v%d, 0" % r)
        e("v_mov_b32 v%d, 0\ns_mov_b32 s%d, 0" % (vL, sBlk))
        e("L_slow_pv:")
        kload()
        e("s_add_u32 s%d, s%d, 4096" % (sT0, sBlk))
        for a in range(2):
            for n in range(4):
                e("s_add_u32 m0, s%d, %d" % (sStg, 4 * PV_ * a + (PV_ - 1024) * n))
                e("buffer_load_dwordx4 v%d, s[%d:%d], s%d offen offset:%d lds" % (vDMA, sV, sV + 3, sT0 if a else sBlk, 1024 * n))
        e("s_waitcnt vmcnt(0)")
        for db in range(8):
            for hb in range(2):
                e("ds_read_b64_tr_b16 %s, v%d offset:%d" % (rn('v', VF(db) + 2 * hb, 2), vVA, hb * 512 + db * 16))
        qk(False)
        e("s_nop 7")
        for i in range(8):
            e("v_exp_f32 v%d, v%d" % (SB + i, SB + i))
        for i in range(8):
            e("v_add_f32 v%d, v%d, v%d" % (vL, vL, SB + i))
        for i in range(4):
            e("v_cvt_pk_bf16_f32 v%d, v%d, v%d" % (PB + i, SB + 2 * i, SB + 2 * i + 1))
        e("s_waitcnt lgkmcnt(0)")
        for db in range(8):
            e(mfma(('v', 4 * db), ('v', PB), ('v', VF(db)), ('v', 4 * db)))
        e("s_nop 7")
        e("s_add_u32 s%d, s%d, 8192\ns_cmp_lt_u32 s%d, 524288\ns_cbranch_scc1 L_slow_pv" % (sBlk, sBlk, sBlk))
        e("v_accvgpr_write_b32 a16, 1.0")
        o.extend(I(x) for x in w.finalize(0, 0, LM, [PKB], None, None, Lreg=vL, soff=sSt, one=16))
        e("s_waitcnt vmcnt(0) lgkmcnt(0)")
        e("s_add_u32 s%d, s%d, 1\ns_cmp_lt_u32 s%d, s%d\ns_cbranch_scc1 L_slow_tile" % (sTile, sTile, sTile, sNT))
        o, _ = insert_lgkm(o, hoist=False)
        return pad_hazards(o)

    def build(self):
        c = self.c
        o = []
        e = lambda s: o.extend(Ins(l) for l in s.strip().split("\n"))
        e("s_cmp_ge_u32 s2, 256\ns_cbranch_scc1 L_end")
        if c.twice: e("s_mov_b32 s90, 0\nL_again:")
        e("s_load_dwordx4 s[4:7], s[0:1], 0\ns_load_dwordx4 s[8:11], s[0:1], 16")
        if c.diag:
            e("s_load_dwordx2 s[40:41], s[0:1], %d" % (32 if (c.dbgout or c.skew) else 40))
            e("s_memrealtime s[44:45]\ns_memtime s[46:47]\ns_waitcnt lgkmcnt(0)\ns_mov_b32 s48, s44\ns_mov_b32 s49, s46")
            if c.tsmode == 2: e("s_mov_b32 s48, s46")
            if c.tsmode == 4:
                del o[-5:]
                e("s_memtime s[48:49]")
        wa, wb = Wave(self, 7, False, "a"), Wave(self, 6, True, "b")
        ca, cb = wa.build(), wb.build()
        assert [[x.text for x in b] for b in wa.first] == [[x.text for x in b] for b in wb.first]
        def prefetch():
            e("s_getpc_b64 s[38:39]")
            e("L_pc:")
            if c.pfs:
                e("s_lshr_b32 s%d, s2, 3\ns_lshl_b32 s%d, s%d, 2\ns_add_u32 s%d, s%d, s%d\ns_lshl_b32 s%d, s%d, 9" % (sC, sC, sC, sC, sC, sW, sC, sC))
                e("s_min_u32 s%d, s%d, L_slow-L_pc\ns_add_u32 s38, s38, s%d\ns_addc_u32 s39, s39, 0" % (sC, sC, sC))
                for i in range(512 // c.pfstride): e("s_load_dword s%d, s[38:39], %d" % (87, c.pfstride * i))
            else:
                e("s_lshr_b32 s%d, s2, 3\ns_and_b32 s%d, s%d, 7\ns_lshl_b32 s%d, s%d, 13" % (sC, sC, sC, sC, sC))
                e("v_lshlrev_b32 v2, 5, v0\nv_add_u32 v2, s%d, v2\nv_min_u32 v2, L_slow-L_pc, v2" % sC)
                e("global_load_dword v63, v2, s[38:39]")
        if c.pfearly == 1: prefetch()
        e("v_lshrrev_b32 v1, 6, v0")
        e("v_and_b32 v5, 63, v0")
        e("v_readfirstlane_b32 s%d, v1" % sW)
        e("v_lshlrev_b32 v%d, 4, v5" % vDMA)
        e("v_and_b32 v2, 48, v5\nv_xor_b32 v%d, v2, v%d" % (vQS, vDMA))
        e("s_mul_i32 s%d, s2, 110592" % sT0)
        e("s_lshl_b32 s3, s2, 19")
        e("s_mov_b32 s%d, 524288\ns_mov_b32 s%d, 0x20000\ns_mov_b32 s%d, 110592\ns_mov_b32 s%d, 0x20000" % (sK + 2, sK + 3, sQ + 2, sQ + 3))
        e("s_mul_i32 s%d, s%d, %d" % (sQo, sW, 112 * 256))
        e("s_add_u32 s%d, s%d, %d\ns_min_u32 s%d, s%d, %d" % (sQT, sQo, 6 * 4096, sQT, sQT, 26 * 4096))
        e("s_mul_i32 s%d, s%d, %d" % (sWK, sW, 2 * PK))
        e("s_lshl_b32 s%d, s%d, 11" % (sWG, sW))
        e("s_mul_i32 s%d, s%d, %d\ns_add_u32 s%d, s%d, %d" % (sQS, sW, QT, sQS, sQS, SS))
        e("s_waitcnt lgkmcnt(0)")
        def srd(r, src, offs):
            e("s_add_u32 s%d, s%d, s%d\ns_addc_u32 s%d, s%d, 0" % (r, src, offs, r + 1, src + 1))
        srd(sK, 6, 3); srd(sQ, 4, sT0)
        def st(k):
            if c.diag and c.tsmode == 4: e("s_memtime s[%d:%d]" % (50 + 2 * k, 51 + 2 * k))
        st(0)
        for j, b in enumerate(wa.first[:c.pfpos]):
            o.extend(b)
            if j in (1, 5, 7): st({1: 1, 5: 2, 7: 3}[j])
        if not c.pfearly: prefetch()
        srd(sV, 8, 3); srd(sO, 10, sT0)
        e("s_mov_b32 s%d, 524288\ns_mov_b32 s%d, 0x20000\ns_mov_b32 s%d, 110592\ns_mov_b32 s%d, 0x20000" % (sV + 2, sV + 3, sO + 2, sO + 3))
        e("s_mul_i32 s%d, s%d, %d" % (sWV, sW, 2 * PV_))
        for b in wa.first[c.pfpos:]: o.extend(b)
        st(4)
        e("v_mov_b32 v0, v5")
        e("v_and_b32 v1, 15, v0\nv_and_b32 v2, 48, v0")
        e("s_mov_b32 s%d, 0x%08x" % (sC, f2u(math.log2(math.e) / math.sqrt(128.0))))
        e("s_mul_i32 s%d, s%d, %d\ns_add_u32 s%d, s%d, %d" % (sStg, sW, PRIV, sStg, sStg, STG))
        e("v_bfe_u32 v3, v0, 2, 2\nv_mul_u32_u24 v%d, %d, v3" % (vQA, PQ))
        e("v_and_b32 v3, 3, v0\nv_lshl_add_u32 v%d, v3, 8, v%d" % (vQA, vQA))
        e("v_lshlrev_b32 v3, 4, v3\nv_xor_b32 v3, v2, v3")
        e("v_add3_u32 v%d, v%d, v3, s%d\nv_add3_u32 v%d, v%d, v3, s%d" % (vQB, vQA, sStg, vQA, vQA, sQS))
        e("v_and_b32 v3, 7, v0\nv_mul_u32_u24 v%d, %d, v3" % (vAK, PK))
        e("v_and_b32 v3, 8, v0\nv_lshl_add_u32 v%d, v3, 5, v%d" % (vAK, vAK))
        e("v_add_u32 v%d, v2, v%d" % (vAK, vAK))
        e("v_and_b32 v3, 1, v0\nv_lshlrev_b32 v4, 3, v3\nv_and_b32 v3, 2, v0\nv_lshl_add_u32 v4, v3, 6, v4")
        e("v_bfe_u32 v3, v0, 2, 3\nv_mul_u32_u24 v%d, %d, v3" % (vAV, PV_))
        e("v_and_b32 v3, 32, v0\nv_lshl_add_u32 v%d, v3, 3, v%d" % (vAV, vAV))
        e("v_add_u32 v%d, v4, v%d\nv_add_u32 v%d, %d, v%d" % (vAV, vAV, vAV, HK, vAV))
        e("v_mul_u32_u24 v%d, 80, v2\nv_lshl_add_u32 v%d, v1, 4, v%d\nv_add_u32 v%d, s%d, v%d" % (vEW, vEW, vEW, vEW, sStg, vEW))
        e("v_mul_u32_u24 v%d, 20, v2\nv_and_b32 v3, 12, v0\nv_lshl_add_u32 v%d, v3, 2, v%d" % (vER, vER, vER))
        e("v_add3_u32 v%d, v%d, v4, s%d" % (vER, vER, sStg))
        st(5)
        if c.pfearly == 2: prefetch()
        if c.diag and c.tsmode == 4:
            e("s_waitcnt vmcnt(%d)" % (c.first - 1)); st(6)
            e("s_waitcnt lgkmcnt(0)")
            for k in range(7): e("s_mov_b32 s%d, s%d" % (49 + k, 50 + 2 * k))
        e("s_cmp_eq_u32 s%d, 3" % sW)
        e("s_cbranch_scc1 L_wave_b")
        o[:] = pad_hazards(o)
        if c.pad: o += [Ins("s_branch L_wave_a")] + [Ins("s_nop 0") for _ in range(c.pad // 4)]
        o += ca
        k = [x.text for x in cb].index("L_tail_b:")
        o += cb[k:] + cb[:k] + [Ins("s_branch L_tail_b")]
        o += self.slow()
        e("L_fin:")
        if c.twice:
            e("s_waitcnt vmcnt(0) lgkmcnt(0)\ns_barrier\nv_lshrrev_b32 v0, 4, v%d\ns_lshl_b32 s91, s%d, 6\nv_add_u32 v0, s91, v0" % (vDMA, sW))
            e("s_add_u32 s90, s90, 1\ns_cmp_le_u32 s90, %d\ns_cbranch_scc1 L_again" % c.twice)
        if c.idle:
            e("s_waitcnt vmcnt(0) lgkmcnt(0)\ns_memtime s[92:93]\ns_waitcnt lgkmcnt(0)\nL_idle:\ns_memtime s[94:95]\ns_waitcnt lgkmcnt(0)\ns_sub_u32 s94, s94, s92\ns_cmp_lt_u32 s94, %d\ns_cbranch_scc1 L_idle" % c.idle)
        if c.diag and c.skew:
            e("s_cmp_lg_u32 s%d, 0\ns_cbranch_scc1 L_end" % sW)
            e("s_mov_b32 s42, 256\ns_mov_b32 s43, 0x20000\nv_mov_b32 v0, 0\ns_mov_b64 exec, 1")
            e("s_sub_u32 s90, 0, s48\nv_mov_b32 v4, s90\nbuffer_atomic_umax v4, v0, s[40:43], 0 offen\ns_waitcnt vmcnt(0)")
            e("L_e1:\ns_memrealtime s[94:95]\ns_waitcnt lgkmcnt(0)\ns_sub_u32 s94, s94, s48\ns_cmp_lt_u32 s94, 12000\ns_cbranch_scc1 L_e1")
            e("buffer_atomic_umax v4, v0, s[40:43], 0 offen sc0\ns_waitcnt vmcnt(0)\nv_readfirstlane_b32 s91, v4\ns_nop 4\ns_sub_u32 s90, s91, s90\ns_mul_i32 s90, s90, %d\ns_add_u32 s90, s90, 13000" % (c.skew - 1))
            e("L_e2:\ns_memrealtime s[94:95]\ns_waitcnt lgkmcnt(0)\ns_sub_u32 s94, s94, s48\ns_cmp_lt_u32 s94, s90\ns_cbranch_scc1 L_e2")
        elif c.diag and c.echo:
            i, j, m, k = c.echo
            e("s_sub_u32 s90, s%d, s%d\ns_mul_i32 s90, s90, %d\ns_lshr_b32 s90, s90, %d" % (48 + 2 * j + k, 48 + 2 * i + k, m, 5 if k else 0))
            e("L_echo:\ns_memrealtime s[94:95]\ns_waitcnt lgkmcnt(0)\ns_sub_u32 s94, s94, s60\ns_cmp_lt_u32 s94, s90\ns_cbranch_scc1 L_echo")
        elif c.diag and c.dbgout:
            e("s_cmp_lg_u32 s%d, 0\ns_cbranch_scc1 L_end" % sW)
            e("s_mov_b32 s42, 256\ns_mov_b32 s43, 0x20000\nv_mov_b32 v0, 0\ns_mov_b64 exec, 1")
            for i in range(1, 7):
                for k in range(2):
                    e("s_sub_u32 s%d, s%d, s%d" % (sT0, 48 + 2 * i + k, 48 + k))
                    e("v_mov_b32 v4, s%d" % sT0)
                    e("buffer_atomic_add v4, v0, s[40:43], 0 offen offset:%d" % (4 * (i - 1) + 24 * k))
                    e("s_waitcnt vmcnt(0)")
            e("v_mov_b32 v4, s60\nbuffer_atomic_umax v4, v0, s[40:43], 0 offen offset:48\ns_waitcnt vmcnt(0)")
            e("s_sub_u32 s%d, 0, s48\nv_mov_b32 v4, s%d\nbuffer_atomic_umax v4, v0, s[40:43], 0 offen offset:52\ns_waitcnt vmcnt(0)" % (sT0, sT0))
            e("v_mov_b32 v4, s48\nbuffer_atomic_umax v4, v0, s[40:43], 0 offen offset:56\ns_waitcnt vmcnt(0)")
        elif c.diag:
            e("s_mov_b32 s42, 0x1000000\ns_mov_b32 s43, 0x20000")
            e("s_lshl_b32 s%d, s2, 2\ns_add_u32 s%d, s%d, s%d\ns_lshl_b32 s%d, s%d, %d" % (sT0, sT0, sT0, sW, sT0, sT0, 7 if c.tsmode >= 2 else 6))
            e("v_mov_b32 v0, 0")
            for i in range(0, 28 if c.tsmode >= 2 else 16, 4):
                for k in range(4):
                    e("v_mov_b32 v%d, s%d" % (4 + k, 48 + i + k if i < 16 else 72 + i + k))
                e("buffer_store_dwordx4 v[4:7], v0, s[40:43], s%d offen offset:%d" % (sT0, i * 4))
                e("s_waitcnt vmcnt(0)")
        e("L_end:")
        e("s_endpgm")
        if c.align is True: align_runs(o)
        elif c.align:
            r = align_bound(o, c.align)
            if c.verbose: print("align", r)
        txt = ["; MHA forward, B=8 H=32 Sq=432 Sk=2048 D=128, bf16.  One workgroup per head, 4 waves (one per SIMD).",
               "; @launch grid=(256,1,1) block=(256,1,1) lds=%d" % LDS] + HEADER.strip().split("\n") + [
               '.amdgcn_target "amdgcn-amd-amdhsa--gfx950"', ".text", ".globl %s" % c.kname, ".p2align 8",
               ".type %s,@function" % c.kname, "%s:" % c.kname]
        for i in o:
            txt.append(i.text if i.kind == "label" else "    " + i.text.replace("[0:0:1]", "[0,0,1]"))
        txt.append('.section .rodata,"a"\n.p2align 6\n.amdhsa_kernel %s' % c.kname)
        txt.append("""  .amdhsa_next_free_vgpr 512
  .amdhsa_next_free_sgpr 102
  .amdhsa_accum_offset 256
  .amdhsa_group_segment_fixed_size 0
  .amdhsa_kernarg_size 48
  .amdhsa_user_sgpr_count 2
  .amdhsa_user_sgpr_kernarg_segment_ptr 1
  .amdhsa_system_sgpr_workgroup_id_x 1
.end_amdhsa_kernel""")
        return "\n".join(txt) + "\n"

if __name__ == "__main__":
    cfg = Cfg()
    out = sys.argv[1]
    for a in sys.argv[2:]:
        k, v = a.split("=")
        assert hasattr(cfg, k), k
        setattr(cfg, k, eval(v))
    open(out, "w").write(Gen(cfg).build())
```

```python
import sys, math, struct
from asmlib import *

KNAME = "standalone__mha_softmax__near_ridge"

HEADER = """
;
;              K/V stream through a 3-slot LDS ring (64 keys per slot) by LDS-DMA.  One barrier per 64 keys.
; Math       : S^T = K * (Q*log2e/sqrt(D))^T + C with v_mfma_f32_16x16x32_bf16, P = exp2(S), l += P (fp32), O += P * V.
"""

class Cfg:
    kname = KNAME + "_kernel"
    diag = False
    tsmode = 0
    echo = None
    jit = None
    force_slow = False
    verbose = 0
    trials = 0
    dflag = "nt"
    qflag = "nt"
    oflag = "sc1"
    bias = 2.0
    gamma = 3.0
    lo_exp = -30
    hi_exp = 30
    first = 8
    lead = 4
    wspan = 0.75
    fpos = 38
    pb_hi = 0.6
    sh_hi = 0.3
    s3_lo = 0.45
    bara = 36
    barb = 37
    qprio = (80, 80)
    space = (48, 64, 12)
    coarse = 8
    nK = 3
    nV = 3
    fun = (1, 3, 4)
    lat = 144
    glob = True
    gshare = 2
    apos = (4, 12, 16, 116, 204, 208)
    bpos = None
    pad = 0

PK, PV_ = 1056, 1040
HK, HV = 8 * PK, 8 * PV_
VO = 16 * PK
SS = 16 * PK + 16 * PV_
HP, HL, HM = 0, 3072, 6144
RB = 6400
RING = 3 * SS
STG = RB + RING
PQ = 1088
QT = 4 * PQ
PARK = 3 * QT
PRIV = 3 * QT + 512
LDS = STG + 4 * PRIV
assert LDS <= 163840 and SS + 15 * QT <= RING and 8 * QT >= SS
FG = 1

def O(t, db):
    if t == 6 and db >= 4: return ('a', 240 + 4 * (db - 4))
    return ('v', 32 * t + 4 * db)
def S(i): return 208 + 4 * (i & 3)
def P(U, ks): return 224 + 8 * (U & 1) + 4 * ks
CI = 240
def Lr(t): return 244 + t
vAK, vAV, vDMA, vEW, vER = 251, 252, 253, 254, 255
vVM, vHalf, vPK, vQS, vQA, vQB = 29, 28, 27, 25, 30, 31
def Q(t, ds): return ('a', 16 * t + 4 * ds)
def FQ(w, ds): return (('a', 96), ('a', 240), ('v', 192))[w][0], (96, 240, 192)[w] + 4 * ds
def FL(w): return (Lr(6), vEW, vER)[w]
def Kf(g, ds): return 112 + 16 * g + 4 * ds
def Vf(db, ks): return 176 + 8 * db + 4 * ks

sHi = 3
sQ, sK, sV, sO = 12, 16, 20, 24
sW, sCnt, sInc, sRd, sC, sQo, sSl = 28, 29, 30, 31, 32, 33, 34
sT0, sT1, sT2 = 35, 36, 37
sGK, sGK2, sGV, sGV2 = 64, 65, 66, 67
sWK, sWV, sWG = 68, 69, 70
sIncW, sIncN = 71, 72
sNT, sTile, sBlk, sStg, sQS, sQT, sMask = 73, 74, 75, 76, 77, 78, 79
sSt = 80
sWo, sDK, sDV, sOo = 87, 4, 5, 6
sC2 = 100
sStep = 7
sWKp, sWVp = 0, 38
sPr, sLK, sLV = 8, 10, 11

def rn(f, b, n): return "%s[%d:%d]" % (f, b, b + n - 1)
def mfma(D, A, B, C, half=False):
    n = 2 if half else 4
    cs = "0" if C is None else rn(C[0], C[1], 4)
    op = "v_mfma_f32_16x16x16_bf16" if half else "v_mfma_f32_16x16x32_bf16"
    return "%s %s, %s, %s, %s" % (op, rn(D[0], D[1], 4), rn(A[0], A[1], n), rn(B[0], B[1], n), cs)
def f2u(x): return struct.unpack("<I", struct.pack("<f", x))[0]
II = lambda l, **kw: [I(x, **kw) for x in l]

def edf(W, primary, secondary):
    def run(pos):
        items = sorted(W, key=lambda w: w[1]); res = {}; pend = []; i = 0
        for p in pos:
            while i < len(items) and items[i][1] <= p: pend.append(items[i]); i += 1
            pend.sort(key=lambda w: w[2])
            if pend:
                w = pend.pop(0)
                if w[2] < p: return None
                res[w[0]] = p
        return None if pend or i < len(items) else res
    sec = list(secondary)
    assert run(sorted(primary + sec)), "no reload schedule"
    for s in list(sec):
        t = list(sec); t.remove(s)
        if run(sorted(primary + t)): sec = t
    return run(sorted(primary + sec)), sec

class Wave:
    def __init__(self, gen, NT, tag):
        self.g, self.c, self.NT, self.tag = gen, gen.c, NT, tag
        self.a = NT == 7
        self.tau = (2, 1, 5, 4) if self.a else (2, 1, 4, 3)
        self.nK = self.c.nK if self.a else 16 - 3 * self.c.nK
        self.nV = self.c.nV if self.a else 16 - 3 * self.c.nV
        self.oinit = set()
        self.qprio = self.c.qprio[0]
        self.group = {}
        self.code = []
        self.npin = 0
        self.nts = 1

    def kread(self, g, ds, off=0):
        return "ds_read_b128 %s, v%d offset:%d" % (rn('a', Kf(g, ds), 4), vAK, off + (g >> 1) * HK + (g & 1) * 512 + ds * 64)
    def vread(self, g, db, off=0):
        return "ds_read_b64_tr_b16 %s, v%d offset:%d" % (rn('a', Vf(db, g >> 1) + 2 * (g & 1), 2), vAV, off + (g >> 1) * HV + (g & 1) * 512 + db * 16)
    def pread(self, U, par):
        return "ds_read_b64 %s, v%d offset:%d" % (rn('v', P(U, FG >> 1) + 2 * (FG & 1), 2), vDMA, HP + 8 * par)
    def pwrite(self, w, sb, par):
        return "ds_write_b64 v%d, %s offset:%d" % (vDMA, rn('v', sb, 2), HP + 1024 * w + 8 * par)
    def qk(self, t, g, sb, raw=False, desc=None, qf=None):
        if desc is None: desc = g & 1
        o = []
        for i, ds in enumerate(range(3, -1, -1) if desc else range(4)):
            o.append(Ins(mfma(('v', sb), ('a', Kf(g, ds)), qf(ds) if qf else Q(t, ds), (None if raw else ('v', CI)) if i == 0 else ('v', sb)), prio=self.qprio))
        return o
    def pv1(self, t, db, pb, ks, gs):
        D = O(t, db)
        assert (t, db) in self.oinit
        if len(gs) == 2: return mfma(D, ('v', pb), ('a', Vf(db, ks)), D)
        h = gs[0] & 1
        return mfma(D, ('v', pb + 2 * h), ('a', Vf(db, ks) + 2 * h), D, half=True)
    def pv(self, t, groups, pbase):
        o = []
        if len(groups) == 3:
            for ks in sorted((0, 1), key=lambda k: -len([g for g in groups if g >> 1 == k])):
                for db in range(8): o.append(self.pv1(t, db, pbase(ks), ks, [g for g in groups if g >> 1 == ks]))
            return II(o)
        for db in range(8):
            for ks in ((0, 1) if db % 2 == 0 else (1, 0)):
                gs = [g for g in groups if g >> 1 == ks]
                if gs: o.append(self.pv1(t, db, pbase(ks), ks, gs))
        return II(o)
    def pv_first(self, t, pbase):
        Bt = O(t, 3)
        o = ["v_mfma_f32_16x16x4_f32 %s, v%d, v%d, 0" % (rn('v', Bt[1], 4), Lr(t), vVM)]
        for r in range(4): o.append("v_and_or_b32 v%d, v%d, s%d, v%d" % (Bt[1] + r, Bt[1] + r, sMask, vHalf))
        o.append("ds_write_b128 v%d, %s offset:%d" % (vPK, rn('v', Bt[1], 4), 64 * t))
        if t == 6:
            for r in range(4): o.append("v_accvgpr_write_b32 a%d, v%d" % (O(6, 7)[1] + r, Bt[1] + r))
        for j, db in enumerate((0, 1, 2, 4, 5, 6, 7, 3)):
            D = O(t, db)
            for k, ks in enumerate((0, 1) if j % 2 == 0 else (1, 0)):
                C = D if k else (Bt if D[0] == 'v' else O(6, 7))
                o.append(mfma(D, ('v', pbase(ks)), ('a', Vf(db, ks)), C))
            self.oinit.add((t, db))
        return II(o)
    def wavemax(self, x, y):
        o = []
        for sw in ("v_permlane32_swap_b32", "v_permlane16_swap_b32"):
            o += ["v_mov_b32 v%d, v%d" % (y, x), "%s v%d, v%d" % (sw, x, y), "v_max_f32 v%d, v%d, v%d" % (x, x, y)]
        for k in (8, 4, 2, 1):
            o.append("v_max_f32_dpp v%d, v%d, v%d row_ror:%d row_mask:0xf bank_mask:0xf" % (x, x, x, k))
        return o
    def vmax(self):
        x, y, z = vVM, 16, 17
        o = ["v_accvgpr_read_b32 v%d, a%d" % (x, Vf(0, 0)), "v_accvgpr_read_b32 v%d, a%d" % (y, Vf(0, 0) + 2), "v_accvgpr_read_b32 v%d, a%d" % (z, Vf(0, 1) + 1),
             "v_max3_f32 v%d, |v%d|, |v%d|, |v%d|" % (x, x, y, z)] + self.wavemax(x, y)
        o.append("v_min_f32 v%d, 0x%08x, v%d" % (x, f2u(2.0 ** 60), x))
        o.append("v_mul_f32 v%d, 0x%08x, v%d" % (x, f2u(self.c.gamma), x))
        return o
    def sm8(self, L, sb, pdst):
        o = []
        for i in range(4):
            o.append(["v_exp_f32 v%d, v%d" % (sb + i, sb + i)])
            v = ["v_add_f32 v%d, v%d, v%d" % (L, L, sb + i)]
            if i & 1: v.append("v_cvt_pk_bf16_f32 v%d, v%d, v%d" % (pdst + i // 2, sb + i - 1, sb + i))
            o.append(v)
        return o
    def softmax(self, L, sb, pdst):
        return II([x for g in self.sm8(L, sb, pdst) for x in g])
    def pd(self, U, g): return P(U, g >> 1) + 2 * (g & 1)
    def tagged(self, text, grp, **kw):
        i = Ins(text, **kw); self.group[id(i)] = grp; return i
    def dma(self, va, srd, so, n, flag, grp):
        return self.tagged("buffer_load_dwordx4 v%d, s[%d:%d], s%d offen offset:%d %s lds" % (va, srd, srd + 3, so, 1024 * n, flag), grp)
    def share(self, kv, blk):
        srd, lo, base, pad = (sK, (blk & 1) * HK, sWK, PK - 1024) if kv == 'K' else (sV, VO + (blk & 1) * HV, sWV, PV_ - 1024)
        lds = RB + ((blk >> 1) % 3) * SS + lo
        o = []
        for n in range(2):
            if blk >= self.c.gshare:
                wb = sWKp if kv == 'K' else sWVp
                if n == 0: b = [Ins("s_add_u32 m0, s%d, %d" % (base, lds)), Ins("s_add_u32 s%d, s%d, %d" % (sPr, wb, blk * 8192)), Ins("s_addc_u32 s%d, s%d, 0" % (sPr + 1, wb + 1))]
                else: b = [Ins("s_add_u32 m0, m0, %d" % pad)]
                o.append(b + [self.tagged("global_load_lds_dwordx4 v%d, s[%d:%d] offset:%d %s" % (vDMA, sPr, sPr + 1, 1024 * n, self.c.dflag), "%s%d" % (kv, blk))])
                continue
            if n == 0: b = [Ins("s_add_u32 m0, s%d, %d" % (base, lds)), Ins("s_add_u32 s%d, s%d, %d" % (sT2, sWG, blk * 8192))]
            else: b = [Ins("s_add_u32 m0, m0, %d" % pad)]
            o.append(b + [self.dma(vDMA, srd, sT2, n, self.c.dflag, "%s%d" % (kv, blk))])
        return o
    def steady(self):
        o = []
        for srd, n, base, st, g1, g2 in ((sK, self.nK, sDK, PK, sGK, sGK2), (sV, self.nV, sDV, PV_, sGV, sGV2)):
            for j in range(n):
                if j == 0: m = "s_add_u32 m0, s%d, s%d" % (sSl, base)
                elif j % 4 == 0: m = "s_add_u32 m0, m0, %d" % (st - 1024 + 4096)
                else: m = "s_add_u32 m0, m0, %d" % (st - 1024)
                b = [Ins(m)]
                if self.c.glob:
                    if j == 0: b += [Ins("s_add_u32 s%d, s%d, s%d" % (sPr, srd, g1)), Ins("s_addc_u32 s%d, s%d, 0" % (sPr + 1, srd + 1))]
                    elif j % 4 == 0: b += [Ins("s_add_u32 s%d, s%d, s%d" % (sPr, sPr, sStep)), Ins("s_addc_u32 s%d, s%d, 0" % (sPr + 1, sPr + 1))]
                    o.append(b + [self.tagged("global_load_lds_dwordx4 v%d, s[%d:%d] offset:%d %s" % (vDMA, sPr, sPr + 1, 1024 * (j & 3), self.c.dflag), "S")])
                    continue
                if j >= 4 and j % 4 == 0: b.append(Ins("s_add_u32 s%d, s%d, %d" % (g2, g1, 1024 * j)))
                o.append(b + [self.dma(vDMA, srd, g1 if j < 4 else g2, j & 3, self.c.dflag, "S")])
        return o
    def qbuf(self, t):
        k = self.NT - 1 - t
        nr = self.NT - 3
        if k < nr: return sQS, vQA, k * 4 * QT
        return sStg, vQB, (k - nr) * QT
    def qload(self, t):
        sb, _, off = self.qbuf(t)
        o = []
        for n in range(4):
            if n == 0: b = [Ins("s_add_u32 m0, s%d, %d" % (sb, off)), Ins("s_sub_u32 s%d, s%d, %d" % (sT1, sQT, (self.NT - 1 - t) * 4096))]
            else: b = [Ins("s_add_u32 m0, m0, %d" % (PQ - 1024))]
            o.append(b + [self.dma(vQS, sQ, sT1, n, self.c.qflag, "Q%d" % t)])
        return o
    def waitv(self, grp):
        i = Ins("s_waitcnt vmcnt(0)"); self.group[id(i)] = "W:" + grp; return i
    def scale(self, t):
        tb = 32 * t + 16 if t < 6 else 16
        _, va, off = self.qbuf(t)
        o = [Ins("ds_read_b128 %s, v%d offset:%d" % (rn('v', 32 * t + 4 * ds, 4), va, off + ds * 64), xr=["L:Q%d" % t]) for ds in range(4)]
        for r0 in range(0, 16, 4):
            for r in range(r0, r0 + 4):
                a = tb + 2 * (r % 4)
                o.append("v_lshlrev_b32 v%d, 16, v%d" % (a, 32 * t + r))
                o.append("v_and_b32 v%d, s%d, v%d" % (a + 1, sHi, 32 * t + r))
            for r in range(r0, r0 + 4):
                a = tb + 2 * (r % 4)
                o.append("v_pk_mul_f32 %s, %s, %s" % (rn('v', a, 2), rn('v', a, 2), rn('s', sC2, 2)))
            for r in range(r0, r0 + 4):
                a = tb + 2 * (r % 4)
                o.append("v_cvt_pk_bf16_f32 v%d, v%d, v%d" % (32 * t + r, a, a + 1))
                o.append("v_accvgpr_write_b32 a%d, v%d" % (Q(t, 0)[1] + r, 32 * t + r))
        return II(o)
    def ts2(self):
        if not (self.c.diag and self.c.tsmode == 2) or self.nts >= 28: return []
        k = self.nts; self.nts += 1
        o = [Ins("s_memtime s[46:47]"), Ins("s_waitcnt lgkmcnt(0)"), Ins("s_mov_b32 s%d, s46" % (48 + k if k < 16 else 88 + k - 16))]
        for x in o: x.R.add("vmq"); x.W.add("vmq")
        return o
    def ts(self, idx):
        if not self.c.diag or self.c.tsmode >= 2: return []
        return [Ins("s_memrealtime s[44:45]"), Ins("s_memtime s[46:47]"), Ins("s_waitcnt lgkmcnt(0)"),
                Ins("s_mov_b32 s%d, s44" % (48 + 2 * idx)), Ins("s_mov_b32 s%d, s46" % (49 + 2 * idx))]
    def pin(self, ins, after):
        self.npin += 1
        after.W.add("pin%d" % self.npin); ins.R.add("pin%d" % self.npin)
        return ins
    def fence(self, grp, after, bar=False, lgkm0=False, frees=()):
        w = self.waitv(grp)
        if after is not None: self.pin(w, after)
        o = self.ts2() + [w]
        if bar: o.append(Ins("s_barrier", lgkm0=lgkm0))
        o[-1].W.add("L:" + grp)
        for f in frees: o[-1].W.add("L:" + f)
        if after is not None and o[0] is not w: self.pin(o[0], after)
        return o + self.ts2()
    def weave(self, body, bundles, span=(0.0, 0.9)):
        n, k = len(body), len(bundles)
        pos = [int(n * (span[0] + (span[1] - span[0]) * j / max(k, 1))) for j in range(k)]
        o = []; j = 0
        for i in range(n):
            o.append(body[i])
            while j < k and pos[j] <= i and (isvalu(body[i]) or i == n - 1):
                self.pin(bundles[j][-1], body[i]); o += bundles[j]; j += 1
        return o
    def unit0_qk(self):
        o = []
        for k, g in enumerate([g for g in range(4) if g != FG]): o += self.qk(0, g, S(g), desc=k & 1)
        return o

    def prologue(self):
        c, NT, tau = self.c, self.NT, self.tau
        T = NT - 1
        G0 = lambda t: [g for g in range(4) if tau[g] <= t]
        seq = self.share('K', 0) + self.qload(T) + self.share('K', 1) + self.qload(T - 1) + self.share('V', 0) + self.share('V', 1)
        for t in range(T - 2, -1, -1): seq += self.qload(t)
        nq = len(seq)
        for b in (2, 3): seq += self.share('K', b) + self.share('V', b)
        n1 = len(seq)
        for b in (4, 5): seq += self.share('K', b) + self.share('V', b)
        grp = [self.group[id(b[-1])] for b in seq]
        state = [0]
        def nxt(g, cap=None):
            want = c.first if g is None else max(j for j, x in enumerate(grp) if x == g) + 1 + c.lead
            want = min(want, len(seq) if cap is None else cap)
            r = seq[state[0]:want]
            state[0] = max(state[0], want)
            return r
        self.first = nxt(None, nq)
        misc = ["v_mov_b32 v%d, 0" % Lr(t) for t in range(7)]
        if not self.a: misc += ["v_mov_b32 v%d, 0" % FL(1), "v_mov_b32 v%d, 0" % FL(2)]
        self.code += II(misc)
        UA = lambda t: NT - t
        UB = lambda t: NT + t
        prog = self.fence("Q%d" % T, None)
        a = self.scale(T)
        prog += self.weave(a, nxt("K1", nq))
        prog += self.fence("K1", a[len(a) // 2], bar=True)
        body = II([self.kread(g, ds) for g in range(4) for ds in range(4)], xr=["L:K1"])
        for g in range(4): body += self.qk(T, g, S(g), raw=True)
        last = body[-1]
        x, y = 26, 29
        b2 = ["v_max3_f32 v%d, v%d, v%d, v%d" % (x, S(0), S(0) + 1, S(0) + 2),
              "v_max3_f32 v%d, v%d, v%d, v%d" % (x, x, S(0) + 3, S(0) + 4),
              "v_max3_f32 v%d, v%d, v%d, v%d" % (x, x, S(0) + 5, S(0) + 6),
              "v_max_f32 v%d, v%d, v%d" % (x, x, S(0) + 7)] + self.wavemax(x, y)
        b2 += [Ins("ds_write_b32 v24, v%d" % x, xw=["L:M"])]
        body += II(b2)
        prog += self.weave(body, nxt("Q%d" % (T - 1), nq), (0.0, 0.5))
        b3 = [Ins("s_barrier", lgkm0=True, xr=["L:M"], xw=["L:M"]), "v_mov_b32 v24, %d" % HM, Ins("ds_read_b128 %s, v24" % rn('v', CI, 4), xr=["L:M"]),
              "v_max3_f32 v%d, v%d, v%d, v%d" % (x, CI, CI + 1, CI + 2), "v_max_f32 v%d, v%d, v%d" % (x, x, CI + 3)]
        for i in range(4): b3.append("v_sub_f32 v%d, 0x%08x, v%d" % (CI + i, f2u(-c.bias), x))
        b3 = II(b3)
        last = b3[2]
        for g in range(4):
            b3 += II(["v_add_f32 v%d, v%d, v%d" % (S(g) + i, S(g) + i, CI) for i in range(4)])
            b3 += self.softmax(Lr(T), S(g), self.pd(UA(T), g))
        prog += b3
        sidx = [0]
        def unit(t, gs, U, post=None, desc=None):
            o = []
            for g in gs:
                sb = S(sidx[0]); sidx[0] += 1
                o += self.qk(t, g, sb, desc=desc)
                if post: o += post(g, o[-1])
                o += self.softmax(Lr(t), sb, self.pd(U, g))
            return o
        gorder = sorted(range(4), key=lambda g: tau[g])
        done = []
        def kreload(g, after):
            o = []
            if not done:
                done.append(1)
                o += self.fence("K2", after, bar=True, lgkm0=True, frees=["Q%d" % (T - 2), "Q%d" % (T - 3), "K1", "V1"])
                if self.a:
                    o += II(["ds_write_b128 v%d, %s offset:%d" % (vDMA, rn('a', Q(0, ds)[1], 4), RB + 3072 * ds) for ds in range(4)], xr=["L:K2"], xw=["L:V2"])
            return o + II([self.kread(g, ds, SS) for ds in range(4)], xr=["L:K2"])
        for t in range(T - 1, -1, -1):
            prog += self.fence("Q%d" % t, last)
            a = self.scale(t)
            if t == T - 1:
                prog += self.weave(a, nxt("V1", nq), (0.0, 0.5))
                prog += self.fence("V1", a[int(len(a) * 0.6)], bar=True, lgkm0=True, frees=["Q%d" % T, "Q%d" % (T - 1)])
                a = II([self.vread(g, db) for db in range(8) for g in range(4)], xr=["L:V1"])
                a += II(self.vmax())
            a += self.pv_first(t + 1, lambda ks: P(UA(t + 1), ks))
            if t > 0:
                u = unit(t, range(4), UA(t), desc=0)
                body = a + u
                cut = body.index(u[-c.fpos])
                prog += self.weave(body[:cut], nxt("Q%d" % (t - 1), n1), (0.0, c.wspan)) + body[cut:]
                last = u[-c.fpos]
            else:
                prog += self.weave(a, nxt("V3", n1), (0.0, c.wspan))
        prog += unit(0, gorder, UA(0), post=lambda g, m: kreload(g, m) if g < 2 else [], desc=0)
        pv0 = self.pv_first(0, lambda ks: P(UA(0), ks))
        prog += pv0[:-14] + self.fence("V2", pv0[-15], bar=True, lgkm0=True) + pv0[-14:]
        for g in gorder[:2]:
            prog += II([self.vread(g, db, SS) for db in range(8)], xr=["L:V2"])
        body = []
        for t in range(1, NT):
            if t == T:
                sidx[0] = 0
                u = unit(t, range(4), UB(t))
                if not self.a: u = u[:-10]
            else: u = unit(t, [g for g in gorder if g in G0(t)], UB(t))
            body += u
            if t == 2:
                body += self.fence("V3", u[-1], bar=True)
                for g in gorder[2:]: body += II([self.kread(g, ds, SS) for ds in range(4)], xr=["L:V3"])
                for g in gorder[2:]: body += II([self.vread(g, db, SS) for db in range(8)], xr=["L:V3"])
                body += II(["v_add_u32 v%d, %d, v%d" % (vAK, 2 * SS, vAK), "v_add_u32 v%d, %d, v%d" % (vAV, 2 * SS, vAV)])
            if t < T: body += self.pv(t, G0(t), lambda ks: P(UB(t), ks))
            if not self.a and 2 <= t <= 4:
                w = t - 2
                body += II(["ds_read_b128 %s, v%d offset:%d" % (rn(*FQ(w, ds), 4), vDMA, RB + 3072 * ds + 1024 * w) for ds in range(4)], xr=["L:V2"])
                sb = S(sidx[0]); sidx[0] += 1
                body += self.qk(0, FG, sb, qf=lambda ds: FQ(w, ds)) + self.softmax(FL(w), sb, sb) + II([self.pwrite(w, sb, 1)])
        if self.a: body += self.unit0_qk()[:9]
        prog += self.weave(body, nxt("V5"), (0.0, c.pb_hi))
        self.code += schedule(prog, c.verbose, order=True, pkmin=4, trials=c.trials)

    def window(self, p):
        c, NT, tau = self.c, self.NT, self.tau
        T = NT - 1
        first = p == 2
        ms, vs, use = [], [], []
        fixed = []
        def add(m, kind, t): ms.extend(m); use.extend([(kind, t)] * len(m))
        if self.a:
            U = NT * p
            add(self.unit0_qk()[9:], 'K', 0)
            add(self.pv(T, range(4), lambda ks: P(U - 1, ks)), 'V', -1)
            gs0 = [g for g in range(4) if g != FG]
            vs += [[], [], []] + self.sm8(Lr(0), S(gs0[0]), self.pd(U, gs0[0])) + self.sm8(Lr(0), S(gs0[1]), self.pd(U, gs0[1]))
            for t in range(1, NT):
                U = NT * p + t
                for g in range(4): add(self.qk(t, g, S(g)), 'K', t)
                add(self.pv(t - 1, range(4), lambda ks: P(U - 1, ks)), 'V', t - 1)
                vs += self.sm8(Lr(t - 1), S(3), self.pd(U - 1, 3))
                for g in range(3): vs += self.sm8(Lr(t), S(g), self.pd(U, g))
            add(self.unit0_qk()[:9], 'K', NT)
            vs += self.sm8(Lr(T), S(3), self.pd(U, 3)) + [[]]
        else:
            prevf = None
            for t in range(NT):
                U = NT * p + t
                base = len(ms)
                for k, g in enumerate((0, 1, 2, 3) if prevf is None else (0, 1, 3, 2)): add(self.qk(t, g, S(g), desc=k & 1), 'K', t)
                add(self.pv((t - 1) % NT, range(4), lambda ks: P(U - 1, ks)), 'V', t - 1)
                if prevf is None: vs += self.sm8(Lr((t - 1) % NT), S(3), self.pd(U - 1, 3))
                else:
                    vs += self.sm8(FL(prevf), S(2), S(2))
                    fixed.append((base + 9, self.pwrite(prevf, S(2), p & 1)))
                for g in range(3): vs += self.sm8(Lr(t), S(g), self.pd(U, g))
                prevf = None
                if t in c.fun:
                    prevf = w = c.fun.index(t)
                    add(self.qk(0, FG, S(2), qf=lambda ds: FQ(w, ds)), 'K', t)
                    x = self.sm8(Lr(t), S(3), self.pd(U, 3))
                    vs += x[:3] + [x[3] + x[4] + x[6] + x[5] + x[7]]
            assert prevf is None
        NG = len(ms)
        assert len(vs) == NG, (len(vs), NG)
        gaps = [dict(m=m, s=[], d=[], v=list(v)) for m, v in zip(ms, vs)]
        cost = lambda v: sum(8 if x.startswith("v_exp") else 4 for x in v)
        tm = [0]
        for g in gaps: tm.append(tm[-1] + max(16, 8 + cost(g['v'])))
        for pos, ins in fixed: gaps[pos]['d'].append(ins)
        W = []
        def win(name, regs, g):
            old = [j for j in range(NG) if regs & ms[j].R and use[j][1] < tau[g]]
            new = [j for j in range(NG) if regs & ms[j].R and use[j][1] >= tau[g]]
            lo, hi = max(old + [1]), min(new)
            assert lo < hi
            W.append((name, lo, max(j for j in range(NG) if tm[j] <= tm[hi] - c.lat)))
        for g in range(4):
            for ds in range(4): win(('K', g, ds), {"a%d" % Kf(g, ds)}, g)
            for db in range(8): win(('V', g, db), {"a%d" % (Vf(db, g >> 1) + 2 * (g & 1))}, g)
        if self.a:
            hi = min(j for j in range(NG) if use[j] == ('V', 0))
            W.append((('P', 0, 0), 1, hi - c.lat // 16))
        free = lambda j: not gaps[j]['d'] and cost(gaps[j]['v']) <= 4
        prim = [j for j in range(1, NG - 1) if free(j)]
        upd = prim[-2:]
        res = c.apos if self.a else c.bpos
        if res:
            prim = [j for j in prim if j not in res or not gaps[j]['v']]
        rd, sec = edf(W, prim[:-2], [j for j in prim if not gaps[j]['v'] and j not in (res or ())] if self.a else [j for j in range(2, NG - 10, 4) if cost(gaps[j]['v']) == 8 and len(gaps[j]['v']) == 1])
        for (kind, g, x), pos in rd.items():
            gaps[pos]['d'].append(self.kread(g, x) if kind == 'K' else self.vread(g, x) if kind == 'V' else self.pread(NT * p, (p - 1) & 1))
        assert max(rd.values()) < upd[0]
        gaps[upd[0]]['v'].append("v_add_u32 v%d, s%d, v%d" % (vAK, sInc, vAK))
        gaps[upd[1]]['v'].append("v_add_u32 v%d, s%d, v%d" % (vAV, sInc, vAV))
        gaps[0]['s'].append(Ins("s_barrier", lgkm0=True))
        dry, _ = insert_lgkm(self.flat(gaps))
        if c.coarse: dry = coarsen_waits(dry, c.coarse)
        j = -1
        for x in dry:
            if x.kind == "mfma": j += 1
            elif x.kind == "wait": gaps[j]['w'] = True
        lo = 1
        if first:
            f = min(pos for (k, g, x), pos in rd.items() if k == 'V' or (k == 'K' and g >= 2))
            f = min(f, c.bara if self.a else c.barb)
            gaps[f - 1]['s'].append(self.waitv("V5"))
            gaps[f]['s'].append(Ins("s_barrier"))
            bl = []
            for blk in (6, 7): bl += self.share('K', blk) + self.share('V', blk)
            self.place(gaps, bl, 3, int(NG * c.sh_hi), cost)
            lo = int(NG * c.s3_lo)
        lastd = self.place(gaps, self.steady(), lo, NG - 2, cost, greedy=not first, res=res)
        def put(seq, lo_, hi_):
            for j0 in range(lo_, hi_):
                js = []; j = j0
                while len(js) < len(seq) and j < hi_ and not gaps[j].get('busy') and not gaps[j]['s']:
                    if not gaps[j].get('w'): js.append(j)
                    j += 1
                if len(js) == len(seq):
                    for q, x in zip(js, seq): gaps[q]['s'].append(x)
                    for q in range(js[0], js[-1] + 1): gaps[q]['busy'] = True
                    return js[-1]
            raise RuntimeError("no scalar slots")
        put(["s_add_u32 s%d, s%d, %d" % (sRd, sRd, SS), "s_cmp_eq_u32 s%d, %d" % (sRd, RING),
             "s_cselect_b32 s%d, s%d, s%d" % (sInc, sIncW, sIncN), "s_cselect_b32 s%d, 0, s%d" % (sRd, sRd)], NG // 2, upd[0] - 1)
        lastuse = {}
        for j, g in enumerate(gaps):
            for x in g['s'] + g['d']:
                for r in I(x).R: lastuse[r] = j
        put(["s_add_u32 s%d, s%d, %d" % (sSl, sSl, SS), "s_cmp_eq_u32 s%d, %d" % (sSl, RING), "s_cselect_b32 s%d, 0, s%d" % (sSl, sSl)],
            lastuse.get("s%d" % sSl, 0) + 1, NG - 3)
        for r in (sGK, sGV):
            if "s%d" % r in lastuse:
                j = put(["s_add_u32 s%d, s%d, 16384" % (r, r)], lastuse["s%d" % r] + 1, NG - 3)
                if c.glob: lastuse[r] = put(["s_cmp_gt_u32 s%d, s%d" % (r, sLK if r == sGK else sLV), "s_cselect_b32 s%d, 0, s%d" % (r, r)], j + 1, NG - 3)
        if "s%d" % sStep in lastuse:
            put(["s_cmp_eq_u32 s%d, 0" % sGK, "s_cselect_b32 s%d, 0, s%d" % (sStep, sStep)], max(lastuse["s%d" % sStep], lastuse[sGK]) + 1, NG - 3)
        if p == 4: put(["s_sub_u32 s%d, s%d, 1" % (sCnt, sCnt)], max(j for j in range(NG) if gaps[j]['s']) + 1, NG - 2)
        j = max(lastd + 1, NG - 2)
        assert j <= NG - 2 or not self.a
        gaps[j]['s'].append(self.waitv("V7") if first else Ins("s_waitcnt vmcnt(%d)" % (self.nK + self.nV)))
        if c.verbose > 1 and p == 3:
            est = sum(max(16, 8 + cost(g['v']) + sum(16 if I(x).kind == "dsw" else 4 for x in g['d'])) for g in gaps)
            print(self.tag, "gaps", NG, "est", est, "sec", sec, "dma at", [j for j, g in enumerate(gaps) if any(I(x).kind == "dma" for x in g['d'])])
        return gaps
    def place(self, gaps, bundles, lo, hi, cost, greedy=False, res=None):
        room = lambda i: 8 - cost(gaps[i]['v']) - 4 * len(gaps[i]['d'])
        k = len(bundles)
        if greedy and res:
            pos = sorted(res); assert len(pos) == k
        elif greedy:
            pos = [i for i in range(lo + (3 if self.c.glob else 0), hi) if room(i) >= 4][:k]
            ex = [i for i in range(lo + 8, hi - 12) if not gaps[i]['d'] and len(gaps[i]['v']) == 1 and room(i) == 0]
            while len(pos) < k:
                pos.append(max(ex, key=lambda i: min(abs(i - q) for q in pos + [lo - 20]))); pos.sort()
        else:
            cand = [i for i in range(lo + 2, hi - 8) if room(i) >= 4 or (not gaps[i]['d'] and len(gaps[i]['v']) == 1)]
            pos = []
            for j, b in enumerate(bundles):
                tgt = lo + 2 + (hi - 8 - lo - 2) * j / k
                cc = [i for i in cand if not pos or i - len(b) >= pos[-1]]
                pos.append(min(cc, key=lambda i: abs(i - tgt) - (4 if room(i) >= 4 else 0)))
        prev = -1
        for b, i in zip(bundles, pos):
            ns = len(b) - 1
            top = i if (ns > 1 or gaps[i]['d']) else i - 1
            js = [j for j in range(max(prev + 1, 1), top + 1) if not gaps[j]['s'] and not gaps[j].get('w')][-ns:]
            if len(js) < ns: js = list(range(max(prev + 1, 0), top + 1))[-ns:]
            assert len(js) == ns, (i, prev)
            for q, ins in zip(js, b[:-1]): gaps[q]['s'].append(ins)
            for q in range(js[0], js[-1] + 1): gaps[q]['busy'] = True
            gaps[i]['d'].append(b[-1])
            prev = i
        return prev
    def flat(self, gaps):
        o = []
        for g in gaps:
            o.append(I(g['m']))
            o += II(g['s'] + g['d'] + g['v'])
        return o

    def finalize(self, t, k, Lm, packs, acct, Lreg=None, soff=None, nb=None):
        c = self.c
        buf = k & 1
        st = "L:st%d" % buf
        Lreg = Lr(t) if Lreg is None else Lreg
        land = Q(t, 0)[1]
        x, y = Lm + 3, Lm + 2
        o = ["v_mov_b32 v%d, v%d" % (y, Lreg), "v_permlane32_swap_b32 v%d, v%d" % (Lreg, y), "v_add_f32 v%d, v%d, v%d" % (Lreg, Lreg, y),
             "v_mov_b32 v%d, v%d" % (y, Lreg), "v_permlane16_swap_b32 v%d, v%d" % (Lreg, y), "v_add_f32 v%d, v%d, v%d" % (Lreg, Lreg, y),
             "v_rcp_f32 v%d, v%d" % (x, Lreg)]
        for g in (1, 2, 3):
            o.append("v_mov_b32_dpp v%d, v%d row_ror:%d row_mask:0x%x bank_mask:0xf" % (x, x, 16 - 4 * g, 1 << g))
        for r in range(4):
            o.append("v_mov_b32_dpp v%d, v%d row_newbcast:%d row_mask:0xf bank_mask:0xf" % (Lm + r, x, r))
        if nb is not None:
            o.append("ds_read_b128 %s, v%d offset:%d" % (rn('v', nb, 4), vAK, 64 * t))
            for r in range(4): o.append("v_mul_f32 v%d, v%d, v%d" % (nb + r, nb + r, Lm + r))
        loc = {}
        for db in range(8):
            f, b = O(t, db)
            if f == 'a':
                for r in range(4):
                    o.append("v_accvgpr_read_b32 v%d, a%d" % (acct + 4 * (db - 4) + r, b + r))
                b = acct + 4 * (db - 4)
            loc[db] = b
        for db in range(8):
            for r in (0, 2):
                if nb is None: o.append("v_pk_mul_f32 %s, %s, %s" % (rn('v', loc[db] + r, 2), rn('v', loc[db] + r, 2), rn('v', Lm + r, 2)))
                else: o.append("v_pk_fma_f32 %s, %s, %s, %s neg_lo:[0:0:1] neg_hi:[0:0:1]" % (rn('v', loc[db] + r, 2), rn('v', loc[db] + r, 2), rn('v', Lm + r, 2), rn('v', nb + r, 2)))
        for r in range(4):
            pb = packs[r % len(packs)]
            for j in range(4):
                o.append("v_cvt_pk_bf16_f32 v%d, v%d, v%d" % (pb + j, loc[2 * j] + r, loc[2 * j + 1] + r))
            o.append(Ins("ds_write_b128 v%d, %s offset:%d" % (vEW, rn('v', pb, 4), r * 320 + buf * 5120), xw=[st + "r%d" % r]))
        if soff is None:
            soff = sSt + t
            o.append("s_add_u32 s%d, s%d, %d" % (soff, sOo, t * 4096))
        for a in range(4):
            for sel in range(2):
                o.append(Ins("ds_read_b64_tr_b16 %s, v%d offset:%d" % (rn('a', land + 4 * a + 2 * sel, 2), vER, a * 1280 + 64 * sel + buf * 5120), xr=[st + "r%d" % r for r in range(4)]))
        for a in range(4):
            o.append("buffer_store_dwordx4 %s, v%d, s[%d:%d], s%d offen offset:%d %s" % (rn('a', land + 4 * a, 4), vDMA, sO, sO + 3, soff, a * 1024, c.oflag))
        return II(o)

    def tail(self):
        c, NT, tau = self.c, self.NT, self.tau
        T = NT - 1
        U = NT * 31
        G1 = lambda t: [g for g in range(4) if tau[g] > t]
        ring = dict(xr=["L:ring"])
        self.qprio = c.qprio[1]
        pre = []
        if not self.a:
            pre = II(["ds_write_b32 v%d, v%d offset:%d" % (vDMA, FL(w), HL + 1024 * w) for w in range(3)])
        prog = [Ins("s_barrier", lgkm0=True, xw=["L:ring"])]
        if self.a:
            prog += self.unit0_qk()[9:] + [Ins(self.pread(U, 0), **ring), Ins("ds_read_b32 v%d, v%d offset:%d" % (S(FG), vDMA, HL), **ring)]
        else:
            prog += self.softmax(Lr(T), S(3), self.pd(U - 1, 3)) + II(self.g.epi_addr(192, 193, 194))
        prog += self.pv(T, range(4), lambda ks: P(U - 1, ks))
        sidx = 0
        for t in range(NT):
            gs = G1(t)
            if not gs: continue
            pb = (lambda u: (lambda ks: P(u, ks)))(U)
            for g in gs:
                sb = S(sidx); sidx += 1
                if not (self.a and t == 0): prog += self.qk(t, g, sb)
                if tau[g] == t + 1: prog += [Ins(self.kread(g, ds), **ring) for ds in range(4)]
                if self.a and t == 0 and g == FG: prog += II(["v_add_f32 v%d, v%d, v%d" % (Lr(0), Lr(0), S(FG))])
                else: prog += self.softmax(Lr(t), sb, self.pd(U, g))
            prog += self.pv(t, gs, pb)
            for db in range(8):
                prog += [Ins(self.vread(g, db), **ring) for g in gs if tau[g] == t + 1]
            U += 1
        order = [t for t in range(NT) if not G1(t)] + [t for t in range(NT) if G1(t)]
        gorder = sorted(range(4), key=lambda g: tau[g])
        pool = 32 * order[0]
        for k, t in enumerate(order):
            pb = (lambda u: (lambda ks: P(u, ks)))(U)
            for g in (gorder if k == 0 else range(4)):
                sb = S(sidx); sidx += 1
                prog += self.qk(t, g, sb)
                prog += self.softmax(Lr(t), sb, self.pd(U, g))
            prog += self.pv(t, range(4), pb)
            U += 1
            if k == 0:
                prog += II(["v_bfe_u32 v%d, v%d, 8, 2" % (vAK, vDMA), "v_lshl_add_u32 v%d, v%d, 4, s%d" % (vAK, vAK, sT0)])
                prog += self.finalize(t, k, pb(0), [pb(0), pb(1)], None, nb=pb(1))
            elif t == 6: prog += self.finalize(t, k, pool + 8 * (k & 1), [pool, pool + 4, pool + 8, pool + 12], pool + 16, nb=pool + 8 * (k & 1) + 4)
            else: prog += self.finalize(t, k, pool + 8 * (k & 1), [pool + 16, pool + 20, pool + 24, pool + 28], None, nb=pool + 8 * (k & 1) + 4)
        ls = [Lr(t) for t in range(NT)] + [Lr(0)]
        for op, r in (("v_max3_u32", vAK), ("v_min3_u32", vAV)):
            prog += II(["%s v%d, v%d, v%d, v%d" % (op, r, ls[0], ls[1], ls[2]), "%s v%d, v%d, v%d, v%d" % (op, r, r, ls[3], ls[4]),
                        "%s v%d, v%d, v%d, v%d" % (op, r, r, ls[5], ls[6])])
        return pre + schedule(prog, c.verbose, order=True, trials=c.trials, space=dict(zip(('dsw', 'vstore', 'dsr'), c.space)))

    def resolve_waits(self, seq):
        issued = [self.group[id(b[-1])] for b in self.first]
        for i in seq:
            g = self.group.get(id(i))
            if i.kind in ("dma", "vload", "vstore"): issued.append(g)
            elif g and g.startswith("W:"):
                last = max(j for j, x in enumerate(issued) if x == g[2:])
                i.text = "s_waitcnt vmcnt(%d)" % min(63, len(issued) - 1 - last)

    def build(self):
        c, NT, tag = self.c, self.NT, self.tag
        self.code = [Ins("L_wave_%s:" % tag)]
        self.prologue()
        self.code += self.ts(1) + self.ts(2) + self.ts2()
        self.code.append(self.waitv("K4"))
        self.code += self.flat(self.window(2)) + self.ts2() + self.ts(3)
        self.resolve_waits(self.code)
        head, pend = insert_lgkm(self.code)
        assert not pend
        if c.coarse: head = coarsen_waits(head, c.coarse)
        head = pad_hazards(head)
        gaps = self.window(3) + self.window(4)
        body, pend = insert_lgkm(self.flat(gaps))
        assert not pend
        if c.coarse: body = coarsen_waits(body, c.coarse)
        body.append(Ins("s_cbranch_scc0 L_loop_%s" % tag))
        pad_hazards(body, hist=head[-16:], fix=False, name="loop entry")
        pad_hazards(body, hist=body[-16:], fix=False, name="loop back")
        tail = self.ts(4) + self.tail()
        tail += [Ins("v_cmp_le_u32 vcc, 0x%08x, v%d" % (f2u(2.0 ** c.hi_exp), vAK)),
                 Ins("s_mov_b64 s[%d:%d], vcc" % (sT1, sT1 + 1)),
                 Ins("v_cmp_ge_u32 vcc, 0x%08x, v%d" % (f2u(2.0 ** c.lo_exp), vAV)),
                 Ins("s_or_b64 s[%d:%d], s[%d:%d], vcc" % (sT1, sT1 + 1, sT1, sT1 + 1)),
                 Ins("s_mov_b32 s%d, %d" % (sNT, NT)),
                 Ins("s_cbranch_scc1 L_slow" if not c.force_slow else "s_branch L_slow")]
        tail += self.ts(5)
        if c.diag: tail += [Ins("s_waitcnt vmcnt(0)")] + self.ts(6)
        tail.append(Ins("s_branch L_fin" if c.diag else "s_endpgm"))
        tail, pend = insert_lgkm(tail)
        tail = pad_hazards(tail, hist=body[-16:])
        res = head + [Ins(".p2align 6"), Ins("L_loop_%s:" % tag)] + body + tail
        if c.jit:
            w, n, before = c.jit
            o = []
            for k, x in enumerate(res):
                d = [Ins("s_cselect_b32 s98, 1, 0"), Ins("s_cmp_lg_u32 s%d, %d" % (sW, w)), Ins("s_cbranch_scc1 L_j%s%d" % (tag, k)), Ins("s_sleep %d" % n), Ins("L_j%s%d:" % (tag, k)), Ins("s_cmp_lg_u32 s98, 0")]
                if x.kind == "barrier" and before: o += d
                o.append(x)
                if x.kind == "barrier" and not before: o += d
            res = o
        return res

class Gen:
    def __init__(self, cfg):
        self.c = cfg
    def epi_addr(self, a, b, d):
        return ["v_bfe_u32 v%d, v%d, 8, 2" % (a, vDMA), "v_and_b32 v%d, 0xf0, v%d" % (b, vDMA),
                "v_mul_u32_u24 v%d, 0x500, v%d" % (vEW, a), "v_add3_u32 v%d, v%d, v%d, s%d" % (vEW, vEW, b, sStg),
                "v_mul_u32_u24 v%d, 0x140, v%d" % (vER, a), "v_bfe_u32 v%d, v%d, 6, 2" % (d, vDMA), "v_lshl_add_u32 v%d, v%d, 4, v%d" % (vER, d, vER),
                "v_bfe_u32 v%d, v%d, 4, 1" % (d, vDMA), "v_lshl_add_u32 v%d, v%d, 3, v%d" % (vER, d, vER),
                "v_bfe_u32 v%d, v%d, 5, 1" % (d, vDMA), "v_lshl_add_u32 v%d, v%d, 7, v%d" % (vER, d, vER),
                "v_add_u32 v%d, s%d, v%d" % (vER, sStg, vER)]
    def slow(self):
        c = self.c
        w = Wave(self, 7, "s")
        o = []
        e = lambda s: o.extend(Ins(l) for l in s.strip().split("\n"))
        vL, vKA, vVA, vQA_, vM, vX = 64, 65, 66, 67, 68, 69
        KF = lambda kg, ds: 72 + 16 * kg + 4 * ds
        VF = lambda db: 104 + 4 * db
        QF = lambda ds: 136 + 4 * ds
        SB, PB, LM, PKB = 152, 160, 164, 168
        e("L_slow:")
        e("s_waitcnt vmcnt(0) lgkmcnt(0)")
        e("v_and_b32 v%d, 0x3ff, v%d" % (vDMA, vDMA))
        e("v_lshrrev_b32 v%d, 4, v%d" % (vX, vDMA))
        e("v_and_b32 v%d, 7, v%d\nv_lshlrev_b32 v%d, 10, v%d" % (vM, vX, vKA, vM))
        e("v_and_b32 v%d, 8, v%d\nv_lshl_add_u32 v%d, v%d, 5, v%d" % (vM, vX, vKA, vM, vKA))
        e("v_and_b32 v%d, 48, v%d\nv_add_u32 v%d, v%d, v%d" % (vM, vX, vKA, vM, vKA))
        e("v_and_b32 v%d, 15, v%d\nv_lshlrev_b32 v%d, 8, v%d" % (vM, vX, vQA_, vM))
        e("v_and_b32 v%d, 48, v%d\nv_add_u32 v%d, v%d, v%d" % (vM, vX, vQA_, vM, vQA_))
        e("v_bfe_u32 v%d, v%d, 2, 3\nv_mul_u32_u24 v%d, %d, v%d" % (vM, vX, vVA, PV_, vM))
        e("v_and_b32 v%d, 32, v%d\nv_lshl_add_u32 v%d, v%d, 3, v%d" % (vM, vX, vVA, vM, vVA))
        e("v_and_b32 v%d, 1, v%d\nv_lshl_add_u32 v%d, v%d, 3, v%d" % (vM, vX, vVA, vM, vVA))
        e("v_and_b32 v%d, 2, v%d\nv_lshl_add_u32 v%d, v%d, 6, v%d" % (vM, vX, vVA, vM, vVA))
        e("v_add_u32 v%d, s%d, v%d" % (vVA, sStg, vVA))
        e("s_mov_b32 s%d, 0" % sTile)
        e("L_slow_tile:")
        e("s_lshl_b32 s%d, s%d, 12\ns_add_u32 s%d, s%d, s%d" % (sSt, sTile, sSt, sSt, sQo))
        for ds in range(4):
            e("buffer_load_dwordx4 %s, v%d, s[%d:%d], s%d offen offset:%d" % (rn('v', QF(ds), 4), vQA_, sQ, sQ + 3, sSt, ds * 64))
        e("s_waitcnt vmcnt(0)")
        for r in range(16):
            q = QF(0) + r
            e("v_lshlrev_b32 v%d, 16, v%d\nv_and_b32 v%d, s%d, v%d" % (vM, q, vX, sHi, q))
            e("v_mul_f32 v%d, s%d, v%d\nv_mul_f32 v%d, s%d, v%d" % (vM, sC2, vM, vX, sC2, vX))
            e("v_cvt_pk_bf16_f32 v%d, v%d, v%d" % (q, vM, vX))
        def kload():
            for kg in range(2):
                for ds in range(4):
                    e("buffer_load_dwordx4 %s, v%d, s[%d:%d], s%d offen offset:%d" % (rn('v', KF(kg, ds), 4), vKA, sK, sK + 3, sBlk, kg * 512 + ds * 64))
        def qk(raw):
            for kg in range(2):
                for ds in range(4):
                    e(mfma(('v', SB + 4 * kg), ('v', KF(kg, ds)), ('v', QF(ds)), (None if raw else ('v', CI)) if ds == 0 else ('v', SB + 4 * kg)))
        e("v_mov_b32 v%d, 0xff800000\ns_mov_b32 s%d, 0" % (vM, sBlk))
        e("L_slow_max:")
        kload()
        e("s_waitcnt vmcnt(0)")
        qk(True)
        e("s_nop 7")
        for i in range(0, 8, 2):
            e("v_max3_f32 v%d, v%d, v%d, v%d" % (vM, vM, SB + i, SB + i + 1))
        e("s_add_u32 s%d, s%d, 8192\ns_cmp_lt_u32 s%d, 524288\ns_cbranch_scc1 L_slow_max" % (sBlk, sBlk, sBlk))
        for sw in ("v_permlane32_swap_b32", "v_permlane16_swap_b32"):
            e("v_mov_b32 v%d, v%d\n%s v%d, v%d\nv_max_f32 v%d, v%d, v%d" % (vX, vM, sw, vM, vX, vM, vM, vX))
        for i in range(4): e("v_sub_f32 v%d, 0, v%d" % (CI + i, vM))
        for r in range(32): e("v_mov_b32 v%d, 0" % r)
        e("v_mov_b32 v%d, 0\ns_mov_b32 s%d, 0" % (vL, sBlk))
        e("L_slow_pv:")
        kload()
        e("s_add_u32 s%d, s%d, 4096" % (sT0, sBlk))
        for a in range(2):
            for n in range(4):
                e("s_add_u32 m0, s%d, %d" % (sStg, 4 * PV_ * a + (PV_ - 1024) * n))
                e("buffer_load_dwordx4 v%d, s[%d:%d], s%d offen offset:%d lds" % (vDMA, sV, sV + 3, sT0 if a else sBlk, 1024 * n))
        e("s_waitcnt vmcnt(0)")
        for db in range(8):
            for hb in range(2):
                e("ds_read_b64_tr_b16 %s, v%d offset:%d" % (rn('v', VF(db) + 2 * hb, 2), vVA, hb * 512 + db * 16))
        qk(False)
        e("s_nop 7")
        for i in range(8): e("v_exp_f32 v%d, v%d" % (SB + i, SB + i))
        for i in range(8): e("v_add_f32 v%d, v%d, v%d" % (vL, vL, SB + i))
        for i in range(4): e("v_cvt_pk_bf16_f32 v%d, v%d, v%d" % (PB + i, SB + 2 * i, SB + 2 * i + 1))
        e("s_waitcnt lgkmcnt(0)")
        for db in range(8):
            e(mfma(('v', 4 * db), ('v', PB), ('v', VF(db)), ('v', 4 * db)))
        e("s_nop 7")
        e("s_add_u32 s%d, s%d, 8192\ns_cmp_lt_u32 s%d, 524288\ns_cbranch_scc1 L_slow_pv" % (sBlk, sBlk, sBlk))
        o.extend(w.finalize(0, 0, LM, [PKB], None, Lreg=vL, soff=sSt))
        e("s_waitcnt vmcnt(0) lgkmcnt(0)")
        e("s_add_u32 s%d, s%d, 1\ns_cmp_lt_u32 s%d, s%d\ns_cbranch_scc1 L_slow_tile" % (sTile, sTile, sTile, sNT))
        o, _ = insert_lgkm(o, hoist=False)
        return pad_hazards(o)

    def build(self):
        c = self.c
        o = []
        e = lambda s: o.extend(Ins(l) for l in s.strip().split("\n"))
        wa, wb = Wave(self, 7, "a"), Wave(self, 6, "b")
        ca, cb = wa.build(), wb.build()
        assert [[x.text for x in b] for b in wa.first] == [[x.text for x in b] for b in wb.first]
        assert sum(x.kind == "barrier" for x in ca) == sum(x.kind == "barrier" for x in cb)
        e("s_cmp_ge_u32 s2, 256\ns_cbranch_scc1 L_end")
        e("s_load_dwordx4 s[4:7], s[0:1], 0\ns_load_dwordx4 s[8:11], s[0:1], 16")
        if c.diag:
            e("s_load_dwordx2 s[40:41], s[0:1], 40")
            e("s_memrealtime s[44:45]\ns_memtime s[46:47]\ns_waitcnt lgkmcnt(0)\ns_mov_b32 s48, s44\ns_mov_b32 s49, s46")
            if c.tsmode == 2: e("s_mov_b32 s48, s46")
        e("s_getpc_b64 s[38:39]")
        e("L_pc:")
        e("s_bfe_u32 s%d, s2, 0x30003\ns_lshl_b32 s%d, s%d, 13" % (sC, sC, sC))
        e("v_lshlrev_b32 v2, 5, v0\nv_add_u32 v2, s%d, v2\nv_min_u32 v2, L_slow-L_pc, v2" % sC)
        e("global_load_dword v63, v2, s[38:39]")
        e("v_lshrrev_b32 v1, 6, v0")
        e("v_and_b32 v0, 63, v0")
        e("v_readfirstlane_b32 s%d, v1" % sW)
        e("v_lshlrev_b32 v%d, 4, v0" % vDMA)
        e("v_and_b32 v2, 48, v0\nv_xor_b32 v%d, v2, v%d" % (vQS, vDMA))
        e("s_mul_i32 s%d, s2, 110592" % sT0)
        e("s_lshl_b32 s3, s2, 19")
        e("s_mov_b32 s%d, 524288\ns_mov_b32 s%d, 0x20000\ns_mov_b32 s%d, 110592\ns_mov_b32 s%d, 0x20000" % (sK + 2, sK + 3, sQ + 2, sQ + 3))
        e("s_mul_i32 s%d, s%d, %d" % (sQo, sW, 112 * 256))
        e("s_add_u32 s%d, s%d, %d\ns_min_u32 s%d, s%d, %d" % (sQT, sQo, 6 * 4096, sQT, sQT, 26 * 4096))
        e("s_mul_i32 s%d, s%d, %d" % (sWK, sW, 2 * PK))
        e("s_lshl_b32 s%d, s%d, 10\ns_cmp_eq_u32 s%d, 3\ns_cselect_b32 s%d, 0, s%d" % (sWo, sW, sW, sWo, sWo))
        e("s_lshl_b32 s%d, s%d, 11\ns_sub_u32 s%d, s%d, s%d" % (sWG, sW, sWG, sWG, sWo))
        e("v_add_u32 v%d, s%d, v%d" % (vDMA, sWo, vDMA))
        e("s_mul_i32 s%d, s%d, %d\ns_add_u32 s%d, s%d, %d" % (sQS, sW, QT, sQS, sQS, RB + SS))
        e("s_waitcnt lgkmcnt(0)")
        def srd(r, src, offs):
            e("s_add_u32 s%d, s%d, s%d\ns_addc_u32 s%d, s%d, 0" % (r, src, offs, r + 1, src + 1))
        srd(sK, 6, 3); srd(sQ, 4, sT0)
        for b in wa.first[:8]: o.extend(b)
        srd(sV, 8, 3); srd(sO, 10, sT0)
        e("s_mov_b32 s%d, 524288\ns_mov_b32 s%d, 0x20000\ns_mov_b32 s%d, 110592\ns_mov_b32 s%d, 0x20000" % (sV + 2, sV + 3, sO + 2, sO + 3))
        e("s_mul_i32 s%d, s%d, %d" % (sWV, sW, 2 * PV_))
        for b in wa.first[8:]: o.extend(b)
        cs = f2u(math.log2(math.e) / math.sqrt(128.0))
        e("s_mov_b32 s%d, 0x%08x\ns_mov_b32 s%d, 0x%08x" % (sC2, cs, sC2 + 1, cs))
        e("s_mul_i32 s%d, s%d, %d\ns_add_u32 s%d, s%d, %d" % (sStg, sW, PRIV, sStg, sStg, STG))
        e("s_mov_b32 s%d, %d\ns_mov_b32 s%d, %d\ns_mov_b32 s%d, %d" % (sRd, 2 * SS, sIncW, (-2 * SS) & 0xffffffff, sIncN, SS))
        e("s_mov_b32 s%d, 13\ns_mov_b32 s%d, %d" % (sCnt, sSl, SS))
        e("s_mov_b32 s%d, 0xff800000\ns_mov_b32 s%d, 0xffff0000" % (sMask, sHi))
        e("s_sub_u32 s%d, s%d, s%d" % (sOo, sQo, sWo))
        for n, st, base, d, g1, g2 in ((c.nK, PK, RB, sDK, sGK, sGK2), (c.nV, PV_, RB + VO, sDV, sGV, sGV2)):
            e("s_mul_i32 s%d, s%d, %d\ns_add_u32 s%d, s%d, %d" % (d, sW, n * st, d, d, base))
            e("s_mul_i32 s%d, s%d, %d\ns_sub_u32 s%d, s%d, s%d\ns_add_u32 s%d, s%d, %d\ns_add_u32 s%d, s%d, 4096" % (g1, sW, n * 1024, g1, g1, sWo, g1, g1, 4 * 16384, g2, g1))
        e("s_add_u32 s%d, s%d, %d\ns_add_u32 s%d, s%d, %d" % (sLK, sGK, 27 * 16384, sLV, sGV, 27 * 16384))
        srd(sWKp, sK, sWG); srd(sWVp, sV, sWG)
        e("s_movk_i32 s%d, 4096" % sStep)
        e("s_add_u32 s%d, s%d, %d" % (sT0, sStg, PARK))
        e("v_mov_b32 v%d, 0x00400000\nv_add_u32 v%d, s%d, v2" % (vHalf, vPK, sT0))
        e("v_lshlrev_b32 v24, 2, v1\nv_add_u32 v24, %d, v24" % HM)
        e("v_bfe_u32 v3, v0, 2, 2\nv_mul_u32_u24 v%d, %d, v3" % (vQA, PQ))
        e("v_and_b32 v3, 3, v0\nv_lshl_add_u32 v%d, v3, 8, v%d" % (vQA, vQA))
        e("v_lshlrev_b32 v3, 4, v3\nv_xor_b32 v3, v2, v3")
        e("v_add3_u32 v%d, v%d, v3, s%d\nv_add3_u32 v%d, v%d, v3, s%d" % (vQB, vQA, sStg, vQA, vQA, sQS))
        e("v_and_b32 v3, 7, v0\nv_mul_u32_u24 v%d, %d, v3" % (vAK, PK))
        e("v_and_b32 v3, 8, v0\nv_lshl_add_u32 v%d, v3, 5, v%d" % (vAK, vAK))
        e("v_add_u32 v%d, v2, v%d\nv_add_u32 v%d, %d, v%d" % (vAK, vAK, vAK, RB, vAK))
        e("v_and_b32 v3, 1, v0\nv_lshlrev_b32 v4, 3, v3\nv_and_b32 v3, 2, v0\nv_lshl_add_u32 v4, v3, 6, v4")
        e("v_bfe_u32 v3, v0, 2, 3\nv_mul_u32_u24 v%d, %d, v3" % (vAV, PV_))
        e("v_and_b32 v3, 32, v0\nv_lshl_add_u32 v%d, v3, 3, v%d" % (vAV, vAV))
        e("v_add_u32 v%d, v4, v%d\nv_add_u32 v%d, %d, v%d" % (vAV, vAV, vAV, RB + VO, vAV))
        e("s_cmp_eq_u32 s%d, 3" % sW)
        e("s_cbranch_scc1 L_wave_b")
        e("\n".join(self.epi_addr(1, 2, 3)))
        o[:] = pad_hazards(o)
        if c.pad: o += [Ins("s_branch L_wave_a")] + [Ins("s_nop 0") for _ in range(c.pad // 4)]
        o += ca
        o += cb
        o += self.slow()
        e("L_fin:")
        if c.diag and c.echo:
            i, j, m, k = c.echo
            e("s_sub_u32 s90, s%d, s%d\ns_mul_i32 s90, s90, %d\ns_lshr_b32 s90, s90, %d" % (48 + 2 * j + k, 48 + 2 * i + k, m, 5 if k else 0))
            e("L_echo:\ns_memrealtime s[94:95]\ns_waitcnt lgkmcnt(0)\ns_sub_u32 s94, s94, s60\ns_cmp_lt_u32 s94, s90\ns_cbranch_scc1 L_echo")
        elif c.diag:
            e("s_mov_b32 s42, 0x1000000\ns_mov_b32 s43, 0x20000")
            e("s_lshl_b32 s%d, s2, 2\ns_add_u32 s%d, s%d, s%d\ns_lshl_b32 s%d, s%d, %d" % (sT0, sT0, sT0, sW, sT0, sT0, 7 if c.tsmode >= 2 else 6))
            e("v_mov_b32 v0, 0")
            for i in range(0, 28 if c.tsmode >= 2 else 16, 4):
                for k in range(4):
                    e("v_mov_b32 v%d, s%d" % (4 + k, 48 + i + k if i < 16 else 72 + i + k))
                e("buffer_store_dwordx4 v[4:7], v0, s[40:43], s%d offen offset:%d" % (sT0, i * 4))
                e("s_waitcnt vmcnt(0)")
        e("L_end:")
        e("s_endpgm")
        align_runs(o)
        txt = ["; MHA forward, B=8 H=32 Sq=432 Sk=2048 D=128, bf16.  One workgroup per head, 4 waves (one per SIMD).",
               "; @launch grid=(256,1,1) block=(256,1,1) lds=%d" % LDS] + HEADER.strip().split("\n") + [
               '.amdgcn_target "amdgcn-amd-amdhsa--gfx950"', ".text", ".globl %s" % c.kname, ".p2align 8",
               ".type %s,@function" % c.kname, "%s:" % c.kname]
        for i in o:
            txt.append(i.text if i.kind == "label" else "    " + i.text.replace("[0:0:1]", "[0,0,1]"))
        txt.append('.section .rodata,"a"\n.p2align 6\n.amdhsa_kernel %s' % c.kname)
        txt.append("""  .amdhsa_next_free_vgpr 512
  .amdhsa_next_free_sgpr 102
  .amdhsa_accum_offset 256
  .amdhsa_group_segment_fixed_size 0
  .amdhsa_kernarg_size 48
  .amdhsa_user_sgpr_count 2
  .amdhsa_user_sgpr_kernarg_segment_ptr 1
  .amdhsa_system_sgpr_workgroup_id_x 1
.end_amdhsa_kernel""")
        return "\n".join(txt) + "\n"

if __name__ == "__main__":
    cfg = Cfg()
    out = sys.argv[1]
    for a in sys.argv[2:]:
        k, v = a.split("=")
        assert hasattr(cfg, k), k
        setattr(cfg, k, eval(v))
    txt = Gen(cfg).build()
    open(out, "w").write(txt)
```

```python
import re

TRANS = ("v_exp_f32", "v_rcp_f32", "v_log_f32", "v_rsq_f32", "v_sqrt_f32")

def regs_of(op):
    op = op.strip()
    op = op.lstrip("-").replace("|", "")
    m = re.fullmatch(r"([vas])\[(\d+):(\d+)\]", op)
    if m: return ["%s%d" % (m.group(1), i) for i in range(int(m.group(2)), int(m.group(3)) + 1)]
    m = re.fullmatch(r"([vas])(\d+)", op)
    if m: return [op]
    if op in ("m0", "vcc", "exec", "scc"): return [op]
    return []

class Ins:
    __slots__ = ("text", "op", "kind", "R", "W", "A", "B", "C", "passes", "idx", "lgkm0", "prio", "dpp")
    def __init__(self, text, xr=(), xw=(), lgkm0=False, prio=0):
        self.text = text.strip()
        self.lgkm0 = lgkm0
        self.prio = prio
        t = self.text
        sp = t.split(None, 1)
        op = sp[0]
        self.op = op
        rest = sp[1] if len(sp) > 1 else ""
        ops = [o.strip() for o in rest.split(",")] if rest else []
        mods = ""
        if ops:
            last = ops[-1].split(None, 1)
            ops[-1] = last[0]
            mods = last[1] if len(last) > 1 else ""
        R, W = set(), set()
        self.A = self.B = self.C = ()
        self.passes = 0
        self.dpp = "row_" in mods or "quad_perm" in mods
        rs = [regs_of(o) for o in ops]
        if t.endswith(":") or op.startswith("."):
            self.kind = "label"
        elif op.startswith("v_smfmac"):
            self.kind = "mfma"
            W.update(rs[0]); self.A, self.B, self.C = rs[1], rs[2] + rs[3], rs[0]
            R.update(rs[0] + rs[1] + rs[2] + rs[3])
            self.passes = 4
        elif op.startswith("v_mfma"):
            self.kind = "mfma"
            W.update(rs[0]); self.A, self.B, self.C = rs[1], rs[2], rs[3]
            R.update(rs[1] + rs[2] + rs[3])
            self.passes = 8 if op.endswith("16x16x4_f32") else 4
        elif op.startswith("v_"):
            self.kind = "trans" if op.startswith(TRANS) else "valu"
            if op.startswith("v_permlane"):
                W.update(rs[0] + rs[1]); R.update(rs[0] + rs[1])
            elif op.startswith("v_cmp"):
                W.update(rs[0])
                for r in rs[1:]: R.update(r)
            else:
                W.update(rs[0])
                for r in rs[1:]: R.update(r)
                if self.dpp or op.startswith("v_fmac"): R.update(rs[0])
        elif op.startswith("ds_read") or op.startswith("ds_bpermute"):
            self.kind = "dsr"; W.update(rs[0])
            for r in rs[1:]: R.update(r)
        elif op.startswith("ds_write"):
            self.kind = "dsw"
            for r in rs: R.update(r)
        elif op.startswith("buffer_load") or op.startswith("global_load"):
            if re.search(r"\blds\b", mods) or op.startswith("global_load_lds"):
                self.kind = "dma"
                for r in rs: R.update(r)
                R.add("m0")
            else:
                self.kind = "vload"; W.update(rs[0])
                for r in rs[1:]: R.update(r)
            R.add("vmq"); W.add("vmq")
        elif op.startswith("buffer_store") or op.startswith("buffer_atomic"):
            self.kind = "vstore"
            for r in rs: R.update(r)
            R.add("vmq"); W.add("vmq")
        elif op == "s_nop":
            self.kind = "nop"
        elif op == "s_waitcnt":
            self.kind = "wait"
            if "vmcnt" in t: R.add("vmq"); W.add("vmq")
        elif op == "s_barrier":
            self.kind = "barrier"; R.add("vmq"); W.add("vmq")
        elif op.startswith("s_cbranch") or op == "s_branch" or op == "s_endpgm":
            self.kind = "branch"
            if "scc" in op: R.add("scc")
            if "vcc" in op: R.add("vcc")
        elif op.startswith("s_load") or op.startswith("s_mem"):
            self.kind = "smem"; W.update(rs[0])
            for r in rs[1:]: R.update(r)
        elif op.startswith("s_"):
            self.kind = "salu"
            if op.startswith("s_cmp"):
                W.add("scc")
                for r in rs: R.update(r)
            else:
                if rs: W.update(rs[0])
                for r in rs[1:]: R.update(r)
                if op.startswith(("s_add", "s_sub", "s_and", "s_or", "s_xor", "s_lsh", "s_min", "s_max", "s_bfe")): W.add("scc")
                if op.startswith(("s_addc", "s_subb", "s_cselect")): R.add("scc")
        else:
            raise ValueError("unknown instruction: " + t)
        R.update(xr); W.update(xw)
        self.R, self.W = R, W

    def states(self):
        if self.kind == "label": return 0
        if self.kind == "nop": return int(self.text.split()[1]) + 1
        return 1

def I(x, **kw):
    return x if isinstance(x, Ins) else Ins(x, **kw)

isvalu = lambda i: i.kind in ("valu", "trans")
isvec = lambda r: r[0] in "va" and r[1:].isdigit()
issg = lambda r: (r[0] == "s" and r[1:].isdigit()) or r == "vcc"

def need_states(p, c):
    n = 0
    if isvalu(p):
        wv = {r for r in p.W if isvec(r)}
        if c.kind == "mfma" and wv & c.R: n = max(n, 2)
        if isvalu(c) and wv & c.R:
            if p.kind == "trans": n = max(n, 1)
            if c.op.startswith("v_permlane") or c.dpp: n = max(n, 2)
            if c.op.startswith(("v_readfirstlane", "v_readlane")): n = max(n, 1)
        ws = {r for r in p.W if issg(r)}
        if ws & c.R:
            if isvalu(c): n = max(n, 2)
            if c.kind in ("dma", "vload", "vstore"): n = max(n, 5)
            if c.kind in ("salu", "branch"): n = max(n, 4)
    if p.kind == "mfma":
        sg = p.op.endswith("_f32") and not p.op.endswith("bf16")
        big = {4: 8, 8: 12}[p.passes] if not sg else {4: 6, 8: 10}[p.passes]
        if c.kind == "mfma":
            if p.W & (set(c.A) | set(c.B)): n = max(n, big)
            if p.W & set(c.C):
                if not (c.op == p.op and set(c.C) == p.W): n = max(n, {4: 6, 8: 10}[p.passes])
            elif p.W & c.W: n = max(n, {4: 6, 8: 10}[p.passes])
        elif p.W & (c.R | c.W): n = max(n, big)
        if isvalu(c) and set(p.C) & c.W: n = max(n, {4: 3, 8: 7}[p.passes])
    if p.kind == "salu" and "m0" in p.W and c.kind == "dma": n = max(n, 1)
    if p.kind in ("vstore", "dsw") and isvalu(c) and {r for r in p.R if isvec(r)} & c.W: n = max(n, 2)
    return n

def pad_hazards(seq, hist=(), fix=True, name=""):
    out = list(hist)
    nh = len(out)
    for c in seq:
        if c.kind != "label":
            need = 0
            d = 0
            for p in reversed(out):
                if d >= 12: break
                k = need_states(p, c) - d
                if k > need:
                    need = k
                    if not fix: raise RuntimeError("%s hazard: %s -> %s short by %d" % (name, p.text, c.text, k))
                d += p.states()
            if need > 0: out.append(Ins("s_nop %d" % (need - 1)))
        out.append(c)
    return out[nh:]

def insert_lgkm(seq, pend=None, hoist=True):
    out = []
    pend = list(pend or [])
    pend = [(r, -1) for r in pend]
    for c in seq:
        if c.kind == "wait" and "lgkmcnt" in c.text:
            n = int(re.search(r"lgkmcnt\((\d+)\)", c.text).group(1))
            pend = pend[len(pend) - n:] if n < len(pend) and n > 0 else ([] if n == 0 else pend)
        touch = c.R | c.W
        k = -1
        for j, (r, _) in enumerate(pend):
            if r & touch: k = j
        if c.lgkm0 and pend: k = len(pend) - 1
        if c.kind == "smem" and pend: k = len(pend) - 1
        if k >= 0:
            pos = len(out)
            if hoist and c.kind == "mfma":
                q = len(out) - 1
                while q >= 0 and out[q].kind not in ("mfma", "label", "branch", "barrier"): q -= 1
                if q >= 0 and out[q].kind == "mfma" and pend[k][1] < q: pos = q + 1
            n = sum(1 for (r, i) in pend[k + 1:] if i < pos)
            n = min(n, 15)
            out.insert(pos, Ins("s_waitcnt lgkmcnt(%d)" % n))
            pend = [(r, i + 1 if i >= pos else i) for (r, i) in pend[k + 1:]]
        if c.kind in ("dsr", "dsw"):
            pend.append(({r for r in c.W if isvec(r)}, len(out)))
        out.append(c)
    return out, [r for r, _ in pend]

def latency(p, c, raw):
    if not raw:
        if p.kind == "mfma" and isvalu(c): return 16 if not (p.W & c.W) else 44
        return 4
    if p.kind == "mfma":
        if c.kind == "mfma" and c.op == p.op and set(c.C) == p.W and not (p.W & (set(c.A) | set(c.B))): return 4 * p.passes
        return 4 * p.passes + 28
    if p.kind == "trans": return 12 if isvalu(c) and not c.dpp else 16
    if p.kind == "valu":
        if c.kind == "mfma" or c.dpp or c.op.startswith("v_permlane"): return 12
        return 4 if isvalu(c) else 8
    if p.kind == "dsr": return 140
    if p.kind == "dsw": return 16
    return 4

MEMK = ("dsr", "dsw", "dma", "vload", "vstore")
def schedule1(prog, verbose=False, jitter=None, AGE=48, order=False, dswcost=24, pkmin=8, space=None, fit=True):
    n = len(prog)
    preds = [[] for _ in range(n)]
    succs = [[] for _ in range(n)]
    lastw, readers = {}, {}
    for i, c in enumerate(prog):
        d = {}
        for r in c.R:
            if r in lastw: d[lastw[r]] = max(d.get(lastw[r], 0), latency(prog[lastw[r]], c, True) if r != "vmq" else 4)
        for r in c.W:
            if r in lastw: d[lastw[r]] = max(d.get(lastw[r], 0), latency(prog[lastw[r]], c, False))
            for j in readers.get(r, ()):
                if j != i: d[j] = max(d.get(j, 0), latency(prog[j], c, False))
        for j, l in d.items():
            preds[i].append((j, l)); succs[j].append((i, l))
        for r in c.R: readers.setdefault(r, []).append(i)
        for r in c.W:
            lastw[r] = i; readers[r] = []
    cp = [0] * n
    for i in range(n - 1, -1, -1):
        cp[i] = max([cp[j] + l for j, l in succs[i]] + [0])
    if order: cp = [-i for i in range(n)]
    if jitter: cp = [a + b for a, b in zip(cp, jitter)]
    npred = [len(p) for p in preds]
    ready_t = [0] * n
    avail = [i for i in range(n) if npred[i] == 0]
    t = 0; vec_free = 0; mf_free = 0; last_valu = -100
    out = []
    ispk = lambda c: c.op.startswith("v_pk_")
    space = space or {}
    nxt_ok = {}
    last_op = "v_mfma_f32_16x16x32_bf16"
    while avail:
        best = None
        rpk = [i for i in avail if ispk(prog[i]) and ready_t[i] <= max(t, vec_free, mf_free)]
        inburst = bool(out) and ispk(out[-1]) and rpk
        for i in (rpk if inburst else avail):
            c = prog[i]
            e = max(t, ready_t[i])
            if ispk(c) and not inburst and len(rpk) < pkmin: e += 64
            if c.kind == "mfma": e = max(e, vec_free, mf_free + (4 if c.op != last_op else 0))
            elif isvalu(c): e = max(e, vec_free)
            elif c.kind in MEMK:
                e = max(e, vec_free, nxt_ok.get(c.kind, 0))
                if max(ready_t[i], nxt_ok.get(c.kind, 0)) + AGE > t: e = max(e, last_valu + 12)
            cls = 0 if c.kind == "mfma" else 1 if c.kind in MEMK else 2
            key = (e, cls, -(cp[i] + c.prio), i)
            if best is None or key < best[0]: best = (key, i)
        (e, cls, _, _), i = best
        c = prog[i]
        if c.kind in MEMK: e = max(e, last_valu + 12)
        if ispk(c): e = max(t, ready_t[i], vec_free, mf_free)
        if isvalu(c) and not ispk(c):
            mt = [max(t, ready_t[j], vec_free, mf_free) for j in avail if prog[j].kind == "mfma"]
            rem = (min(mt) - e) if mt else None
            pick = lambda l: max(l, key=lambda k: (cp[k] + prog[k].prio, -k))
            if c.kind == "trans" and rem == 4:
                alt = [k for k in avail if prog[k].kind == "valu" and not ispk(prog[k]) and max(t, ready_t[k], vec_free) <= e]
                if alt: i = pick(alt); c = prog[i]
                elif fit:
                    i = pick([j for j in avail if prog[j].kind == "mfma" and max(t, ready_t[j], vec_free, mf_free) == e + 4]); c = prog[i]; e += 4
            elif fit and c.kind == "valu" and rem == 8:
                two = [k for k in avail if k != i and prog[k].kind == "valu" and not ispk(prog[k]) and ready_t[k] <= e + 4]
                two += [k for k, l in succs[i] if npred[k] == 1 and l <= 4 and prog[k].kind == "valu" and not ispk(prog[k]) and ready_t[k] <= e + 4]
                tr = [k for k in avail if prog[k].kind == "trans" and ready_t[k] <= e]
                if not two and tr: i = pick(tr); c = prog[i]
        avail.remove(i)
        out.append(c)
        if verbose > 1 and c.kind == "wait": print("    fence at est %d (instr %d, mfmas so far %d)" % (e, len(out), sum(x.kind == "mfma" for x in out)))
        if c.kind in space: nxt_ok[c.kind] = e + space[c.kind]
        if c.kind == "mfma":
            vec_free = e + 8; mf_free = e + 4 * c.passes; t = e + 4
            if c.passes == 8: vec_free = mf_free = e + 52
            if "16x16x16" in c.op: vec_free = e + 4
            last_op = c.op
        elif c.kind == "trans":
            vec_free = e + 8; t = e + 8; last_valu = e + 4
        elif c.kind == "valu":
            vec_free = e + 4; t = e + 4; last_valu = e
        elif c.kind == "dsw":
            t = e + 4; vec_free = e + dswcost
        elif c.kind == "vstore":
            t = e + 4; vec_free = e + 12
        else:
            t = e + 4
        for j, l in succs[i]:
            ready_t[j] = max(ready_t[j], e + l)
            npred[j] -= 1
            if npred[j] == 0: avail.append(j)
    assert len(out) == n
    return out, t

def schedule(prog, verbose=False, trials=0, seed=1, **kw):
    import random
    rnd = random.Random(seed)
    n = len(prog)
    jit = [0] * n
    best, bt = schedule1(prog, verbose, None, **kw)
    t0 = bt
    kinds = sorted({(c.kind, c.prio) for c in prog})
    for k in range(trials):
        j = list(jit)
        a = rnd.randrange(n); w = rnd.choice((20, 50, 120, 300)); kd = rnd.choice(kinds); d = rnd.choice((-80, -40, -20, -8, 8, 20, 40, 80))
        for i in range(a, min(n, a + w)):
            if (prog[i].kind, prog[i].prio) == kd: j[i] += d
        o, t = schedule1(prog, False, j, **kw)
        if t <= bt: best, bt, jit = o, t, j
    if verbose: print("scheduled %d instrs, est %d cycles (start %d)" % (n, bt, t0))
    return best

VOP12 = ("v_exp_f32", "v_rcp_f32", "v_add_f32", "v_sub_f32", "v_mul_f32", "v_max_f32", "v_min_f32", "v_mov_b32", "v_and_b32", "v_lshlrev_b32",
         "v_lshrrev_b32", "v_add_u32", "v_mul_u32_u24", "v_min_u32", "v_readfirstlane_b32", "v_permlane32_swap_b32", "v_permlane16_swap_b32",
         "v_cmp_le_u32", "v_cmp_ge_u32", "v_xor_b32")
def has_literal(t):
    ops = t.split(None, 1)[1].split(",") if len(t.split(None, 1)) > 1 else []
    for o in ops:
        o = o.strip().split()[0]
        if o.startswith("L_"): return True
        try: v = int(o, 0)
        except ValueError: continue
        if v > 0x7fffffff: v -= 1 << 32
        if not (-16 <= v <= 64) and (v & 0xffffffff) not in (0x3f000000, 0xbf000000, 0x3f800000, 0xbf800000, 0x40000000, 0xc0000000, 0x40800000, 0xc0800000, 0x3e22f983): return True
    return False
def isize(i):
    if i.kind == "label": return 0
    if i.kind in ("nop", "wait", "barrier", "branch"): return 4
    if i.kind == "salu": return 8 if has_literal(i.text) and not i.op.startswith("s_movk") else 4
    if isvalu(i):
        if i.op in VOP12: return 8 if has_literal(i.text) else 4
        return 8
    return 8
def align_runs(seq, minrun=4):
    pc = 0
    n = len(seq)
    cand = None
    i = 0
    while i < n:
        c = seq[i]
        if c.kind == "label" and c.op == ".p2align":
            a = 1 << int(c.text.split()[1]); pc = (pc + a - 1) // a * a; cand = None
        sz = isize(c)
        if sz == 8 and c.kind != "mfma":
            j = i
            while j < n and isize(seq[j]) == 8 and seq[j].kind != "mfma": j += 1
            if j - i >= minrun:
                if pc % 8 == 4 and cand is not None:
                    cand.text = cand.text.replace(cand.op, cand.op + "_e64", 1); cand.op += "_e64"; pc += 4
                cand = None
            pc += 8 * (j - i); i = j
            continue
        if sz == 4 and isvalu(c) and c.op in VOP12[:12] and not c.dpp: cand = c
        pc += sz; i += 1
    return pc

def align_bound(seq, B):
    pc = 0
    cand = None
    nfix = nfail = 0
    for c in seq:
        if c.kind == "label" and c.op == ".p2align":
            a = 1 << int(c.text.split()[1]); pc = (pc + a - 1) // a * a; cand = None
        sz = isize(c)
        if sz == 8 and pc % B == B - 4:
            if cand is not None:
                cand.text = cand.text.replace(cand.op, cand.op + "_e64", 1); cand.op += "_e64"; pc += 4; nfix += 1
            else: nfail += 1
            cand = None
        if pc % B == 0: cand = None
        if sz == 4 and isvalu(c) and c.op in VOP12[:12] and not c.dpp and pc % B != B - 4: cand = c
        pc += sz
    return nfix, nfail

def coarsen_waits(seq, minage):
    out = []
    issued = []
    done = 0
    nm = 0
    for c in seq:
        if c.kind == "mfma": nm += 1
        if c.kind in ("dsr", "dsw"): issued.append(nm)
        if c.kind == "wait" and "lgkmcnt" in c.text and "vmcnt" not in c.text:
            n = int(re.search(r"lgkmcnt\((\d+)\)", c.text).group(1))
            need = len(issued) - n
            if out and out[-1].kind == "smem":
                done = len(issued); out.append(c); continue
            if need <= done: continue
            while need < len(issued) and nm - issued[need] >= minage: need += 1
            done = need
            out.append(Ins("s_waitcnt lgkmcnt(%d)" % (len(issued) - need)))
            continue
        out.append(c)
    return out
```

```python
import sys, math, struct
from asmlib import *

KNAME = "standalone__mha_softmax__near_ridge"

HEADER = """
;
;              K/V stream through a 3-slot LDS ring (64 keys per slot) by LDS-DMA.  One barrier per 64 keys.
; Math       : S^T = K * (Q*log2e/sqrt(D))^T + C with v_mfma_f32_16x16x32_bf16, P = exp2(S), l += P (fp32), O += P * V.
"""

class Cfg:
    kname = KNAME + "_kernel"
    diag = False
    tsmode = 0
    echo = None
    jit = None
    force_slow = False
    verbose = 0
    trials = 0
    dflag = "nt"
    qflag = "nt"
    oflag = "sc1"
    bias = 2.0
    gamma = 3.0
    lo_exp = -30
    hi_exp = 30
    first = 8
    lead = 4
    wspan = 0.75
    fpos = 38
    pb_hi = 0.6
    sh_hi = 0.3
    s3_lo = 0.45
    bara = 36
    barb = 37
    qprio = (80, 80)
    space = (48, 64, 12)
    coarse = 8
    nK = 3
    nV = 3
    fun = (1, 3, 4)
    lat = 144
    exp = ''
    glob = True
    gshare = 2
    apos = (4, 12, 16, 116, 204, 208)
    bpos = None
    pad = 0

PK, PV_ = 1056, 1040
HK, HV = 8 * PK, 8 * PV_
VO = 16 * PK
SS = 16 * PK + 16 * PV_
HP, HL, HM = 0, 3072, 6144
RB = 6400
RING = 3 * SS
STG = RB + RING
PQ = 1088
QT = 4 * PQ
PARK = 3 * QT
PRIV = 3 * QT + 512
LDS = STG + 4 * PRIV
assert LDS <= 163840 and SS + 15 * QT <= RING and 8 * QT >= SS
FG = 1

def O(t, db):
    if t == 6 and db >= 4: return ('a', 240 + 4 * (db - 4))
    return ('v', 32 * t + 4 * db)
def S(i): return 208 + 4 * (i & 3)
def P(U, ks): return 224 + 8 * (U & 1) + 4 * ks
CI = 240
def Lr(t): return 244 + t
vAK, vAV, vDMA, vEW, vER = 251, 252, 253, 254, 255
TB = 32
vVM, vHalf, vPK, vQS, vQA, vQB, vMA, vMX = TB + 29, TB + 28, TB + 27, TB + 25, TB + 30, TB + 31, TB + 24, TB + 26
def Q(t, ds): return ('a', 16 * t + 4 * ds)
def FQ(w, ds): return (('a', 96), ('a', 240), ('v', 192))[w][0], (96, 240, 192)[w] + 4 * ds
def FL(w): return (Lr(6), vEW, vER)[w]
def Kf(g, ds): return 112 + 16 * g + 4 * ds
def Vf(db, ks): return 176 + 8 * db + 4 * ks

sHi = 3
sQ, sK, sV, sO = 12, 16, 20, 24
sW, sCnt, sInc, sRd, sC, sQo, sSl = 28, 29, 30, 31, 32, 33, 34
sT0, sT1, sT2 = 35, 36, 37
sGK, sGK2, sGV, sGV2 = 64, 65, 66, 67
sWK, sWV, sWG = 68, 69, 70
sIncW, sIncN = 71, 72
sNT, sTile, sBlk, sStg, sQS, sQT, sMask = 73, 74, 75, 76, 77, 78, 79
sSt = 80
sWo, sDK, sDV, sOo = 87, 4, 5, 6
sC2 = 100
sStep = 7
sWKp, sWVp = 0, 38
sPr, sLK, sLV = 8, 10, 11

def rn(f, b, n): return "%s[%d:%d]" % (f, b, b + n - 1)
def mfma(D, A, B, C, half=False):
    n = 2 if half else 4
    cs = "0" if C is None else rn(C[0], C[1], 4)
    op = "v_mfma_f32_16x16x16_bf16" if half else "v_mfma_f32_16x16x32_bf16"
    return "%s %s, %s, %s, %s" % (op, rn(D[0], D[1], 4), rn(A[0], A[1], n), rn(B[0], B[1], n), cs)
def f2u(x): return struct.unpack("<I", struct.pack("<f", x))[0]
II = lambda l, **kw: [I(x, **kw) for x in l]

def edf(W, primary, secondary):
    def run(pos):
        items = sorted(W, key=lambda w: w[1]); res = {}; pend = []; i = 0
        for p in pos:
            while i < len(items) and items[i][1] <= p: pend.append(items[i]); i += 1
            pend.sort(key=lambda w: w[2])
            if pend:
                w = pend.pop(0)
                if w[2] < p: return None
                res[w[0]] = p
        return None if pend or i < len(items) else res
    sec = list(secondary)
    assert run(sorted(primary + sec)), "no reload schedule"
    for s in list(sec):
        t = list(sec); t.remove(s)
        if run(sorted(primary + t)): sec = t
    return run(sorted(primary + sec)), sec

class Wave:
    def __init__(self, gen, NT, tag):
        self.g, self.c, self.NT, self.tag = gen, gen.c, NT, tag
        self.a = NT == 7
        self.tau = (2, 1, 5, 4) if self.a else (2, 1, 4, 3)
        self.nK = self.c.nK if self.a else 16 - 3 * self.c.nK
        self.nV = self.c.nV if self.a else 16 - 3 * self.c.nV
        self.oinit = set()
        self.qprio = self.c.qprio[0]
        self.group = {}
        self.code = []
        self.npin = 0
        self.nts = 1
        self.arr = [NT - 1, NT - 2, 0] + list(range(NT - 3, 0, -1))

    def kread(self, g, ds, off=0):
        return "ds_read_b128 %s, v%d offset:%d" % (rn('a', Kf(g, ds), 4), vAK, off + (g >> 1) * HK + (g & 1) * 512 + ds * 64)
    def vread(self, g, db, off=0):
        return "ds_read_b64_tr_b16 %s, v%d offset:%d" % (rn('a', Vf(db, g >> 1) + 2 * (g & 1), 2), vAV, off + (g >> 1) * HV + (g & 1) * 512 + db * 16)
    def pread(self, U, par):
        return "ds_read_b64 %s, v%d offset:%d" % (rn('v', P(U, FG >> 1) + 2 * (FG & 1), 2), vDMA, HP + 8 * par)
    def pwrite(self, w, sb, par):
        return "ds_write_b64 v%d, %s offset:%d" % (vDMA, rn('v', sb, 2), HP + 1024 * w + 8 * par)
    def qk(self, t, g, sb, raw=False, desc=None, qf=None):
        if desc is None: desc = g & 1
        o = []
        for i, ds in enumerate(range(3, -1, -1) if desc else range(4)):
            o.append(Ins(mfma(('v', sb), ('a', Kf(g, ds)), qf(ds) if qf else Q(t, ds), (None if raw else ('v', CI)) if i == 0 else ('v', sb)), prio=self.qprio))
        return o
    def pv1(self, t, db, pb, ks, gs):
        D = O(t, db)
        assert (t, db) in self.oinit
        if len(gs) == 2: return mfma(D, ('v', pb), ('a', Vf(db, ks)), D)
        h = gs[0] & 1
        return mfma(D, ('v', pb + 2 * h), ('a', Vf(db, ks) + 2 * h), D, half=True)
    def pv(self, t, groups, pbase):
        o = []
        if len(groups) == 3:
            for ks in sorted((0, 1), key=lambda k: -len([g for g in groups if g >> 1 == k])):
                for db in range(8): o.append(self.pv1(t, db, pbase(ks), ks, [g for g in groups if g >> 1 == ks]))
            return II(o)
        for db in range(8):
            for ks in ((0, 1) if db % 2 == 0 else (1, 0)):
                gs = [g for g in groups if g >> 1 == ks]
                if gs: o.append(self.pv1(t, db, pbase(ks), ks, gs))
        return II(o)
    def pv_first(self, t, pbase):
        Bt = O(t, 3)
        o = ["v_mfma_f32_16x16x4_f32 %s, v%d, v%d, 0" % (rn('v', Bt[1], 4), Lr(t), vVM)]
        for r in range(4): o.append("v_and_or_b32 v%d, v%d, s%d, v%d" % (Bt[1] + r, Bt[1] + r, sMask, vHalf))
        o.append("ds_write_b128 v%d, %s offset:%d" % (vPK, rn('v', Bt[1], 4), 64 * t))
        if t == 6:
            for r in range(4): o.append("v_accvgpr_write_b32 a%d, v%d" % (O(6, 7)[1] + r, Bt[1] + r))
        for j, db in enumerate((0, 1, 2, 4, 5, 6, 7, 3)):
            D = O(t, db)
            for k, ks in enumerate((0, 1) if j % 2 == 0 else (1, 0)):
                C = D if k else (Bt if D[0] == 'v' else O(6, 7))
                o.append(mfma(D, ('v', pbase(ks)), ('a', Vf(db, ks)), C))
            self.oinit.add((t, db))
        return II(o)
    def wavemax(self, x, y):
        o = []
        for sw in ("v_permlane32_swap_b32", "v_permlane16_swap_b32"):
            o += ["v_mov_b32 v%d, v%d" % (y, x), "%s v%d, v%d" % (sw, x, y), "v_max_f32 v%d, v%d, v%d" % (x, x, y)]
        for k in (8, 4, 2, 1):
            o.append("v_max_f32_dpp v%d, v%d, v%d row_ror:%d row_mask:0xf bank_mask:0xf" % (x, x, x, k))
        return o
    def vmax(self):
        x, y, z = vVM, TB + 16, TB + 17
        o = ["v_accvgpr_read_b32 v%d, a%d" % (x, Vf(0, 0)), "v_accvgpr_read_b32 v%d, a%d" % (y, Vf(0, 0) + 2), "v_accvgpr_read_b32 v%d, a%d" % (z, Vf(0, 1) + 1),
             "v_max3_f32 v%d, |v%d|, |v%d|, |v%d|" % (x, x, y, z)] + self.wavemax(x, y)
        o.append("v_min_f32 v%d, 0x%08x, v%d" % (x, f2u(2.0 ** 60), x))
        o.append("v_mul_f32 v%d, 0x%08x, v%d" % (x, f2u(self.c.gamma), x))
        return o
    def sm8(self, L, sb, pdst):
        o = []
        for i in range(4):
            o.append(["v_exp_f32 v%d, v%d" % (sb + i, sb + i)])
            v = ["v_add_f32 v%d, v%d, v%d" % (L, L, sb + i)]
            if i & 1: v.append("v_cvt_pk_bf16_f32 v%d, v%d, v%d" % (pdst + i // 2, sb + i - 1, sb + i))
            o.append(v)
        return o
    def softmax(self, L, sb, pdst):
        return II([x for g in self.sm8(L, sb, pdst) for x in g])
    def pd(self, U, g): return P(U, g >> 1) + 2 * (g & 1)
    def tagged(self, text, grp, **kw):
        i = Ins(text, **kw); self.group[id(i)] = grp; return i
    def dma(self, va, srd, so, n, flag, grp):
        return self.tagged("buffer_load_dwordx4 v%d, s[%d:%d], s%d offen offset:%d %s lds" % (va, srd, srd + 3, so, 1024 * n, flag), grp)
    def share(self, kv, blk):
        srd, lo, base, pad = (sK, (blk & 1) * HK, sWK, PK - 1024) if kv == 'K' else (sV, VO + (blk & 1) * HV, sWV, PV_ - 1024)
        lds = RB + ((blk >> 1) % 3) * SS + lo
        o = []
        for n in range(2):
            if blk >= self.c.gshare:
                wb = sWKp if kv == 'K' else sWVp
                if n == 0: b = [Ins("s_add_u32 m0, s%d, %d" % (base, lds)), Ins("s_add_u32 s%d, s%d, %d" % (sPr, wb, blk * 8192)), Ins("s_addc_u32 s%d, s%d, 0" % (sPr + 1, wb + 1))]
                else: b = [Ins("s_add_u32 m0, m0, %d" % pad)]
                o.append(b + [self.tagged("global_load_lds_dwordx4 v%d, s[%d:%d] offset:%d %s" % (vDMA, sPr, sPr + 1, 1024 * n, self.c.dflag), "%s%d" % (kv, blk))])
                continue
            if n == 0: b = [Ins("s_add_u32 m0, s%d, %d" % (base, lds)), Ins("s_add_u32 s%d, s%d, %d" % (sT2, sWG, blk * 8192))]
            else: b = [Ins("s_add_u32 m0, m0, %d" % pad)]
            o.append(b + [self.dma(vDMA, srd, sT2, n, self.c.dflag, "%s%d" % (kv, blk))])
        return o
    def steady(self):
        o = []
        for srd, n, base, st, g1, g2 in ((sK, self.nK, sDK, PK, sGK, sGK2), (sV, self.nV, sDV, PV_, sGV, sGV2)):
            for j in range(n):
                if j == 0: m = "s_add_u32 m0, s%d, s%d" % (sSl, base)
                elif j % 4 == 0: m = "s_add_u32 m0, m0, %d" % (st - 1024 + 4096)
                else: m = "s_add_u32 m0, m0, %d" % (st - 1024)
                b = [Ins(m)]
                if self.c.glob:
                    if j == 0: b += [Ins("s_add_u32 s%d, s%d, s%d" % (sPr, srd, g1)), Ins("s_addc_u32 s%d, s%d, 0" % (sPr + 1, srd + 1))]
                    elif j % 4 == 0: b += [Ins("s_add_u32 s%d, s%d, s%d" % (sPr, sPr, sStep)), Ins("s_addc_u32 s%d, s%d, 0" % (sPr + 1, sPr + 1))]
                    o.append(b + [self.tagged("global_load_lds_dwordx4 v%d, s[%d:%d] offset:%d %s" % (vDMA, sPr, sPr + 1, 1024 * (j & 3), self.c.dflag), "S")])
                    continue
                if j >= 4 and j % 4 == 0: b.append(Ins("s_add_u32 s%d, s%d, %d" % (g2, g1, 1024 * j)))
                o.append(b + [self.dma(vDMA, srd, g1 if j < 4 else g2, j & 3, self.c.dflag, "S")])
        return o
    def qbuf(self, t):
        k = self.arr.index(t)
        nr = self.NT - 3
        if k < nr: return sQS, vQA, k * 4 * QT
        return sStg, vQB, (k - nr) * QT
    def qload(self, t):
        sb, _, off = self.qbuf(t)
        o = []
        for n in range(4):
            if n == 0: b = [Ins("s_add_u32 m0, s%d, %d" % (sb, off)), Ins("s_sub_u32 s%d, s%d, %d" % (sT1, sQT, (self.NT - 1 - t) * 4096))]
            else: b = [Ins("s_add_u32 m0, m0, %d" % (PQ - 1024))]
            o.append(b + [self.dma(vQS, sQ, sT1, n, self.c.qflag, "Q%d" % t)])
        return o
    def waitv(self, grp):
        i = Ins("s_waitcnt vmcnt(0)"); self.group[id(i)] = "W:" + grp; return i
    def scale(self, t):
        tb = 32 * t + 16 if t < 6 else TB + 16
        _, va, off = self.qbuf(t)
        o = [Ins("ds_read_b128 %s, v%d offset:%d" % (rn('v', 32 * t + 4 * ds, 4), va, off + ds * 64), xr=["L:Q%d" % t]) for ds in range(4)]
        for r0 in range(0, 16, 4):
            for r in range(r0, r0 + 4):
                a = tb + 2 * (r % 4)
                o.append("v_lshlrev_b32 v%d, 16, v%d" % (a, 32 * t + r))
                o.append("v_and_b32 v%d, s%d, v%d" % (a + 1, sHi, 32 * t + r))
            for r in range(r0, r0 + 4):
                a = tb + 2 * (r % 4)
                o.append("v_pk_mul_f32 %s, %s, %s" % (rn('v', a, 2), rn('v', a, 2), rn('s', sC2, 2)))
            for r in range(r0, r0 + 4):
                a = tb + 2 * (r % 4)
                o.append("v_cvt_pk_bf16_f32 v%d, v%d, v%d" % (32 * t + r, a, a + 1))
                o.append("v_accvgpr_write_b32 a%d, v%d" % (Q(t, 0)[1] + r, 32 * t + r))
        return II(o)
    def ts2(self):
        if not (self.c.diag and self.c.tsmode == 2) or self.nts >= 28: return []
        k = self.nts; self.nts += 1
        o = [Ins("s_memtime s[46:47]"), Ins("s_waitcnt lgkmcnt(0)"), Ins("s_mov_b32 s%d, s46" % (48 + k if k < 16 else 88 + k - 16))]
        for x in o: x.R.add("vmq"); x.W.add("vmq")
        return o
    def ts(self, idx):
        if not self.c.diag or self.c.tsmode >= 2: return []
        return [Ins("s_memrealtime s[44:45]"), Ins("s_memtime s[46:47]"), Ins("s_waitcnt lgkmcnt(0)"),
                Ins("s_mov_b32 s%d, s44" % (48 + 2 * idx)), Ins("s_mov_b32 s%d, s46" % (49 + 2 * idx))]
    def pin(self, ins, after):
        self.npin += 1
        after.W.add("pin%d" % self.npin); ins.R.add("pin%d" % self.npin)
        return ins
    def fence(self, grp, after, bar=False, lgkm0=False, frees=()):
        w = self.waitv(grp)
        if after is not None: self.pin(w, after)
        o = self.ts2() + [w]
        if bar: o.append(Ins("s_barrier", lgkm0=lgkm0))
        o[-1].W.add("L:" + grp)
        for f in frees: o[-1].W.add("L:" + f)
        if after is not None and o[0] is not w: self.pin(o[0], after)
        return o + self.ts2()
    def weave(self, body, bundles, span=(0.0, 0.9)):
        n, k = len(body), len(bundles)
        pos = [int(n * (span[0] + (span[1] - span[0]) * j / max(k, 1))) for j in range(k)]
        o = []; j = 0
        for i in range(n):
            o.append(body[i])
            while j < k and pos[j] <= i and (isvalu(body[i]) or i == n - 1):
                self.pin(bundles[j][-1], body[i]); o += bundles[j]; j += 1
        return o
    def unit0_qk(self):
        o = []
        for k, g in enumerate([g for g in range(4) if g != FG]): o += self.qk(0, g, S(g), desc=k & 1)
        return o

    def prologue(self):
        c, NT, tau = self.c, self.NT, self.tau
        T = NT - 1
        G0 = lambda t: [g for g in range(4) if tau[g] <= t]
        seq = self.share('K', 0) + self.qload(T) + self.share('K', 1) + self.qload(T - 1) + self.share('V', 0) + self.share('V', 1)
        arr = self.arr
        for t in arr[2:]: seq += self.qload(t)
        nq = len(seq)
        for b in (2, 3): seq += self.share('K', b) + self.share('V', b)
        n1 = len(seq)
        for b in (4, 5): seq += self.share('K', b) + self.share('V', b)
        grp = [self.group[id(b[-1])] for b in seq]
        state = [0]
        def nxt(g, cap=None):
            want = c.first if g is None else max(j for j, x in enumerate(grp) if x == g) + 1 + c.lead
            want = min(want, len(seq) if cap is None else cap)
            r = seq[state[0]:want]
            state[0] = max(state[0], want)
            return r
        self.first = nxt(None, nq)
        misc = ["v_mov_b32 v%d, 0" % Lr(t) for t in range(7)]
        if not self.a: misc += ["v_mov_b32 v%d, 0" % FL(1), "v_mov_b32 v%d, 0" % FL(2)]
        self.code += II(misc)
        UA = lambda t: 1 + arr.index(t)
        UB = lambda t: NT + t
        prog = self.fence("Q%d" % T, None)
        a = self.scale(T)
        prog += self.weave(a, nxt("K1", nq))
        prog += self.fence("K1", a[len(a) // 2], bar=True)
        body = II([self.kread(g, ds) for g in range(4) for ds in range(4)], xr=["L:K1"])
        for g in range(4): body += self.qk(T, g, S(g), raw=True)
        last = body[-1]
        x, y = vMX, vVM
        b2 = ["v_max3_f32 v%d, v%d, v%d, v%d" % (x, S(0), S(0) + 1, S(0) + 2),
              "v_max3_f32 v%d, v%d, v%d, v%d" % (x, x, S(0) + 3, S(0) + 4),
              "v_max3_f32 v%d, v%d, v%d, v%d" % (x, x, S(0) + 5, S(0) + 6),
              "v_max_f32 v%d, v%d, v%d" % (x, x, S(0) + 7)] + self.wavemax(x, y)
        b2 += [Ins("ds_write_b32 v%d, v%d" % (vMA, x), xw=["L:M"])]
        body += II(b2)
        prog += self.weave(body, nxt("Q%d" % (T - 1), nq), (0.0, 0.5))
        b3 = [Ins("s_barrier", lgkm0=True, xr=["L:M"], xw=["L:M"]), "v_mov_b32 v%d, %d" % (vMA, HM), Ins("ds_read_b128 %s, v%d" % (rn('v', CI, 4), vMA), xr=["L:M"]),
              "v_max3_f32 v%d, v%d, v%d, v%d" % (x, CI, CI + 1, CI + 2), "v_max_f32 v%d, v%d, v%d" % (x, x, CI + 3)]
        for i in range(4): b3.append("v_sub_f32 v%d, 0x%08x, v%d" % (CI + i, f2u(-c.bias), x))
        b3 = II(b3)
        last = b3[2]
        for g in range(4):
            b3 += II(["v_add_f32 v%d, v%d, v%d" % (S(g) + i, S(g) + i, CI) for i in range(4)])
            b3 += self.softmax(Lr(T), S(g), self.pd(UA(T), g))
        prog += b3
        sidx = [0]
        def unit(t, gs, U, post=None, desc=None):
            o = []
            for g in gs:
                sb = S(sidx[0]); sidx[0] += 1
                o += self.qk(t, g, sb, desc=desc)
                if post: o += post(g, o[-1])
                o += self.softmax(Lr(t), sb, self.pd(U, g))
            return o
        gorder = sorted(range(4), key=lambda g: tau[g])
        done = []
        _, va0, off0 = self.qbuf(0)
        assert va0 == vQA and off0 >= 3 * QT
        fq = []
        def kreload(g, after):
            o = []
            if not done:
                done.append(1)
                o += self.fence("K2", after, bar=True, lgkm0=True, frees=["Q%d" % arr[2], "Q%d" % arr[3]])
            o += II([self.kread(g, ds, SS) for ds in range(4)], xr=["L:K2"])
            if not self.a and not fq:
                for w in range(3):
                    fq.extend(II(["ds_read_b128 %s, v%d offset:%d" % (rn(*FQ(w, ds), 4), vQA, off0 + (w - 3) * QT + ds * 64) for ds in range(4)], xr=["L:K2", "L:V2"]))
                o += fq
            return o
        for k in range(1, NT):
            t, tp = arr[k], arr[k - 1]
            prog += self.fence("Q%d" % t, last)
            a = self.scale(t)
            if t == 0 and self.a:
                a += II(["ds_write_b128 v%d, %s offset:%d" % (vQA, rn('a', Q(0, ds)[1], 4), off0 + ds * 64) for ds in range(4)], xw=["L:Q0"])
            if k == 1:
                prog += self.weave(a, nxt("V1", nq), (0.0, 0.5))
                prog += self.fence("V1", a[int(len(a) * 0.6)], bar=True, lgkm0=True, frees=["Q%d" % T, "Q%d" % (T - 1)])
                a = II([self.vread(g, db) for db in range(8) for g in range(4)], xr=["L:V1"])
                a += II(self.vmax())
            a += self.pv_first(tp, lambda ks: P(UA(tp), ks))
            if k < T:
                u = unit(t, range(4), UA(t), desc=0)
                body = a + u
                cut = body.index(u[-c.fpos])
                prog += self.weave(body[:cut], nxt("Q%d" % arr[k + 1], n1), (0.0, c.wspan)) + body[cut:]
                last = u[-c.fpos]
            else:
                prog += self.weave(a, nxt("V3", n1), (0.0, c.wspan))
        tl = arr[-1]
        prog += unit(tl, gorder, UA(tl), post=lambda g, m: kreload(g, m) if g < 2 else [], desc=0)
        pv0 = self.pv_first(tl, lambda ks: P(UA(tl), ks))
        prog += pv0[:-14] + self.fence("V2", pv0[-15], bar=True, lgkm0=not self.a) + pv0[-14:]
        for g in gorder[:2]:
            prog += II([self.vread(g, db, SS) for db in range(8)], xr=["L:V2"])
        body = []
        for t in range(1, NT):
            if t == T:
                sidx[0] = 0
                u = unit(t, range(4), UB(t))
                if not self.a: u = u[:-10]
            else: u = unit(t, [g for g in gorder if g in G0(t)], UB(t))
            body += u
            if t == 2:
                body += self.fence("V3", u[-1], bar=True)
                for g in gorder[2:]: body += II([self.kread(g, ds, SS) for ds in range(4)], xr=["L:V3"])
                for g in gorder[2:]: body += II([self.vread(g, db, SS) for db in range(8)], xr=["L:V3"])
                body += II(["v_add_u32 v%d, %d, v%d" % (vAK, 2 * SS, vAK), "v_add_u32 v%d, %d, v%d" % (vAV, 2 * SS, vAV)])
            if t < T: body += self.pv(t, G0(t), lambda ks: P(UB(t), ks))
            if not self.a and 2 <= t <= 4:
                w = t - 2
                sb = S(sidx[0]); sidx[0] += 1
                body += self.qk(0, FG, sb, qf=lambda ds: FQ(w, ds)) + self.softmax(FL(w), sb, sb) + II([self.pwrite(w, sb, 1)])
        if self.a: body += self.unit0_qk()[:9]
        prog += self.weave(body, nxt("V5"), (0.0, c.pb_hi))
        self.code += schedule(prog, c.verbose, order=True, pkmin=4, trials=c.trials)

    def window(self, p):
        c, NT, tau = self.c, self.NT, self.tau
        T = NT - 1
        first = p == 2
        ms, vs, use = [], [], []
        fixed = []
        def add(m, kind, t): ms.extend(m); use.extend([(kind, t)] * len(m))
        if self.a:
            U = NT * p
            add(self.unit0_qk()[9:], 'K', 0)
            add(self.pv(T, range(4), lambda ks: P(U - 1, ks)), 'V', -1)
            gs0 = [g for g in range(4) if g != FG]
            vs += [[], [], []] + self.sm8(Lr(0), S(gs0[0]), self.pd(U, gs0[0])) + self.sm8(Lr(0), S(gs0[1]), self.pd(U, gs0[1]))
            for t in range(1, NT):
                U = NT * p + t
                for g in range(4): add(self.qk(t, g, S(g)), 'K', t)
                add(self.pv(t - 1, range(4), lambda ks: P(U - 1, ks)), 'V', t - 1)
                vs += self.sm8(Lr(t - 1), S(3), self.pd(U - 1, 3))
                for g in range(3): vs += self.sm8(Lr(t), S(g), self.pd(U, g))
            add(self.unit0_qk()[:9], 'K', NT)
            vs += self.sm8(Lr(T), S(3), self.pd(U, 3)) + [[]]
        else:
            prevf = None
            for t in range(NT):
                U = NT * p + t
                base = len(ms)
                for k, g in enumerate((0, 1, 2, 3) if prevf is None else (0, 1, 3, 2)): add(self.qk(t, g, S(g), desc=k & 1), 'K', t)
                add(self.pv((t - 1) % NT, range(4), lambda ks: P(U - 1, ks)), 'V', t - 1)
                if prevf is None: vs += self.sm8(Lr((t - 1) % NT), S(3), self.pd(U - 1, 3))
                else:
                    vs += self.sm8(FL(prevf), S(2), S(2))
                    fixed.append((base + 9, self.pwrite(prevf, S(2), p & 1)))
                for g in range(3): vs += self.sm8(Lr(t), S(g), self.pd(U, g))
                prevf = None
                if t in c.fun:
                    prevf = w = c.fun.index(t)
                    add(self.qk(0, FG, S(2), qf=lambda ds: FQ(w, ds)), 'K', t)
                    x = self.sm8(Lr(t), S(3), self.pd(U, 3))
                    vs += x[:3] + [x[3] + x[4] + x[6] + x[5] + x[7]]
            assert prevf is None
        NG = len(ms)
        assert len(vs) == NG, (len(vs), NG)
        gaps = [dict(m=m, s=[], d=[], v=list(v)) for m, v in zip(ms, vs)]
        cost = lambda v: sum(8 if x.startswith("v_exp") else 4 for x in v)
        tm = [0]
        for g in gaps: tm.append(tm[-1] + max(16, 8 + cost(g['v'])))
        for pos, ins in fixed: gaps[pos]['d'].append(ins)
        W = []
        def win(name, regs, g):
            old = [j for j in range(NG) if regs & ms[j].R and use[j][1] < tau[g]]
            new = [j for j in range(NG) if regs & ms[j].R and use[j][1] >= tau[g]]
            lo, hi = max(old + [1]), min(new)
            assert lo < hi
            W.append((name, lo, max(j for j in range(NG) if tm[j] <= tm[hi] - c.lat)))
        for g in range(4):
            for ds in range(4): win(('K', g, ds), {"a%d" % Kf(g, ds)}, g)
            for db in range(8): win(('V', g, db), {"a%d" % (Vf(db, g >> 1) + 2 * (g & 1))}, g)
        if self.a:
            hi = min(j for j in range(NG) if use[j] == ('V', 0))
            W.append((('P', 0, 0), 1, hi - c.lat // 16))
        free = lambda j: not gaps[j]['d'] and cost(gaps[j]['v']) <= 4
        prim = [j for j in range(1, NG - 1) if free(j)]
        upd = prim[-2:]
        res = c.apos if self.a else c.bpos
        if res:
            prim = [j for j in prim if j not in res or not gaps[j]['v']]
        rd, sec = edf(W, prim[:-2], [j for j in prim if not gaps[j]['v'] and j not in (res or ())] if self.a else [j for j in range(2, NG - 10, 4) if cost(gaps[j]['v']) == 8 and len(gaps[j]['v']) == 1])
        for (kind, g, x), pos in rd.items():
            gaps[pos]['d'].append(self.kread(g, x) if kind == 'K' else self.vread(g, x) if kind == 'V' else self.pread(NT * p, (p - 1) & 1))
        assert max(rd.values()) < upd[0]
        gaps[upd[0]]['v'].append("v_add_u32 v%d, s%d, v%d" % (vAK, sInc, vAK))
        gaps[upd[1]]['v'].append("v_add_u32 v%d, s%d, v%d" % (vAV, sInc, vAV))
        gaps[0]['s'].append(Ins("s_barrier", lgkm0=True))
        dry, _ = insert_lgkm(self.flat(gaps))
        if c.coarse: dry = coarsen_waits(dry, c.coarse)
        j = -1
        for x in dry:
            if x.kind == "mfma": j += 1
            elif x.kind == "wait": gaps[j]['w'] = True
        lo = 1
        if first:
            f = min(pos for (k, g, x), pos in rd.items() if k == 'V' or (k == 'K' and g >= 2))
            f = min(f, c.bara if self.a else c.barb)
            gaps[f - 1]['s'].append(self.waitv("V5"))
            gaps[f]['s'].append(Ins("s_barrier"))
            bl = []
            for blk in (6, 7): bl += self.share('K', blk) + self.share('V', blk)
            self.place(gaps, bl, 3, int(NG * c.sh_hi), cost)
            lo = int(NG * c.s3_lo)
        lastd = self.place(gaps, self.steady(), lo, NG - 2, cost, greedy=not first, res=res)
        def put(seq, lo_, hi_):
            for j0 in range(lo_, hi_):
                js = []; j = j0
                while len(js) < len(seq) and j < hi_ and not gaps[j].get('busy') and not gaps[j]['s']:
                    if not gaps[j].get('w'): js.append(j)
                    j += 1
                if len(js) == len(seq):
                    for q, x in zip(js, seq): gaps[q]['s'].append(x)
                    for q in range(js[0], js[-1] + 1): gaps[q]['busy'] = True
                    return js[-1]
            raise RuntimeError("no scalar slots")
        put(["s_add_u32 s%d, s%d, %d" % (sRd, sRd, SS), "s_cmp_eq_u32 s%d, %d" % (sRd, RING),
             "s_cselect_b32 s%d, s%d, s%d" % (sInc, sIncW, sIncN), "s_cselect_b32 s%d, 0, s%d" % (sRd, sRd)], NG // 2, upd[0] - 1)
        lastuse = {}
        for j, g in enumerate(gaps):
            for x in g['s'] + g['d']:
                for r in I(x).R: lastuse[r] = j
        put(["s_add_u32 s%d, s%d, %d" % (sSl, sSl, SS), "s_cmp_eq_u32 s%d, %d" % (sSl, RING), "s_cselect_b32 s%d, 0, s%d" % (sSl, sSl)],
            lastuse.get("s%d" % sSl, 0) + 1, NG - 3)
        for r in (sGK, sGV):
            if "s%d" % r in lastuse:
                j = put(["s_add_u32 s%d, s%d, 16384" % (r, r)], lastuse["s%d" % r] + 1, NG - 3)
                if c.glob: lastuse[r] = put(["s_cmp_gt_u32 s%d, s%d" % (r, sLK if r == sGK else sLV), "s_cselect_b32 s%d, 0, s%d" % (r, r)], j + 1, NG - 3)
        if "s%d" % sStep in lastuse:
            put(["s_cmp_eq_u32 s%d, 0" % sGK, "s_cselect_b32 s%d, 0, s%d" % (sStep, sStep)], max(lastuse["s%d" % sStep], lastuse[sGK]) + 1, NG - 3)
        if p == 4: put(["s_sub_u32 s%d, s%d, 1" % (sCnt, sCnt)], max(j for j in range(NG) if gaps[j]['s']) + 1, NG - 2)
        j = max(lastd + 1, NG - 2)
        assert j <= NG - 2 or not self.a
        gaps[j]['s'].append(self.waitv("V7") if first else Ins("s_waitcnt vmcnt(%d)" % (self.nK + self.nV)))
        if c.verbose > 1 and p == 3:
            est = sum(max(16, 8 + cost(g['v']) + sum(16 if I(x).kind == "dsw" else 4 for x in g['d'])) for g in gaps)
            print(self.tag, "gaps", NG, "est", est, "sec", sec, "dma at", [j for j, g in enumerate(gaps) if any(I(x).kind == "dma" for x in g['d'])])
        return gaps
    def place(self, gaps, bundles, lo, hi, cost, greedy=False, res=None):
        room = lambda i: 8 - cost(gaps[i]['v']) - 4 * len(gaps[i]['d'])
        k = len(bundles)
        if greedy and res:
            pos = sorted(res); assert len(pos) == k
        elif greedy:
            pos = [i for i in range(lo + (3 if self.c.glob else 0), hi) if room(i) >= 4][:k]
            ex = [i for i in range(lo + 8, hi - 12) if not gaps[i]['d'] and len(gaps[i]['v']) == 1 and room(i) == 0]
            while len(pos) < k:
                pos.append(max(ex, key=lambda i: min(abs(i - q) for q in pos + [lo - 20]))); pos.sort()
        else:
            cand = [i for i in range(lo + 2, hi - 8) if room(i) >= 4 or (not gaps[i]['d'] and len(gaps[i]['v']) == 1)]
            pos = []
            for j, b in enumerate(bundles):
                tgt = lo + 2 + (hi - 8 - lo - 2) * j / k
                cc = [i for i in cand if not pos or i - len(b) >= pos[-1]]
                pos.append(min(cc, key=lambda i: abs(i - tgt) - (4 if room(i) >= 4 else 0)))
        prev = -1
        for b, i in zip(bundles, pos):
            ns = len(b) - 1
            top = i if (ns > 1 or gaps[i]['d']) else i - 1
            js = [j for j in range(max(prev + 1, 1), top + 1) if not gaps[j]['s'] and not gaps[j].get('w')][-ns:]
            if len(js) < ns: js = list(range(max(prev + 1, 0), top + 1))[-ns:]
            assert len(js) == ns, (i, prev)
            for q, ins in zip(js, b[:-1]): gaps[q]['s'].append(ins)
            for q in range(js[0], js[-1] + 1): gaps[q]['busy'] = True
            gaps[i]['d'].append(b[-1])
            prev = i
        return prev
    def flat(self, gaps):
        o = []
        for g in gaps:
            o.append(I(g['m']))
            o += II(g['s'] + g['d'] + g['v'])
        return o

    def finalize(self, t, k, Lm, packs, acct, Lreg=None, soff=None, nb=None):
        c = self.c
        buf = k & 1
        st = "L:st%d" % buf
        Lreg = Lr(t) if Lreg is None else Lreg
        land = Q(t, 0)[1]
        x, y = Lm + 3, Lm + 2
        o = ["v_mov_b32 v%d, v%d" % (y, Lreg), "v_permlane32_swap_b32 v%d, v%d" % (Lreg, y), "v_add_f32 v%d, v%d, v%d" % (Lreg, Lreg, y),
             "v_mov_b32 v%d, v%d" % (y, Lreg), "v_permlane16_swap_b32 v%d, v%d" % (Lreg, y), "v_add_f32 v%d, v%d, v%d" % (Lreg, Lreg, y),
             "v_rcp_f32 v%d, v%d" % (x, Lreg)]
        for g in (1, 2, 3):
            o.append("v_mov_b32_dpp v%d, v%d row_ror:%d row_mask:0x%x bank_mask:0xf" % (x, x, 16 - 4 * g, 1 << g))
        for r in range(4):
            o.append("v_mov_b32_dpp v%d, v%d row_newbcast:%d row_mask:0xf bank_mask:0xf" % (Lm + r, x, r))
        if nb is not None:
            o.append("ds_read_b128 %s, v%d offset:%d" % (rn('v', nb, 4), vAK, 64 * t))
            for r in range(4): o.append("v_mul_f32 v%d, v%d, v%d" % (nb + r, nb + r, Lm + r))
        loc = {}
        for db in range(8):
            f, b = O(t, db)
            if f == 'a':
                for r in range(4):
                    o.append("v_accvgpr_read_b32 v%d, a%d" % (acct + 4 * (db - 4) + r, b + r))
                b = acct + 4 * (db - 4)
            loc[db] = b
        for db in range(8):
            for r in (0, 2):
                if nb is None: o.append("v_pk_mul_f32 %s, %s, %s" % (rn('v', loc[db] + r, 2), rn('v', loc[db] + r, 2), rn('v', Lm + r, 2)))
                else: o.append("v_pk_fma_f32 %s, %s, %s, %s neg_lo:[0:0:1] neg_hi:[0:0:1]" % (rn('v', loc[db] + r, 2), rn('v', loc[db] + r, 2), rn('v', Lm + r, 2), rn('v', nb + r, 2)))
        for r in range(4):
            pb = packs[r % len(packs)]
            for j in range(4):
                o.append("v_cvt_pk_bf16_f32 v%d, v%d, v%d" % (pb + j, loc[2 * j] + r, loc[2 * j + 1] + r))
            o.append(Ins("ds_write_b128 v%d, %s offset:%d" % (vEW, rn('v', pb, 4), r * 320 + buf * 5120), xw=[st + "r%d" % r]))
        if soff is None:
            soff = sSt + t
            o.append("s_add_u32 s%d, s%d, %d" % (soff, sOo, t * 4096))
        for a in range(4):
            for sel in range(2):
                o.append(Ins("ds_read_b64_tr_b16 %s, v%d offset:%d" % (rn('a', land + 4 * a + 2 * sel, 2), vER, a * 1280 + 64 * sel + buf * 5120), xr=[st + "r%d" % r for r in range(4)]))
        for a in range(4):
            o.append("buffer_store_dwordx4 %s, v%d, s[%d:%d], s%d offen offset:%d %s" % (rn('a', land + 4 * a, 4), vDMA, sO, sO + 3, soff, a * 1024, c.oflag))
        return II(o)

    def tail(self):
        c, NT, tau = self.c, self.NT, self.tau
        T = NT - 1
        U = NT * 31
        G1 = lambda t: [g for g in range(4) if tau[g] > t]
        ring = dict(xr=["L:ring"])
        self.qprio = c.qprio[1]
        pre = []
        if not self.a:
            pre = II(["ds_write_b32 v%d, v%d offset:%d" % (vDMA, FL(w), HL + 1024 * w) for w in range(3)])
        prog = [Ins("s_barrier", lgkm0=True, xw=["L:ring"])]
        if self.a:
            prog += self.unit0_qk()[9:] + [Ins(self.pread(U, 0), **ring), Ins("ds_read_b32 v%d, v%d offset:%d" % (S(FG), vDMA, HL), **ring)]
        else:
            prog += self.softmax(Lr(T), S(3), self.pd(U - 1, 3)) + II(self.g.epi_addr(192, 193, 194))
        prog += self.pv(T, range(4), lambda ks: P(U - 1, ks))
        sidx = 0
        for t in range(NT):
            gs = G1(t)
            if not gs: continue
            pb = (lambda u: (lambda ks: P(u, ks)))(U)
            for g in gs:
                sb = S(sidx); sidx += 1
                if not (self.a and t == 0): prog += self.qk(t, g, sb)
                if tau[g] == t + 1: prog += [Ins(self.kread(g, ds), **ring) for ds in range(4)]
                if self.a and t == 0 and g == FG: prog += II(["v_add_f32 v%d, v%d, v%d" % (Lr(0), Lr(0), S(FG))])
                else: prog += self.softmax(Lr(t), sb, self.pd(U, g))
            prog += self.pv(t, gs, pb)
            for db in range(8):
                prog += [Ins(self.vread(g, db), **ring) for g in gs if tau[g] == t + 1]
            U += 1
        order = [t for t in range(NT) if not G1(t)] + [t for t in range(NT) if G1(t)]
        gorder = sorted(range(4), key=lambda g: tau[g])
        pool = 32 * order[0]
        for k, t in enumerate(order):
            pb = (lambda u: (lambda ks: P(u, ks)))(U)
            for g in (gorder if k == 0 else range(4)):
                sb = S(sidx); sidx += 1
                prog += self.qk(t, g, sb)
                prog += self.softmax(Lr(t), sb, self.pd(U, g))
            prog += self.pv(t, range(4), pb)
            U += 1
            if k == 0:
                prog += II(["v_bfe_u32 v%d, v%d, 8, 2" % (vAK, vDMA), "v_lshl_add_u32 v%d, v%d, 4, s%d" % (vAK, vAK, sT0)])
                prog += self.finalize(t, k, pb(0), [pb(0), pb(1)], None, nb=pb(1))
            elif t == 6: prog += self.finalize(t, k, pool + 8 * (k & 1), [pool, pool + 4, pool + 8, pool + 12], pool + 16, nb=pool + 8 * (k & 1) + 4)
            else: prog += self.finalize(t, k, pool + 8 * (k & 1), [pool + 16, pool + 20, pool + 24, pool + 28], None, nb=pool + 8 * (k & 1) + 4)
        ls = [Lr(t) for t in range(NT)] + [Lr(0)]
        for op, r in (("v_max3_u32", vAK), ("v_min3_u32", vAV)):
            prog += II(["%s v%d, v%d, v%d, v%d" % (op, r, ls[0], ls[1], ls[2]), "%s v%d, v%d, v%d, v%d" % (op, r, r, ls[3], ls[4]),
                        "%s v%d, v%d, v%d, v%d" % (op, r, r, ls[5], ls[6])])
        return pre + schedule(prog, c.verbose, order=True, trials=c.trials, space=dict(zip(('dsw', 'vstore', 'dsr'), c.space)))

    def resolve_waits(self, seq):
        issued = [self.group[id(b[-1])] for b in self.first]
        for i in seq:
            g = self.group.get(id(i))
            if i.kind in ("dma", "vload", "vstore"): issued.append(g)
            elif g and g.startswith("W:"):
                last = max(j for j, x in enumerate(issued) if x == g[2:])
                i.text = "s_waitcnt vmcnt(%d)" % min(63, len(issued) - 1 - last)

    def build(self):
        c, NT, tag = self.c, self.NT, self.tag
        self.code = [Ins("L_wave_%s:" % tag)]
        self.prologue()
        self.code += self.ts(1) + self.ts(2) + self.ts2()
        self.code.append(self.waitv("K4"))
        self.code += self.flat(self.window(2)) + self.ts2() + self.ts(3)
        self.resolve_waits(self.code)
        head, pend = insert_lgkm(self.code)
        assert not pend
        if c.coarse: head = coarsen_waits(head, c.coarse)
        head = pad_hazards(head)
        gaps = self.window(3) + self.window(4)
        body, pend = insert_lgkm(self.flat(gaps))
        assert not pend
        if c.coarse: body = coarsen_waits(body, c.coarse)
        if c.exp:
            nb_ = []; prevqk = False; k = 0
            for x in body:
                if x.kind == "mfma":
                    qk_ = x.A[0][0] == 'a'
                    if prevqk and not qk_:
                        pb_ = int(x.A[0][1:]) & ~7
                        if 'S' in c.exp: nb_.append(Ins("v_smfmac_f32_16x16x64_bf16 v[244:247], v[248:251], v[%d:%d], v255" % (pb_, pb_ + 7)))
                        if 'D' in c.exp: nb_ += [Ins("v_mfma_f32_16x16x32_bf16 v[244:247], v[%d:%d], v[248:251], v[244:247]" % (pb_ + 4 * i, pb_ + 4 * i + 3)) for i in range(2)]
                        if 'N' in c.exp: nb_.append(Ins("s_nop 3"))
                        if 'M' in c.exp: nb_.append(Ins("s_nop 7"))
                    prevqk = qk_
                if x.op == "v_add_f32" and set(c.exp) & set("SD"):
                    k += 1
                    if k % 16 in (1, 3, 5): nb_.append(Ins("v_mov_b32_dpp v%d, v%d row_ror:2 row_mask:0xf bank_mask:0xf" % (248 + k % 16 // 2, 248 + k % 16 // 2)))
                    if k % 16 == 7: nb_.append(Ins("v_mov_b32_dpp v254, v254 row_ror:2 row_mask:0xf bank_mask:0xf"))
                    continue
                nb_.append(x)
            body = nb_
            if set(c.exp) & set("SD"):
                head += II(["v_bfe_u32 v248, v253, 5, 3", "v_cmp_eq_u32 vcc, 0, v248", "v_mov_b32 v255, 0x3f803f80", "s_nop 1", "v_cndmask_b32 v248, 0, v255, vcc", "v_cndmask_b32 v249, 0, v255, vcc",
                            "v_cndmask_b32 v250, 0, v255, vcc", "v_cndmask_b32 v254, 0, v255, vcc", "v_mov_b32 v255, 0x44444444", "s_nop 1"])
        body.append(Ins("s_cbranch_scc0 L_loop_%s" % tag))
        if not c.exp:
            pad_hazards(body, hist=head[-16:], fix=False, name="loop entry")
            pad_hazards(body, hist=body[-16:], fix=False, name="loop back")
        tail = self.ts(4) + (II(self.g.epi_addr(244, 245, 246)) if c.exp and self.a else []) + self.tail()
        tail += [Ins("v_cmp_le_u32 vcc, 0x%08x, v%d" % (f2u(2.0 ** c.hi_exp), vAK)),
                 Ins("s_mov_b64 s[%d:%d], vcc" % (sT1, sT1 + 1)),
                 Ins("v_cmp_ge_u32 vcc, 0x%08x, v%d" % (f2u(2.0 ** c.lo_exp), vAV)),
                 Ins("s_or_b64 s[%d:%d], s[%d:%d], vcc" % (sT1, sT1 + 1, sT1, sT1 + 1)),
                 Ins("s_mov_b32 s%d, %d" % (sNT, NT)),
                 Ins("s_nop 0" if c.exp else "s_cbranch_scc1 L_slow" if not c.force_slow else "s_branch L_slow")]
        tail += self.ts(5)
        if c.diag: tail += [Ins("s_waitcnt vmcnt(0)")] + self.ts(6)
        tail.append(Ins("s_branch L_fin" if c.diag else "s_endpgm"))
        tail, pend = insert_lgkm(tail)
        tail = pad_hazards(tail, hist=body[-16:])
        res = head + [Ins(".p2align 6"), Ins("L_loop_%s:" % tag)] + body + tail
        if c.jit:
            w, n, before = c.jit
            o = []
            for k, x in enumerate(res):
                d = [Ins("s_cselect_b32 s98, 1, 0"), Ins("s_cmp_lg_u32 s%d, %d" % (sW, w)), Ins("s_cbranch_scc1 L_j%s%d" % (tag, k)), Ins("s_sleep %d" % n), Ins("L_j%s%d:" % (tag, k)), Ins("s_cmp_lg_u32 s98, 0")]
                if x.kind == "barrier" and before: o += d
                o.append(x)
                if x.kind == "barrier" and not before: o += d
            res = o
        return res

class Gen:
    def __init__(self, cfg):
        self.c = cfg
    def epi_addr(self, a, b, d):
        return ["v_bfe_u32 v%d, v%d, 8, 2" % (a, vDMA), "v_and_b32 v%d, 0xf0, v%d" % (b, vDMA),
                "v_mul_u32_u24 v%d, 0x500, v%d" % (vEW, a), "v_add3_u32 v%d, v%d, v%d, s%d" % (vEW, vEW, b, sStg),
                "v_mul_u32_u24 v%d, 0x140, v%d" % (vER, a), "v_bfe_u32 v%d, v%d, 6, 2" % (d, vDMA), "v_lshl_add_u32 v%d, v%d, 4, v%d" % (vER, d, vER),
                "v_bfe_u32 v%d, v%d, 4, 1" % (d, vDMA), "v_lshl_add_u32 v%d, v%d, 3, v%d" % (vER, d, vER),
                "v_bfe_u32 v%d, v%d, 5, 1" % (d, vDMA), "v_lshl_add_u32 v%d, v%d, 7, v%d" % (vER, d, vER),
                "v_add_u32 v%d, s%d, v%d" % (vER, sStg, vER)]
    def slow(self):
        c = self.c
        w = Wave(self, 7, "s")
        o = []
        e = lambda s: o.extend(Ins(l) for l in s.strip().split("\n"))
        vL, vKA, vVA, vQA_, vM, vX = 64, 65, 66, 67, 68, 69
        KF = lambda kg, ds: 72 + 16 * kg + 4 * ds
        VF = lambda db: 104 + 4 * db
        QF = lambda ds: 136 + 4 * ds
        SB, PB, LM, PKB = 152, 160, 164, 168
        e("L_slow:")
        e("s_waitcnt vmcnt(0) lgkmcnt(0)")
        e("v_and_b32 v%d, 0x3ff, v%d" % (vDMA, vDMA))
        e("v_lshrrev_b32 v%d, 4, v%d" % (vX, vDMA))
        e("v_and_b32 v%d, 7, v%d\nv_lshlrev_b32 v%d, 10, v%d" % (vM, vX, vKA, vM))
        e("v_and_b32 v%d, 8, v%d\nv_lshl_add_u32 v%d, v%d, 5, v%d" % (vM, vX, vKA, vM, vKA))
        e("v_and_b32 v%d, 48, v%d\nv_add_u32 v%d, v%d, v%d" % (vM, vX, vKA, vM, vKA))
        e("v_and_b32 v%d, 15, v%d\nv_lshlrev_b32 v%d, 8, v%d" % (vM, vX, vQA_, vM))
        e("v_and_b32 v%d, 48, v%d\nv_add_u32 v%d, v%d, v%d" % (vM, vX, vQA_, vM, vQA_))
        e("v_bfe_u32 v%d, v%d, 2, 3\nv_mul_u32_u24 v%d, %d, v%d" % (vM, vX, vVA, PV_, vM))
        e("v_and_b32 v%d, 32, v%d\nv_lshl_add_u32 v%d, v%d, 3, v%d" % (vM, vX, vVA, vM, vVA))
        e("v_and_b32 v%d, 1, v%d\nv_lshl_add_u32 v%d, v%d, 3, v%d" % (vM, vX, vVA, vM, vVA))
        e("v_and_b32 v%d, 2, v%d\nv_lshl_add_u32 v%d, v%d, 6, v%d" % (vM, vX, vVA, vM, vVA))
        e("v_add_u32 v%d, s%d, v%d" % (vVA, sStg, vVA))
        e("s_mov_b32 s%d, 0" % sTile)
        e("L_slow_tile:")
        e("s_lshl_b32 s%d, s%d, 12\ns_add_u32 s%d, s%d, s%d" % (sSt, sTile, sSt, sSt, sQo))
        for ds in range(4):
            e("buffer_load_dwordx4 %s, v%d, s[%d:%d], s%d offen offset:%d" % (rn('v', QF(ds), 4), vQA_, sQ, sQ + 3, sSt, ds * 64))
        e("s_waitcnt vmcnt(0)")
        for r in range(16):
            q = QF(0) + r
            e("v_lshlrev_b32 v%d, 16, v%d\nv_and_b32 v%d, s%d, v%d" % (vM, q, vX, sHi, q))
            e("v_mul_f32 v%d, s%d, v%d\nv_mul_f32 v%d, s%d, v%d" % (vM, sC2, vM, vX, sC2, vX))
            e("v_cvt_pk_bf16_f32 v%d, v%d, v%d" % (q, vM, vX))
        def kload():
            for kg in range(2):
                for ds in range(4):
                    e("buffer_load_dwordx4 %s, v%d, s[%d:%d], s%d offen offset:%d" % (rn('v', KF(kg, ds), 4), vKA, sK, sK + 3, sBlk, kg * 512 + ds * 64))
        def qk(raw):
            for kg in range(2):
                for ds in range(4):
                    e(mfma(('v', SB + 4 * kg), ('v', KF(kg, ds)), ('v', QF(ds)), (None if raw else ('v', CI)) if ds == 0 else ('v', SB + 4 * kg)))
        e("v_mov_b32 v%d, 0xff800000\ns_mov_b32 s%d, 0" % (vM, sBlk))
        e("L_slow_max:")
        kload()
        e("s_waitcnt vmcnt(0)")
        qk(True)
        e("s_nop 7")
        for i in range(0, 8, 2):
            e("v_max3_f32 v%d, v%d, v%d, v%d" % (vM, vM, SB + i, SB + i + 1))
        e("s_add_u32 s%d, s%d, 8192\ns_cmp_lt_u32 s%d, 524288\ns_cbranch_scc1 L_slow_max" % (sBlk, sBlk, sBlk))
        for sw in ("v_permlane32_swap_b32", "v_permlane16_swap_b32"):
            e("v_mov_b32 v%d, v%d\n%s v%d, v%d\nv_max_f32 v%d, v%d, v%d" % (vX, vM, sw, vM, vX, vM, vM, vX))
        for i in range(4): e("v_sub_f32 v%d, 0, v%d" % (CI + i, vM))
        for r in range(32): e("v_mov_b32 v%d, 0" % r)
        e("v_mov_b32 v%d, 0\ns_mov_b32 s%d, 0" % (vL, sBlk))
        e("L_slow_pv:")
        kload()
        e("s_add_u32 s%d, s%d, 4096" % (sT0, sBlk))
        for a in range(2):
            for n in range(4):
                e("s_add_u32 m0, s%d, %d" % (sStg, 4 * PV_ * a + (PV_ - 1024) * n))
                e("buffer_load_dwordx4 v%d, s[%d:%d], s%d offen offset:%d lds" % (vDMA, sV, sV + 3, sT0 if a else sBlk, 1024 * n))
        e("s_waitcnt vmcnt(0)")
        for db in range(8):
            for hb in range(2):
                e("ds_read_b64_tr_b16 %s, v%d offset:%d" % (rn('v', VF(db) + 2 * hb, 2), vVA, hb * 512 + db * 16))
        qk(False)
        e("s_nop 7")
        for i in range(8): e("v_exp_f32 v%d, v%d" % (SB + i, SB + i))
        for i in range(8): e("v_add_f32 v%d, v%d, v%d" % (vL, vL, SB + i))
        for i in range(4): e("v_cvt_pk_bf16_f32 v%d, v%d, v%d" % (PB + i, SB + 2 * i, SB + 2 * i + 1))
        e("s_waitcnt lgkmcnt(0)")
        for db in range(8):
            e(mfma(('v', 4 * db), ('v', PB), ('v', VF(db)), ('v', 4 * db)))
        e("s_nop 7")
        e("s_add_u32 s%d, s%d, 8192\ns_cmp_lt_u32 s%d, 524288\ns_cbranch_scc1 L_slow_pv" % (sBlk, sBlk, sBlk))
        o.extend(w.finalize(0, 0, LM, [PKB], None, Lreg=vL, soff=sSt))
        e("s_waitcnt vmcnt(0) lgkmcnt(0)")
        e("s_add_u32 s%d, s%d, 1\ns_cmp_lt_u32 s%d, s%d\ns_cbranch_scc1 L_slow_tile" % (sTile, sTile, sTile, sNT))
        o, _ = insert_lgkm(o, hoist=False)
        return pad_hazards(o)

    def build(self):
        c = self.c
        o = []
        e = lambda s: o.extend(Ins(l) for l in s.strip().split("\n"))
        wa, wb = Wave(self, 7, "a"), Wave(self, 6, "b")
        ca, cb = wa.build(), wb.build()
        assert [[x.text for x in b] for b in wa.first] == [[x.text for x in b] for b in wb.first]
        assert sum(x.kind == "barrier" for x in ca) == sum(x.kind == "barrier" for x in cb)
        e("s_cmp_ge_u32 s2, 256\ns_cbranch_scc1 L_end")
        e("s_load_dwordx4 s[4:7], s[0:1], 0\ns_load_dwordx4 s[8:11], s[0:1], 16")
        if c.diag:
            e("s_load_dwordx2 s[40:41], s[0:1], 40")
            e("s_memrealtime s[44:45]\ns_memtime s[46:47]\ns_waitcnt lgkmcnt(0)\ns_mov_b32 s48, s44\ns_mov_b32 s49, s46")
            if c.tsmode == 2: e("s_mov_b32 s48, s46")
        e("s_getpc_b64 s[38:39]")
        e("L_pc:")
        e("s_bfe_u32 s%d, s2, 0x30003\ns_lshl_b32 s%d, s%d, 13" % (sC, sC, sC))
        e("v_lshlrev_b32 v2, 5, v0\nv_add_u32 v2, s%d, v2\nv_min_u32 v2, L_slow-L_pc, v2" % sC)
        e("global_load_dword v95, v2, s[38:39]")
        e("v_lshrrev_b32 v1, 6, v0")
        e("v_and_b32 v0, 63, v0")
        e("v_readfirstlane_b32 s%d, v1" % sW)
        e("v_lshlrev_b32 v%d, 4, v0" % vDMA)
        e("v_and_b32 v2, 48, v0\nv_xor_b32 v%d, v2, v%d" % (vQS, vDMA))
        e("s_mul_i32 s%d, s2, 110592" % sT0)
        e("s_lshl_b32 s3, s2, 19")
        e("s_mov_b32 s%d, 524288\ns_mov_b32 s%d, 0x20000\ns_mov_b32 s%d, 110592\ns_mov_b32 s%d, 0x20000" % (sK + 2, sK + 3, sQ + 2, sQ + 3))
        e("s_mul_i32 s%d, s%d, %d" % (sQo, sW, 112 * 256))
        e("s_add_u32 s%d, s%d, %d\ns_min_u32 s%d, s%d, %d" % (sQT, sQo, 6 * 4096, sQT, sQT, 26 * 4096))
        e("s_mul_i32 s%d, s%d, %d" % (sWK, sW, 2 * PK))
        e("s_lshl_b32 s%d, s%d, 10\ns_cmp_eq_u32 s%d, 3\ns_cselect_b32 s%d, 0, s%d" % (sWo, sW, sW, sWo, sWo))
        e("s_lshl_b32 s%d, s%d, 11\ns_sub_u32 s%d, s%d, s%d" % (sWG, sW, sWG, sWG, sWo))
        e("v_add_u32 v%d, s%d, v%d" % (vDMA, sWo, vDMA))
        e("s_mul_i32 s%d, s%d, %d\ns_add_u32 s%d, s%d, %d" % (sQS, sW, QT, sQS, sQS, RB + SS))
        e("s_waitcnt lgkmcnt(0)")
        def srd(r, src, offs):
            e("s_add_u32 s%d, s%d, s%d\ns_addc_u32 s%d, s%d, 0" % (r, src, offs, r + 1, src + 1))
        srd(sK, 6, 3); srd(sQ, 4, sT0)
        for b in wa.first[:8]: o.extend(b)
        srd(sV, 8, 3); srd(sO, 10, sT0)
        e("s_mov_b32 s%d, 524288\ns_mov_b32 s%d, 0x20000\ns_mov_b32 s%d, 110592\ns_mov_b32 s%d, 0x20000" % (sV + 2, sV + 3, sO + 2, sO + 3))
        e("s_mul_i32 s%d, s%d, %d" % (sWV, sW, 2 * PV_))
        for b in wa.first[8:]: o.extend(b)
        cs = f2u(math.log2(math.e) / math.sqrt(128.0))
        e("s_mov_b32 s%d, 0x%08x\ns_mov_b32 s%d, 0x%08x" % (sC2, cs, sC2 + 1, cs))
        e("s_mul_i32 s%d, s%d, %d\ns_add_u32 s%d, s%d, %d" % (sStg, sW, PRIV, sStg, sStg, STG))
        e("s_mov_b32 s%d, %d\ns_mov_b32 s%d, %d\ns_mov_b32 s%d, %d" % (sRd, 2 * SS, sIncW, (-2 * SS) & 0xffffffff, sIncN, SS))
        e("s_mov_b32 s%d, 13\ns_mov_b32 s%d, %d" % (sCnt, sSl, SS))
        e("s_mov_b32 s%d, 0xff800000\ns_mov_b32 s%d, 0xffff0000" % (sMask, sHi))
        e("s_sub_u32 s%d, s%d, s%d" % (sOo, sQo, sWo))
        for n, st, base, d, g1, g2 in ((c.nK, PK, RB, sDK, sGK, sGK2), (c.nV, PV_, RB + VO, sDV, sGV, sGV2)):
            e("s_mul_i32 s%d, s%d, %d\ns_add_u32 s%d, s%d, %d" % (d, sW, n * st, d, d, base))
            e("s_mul_i32 s%d, s%d, %d\ns_sub_u32 s%d, s%d, s%d\ns_add_u32 s%d, s%d, %d\ns_add_u32 s%d, s%d, 4096" % (g1, sW, n * 1024, g1, g1, sWo, g1, g1, 4 * 16384, g2, g1))
        e("s_add_u32 s%d, s%d, %d\ns_add_u32 s%d, s%d, %d" % (sLK, sGK, 27 * 16384, sLV, sGV, 27 * 16384))
        srd(sWKp, sK, sWG); srd(sWVp, sV, sWG)
        e("s_movk_i32 s%d, 4096" % sStep)
        e("s_add_u32 s%d, s%d, %d" % (sT0, sStg, PARK))
        e("v_mov_b32 v%d, 0x00400000\nv_add_u32 v%d, s%d, v2" % (vHalf, vPK, sT0))
        e("v_lshlrev_b32 v%d, 2, v1\nv_add_u32 v%d, %d, v%d" % (vMA, vMA, HM, vMA))
        e("v_bfe_u32 v3, v0, 2, 2\nv_mul_u32_u24 v%d, %d, v3" % (vQA, PQ))
        e("v_and_b32 v3, 3, v0\nv_lshl_add_u32 v%d, v3, 8, v%d" % (vQA, vQA))
        e("v_lshlrev_b32 v3, 4, v3\nv_xor_b32 v3, v2, v3")
        e("v_add3_u32 v%d, v%d, v3, s%d\nv_add3_u32 v%d, v%d, v3, s%d" % (vQB, vQA, sStg, vQA, vQA, sQS))
        e("v_and_b32 v3, 7, v0\nv_mul_u32_u24 v%d, %d, v3" % (vAK, PK))
        e("v_and_b32 v3, 8, v0\nv_lshl_add_u32 v%d, v3, 5, v%d" % (vAK, vAK))
        e("v_add_u32 v%d, v2, v%d\nv_add_u32 v%d, %d, v%d" % (vAK, vAK, vAK, RB, vAK))
        e("v_and_b32 v3, 1, v0\nv_lshlrev_b32 v4, 3, v3\nv_and_b32 v3, 2, v0\nv_lshl_add_u32 v4, v3, 6, v4")
        e("v_bfe_u32 v3, v0, 2, 3\nv_mul_u32_u24 v%d, %d, v3" % (vAV, PV_))
        e("v_and_b32 v3, 32, v0\nv_lshl_add_u32 v%d, v3, 3, v%d" % (vAV, vAV))
        e("v_add_u32 v%d, v4, v%d\nv_add_u32 v%d, %d, v%d" % (vAV, vAV, vAV, RB + VO, vAV))
        e("s_cmp_eq_u32 s%d, 3" % sW)
        e("s_cbranch_scc1 L_wave_b")
        e("\n".join(self.epi_addr(1, 2, 3)))
        o[:] = pad_hazards(o)
        if c.pad: o += [Ins("s_branch L_wave_a")] + [Ins("s_nop 0") for _ in range(c.pad // 4)]
        o += ca
        o += cb
        o += self.slow()
        e("L_fin:")
        if c.diag and c.echo:
            i, j, m, k = c.echo
            e("s_sub_u32 s90, s%d, s%d\ns_mul_i32 s90, s90, %d\ns_lshr_b32 s90, s90, %d" % (48 + 2 * j + k, 48 + 2 * i + k, m, 5 if k else 0))
            e("L_echo:\ns_memrealtime s[94:95]\ns_waitcnt lgkmcnt(0)\ns_sub_u32 s94, s94, s60\ns_cmp_lt_u32 s94, s90\ns_cbranch_scc1 L_echo")
        elif c.diag:
            e("s_mov_b32 s42, 0x1000000\ns_mov_b32 s43, 0x20000")
            e("s_lshl_b32 s%d, s2, 2\ns_add_u32 s%d, s%d, s%d\ns_lshl_b32 s%d, s%d, %d" % (sT0, sT0, sT0, sW, sT0, sT0, 7 if c.tsmode >= 2 else 6))
            e("v_mov_b32 v0, 0")
            for i in range(0, 28 if c.tsmode >= 2 else 16, 4):
                for k in range(4):
                    e("v_mov_b32 v%d, s%d" % (4 + k, 48 + i + k if i < 16 else 72 + i + k))
                e("buffer_store_dwordx4 v[4:7], v0, s[40:43], s%d offen offset:%d" % (sT0, i * 4))
                e("s_waitcnt vmcnt(0)")
        e("L_end:")
        e("s_endpgm")
        align_runs(o)
        txt = ["; MHA forward, B=8 H=32 Sq=432 Sk=2048 D=128, bf16.  One workgroup per head, 4 waves (one per SIMD).",
               "; @launch grid=(256,1,1) block=(256,1,1) lds=%d" % LDS] + HEADER.strip().split("\n") + [
               '.amdgcn_target "amdgcn-amd-amdhsa--gfx950"', ".text", ".globl %s" % c.kname, ".p2align 8",
               ".type %s,@function" % c.kname, "%s:" % c.kname]
        for i in o:
            txt.append(i.text if i.kind == "label" else "    " + i.text.replace("[0:0:1]", "[0,0,1]"))
        txt.append('.section .rodata,"a"\n.p2align 6\n.amdhsa_kernel %s' % c.kname)
        txt.append("""  .amdhsa_next_free_vgpr 512
  .amdhsa_next_free_sgpr 102
  .amdhsa_accum_offset 256
  .amdhsa_group_segment_fixed_size 0
  .amdhsa_kernarg_size 48
  .amdhsa_user_sgpr_count 2
  .amdhsa_user_sgpr_kernarg_segment_ptr 1
  .amdhsa_system_sgpr_workgroup_id_x 1
.end_amdhsa_kernel""")
        return "\n".join(txt) + "\n"

if __name__ == "__main__":
    cfg = Cfg()
    out = sys.argv[1]
    for a in sys.argv[2:]:
        k, v = a.split("=")
        assert hasattr(cfg, k), k
        setattr(cfg, k, eval(v))
    txt = Gen(cfg).build()
    open(out, "w").write(txt)
```

```python
import sys, math, struct
from asmlib import *

KNAME = "standalone__mha_softmax__near_ridge"

HEADER = """
;
;              K/V stream through a 3-slot LDS ring (64 keys per slot) by LDS-DMA.  One barrier per 64 keys.
; Math       : S^T = K * (Q*log2e/sqrt(D))^T + C with v_mfma_f32_16x16x32_bf16, P = exp2(S), l += P (fp32), O += P * V.
"""

class Cfg:
    kname = KNAME + "_kernel"
    diag = False
    tsmode = 0
    echo = None
    jit = None
    force_slow = False
    verbose = 0
    trials = 0
    ptrials = 0
    dflag = "nt"
    qflag = "nt"
    oflag = "sc1"
    bias = 2.0
    gamma = 16.0
    lo_exp = -30
    hi_exp = 30
    first = 8
    lead = 4
    wspan = 0.75
    fpos = 38
    pb_hi = 0.6
    sh_hi = 0.3
    s3_lo = 0.45
    bara = 36
    barb = 37
    qprio = (80, 80)
    space = (48, 64, 12)
    coarse = 8
    nK = 3
    nV = 3
    fun = (1, 3, 4)
    lat = 144
    exp = ''
    glob = True
    gshare = 2
    apos = (4, 12, 16, 116, 204, 208)
    bpos = None
    pad = 0

PK, PV_ = 1056, 1040
HK, HV = 8 * PK, 8 * PV_
VO = 16 * PK
SS = 16 * PK + 16 * PV_
HP, HL, HM = 0, 3072, 6144
RB = 6400
RING = 3 * SS
STG = RB + RING
PQ = 1088
QT = 4 * PQ
PARK = 3 * QT
PRIV = 3 * QT + 512
LDS = STG + 4 * PRIV
assert LDS <= 163840 and SS + 15 * QT <= RING and 8 * QT >= SS
FG = 1

def O(t, db):
    if t == 6 and db >= 4: return ('a', 240 + 4 * (db - 4))
    return ('v', 32 * t + 4 * db)
def S(i): return 208 + 4 * (i & 3)
def P(U, ks): return 224 + 8 * (U & 1) + 4 * ks
CI = 240
def Lr(t): return 244 + t
vAK, vAV, vDMA, vEW, vER = 251, 252, 253, 254, 255
TB = 32
vVM, vHalf, vPK, vQS, vQA, vQB, vMA, vMX = TB + 29, TB + 28, TB + 27, TB + 25, TB + 30, TB + 31, TB + 24, TB + 26
def Q(t, ds): return ('a', 16 * t + 4 * ds)
def FQ(w, ds): return (('a', 96), ('a', 240), ('v', 192))[w][0], (96, 240, 192)[w] + 4 * ds
def FL(w): return (Lr(6), vEW, vER)[w]
def Kf(g, ds): return 112 + 16 * g + 4 * ds
def Vf(db, ks): return 176 + 8 * db + 4 * ks

sHi = 3
sQ, sK, sV, sO = 12, 16, 20, 24
sW, sCnt, sInc, sRd, sC, sQo, sSl = 28, 29, 30, 31, 32, 33, 34
sT0, sT1, sT2 = 35, 36, 37
sGK, sGK2, sGV, sGV2 = 64, 65, 66, 67
sWK, sWV, sWG = 68, 69, 70
sIncW, sIncN = 71, 72
sNT, sTile, sBlk, sStg, sQS, sQT, sMask = 73, 74, 75, 76, 77, 78, 79
sSt = 80
sWo, sDK, sDV, sOo = 87, 4, 5, 6
sC2 = 100
sStep = 7
sWKp, sWVp = 0, 38
sPr, sLK, sLV = 8, 10, 11

def rn(f, b, n): return "%s[%d:%d]" % (f, b, b + n - 1)
def mfma(D, A, B, C, half=False):
    n = 2 if half else 4
    cs = "0" if C is None else rn(C[0], C[1], 4)
    op = "v_mfma_f32_16x16x16_bf16" if half else "v_mfma_f32_16x16x32_bf16"
    return "%s %s, %s, %s, %s" % (op, rn(D[0], D[1], 4), rn(A[0], A[1], n), rn(B[0], B[1], n), cs)
def f2u(x): return struct.unpack("<I", struct.pack("<f", x))[0]
II = lambda l, **kw: [I(x, **kw) for x in l]

def edf(W, primary, secondary):
    def run(pos):
        items = sorted(W, key=lambda w: w[1]); res = {}; pend = []; i = 0
        for p in pos:
            while i < len(items) and items[i][1] <= p: pend.append(items[i]); i += 1
            pend.sort(key=lambda w: w[2])
            if pend:
                w = pend.pop(0)
                if w[2] < p: return None
                res[w[0]] = p
        return None if pend or i < len(items) else res
    sec = list(secondary)
    assert run(sorted(primary + sec)), "no reload schedule"
    for s in list(sec):
        t = list(sec); t.remove(s)
        if run(sorted(primary + t)): sec = t
    return run(sorted(primary + sec)), sec

class Wave:
    def __init__(self, gen, NT, tag):
        self.g, self.c, self.NT, self.tag = gen, gen.c, NT, tag
        self.a = NT == 7
        self.tau = (2, 1, 5, 4) if self.a else (2, 1, 4, 3)
        self.nK = self.c.nK if self.a else 16 - 3 * self.c.nK
        self.nV = self.c.nV if self.a else 16 - 3 * self.c.nV
        self.oinit = set()
        self.qprio = self.c.qprio[0]
        self.group = {}
        self.code = []
        self.npin = 0
        self.nts = 1
        self.arr = [NT - 1, NT - 2, 0] + list(range(NT - 3, 0, -1))

    def kread(self, g, ds, off=0):
        return "ds_read_b128 %s, v%d offset:%d" % (rn('a', Kf(g, ds), 4), vAK, off + (g >> 1) * HK + (g & 1) * 512 + ds * 64)
    def vread(self, g, db, off=0):
        return "ds_read_b64_tr_b16 %s, v%d offset:%d" % (rn('a', Vf(db, g >> 1) + 2 * (g & 1), 2), vAV, off + (g >> 1) * HV + (g & 1) * 512 + db * 16)
    def pread(self, U, par):
        return "ds_read_b64 %s, v%d offset:%d" % (rn('v', P(U, FG >> 1) + 2 * (FG & 1), 2), vDMA, HP + 8 * par)
    def pwrite(self, w, sb, par):
        return "ds_write_b64 v%d, %s offset:%d" % (vDMA, rn('v', sb, 2), HP + 1024 * w + 8 * par)
    def qk(self, t, g, sb, raw=False, desc=None, qf=None):
        if desc is None: desc = g & 1
        o = []
        for i, ds in enumerate(range(3, -1, -1) if desc else range(4)):
            o.append(Ins(mfma(('v', sb), ('a', Kf(g, ds)), qf(ds) if qf else Q(t, ds), (None if raw else ('v', CI)) if i == 0 else ('v', sb)), prio=self.qprio))
        return o
    def pv1(self, t, db, pb, ks, gs):
        D = O(t, db)
        assert (t, db) in self.oinit
        if len(gs) == 2: return mfma(D, ('v', pb), ('a', Vf(db, ks)), D)
        h = gs[0] & 1
        return mfma(D, ('v', pb + 2 * h), ('a', Vf(db, ks) + 2 * h), D, half=True)
    def pv(self, t, groups, pbase):
        o = []
        if len(groups) == 3:
            for ks in sorted((0, 1), key=lambda k: -len([g for g in groups if g >> 1 == k])):
                for db in range(8): o.append(self.pv1(t, db, pbase(ks), ks, [g for g in groups if g >> 1 == ks]))
            return II(o)
        for db in range(8):
            for ks in ((0, 1) if db % 2 == 0 else (1, 0)):
                gs = [g for g in groups if g >> 1 == ks]
                if gs: o.append(self.pv1(t, db, pbase(ks), ks, gs))
        return II(o)
    def pv_first(self, t, pbase):
        Bt = O(t, 3)
        o = ["v_mfma_f32_16x16x4_f32 %s, v%d, v%d, 0" % (rn('v', Bt[1], 4), Lr(t), vVM)]
        for r in range(4): o.append("v_and_or_b32 v%d, v%d, s%d, v%d" % (Bt[1] + r, Bt[1] + r, sMask, vHalf))
        o.append("ds_write_b128 v%d, %s offset:%d" % (vPK, rn('v', Bt[1], 4), 64 * t))
        if t == 6:
            for r in range(4): o.append("v_accvgpr_write_b32 a%d, v%d" % (O(6, 7)[1] + r, Bt[1] + r))
        for j, db in enumerate((0, 1, 2, 4, 5, 6, 7, 3)):
            D = O(t, db)
            for k, ks in enumerate((0, 1) if j % 2 == 0 else (1, 0)):
                C = D if k else (Bt if D[0] == 'v' else O(6, 7))
                o.append(mfma(D, ('v', pbase(ks)), ('a', Vf(db, ks)), C))
            self.oinit.add((t, db))
        return II(o)
    def wavemax(self, x, y, op="v_max_f32"):
        o = []
        for sw in ("v_permlane32_swap_b32", "v_permlane16_swap_b32"):
            o += ["v_mov_b32 v%d, v%d" % (y, x), "%s v%d, v%d" % (sw, x, y), "%s v%d, v%d, v%d" % (op, x, x, y)]
        for k in (8, 4, 2, 1):
            o.append("%s_dpp v%d, v%d, v%d row_ror:%d row_mask:0xf bank_mask:0xf" % (op, x, x, x, k))
        return o
    def vmax(self):
        x = vVM
        o = []
        for db in range(8):
            t = TB + 3 * (db % 4)
            o += ["v_accvgpr_read_b32 v%d, a%d" % (t + j, r) for j, r in enumerate((Vf(db, 0), Vf(db, 0) + 2, Vf(db, 1) + 1))]
            o.append("v_max3_f32 v%d, |v%d|, |v%d|, |v%d|" % (TB + 16 + db, t, t + 1, t + 2))
        m = TB + 16
        o += ["v_min3_f32 v%d, v%d, v%d, v%d" % (x, m, m + 1, m + 2), "v_min3_f32 v%d, v%d, v%d, v%d" % (x, x, m + 3, m + 4),
              "v_min3_f32 v%d, v%d, v%d, v%d" % (x, x, m + 5, m + 6), "v_min_f32 v%d, v%d, v%d" % (x, x, m + 7)] + self.wavemax(x, m, "v_min_f32")
        o.append("v_min_f32 v%d, 0x%08x, v%d" % (x, f2u(2.0 ** 56), x))
        o.append("v_mul_f32 v%d, 0x%08x, v%d" % (x, f2u(self.c.gamma), x))
        return o
    def sm8(self, L, sb, pdst):
        o = []
        for i in range(4):
            o.append(["v_exp_f32 v%d, v%d" % (sb + i, sb + i)])
            v = ["v_add_f32 v%d, v%d, v%d" % (L, L, sb + i)]
            if i & 1: v.append("v_cvt_pk_bf16_f32 v%d, v%d, v%d" % (pdst + i // 2, sb + i - 1, sb + i))
            o.append(v)
        return o
    def softmax(self, L, sb, pdst):
        return II([x for g in self.sm8(L, sb, pdst) for x in g])
    def pd(self, U, g): return P(U, g >> 1) + 2 * (g & 1)
    def tagged(self, text, grp, **kw):
        i = Ins(text, **kw); self.group[id(i)] = grp; return i
    def dma(self, va, srd, so, n, flag, grp):
        return self.tagged("buffer_load_dwordx4 v%d, s[%d:%d], s%d offen offset:%d %s lds" % (va, srd, srd + 3, so, 1024 * n, flag), grp)
    def share(self, kv, blk):
        srd, lo, base, pad = (sK, (blk & 1) * HK, sWK, PK - 1024) if kv == 'K' else (sV, VO + (blk & 1) * HV, sWV, PV_ - 1024)
        lds = RB + ((blk >> 1) % 3) * SS + lo
        o = []
        for n in range(2):
            if blk >= self.c.gshare:
                wb = sWKp if kv == 'K' else sWVp
                if n == 0: b = [Ins("s_add_u32 m0, s%d, %d" % (base, lds)), Ins("s_add_u32 s%d, s%d, %d" % (sPr, wb, blk * 8192)), Ins("s_addc_u32 s%d, s%d, 0" % (sPr + 1, wb + 1))]
                else: b = [Ins("s_add_u32 m0, m0, %d" % pad)]
                o.append(b + [self.tagged("global_load_lds_dwordx4 v%d, s[%d:%d] offset:%d %s" % (vDMA, sPr, sPr + 1, 1024 * n, self.c.dflag), "%s%d" % (kv, blk))])
                continue
            if n == 0: b = [Ins("s_add_u32 m0, s%d, %d" % (base, lds)), Ins("s_add_u32 s%d, s%d, %d" % (sT2, sWG, blk * 8192))]
            else: b = [Ins("s_add_u32 m0, m0, %d" % pad)]
            o.append(b + [self.dma(vDMA, srd, sT2, n, self.c.dflag, "%s%d" % (kv, blk))])
        return o
    def steady(self):
        o = []
        for srd, n, base, st, g1, g2 in ((sK, self.nK, sDK, PK, sGK, sGK2), (sV, self.nV, sDV, PV_, sGV, sGV2)):
            for j in range(n):
                if j == 0: m = "s_add_u32 m0, s%d, s%d" % (sSl, base)
                elif j % 4 == 0: m = "s_add_u32 m0, m0, %d" % (st - 1024 + 4096)
                else: m = "s_add_u32 m0, m0, %d" % (st - 1024)
                b = [Ins(m)]
                if self.c.glob:
                    if j == 0: b += [Ins("s_add_u32 s%d, s%d, s%d" % (sPr, srd, g1)), Ins("s_addc_u32 s%d, s%d, 0" % (sPr + 1, srd + 1))]
                    elif j % 4 == 0: b += [Ins("s_add_u32 s%d, s%d, s%d" % (sPr, sPr, sStep)), Ins("s_addc_u32 s%d, s%d, 0" % (sPr + 1, sPr + 1))]
                    o.append(b + [self.tagged("global_load_lds_dwordx4 v%d, s[%d:%d] offset:%d %s" % (vDMA, sPr, sPr + 1, 1024 * (j & 3), self.c.dflag), "S")])
                    continue
                if j >= 4 and j % 4 == 0: b.append(Ins("s_add_u32 s%d, s%d, %d" % (g2, g1, 1024 * j)))
                o.append(b + [self.dma(vDMA, srd, g1 if j < 4 else g2, j & 3, self.c.dflag, "S")])
        return o
    def qbuf(self, t):
        k = self.arr.index(t)
        nr = self.NT - 3
        if k < nr: return sQS, vQA, k * 4 * QT
        return sStg, vQB, (k - nr) * QT
    def qload(self, t):
        sb, _, off = self.qbuf(t)
        o = []
        for n in range(4):
            if n == 0: b = [Ins("s_add_u32 m0, s%d, %d" % (sb, off)), Ins("s_sub_u32 s%d, s%d, %d" % (sT1, sQT, (self.NT - 1 - t) * 4096))]
            else: b = [Ins("s_add_u32 m0, m0, %d" % (PQ - 1024))]
            o.append(b + [self.dma(vQS, sQ, sT1, n, self.c.qflag, "Q%d" % t)])
        return o
    def waitv(self, grp):
        i = Ins("s_waitcnt vmcnt(0)"); self.group[id(i)] = "W:" + grp; return i
    def scale(self, t):
        tb = 32 * t + 16 if t < 6 else TB + 16
        _, va, off = self.qbuf(t)
        o = [Ins("ds_read_b128 %s, v%d offset:%d" % (rn('v', 32 * t + 4 * ds, 4), va, off + ds * 64), xr=["L:Q%d" % t]) for ds in range(4)]
        for r0 in range(0, 16, 4):
            for r in range(r0, r0 + 4):
                a = tb + 2 * (r % 4)
                o.append("v_lshlrev_b32 v%d, 16, v%d" % (a, 32 * t + r))
                o.append("v_and_b32 v%d, s%d, v%d" % (a + 1, sHi, 32 * t + r))
            for r in range(r0, r0 + 4):
                a = tb + 2 * (r % 4)
                o.append("v_pk_mul_f32 %s, %s, %s" % (rn('v', a, 2), rn('v', a, 2), rn('s', sC2, 2)))
            for r in range(r0, r0 + 4):
                a = tb + 2 * (r % 4)
                o.append("v_cvt_pk_bf16_f32 v%d, v%d, v%d" % (32 * t + r, a, a + 1))
                o.append("v_accvgpr_write_b32 a%d, v%d" % (Q(t, 0)[1] + r, 32 * t + r))
        return II(o)
    def ts2(self):
        if not (self.c.diag and self.c.tsmode == 2) or self.nts >= 28: return []
        k = self.nts; self.nts += 1
        o = [Ins("s_memtime s[46:47]"), Ins("s_waitcnt lgkmcnt(0)"), Ins("s_mov_b32 s%d, s46" % (48 + k if k < 16 else 88 + k - 16))]
        for x in o: x.R.add("vmq"); x.W.add("vmq")
        return o
    def ts(self, idx):
        if not self.c.diag or self.c.tsmode >= 2: return []
        return [Ins("s_memrealtime s[44:45]"), Ins("s_memtime s[46:47]"), Ins("s_waitcnt lgkmcnt(0)"),
                Ins("s_mov_b32 s%d, s44" % (48 + 2 * idx)), Ins("s_mov_b32 s%d, s46" % (49 + 2 * idx))]
    def pin(self, ins, after):
        self.npin += 1
        after.W.add("pin%d" % self.npin); ins.R.add("pin%d" % self.npin)
        return ins
    def fence(self, grp, after, bar=False, lgkm0=False, frees=()):
        w = self.waitv(grp)
        if after is not None: self.pin(w, after)
        o = self.ts2() + [w]
        if bar: o.append(Ins("s_barrier", lgkm0=lgkm0))
        o[-1].W.add("L:" + grp)
        for f in frees: o[-1].W.add("L:" + f)
        if after is not None and o[0] is not w: self.pin(o[0], after)
        return o + self.ts2()
    def weave(self, body, bundles, span=(0.0, 0.9)):
        n, k = len(body), len(bundles)
        pos = [int(n * (span[0] + (span[1] - span[0]) * j / max(k, 1))) for j in range(k)]
        o = []; j = 0
        for i in range(n):
            o.append(body[i])
            while j < k and pos[j] <= i and (isvalu(body[i]) or i == n - 1):
                self.pin(bundles[j][-1], body[i]); o += bundles[j]; j += 1
        return o
    def unit0_qk(self):
        o = []
        for k, g in enumerate([g for g in range(4) if g != FG]): o += self.qk(0, g, S(g), desc=k & 1)
        return o

    def prologue(self):
        c, NT, tau = self.c, self.NT, self.tau
        T = NT - 1
        G0 = lambda t: [g for g in range(4) if tau[g] <= t]
        seq = self.share('K', 0) + self.qload(T) + self.share('K', 1) + self.qload(T - 1) + self.share('V', 0) + self.share('V', 1)
        arr = self.arr
        for t in arr[2:]: seq += self.qload(t)
        nq = len(seq)
        for b in (2, 3): seq += self.share('K', b) + self.share('V', b)
        n1 = len(seq)
        for b in (4, 5): seq += self.share('K', b) + self.share('V', b)
        grp = [self.group[id(b[-1])] for b in seq]
        state = [0]
        def nxt(g, cap=None):
            want = c.first if g is None else max(j for j, x in enumerate(grp) if x == g) + 1 + c.lead
            want = min(want, len(seq) if cap is None else cap)
            r = seq[state[0]:want]
            state[0] = max(state[0], want)
            return r
        self.first = nxt(None, nq)
        misc = ["v_mov_b32 v%d, 0" % Lr(t) for t in range(7)]
        if not self.a: misc += ["v_mov_b32 v%d, 0" % FL(1), "v_mov_b32 v%d, 0" % FL(2)]
        self.code += II(misc)
        UA = lambda t: 1 + arr.index(t)
        UB = lambda t: NT + t
        prog = self.fence("Q%d" % T, None)
        a = self.scale(T)
        prog += self.weave(a, nxt("K1", nq))
        prog += self.fence("K1", a[len(a) // 2], bar=True)
        body = II([self.kread(g, ds) for g in range(4) for ds in range(4)], xr=["L:K1"])
        for g in range(4): body += self.qk(T, g, S(g), raw=True)
        last = body[-1]
        x, y = vMX, vVM
        b2 = ["v_max3_f32 v%d, v%d, v%d, v%d" % (x, S(0), S(0) + 1, S(0) + 2),
              "v_max3_f32 v%d, v%d, v%d, v%d" % (x, x, S(0) + 3, S(0) + 4),
              "v_max3_f32 v%d, v%d, v%d, v%d" % (x, x, S(0) + 5, S(0) + 6),
              "v_max_f32 v%d, v%d, v%d" % (x, x, S(0) + 7)] + self.wavemax(x, y)
        b2 += [Ins("ds_write_b32 v%d, v%d" % (vMA, x), xw=["L:M"])]
        body += II(b2)
        prog += self.weave(body, nxt("Q%d" % (T - 1), nq), (0.0, 0.5))
        b3 = [Ins("s_barrier", lgkm0=True, xr=["L:M"], xw=["L:M"]), "v_mov_b32 v%d, %d" % (vMA, HM), Ins("ds_read_b128 %s, v%d" % (rn('v', CI, 4), vMA), xr=["L:M"]),
              "v_max3_f32 v%d, v%d, v%d, v%d" % (x, CI, CI + 1, CI + 2), "v_max_f32 v%d, v%d, v%d" % (x, x, CI + 3)]
        for i in range(4): b3.append("v_sub_f32 v%d, 0x%08x, v%d" % (CI + i, f2u(-c.bias), x))
        b3 = II(b3)
        last = b3[2]
        for g in range(4):
            b3 += II(["v_add_f32 v%d, v%d, v%d" % (S(g) + i, S(g) + i, CI) for i in range(4)])
            b3 += self.softmax(Lr(T), S(g), self.pd(UA(T), g))
        prog += b3
        sidx = [0]
        def unit(t, gs, U, post=None, desc=None):
            o = []
            for g in gs:
                sb = S(sidx[0]); sidx[0] += 1
                o += self.qk(t, g, sb, desc=desc)
                if post: o += post(g, o[-1])
                o += self.softmax(Lr(t), sb, self.pd(U, g))
            return o
        gorder = sorted(range(4), key=lambda g: tau[g])
        done = []
        _, va0, off0 = self.qbuf(0)
        assert va0 == vQA and off0 >= 3 * QT
        fq = []
        def kreload(g, after):
            o = []
            if not done:
                done.append(1)
                o += self.fence("K2", after, bar=True, lgkm0=True, frees=["Q%d" % arr[2], "Q%d" % arr[3]])
            o += II([self.kread(g, ds, SS) for ds in range(4)], xr=["L:K2"])
            if not self.a and not fq:
                for w in range(3):
                    fq.extend(II(["ds_read_b128 %s, v%d offset:%d" % (rn(*FQ(w, ds), 4), vQA, off0 + (w - 3) * QT + ds * 64) for ds in range(4)], xr=["L:K2", "L:V2"]))
                o += fq
            return o
        for k in range(1, NT):
            t, tp = arr[k], arr[k - 1]
            prog += self.fence("Q%d" % t, last)
            a = self.scale(t)
            if t == 0 and self.a:
                a += II(["ds_write_b128 v%d, %s offset:%d" % (vQA, rn('a', Q(0, ds)[1], 4), off0 + ds * 64) for ds in range(4)], xw=["L:Q0"])
            if k == 1:
                prog += self.weave(a, nxt("V1", nq), (0.0, 0.5))
                prog += self.fence("V1", a[int(len(a) * 0.6)], bar=True, lgkm0=True, frees=["Q%d" % T, "Q%d" % (T - 1)])
                a = II([self.vread(g, db) for db in range(8) for g in range(4)], xr=["L:V1"])
                a += II(self.vmax())
            a += self.pv_first(tp, lambda ks: P(UA(tp), ks))
            if k < T:
                u = unit(t, range(4), UA(t), desc=0)
                body = a + u
                cut = body.index(u[-c.fpos])
                prog += self.weave(body[:cut], nxt("Q%d" % arr[k + 1], n1), (0.0, c.wspan)) + body[cut:]
                last = u[-c.fpos]
            else:
                prog += self.weave(a, nxt("V3", n1), (0.0, c.wspan))
        tl = arr[-1]
        prog += unit(tl, gorder, UA(tl), post=lambda g, m: kreload(g, m) if g < 2 else [], desc=0)
        pv0 = self.pv_first(tl, lambda ks: P(UA(tl), ks))
        prog += pv0[:-14] + self.fence("V2", pv0[-15], bar=True, lgkm0=not self.a) + pv0[-14:]
        for g in gorder[:2]:
            prog += II([self.vread(g, db, SS) for db in range(8)], xr=["L:V2"])
        body = []
        for t in range(1, NT):
            if t == T:
                sidx[0] = 0
                u = unit(t, range(4), UB(t))
                if not self.a: u = u[:-10]
            else: u = unit(t, [g for g in gorder if g in G0(t)], UB(t))
            body += u
            if t == 2:
                body += self.fence("V3", u[-1], bar=True)
                for g in gorder[2:]: body += II([self.kread(g, ds, SS) for ds in range(4)], xr=["L:V3"])
                for g in gorder[2:]: body += II([self.vread(g, db, SS) for db in range(8)], xr=["L:V3"])
                body += II(["v_add_u32 v%d, %d, v%d" % (vAK, 2 * SS, vAK), "v_add_u32 v%d, %d, v%d" % (vAV, 2 * SS, vAV)])
            if t < T: body += self.pv(t, G0(t), lambda ks: P(UB(t), ks))
            if not self.a and 2 <= t <= 4:
                w = t - 2
                sb = S(sidx[0]); sidx[0] += 1
                body += self.qk(0, FG, sb, qf=lambda ds: FQ(w, ds)) + self.softmax(FL(w), sb, sb) + II([self.pwrite(w, sb, 1)])
        if self.a: body += self.unit0_qk()[:9]
        prog += self.weave(body, nxt("V5"), (0.0, c.pb_hi))
        self.code += schedule(prog, c.verbose, order=True, pkmin=4, trials=c.ptrials)

    def window(self, p):
        c, NT, tau = self.c, self.NT, self.tau
        T = NT - 1
        first = p == 2
        ms, vs, use = [], [], []
        fixed = []
        def add(m, kind, t): ms.extend(m); use.extend([(kind, t)] * len(m))
        if self.a:
            U = NT * p
            add(self.unit0_qk()[9:], 'K', 0)
            add(self.pv(T, range(4), lambda ks: P(U - 1, ks)), 'V', -1)
            gs0 = [g for g in range(4) if g != FG]
            vs += [[], [], []] + self.sm8(Lr(0), S(gs0[0]), self.pd(U, gs0[0])) + self.sm8(Lr(0), S(gs0[1]), self.pd(U, gs0[1]))
            for t in range(1, NT):
                U = NT * p + t
                for g in range(4): add(self.qk(t, g, S(g)), 'K', t)
                add(self.pv(t - 1, range(4), lambda ks: P(U - 1, ks)), 'V', t - 1)
                vs += self.sm8(Lr(t - 1), S(3), self.pd(U - 1, 3))
                for g in range(3): vs += self.sm8(Lr(t), S(g), self.pd(U, g))
            add(self.unit0_qk()[:9], 'K', NT)
            vs += self.sm8(Lr(T), S(3), self.pd(U, 3)) + [[]]
        else:
            prevf = None
            for t in range(NT):
                U = NT * p + t
                base = len(ms)
                for k, g in enumerate((0, 1, 2, 3) if prevf is None else (0, 1, 3, 2)): add(self.qk(t, g, S(g), desc=k & 1), 'K', t)
                add(self.pv((t - 1) % NT, range(4), lambda ks: P(U - 1, ks)), 'V', t - 1)
                if prevf is None: vs += self.sm8(Lr((t - 1) % NT), S(3), self.pd(U - 1, 3))
                else:
                    vs += self.sm8(FL(prevf), S(2), S(2))
                    fixed.append((base + 9, self.pwrite(prevf, S(2), p & 1)))
                for g in range(3): vs += self.sm8(Lr(t), S(g), self.pd(U, g))
                prevf = None
                if t in c.fun:
                    prevf = w = c.fun.index(t)
                    add(self.qk(0, FG, S(2), qf=lambda ds: FQ(w, ds)), 'K', t)
                    x = self.sm8(Lr(t), S(3), self.pd(U, 3))
                    vs += x[:3] + [x[3] + x[4] + x[6] + x[5] + x[7]]
            assert prevf is None
        NG = len(ms)
        assert len(vs) == NG, (len(vs), NG)
        gaps = [dict(m=m, s=[], d=[], v=list(v)) for m, v in zip(ms, vs)]
        cost = lambda v: sum(8 if x.startswith("v_exp") else 4 for x in v)
        tm = [0]
        for g in gaps: tm.append(tm[-1] + max(16, 8 + cost(g['v'])))
        for pos, ins in fixed: gaps[pos]['d'].append(ins)
        W = []
        def win(name, regs, g):
            old = [j for j in range(NG) if regs & ms[j].R and use[j][1] < tau[g]]
            new = [j for j in range(NG) if regs & ms[j].R and use[j][1] >= tau[g]]
            lo, hi = max(old + [1]), min(new)
            assert lo < hi
            W.append((name, lo, max(j for j in range(NG) if tm[j] <= tm[hi] - c.lat)))
        for g in range(4):
            for ds in range(4): win(('K', g, ds), {"a%d" % Kf(g, ds)}, g)
            for db in range(8): win(('V', g, db), {"a%d" % (Vf(db, g >> 1) + 2 * (g & 1))}, g)
        if self.a:
            hi = min(j for j in range(NG) if use[j] == ('V', 0))
            W.append((('P', 0, 0), 1, hi - c.lat // 16))
        free = lambda j: not gaps[j]['d'] and cost(gaps[j]['v']) <= 4
        prim = [j for j in range(1, NG - 1) if free(j)]
        upd = prim[-2:]
        res = c.apos if self.a else c.bpos
        if res:
            prim = [j for j in prim if j not in res or not gaps[j]['v']]
        rd, sec = edf(W, prim[:-2], [j for j in prim if not gaps[j]['v'] and j not in (res or ())] if self.a else [j for j in range(2, NG - 10, 4) if cost(gaps[j]['v']) == 8 and len(gaps[j]['v']) == 1])
        for (kind, g, x), pos in rd.items():
            gaps[pos]['d'].append(self.kread(g, x) if kind == 'K' else self.vread(g, x) if kind == 'V' else self.pread(NT * p, (p - 1) & 1))
        assert max(rd.values()) < upd[0]
        gaps[upd[0]]['v'].append("v_add_u32 v%d, s%d, v%d" % (vAK, sInc, vAK))
        gaps[upd[1]]['v'].append("v_add_u32 v%d, s%d, v%d" % (vAV, sInc, vAV))
        gaps[0]['s'].append(Ins("s_barrier", lgkm0=True))
        dry, _ = insert_lgkm(self.flat(gaps))
        if c.coarse: dry = coarsen_waits(dry, c.coarse)
        j = -1
        for x in dry:
            if x.kind == "mfma": j += 1
            elif x.kind == "wait": gaps[j]['w'] = True
        lo = 1
        if first:
            f = min(pos for (k, g, x), pos in rd.items() if k == 'V' or (k == 'K' and g >= 2))
            f = min(f, c.bara if self.a else c.barb)
            gaps[f - 1]['s'].append(self.waitv("V5"))
            gaps[f]['s'].append(Ins("s_barrier"))
            bl = []
            for blk in (6, 7): bl += self.share('K', blk) + self.share('V', blk)
            self.place(gaps, bl, 3, int(NG * c.sh_hi), cost)
            lo = int(NG * c.s3_lo)
        lastd = self.place(gaps, self.steady(), lo, NG - 2, cost, greedy=not first, res=res)
        def put(seq, lo_, hi_):
            for j0 in range(lo_, hi_):
                js = []; j = j0
                while len(js) < len(seq) and j < hi_ and not gaps[j].get('busy') and not gaps[j]['s']:
                    if not gaps[j].get('w'): js.append(j)
                    j += 1
                if len(js) == len(seq):
                    for q, x in zip(js, seq): gaps[q]['s'].append(x)
                    for q in range(js[0], js[-1] + 1): gaps[q]['busy'] = True
                    return js[-1]
            raise RuntimeError("no scalar slots")
        put(["s_add_u32 s%d, s%d, %d" % (sRd, sRd, SS), "s_cmp_eq_u32 s%d, %d" % (sRd, RING),
             "s_cselect_b32 s%d, s%d, s%d" % (sInc, sIncW, sIncN), "s_cselect_b32 s%d, 0, s%d" % (sRd, sRd)], NG // 2, upd[0] - 1)
        lastuse = {}
        for j, g in enumerate(gaps):
            for x in g['s'] + g['d']:
                for r in I(x).R: lastuse[r] = j
        put(["s_add_u32 s%d, s%d, %d" % (sSl, sSl, SS), "s_cmp_eq_u32 s%d, %d" % (sSl, RING), "s_cselect_b32 s%d, 0, s%d" % (sSl, sSl)],
            lastuse.get("s%d" % sSl, 0) + 1, NG - 3)
        for r in (sGK, sGV):
            if "s%d" % r in lastuse:
                j = put(["s_add_u32 s%d, s%d, 16384" % (r, r)], lastuse["s%d" % r] + 1, NG - 3)
                if c.glob: lastuse[r] = put(["s_cmp_gt_u32 s%d, s%d" % (r, sLK if r == sGK else sLV), "s_cselect_b32 s%d, 0, s%d" % (r, r)], j + 1, NG - 3)
        if "s%d" % sStep in lastuse:
            put(["s_cmp_eq_u32 s%d, 0" % sGK, "s_cselect_b32 s%d, 0, s%d" % (sStep, sStep)], max(lastuse["s%d" % sStep], lastuse[sGK]) + 1, NG - 3)
        if p == 4: put(["s_sub_u32 s%d, s%d, 1" % (sCnt, sCnt)], max(j for j in range(NG) if gaps[j]['s']) + 1, NG - 2)
        j = max(lastd + 1, NG - 2)
        assert j <= NG - 2 or not self.a
        gaps[j]['s'].append(self.waitv("V7") if first else Ins("s_waitcnt vmcnt(%d)" % (self.nK + self.nV)))
        if c.verbose > 1 and p == 3:
            est = sum(max(16, 8 + cost(g['v']) + sum(16 if I(x).kind == "dsw" else 4 for x in g['d'])) for g in gaps)
            print(self.tag, "gaps", NG, "est", est, "sec", sec, "dma at", [j for j, g in enumerate(gaps) if any(I(x).kind == "dma" for x in g['d'])])
        return gaps
    def place(self, gaps, bundles, lo, hi, cost, greedy=False, res=None):
        room = lambda i: 8 - cost(gaps[i]['v']) - 4 * len(gaps[i]['d'])
        k = len(bundles)
        if greedy and res:
            pos = sorted(res); assert len(pos) == k
        elif greedy:
            pos = [i for i in range(lo + (3 if self.c.glob else 0), hi) if room(i) >= 4][:k]
            ex = [i for i in range(lo + 8, hi - 12) if not gaps[i]['d'] and len(gaps[i]['v']) == 1 and room(i) == 0]
            while len(pos) < k:
                pos.append(max(ex, key=lambda i: min(abs(i - q) for q in pos + [lo - 20]))); pos.sort()
        else:
            cand = [i for i in range(lo + 2, hi - 8) if room(i) >= 4 or (not gaps[i]['d'] and len(gaps[i]['v']) == 1)]
            pos = []
            for j, b in enumerate(bundles):
                tgt = lo + 2 + (hi - 8 - lo - 2) * j / k
                cc = [i for i in cand if not pos or i - len(b) >= pos[-1]]
                pos.append(min(cc, key=lambda i: abs(i - tgt) - (4 if room(i) >= 4 else 0)))
        prev = -1
        for b, i in zip(bundles, pos):
            ns = len(b) - 1
            top = i if (ns > 1 or gaps[i]['d']) else i - 1
            js = [j for j in range(max(prev + 1, 1), top + 1) if not gaps[j]['s'] and not gaps[j].get('w')][-ns:]
            if len(js) < ns: js = list(range(max(prev + 1, 0), top + 1))[-ns:]
            assert len(js) == ns, (i, prev)
            for q, ins in zip(js, b[:-1]): gaps[q]['s'].append(ins)
            for q in range(js[0], js[-1] + 1): gaps[q]['busy'] = True
            gaps[i]['d'].append(b[-1])
            prev = i
        return prev
    def flat(self, gaps):
        o = []
        for g in gaps:
            o.append(I(g['m']))
            o += II(g['s'] + g['d'] + g['v'])
        return o

    def finalize(self, t, k, Lm, packs, acct, Lreg=None, soff=None, nb=None):
        c = self.c
        buf = k & 1
        st = "L:st%d" % buf
        Lreg = Lr(t) if Lreg is None else Lreg
        land = Q(t, 0)[1]
        x, y = Lm + 3, Lm + 2
        o = ["v_mov_b32 v%d, v%d" % (y, Lreg), "v_permlane32_swap_b32 v%d, v%d" % (Lreg, y), "v_add_f32 v%d, v%d, v%d" % (Lreg, Lreg, y),
             "v_mov_b32 v%d, v%d" % (y, Lreg), "v_permlane16_swap_b32 v%d, v%d" % (Lreg, y), "v_add_f32 v%d, v%d, v%d" % (Lreg, Lreg, y),
             "v_rcp_f32 v%d, v%d" % (x, Lreg)]
        for g in (1, 2, 3):
            o.append("v_mov_b32_dpp v%d, v%d row_ror:%d row_mask:0x%x bank_mask:0xf" % (x, x, 16 - 4 * g, 1 << g))
        for r in range(4):
            o.append("v_mov_b32_dpp v%d, v%d row_newbcast:%d row_mask:0xf bank_mask:0xf" % (Lm + r, x, r))
        if nb is not None:
            o.append("ds_read_b128 %s, v%d offset:%d" % (rn('v', nb, 4), vAK, 64 * t))
            for r in range(4): o.append("v_mul_f32 v%d, v%d, v%d" % (nb + r, nb + r, Lm + r))
        loc = {}
        for db in range(8):
            f, b = O(t, db)
            if f == 'a':
                for r in range(4):
                    o.append("v_accvgpr_read_b32 v%d, a%d" % (acct + 4 * (db - 4) + r, b + r))
                b = acct + 4 * (db - 4)
            loc[db] = b
        for db in range(8):
            for r in (0, 2):
                if nb is None: o.append("v_pk_mul_f32 %s, %s, %s" % (rn('v', loc[db] + r, 2), rn('v', loc[db] + r, 2), rn('v', Lm + r, 2)))
                else: o.append("v_pk_fma_f32 %s, %s, %s, %s neg_lo:[0:0:1] neg_hi:[0:0:1]" % (rn('v', loc[db] + r, 2), rn('v', loc[db] + r, 2), rn('v', Lm + r, 2), rn('v', nb + r, 2)))
        for r in range(4):
            pb = packs[r % len(packs)]
            for j in range(4):
                o.append("v_cvt_pk_bf16_f32 v%d, v%d, v%d" % (pb + j, loc[2 * j] + r, loc[2 * j + 1] + r))
            o.append(Ins("ds_write_b128 v%d, %s offset:%d" % (vEW, rn('v', pb, 4), r * 320 + buf * 5120), xw=[st + "r%d" % r]))
        if soff is None:
            soff = sSt + t
            o.append("s_add_u32 s%d, s%d, %d" % (soff, sOo, t * 4096))
        for a in range(4):
            for sel in range(2):
                o.append(Ins("ds_read_b64_tr_b16 %s, v%d offset:%d" % (rn('a', land + 4 * a + 2 * sel, 2), vER, a * 1280 + 64 * sel + buf * 5120), xr=[st + "r%d" % r for r in range(4)]))
        for a in range(4):
            o.append("buffer_store_dwordx4 %s, v%d, s[%d:%d], s%d offen offset:%d %s" % (rn('a', land + 4 * a, 4), vDMA, sO, sO + 3, soff, a * 1024, c.oflag))
        return II(o)

    def tail(self):
        c, NT, tau = self.c, self.NT, self.tau
        T = NT - 1
        U = NT * 31
        G1 = lambda t: [g for g in range(4) if tau[g] > t]
        ring = dict(xr=["L:ring"])
        self.qprio = c.qprio[1]
        pre = []
        if not self.a:
            pre = II(["ds_write_b32 v%d, v%d offset:%d" % (vDMA, FL(w), HL + 1024 * w) for w in range(3)])
        prog = [Ins("s_barrier", lgkm0=True, xw=["L:ring"])]
        if self.a:
            prog += self.unit0_qk()[9:] + [Ins(self.pread(U, 0), **ring), Ins("ds_read_b32 v%d, v%d offset:%d" % (S(FG), vDMA, HL), **ring)]
        else:
            prog += self.softmax(Lr(T), S(3), self.pd(U - 1, 3)) + II(self.g.epi_addr(192, 193, 194))
        prog += self.pv(T, range(4), lambda ks: P(U - 1, ks))
        sidx = 0
        for t in range(NT):
            gs = G1(t)
            if not gs: continue
            pb = (lambda u: (lambda ks: P(u, ks)))(U)
            for g in gs:
                sb = S(sidx); sidx += 1
                if not (self.a and t == 0): prog += self.qk(t, g, sb)
                if tau[g] == t + 1: prog += [Ins(self.kread(g, ds), **ring) for ds in range(4)]
                if self.a and t == 0 and g == FG: prog += II(["v_add_f32 v%d, v%d, v%d" % (Lr(0), Lr(0), S(FG))])
                else: prog += self.softmax(Lr(t), sb, self.pd(U, g))
            prog += self.pv(t, gs, pb)
            for db in range(8):
                prog += [Ins(self.vread(g, db), **ring) for g in gs if tau[g] == t + 1]
            U += 1
        order = [t for t in range(NT) if not G1(t)] + [t for t in range(NT) if G1(t)]
        gorder = sorted(range(4), key=lambda g: tau[g])
        pool = 32 * order[0]
        for k, t in enumerate(order):
            pb = (lambda u: (lambda ks: P(u, ks)))(U)
            for g in (gorder if k == 0 else range(4)):
                sb = S(sidx); sidx += 1
                prog += self.qk(t, g, sb)
                prog += self.softmax(Lr(t), sb, self.pd(U, g))
            prog += self.pv(t, range(4), pb)
            U += 1
            if k == 0:
                prog += II(["v_bfe_u32 v%d, v%d, 8, 2" % (vAK, vDMA), "v_lshl_add_u32 v%d, v%d, 4, s%d" % (vAK, vAK, sT0)])
                prog += self.finalize(t, k, pb(0), [pb(0), pb(1)], None, nb=pb(1))
            elif t == 6: prog += self.finalize(t, k, pool + 8 * (k & 1), [pool, pool + 4, pool + 8, pool + 12], pool + 16, nb=pool + 8 * (k & 1) + 4)
            else: prog += self.finalize(t, k, pool + 8 * (k & 1), [pool + 16, pool + 20, pool + 24, pool + 28], None, nb=pool + 8 * (k & 1) + 4)
        ls = [Lr(t) for t in range(NT)] + [Lr(0)]
        for op, r in (("v_max3_u32", vAK), ("v_min3_u32", vAV)):
            prog += II(["%s v%d, v%d, v%d, v%d" % (op, r, ls[0], ls[1], ls[2]), "%s v%d, v%d, v%d, v%d" % (op, r, r, ls[3], ls[4]),
                        "%s v%d, v%d, v%d, v%d" % (op, r, r, ls[5], ls[6])])
        return pre + schedule(prog, c.verbose, order=True, trials=c.trials, space=dict(zip(('dsw', 'vstore', 'dsr'), c.space)))

    def resolve_waits(self, seq):
        issued = [self.group[id(b[-1])] for b in self.first]
        for i in seq:
            g = self.group.get(id(i))
            if i.kind in ("dma", "vload", "vstore"): issued.append(g)
            elif g and g.startswith("W:"):
                last = max(j for j, x in enumerate(issued) if x == g[2:])
                i.text = "s_waitcnt vmcnt(%d)" % min(63, len(issued) - 1 - last)

    def build(self):
        c, NT, tag = self.c, self.NT, self.tag
        self.code = [Ins("L_wave_%s:" % tag)]
        self.prologue()
        self.code += self.ts(1) + self.ts(2) + self.ts2()
        self.code.append(self.waitv("K4"))
        self.code += self.flat(self.window(2)) + self.ts2() + self.ts(3)
        self.resolve_waits(self.code)
        head, pend = insert_lgkm(self.code)
        assert not pend
        if c.coarse: head = coarsen_waits(head, c.coarse)
        head = pad_hazards(head)
        gaps = self.window(3) + self.window(4)
        body, pend = insert_lgkm(self.flat(gaps))
        assert not pend
        if c.coarse: body = coarsen_waits(body, c.coarse)
        if c.exp:
            nb_ = []; prevqk = False; k = 0
            for x in body:
                if x.kind == "mfma":
                    qk_ = x.A[0][0] == 'a'
                    if prevqk and not qk_:
                        pb_ = int(x.A[0][1:]) & ~7
                        if 'S' in c.exp: nb_.append(Ins("v_smfmac_f32_16x16x64_bf16 v[244:247], v[248:251], v[%d:%d], v255" % (pb_, pb_ + 7)))
                        if 'D' in c.exp: nb_ += [Ins("v_mfma_f32_16x16x32_bf16 v[244:247], v[%d:%d], v[248:251], v[244:247]" % (pb_ + 4 * i, pb_ + 4 * i + 3)) for i in range(2)]
                        if 'N' in c.exp: nb_.append(Ins("s_nop 3"))
                        if 'M' in c.exp: nb_.append(Ins("s_nop 7"))
                    prevqk = qk_
                if x.op == "v_add_f32" and set(c.exp) & set("SD"):
                    k += 1
                    if k % 16 in (1, 3, 5): nb_.append(Ins("v_mov_b32_dpp v%d, v%d row_ror:2 row_mask:0xf bank_mask:0xf" % (248 + k % 16 // 2, 248 + k % 16 // 2)))
                    if k % 16 == 7: nb_.append(Ins("v_mov_b32_dpp v254, v254 row_ror:2 row_mask:0xf bank_mask:0xf"))
                    continue
                nb_.append(x)
            body = nb_
            if set(c.exp) & set("SD"):
                head += II(["v_bfe_u32 v248, v253, 5, 3", "v_cmp_eq_u32 vcc, 0, v248", "v_mov_b32 v255, 0x3f803f80", "s_nop 1", "v_cndmask_b32 v248, 0, v255, vcc", "v_cndmask_b32 v249, 0, v255, vcc",
                            "v_cndmask_b32 v250, 0, v255, vcc", "v_cndmask_b32 v254, 0, v255, vcc", "v_mov_b32 v255, 0x44444444", "s_nop 1"])
        body.append(Ins("s_cbranch_scc0 L_loop_%s" % tag))
        if not c.exp:
            pad_hazards(body, hist=head[-16:], fix=False, name="loop entry")
            pad_hazards(body, hist=body[-16:], fix=False, name="loop back")
        tail = self.ts(4) + (II(self.g.epi_addr(244, 245, 246)) if c.exp and self.a else []) + self.tail()
        tail += [Ins("v_cmp_le_u32 vcc, 0x%08x, v%d" % (f2u(2.0 ** c.hi_exp), vAK)),
                 Ins("s_mov_b64 s[%d:%d], vcc" % (sT1, sT1 + 1)),
                 Ins("v_cmp_ge_u32 vcc, 0x%08x, v%d" % (f2u(2.0 ** c.lo_exp), vAV)),
                 Ins("s_or_b64 s[%d:%d], s[%d:%d], vcc" % (sT1, sT1 + 1, sT1, sT1 + 1)),
                 Ins("s_mov_b32 s%d, %d" % (sNT, NT)),
                 Ins("s_nop 0" if c.exp else "s_cbranch_scc1 L_slow" if not c.force_slow else "s_branch L_slow")]
        tail += self.ts(5)
        if c.diag: tail += [Ins("s_waitcnt vmcnt(0)")] + self.ts(6)
        tail.append(Ins("s_branch L_fin" if c.diag else "s_endpgm"))
        tail, pend = insert_lgkm(tail)
        tail = pad_hazards(tail, hist=body[-16:])
        res = head + [Ins(".p2align 6"), Ins("L_loop_%s:" % tag)] + body + tail
        if c.jit:
            w, n, before = c.jit
            o = []
            for k, x in enumerate(res):
                d = [Ins("s_cselect_b32 s98, 1, 0"), Ins("s_cmp_lg_u32 s%d, %d" % (sW, w)), Ins("s_cbranch_scc1 L_j%s%d" % (tag, k)), Ins("s_sleep %d" % n), Ins("L_j%s%d:" % (tag, k)), Ins("s_cmp_lg_u32 s98, 0")]
                if x.kind == "barrier" and before: o += d
                o.append(x)
                if x.kind == "barrier" and not before: o += d
            res = o
        return res

class Gen:
    def __init__(self, cfg):
        self.c = cfg
    def epi_addr(self, a, b, d):
        return ["v_bfe_u32 v%d, v%d, 8, 2" % (a, vDMA), "v_and_b32 v%d, 0xf0, v%d" % (b, vDMA),
                "v_mul_u32_u24 v%d, 0x500, v%d" % (vEW, a), "v_add3_u32 v%d, v%d, v%d, s%d" % (vEW, vEW, b, sStg),
                "v_mul_u32_u24 v%d, 0x140, v%d" % (vER, a), "v_bfe_u32 v%d, v%d, 6, 2" % (d, vDMA), "v_lshl_add_u32 v%d, v%d, 4, v%d" % (vER, d, vER),
                "v_bfe_u32 v%d, v%d, 4, 1" % (d, vDMA), "v_lshl_add_u32 v%d, v%d, 3, v%d" % (vER, d, vER),
                "v_bfe_u32 v%d, v%d, 5, 1" % (d, vDMA), "v_lshl_add_u32 v%d, v%d, 7, v%d" % (vER, d, vER),
                "v_add_u32 v%d, s%d, v%d" % (vER, sStg, vER)]
    def slow(self):
        c = self.c
        w = Wave(self, 7, "s")
        o = []
        e = lambda s: o.extend(Ins(l) for l in s.strip().split("\n"))
        vL, vKA, vVA, vQA_, vM, vX = 64, 65, 66, 67, 68, 69
        KF = lambda kg, ds: 72 + 16 * kg + 4 * ds
        VF = lambda db: 104 + 4 * db
        QF = lambda ds: 136 + 4 * ds
        SB, PB, LM, PKB = 152, 160, 164, 168
        e("L_slow:")
        e("s_waitcnt vmcnt(0) lgkmcnt(0)")
        e("v_and_b32 v%d, 0x3ff, v%d" % (vDMA, vDMA))
        e("v_lshrrev_b32 v%d, 4, v%d" % (vX, vDMA))
        e("v_and_b32 v%d, 7, v%d\nv_lshlrev_b32 v%d, 10, v%d" % (vM, vX, vKA, vM))
        e("v_and_b32 v%d, 8, v%d\nv_lshl_add_u32 v%d, v%d, 5, v%d" % (vM, vX, vKA, vM, vKA))
        e("v_and_b32 v%d, 48, v%d\nv_add_u32 v%d, v%d, v%d" % (vM, vX, vKA, vM, vKA))
        e("v_and_b32 v%d, 15, v%d\nv_lshlrev_b32 v%d, 8, v%d" % (vM, vX, vQA_, vM))
        e("v_and_b32 v%d, 48, v%d\nv_add_u32 v%d, v%d, v%d" % (vM, vX, vQA_, vM, vQA_))
        e("v_bfe_u32 v%d, v%d, 2, 3\nv_mul_u32_u24 v%d, %d, v%d" % (vM, vX, vVA, PV_, vM))
        e("v_and_b32 v%d, 32, v%d\nv_lshl_add_u32 v%d, v%d, 3, v%d" % (vM, vX, vVA, vM, vVA))
        e("v_and_b32 v%d, 1, v%d\nv_lshl_add_u32 v%d, v%d, 3, v%d" % (vM, vX, vVA, vM, vVA))
        e("v_and_b32 v%d, 2, v%d\nv_lshl_add_u32 v%d, v%d, 6, v%d" % (vM, vX, vVA, vM, vVA))
        e("v_add_u32 v%d, s%d, v%d" % (vVA, sStg, vVA))
        e("s_mov_b32 s%d, 0" % sTile)
        e("L_slow_tile:")
        e("s_lshl_b32 s%d, s%d, 12\ns_add_u32 s%d, s%d, s%d" % (sSt, sTile, sSt, sSt, sQo))
        for ds in range(4):
            e("buffer_load_dwordx4 %s, v%d, s[%d:%d], s%d offen offset:%d" % (rn('v', QF(ds), 4), vQA_, sQ, sQ + 3, sSt, ds * 64))
        e("s_waitcnt vmcnt(0)")
        for r in range(16):
            q = QF(0) + r
            e("v_lshlrev_b32 v%d, 16, v%d\nv_and_b32 v%d, s%d, v%d" % (vM, q, vX, sHi, q))
            e("v_mul_f32 v%d, s%d, v%d\nv_mul_f32 v%d, s%d, v%d" % (vM, sC2, vM, vX, sC2, vX))
            e("v_cvt_pk_bf16_f32 v%d, v%d, v%d" % (q, vM, vX))
        def kload():
            for kg in range(2):
                for ds in range(4):
                    e("buffer_load_dwordx4 %s, v%d, s[%d:%d], s%d offen offset:%d" % (rn('v', KF(kg, ds), 4), vKA, sK, sK + 3, sBlk, kg * 512 + ds * 64))
        def qk(raw):
            for kg in range(2):
                for ds in range(4):
                    e(mfma(('v', SB + 4 * kg), ('v', KF(kg, ds)), ('v', QF(ds)), (None if raw else ('v', CI)) if ds == 0 else ('v', SB + 4 * kg)))
        e("v_mov_b32 v%d, 0xff800000\ns_mov_b32 s%d, 0" % (vM, sBlk))
        e("L_slow_max:")
        kload()
        e("s_waitcnt vmcnt(0)")
        qk(True)
        e("s_nop 7")
        for i in range(0, 8, 2):
            e("v_max3_f32 v%d, v%d, v%d, v%d" % (vM, vM, SB + i, SB + i + 1))
        e("s_add_u32 s%d, s%d, 8192\ns_cmp_lt_u32 s%d, 524288\ns_cbranch_scc1 L_slow_max" % (sBlk, sBlk, sBlk))
        for sw in ("v_permlane32_swap_b32", "v_permlane16_swap_b32"):
            e("v_mov_b32 v%d, v%d\n%s v%d, v%d\nv_max_f32 v%d, v%d, v%d" % (vX, vM, sw, vM, vX, vM, vM, vX))
        for i in range(4): e("v_sub_f32 v%d, 0, v%d" % (CI + i, vM))
        for r in range(32): e("v_mov_b32 v%d, 0" % r)
        e("v_mov_b32 v%d, 0\ns_mov_b32 s%d, 0" % (vL, sBlk))
        e("L_slow_pv:")
        kload()
        e("s_add_u32 s%d, s%d, 4096" % (sT0, sBlk))
        for a in range(2):
            for n in range(4):
                e("s_add_u32 m0, s%d, %d" % (sStg, 4 * PV_ * a + (PV_ - 1024) * n))
                e("buffer_load_dwordx4 v%d, s[%d:%d], s%d offen offset:%d lds" % (vDMA, sV, sV + 3, sT0 if a else sBlk, 1024 * n))
        e("s_waitcnt vmcnt(0)")
        for db in range(8):
            for hb in range(2):
                e("ds_read_b64_tr_b16 %s, v%d offset:%d" % (rn('v', VF(db) + 2 * hb, 2), vVA, hb * 512 + db * 16))
        qk(False)
        e("s_nop 7")
        for i in range(8): e("v_exp_f32 v%d, v%d" % (SB + i, SB + i))
        for i in range(8): e("v_add_f32 v%d, v%d, v%d" % (vL, vL, SB + i))
        for i in range(4): e("v_cvt_pk_bf16_f32 v%d, v%d, v%d" % (PB + i, SB + 2 * i, SB + 2 * i + 1))
        e("s_waitcnt lgkmcnt(0)")
        for db in range(8):
            e(mfma(('v', 4 * db), ('v', PB), ('v', VF(db)), ('v', 4 * db)))
        e("s_nop 7")
        e("s_add_u32 s%d, s%d, 8192\ns_cmp_lt_u32 s%d, 524288\ns_cbranch_scc1 L_slow_pv" % (sBlk, sBlk, sBlk))
        o.extend(w.finalize(0, 0, LM, [PKB], None, Lreg=vL, soff=sSt))
        e("s_waitcnt vmcnt(0) lgkmcnt(0)")
        e("s_add_u32 s%d, s%d, 1\ns_cmp_lt_u32 s%d, s%d\ns_cbranch_scc1 L_slow_tile" % (sTile, sTile, sTile, sNT))
        o, _ = insert_lgkm(o, hoist=False)
        return pad_hazards(o)

    def build(self):
        c = self.c
        o = []
        e = lambda s: o.extend(Ins(l) for l in s.strip().split("\n"))
        wa, wb = Wave(self, 7, "a"), Wave(self, 6, "b")
        ca, cb = wa.build(), wb.build()
        assert [[x.text for x in b] for b in wa.first] == [[x.text for x in b] for b in wb.first]
        assert sum(x.kind == "barrier" for x in ca) == sum(x.kind == "barrier" for x in cb)
        e("s_cmp_ge_u32 s2, 256\ns_cbranch_scc1 L_end")
        e("s_load_dwordx4 s[4:7], s[0:1], 0\ns_load_dwordx4 s[8:11], s[0:1], 16")
        if c.diag:
            e("s_load_dwordx2 s[40:41], s[0:1], 40")
            e("s_memrealtime s[44:45]\ns_memtime s[46:47]\ns_waitcnt lgkmcnt(0)\ns_mov_b32 s48, s44\ns_mov_b32 s49, s46")
            if c.tsmode == 2: e("s_mov_b32 s48, s46")
        e("s_getpc_b64 s[38:39]")
        e("L_pc:")
        e("s_bfe_u32 s%d, s2, 0x30003\ns_lshl_b32 s%d, s%d, 13" % (sC, sC, sC))
        e("v_lshlrev_b32 v2, 5, v0\nv_add_u32 v2, s%d, v2\nv_min_u32 v2, L_slow-L_pc, v2" % sC)
        e("global_load_dword v95, v2, s[38:39]")
        e("v_lshrrev_b32 v1, 6, v0")
        e("v_and_b32 v0, 63, v0")
        e("v_readfirstlane_b32 s%d, v1" % sW)
        e("v_lshlrev_b32 v%d, 4, v0" % vDMA)
        e("v_and_b32 v2, 48, v0\nv_xor_b32 v%d, v2, v%d" % (vQS, vDMA))
        e("s_mul_i32 s%d, s2, 110592" % sT0)
        e("s_lshl_b32 s3, s2, 19")
        e("s_mov_b32 s%d, 524288\ns_mov_b32 s%d, 0x20000\ns_mov_b32 s%d, 110592\ns_mov_b32 s%d, 0x20000" % (sK + 2, sK + 3, sQ + 2, sQ + 3))
        e("s_mul_i32 s%d, s%d, %d" % (sQo, sW, 112 * 256))
        e("s_add_u32 s%d, s%d, %d\ns_min_u32 s%d, s%d, %d" % (sQT, sQo, 6 * 4096, sQT, sQT, 26 * 4096))
        e("s_mul_i32 s%d, s%d, %d" % (sWK, sW, 2 * PK))
        e("s_lshl_b32 s%d, s%d, 10\ns_cmp_eq_u32 s%d, 3\ns_cselect_b32 s%d, 0, s%d" % (sWo, sW, sW, sWo, sWo))
        e("s_lshl_b32 s%d, s%d, 11\ns_sub_u32 s%d, s%d, s%d" % (sWG, sW, sWG, sWG, sWo))
        e("v_add_u32 v%d, s%d, v%d" % (vDMA, sWo, vDMA))
        e("s_mul_i32 s%d, s%d, %d\ns_add_u32 s%d, s%d, %d" % (sQS, sW, QT, sQS, sQS, RB + SS))
        e("s_waitcnt lgkmcnt(0)")
        def srd(r, src, offs):
            e("s_add_u32 s%d, s%d, s%d\ns_addc_u32 s%d, s%d, 0" % (r, src, offs, r + 1, src + 1))
        srd(sK, 6, 3); srd(sQ, 4, sT0)
        for b in wa.first[:8]: o.extend(b)
        srd(sV, 8, 3); srd(sO, 10, sT0)
        e("s_mov_b32 s%d, 524288\ns_mov_b32 s%d, 0x20000\ns_mov_b32 s%d, 110592\ns_mov_b32 s%d, 0x20000" % (sV + 2, sV + 3, sO + 2, sO + 3))
        e("s_mul_i32 s%d, s%d, %d" % (sWV, sW, 2 * PV_))
        for b in wa.first[8:]: o.extend(b)
        cs = f2u(math.log2(math.e) / math.sqrt(128.0))
        e("s_mov_b32 s%d, 0x%08x\ns_mov_b32 s%d, 0x%08x" % (sC2, cs, sC2 + 1, cs))
        e("s_mul_i32 s%d, s%d, %d\ns_add_u32 s%d, s%d, %d" % (sStg, sW, PRIV, sStg, sStg, STG))
        e("s_mov_b32 s%d, %d\ns_mov_b32 s%d, %d\ns_mov_b32 s%d, %d" % (sRd, 2 * SS, sIncW, (-2 * SS) & 0xffffffff, sIncN, SS))
        e("s_mov_b32 s%d, 13\ns_mov_b32 s%d, %d" % (sCnt, sSl, SS))
        e("s_mov_b32 s%d, 0xff800000\ns_mov_b32 s%d, 0xffff0000" % (sMask, sHi))
        e("s_sub_u32 s%d, s%d, s%d" % (sOo, sQo, sWo))
        for n, st, base, d, g1, g2 in ((c.nK, PK, RB, sDK, sGK, sGK2), (c.nV, PV_, RB + VO, sDV, sGV, sGV2)):
            e("s_mul_i32 s%d, s%d, %d\ns_add_u32 s%d, s%d, %d" % (d, sW, n * st, d, d, base))
            e("s_mul_i32 s%d, s%d, %d\ns_sub_u32 s%d, s%d, s%d\ns_add_u32 s%d, s%d, %d\ns_add_u32 s%d, s%d, 4096" % (g1, sW, n * 1024, g1, g1, sWo, g1, g1, 4 * 16384, g2, g1))
        e("s_add_u32 s%d, s%d, %d\ns_add_u32 s%d, s%d, %d" % (sLK, sGK, 27 * 16384, sLV, sGV, 27 * 16384))
        srd(sWKp, sK, sWG); srd(sWVp, sV, sWG)
        e("s_movk_i32 s%d, 4096" % sStep)
        e("s_add_u32 s%d, s%d, %d" % (sT0, sStg, PARK))
        e("v_mov_b32 v%d, 0x00400000\nv_add_u32 v%d, s%d, v2" % (vHalf, vPK, sT0))
        e("v_lshlrev_b32 v%d, 2, v1\nv_add_u32 v%d, %d, v%d" % (vMA, vMA, HM, vMA))
        e("v_bfe_u32 v3, v0, 2, 2\nv_mul_u32_u24 v%d, %d, v3" % (vQA, PQ))
        e("v_and_b32 v3, 3, v0\nv_lshl_add_u32 v%d, v3, 8, v%d" % (vQA, vQA))
        e("v_lshlrev_b32 v3, 4, v3\nv_xor_b32 v3, v2, v3")
        e("v_add3_u32 v%d, v%d, v3, s%d\nv_add3_u32 v%d, v%d, v3, s%d" % (vQB, vQA, sStg, vQA, vQA, sQS))
        e("v_and_b32 v3, 7, v0\nv_mul_u32_u24 v%d, %d, v3" % (vAK, PK))
        e("v_and_b32 v3, 8, v0\nv_lshl_add_u32 v%d, v3, 5, v%d" % (vAK, vAK))
        e("v_add_u32 v%d, v2, v%d\nv_add_u32 v%d, %d, v%d" % (vAK, vAK, vAK, RB, vAK))
        e("v_and_b32 v3, 1, v0\nv_lshlrev_b32 v4, 3, v3\nv_and_b32 v3, 2, v0\nv_lshl_add_u32 v4, v3, 6, v4")
        e("v_bfe_u32 v3, v0, 2, 3\nv_mul_u32_u24 v%d, %d, v3" % (vAV, PV_))
        e("v_and_b32 v3, 32, v0\nv_lshl_add_u32 v%d, v3, 3, v%d" % (vAV, vAV))
        e("v_add_u32 v%d, v4, v%d\nv_add_u32 v%d, %d, v%d" % (vAV, vAV, vAV, RB + VO, vAV))
        e("s_cmp_eq_u32 s%d, 3" % sW)
        e("s_cbranch_scc1 L_wave_b")
        e("\n".join(self.epi_addr(1, 2, 3)))
        o[:] = pad_hazards(o)
        if c.pad: o += [Ins("s_branch L_wave_a")] + [Ins("s_nop 0") for _ in range(c.pad // 4)]
        o += ca
        o += cb
        o += self.slow()
        e("L_fin:")
        if c.diag and c.echo:
            i, j, m, k = c.echo
            e("s_sub_u32 s90, s%d, s%d\ns_mul_i32 s90, s90, %d\ns_lshr_b32 s90, s90, %d" % (48 + 2 * j + k, 48 + 2 * i + k, m, 5 if k else 0))
            e("L_echo:\ns_memrealtime s[94:95]\ns_waitcnt lgkmcnt(0)\ns_sub_u32 s94, s94, s60\ns_cmp_lt_u32 s94, s90\ns_cbranch_scc1 L_echo")
        elif c.diag:
            e("s_mov_b32 s42, 0x1000000\ns_mov_b32 s43, 0x20000")
            e("s_lshl_b32 s%d, s2, 2\ns_add_u32 s%d, s%d, s%d\ns_lshl_b32 s%d, s%d, %d" % (sT0, sT0, sT0, sW, sT0, sT0, 7 if c.tsmode >= 2 else 6))
            e("v_mov_b32 v0, 0")
            for i in range(0, 28 if c.tsmode >= 2 else 16, 4):
                for k in range(4):
                    e("v_mov_b32 v%d, s%d" % (4 + k, 48 + i + k if i < 16 else 72 + i + k))
                e("buffer_store_dwordx4 v[4:7], v0, s[40:43], s%d offen offset:%d" % (sT0, i * 4))
                e("s_waitcnt vmcnt(0)")
        e("L_end:")
        e("s_endpgm")
        align_runs(o)
        txt = ["; MHA forward, B=8 H=32 Sq=432 Sk=2048 D=128, bf16.  One workgroup per head, 4 waves (one per SIMD).",
               "; @launch grid=(256,1,1) block=(256,1,1) lds=%d" % LDS] + HEADER.strip().split("\n") + [
               '.amdgcn_target "amdgcn-amd-amdhsa--gfx950"', ".text", ".globl %s" % c.kname, ".p2align 8",
               ".type %s,@function" % c.kname, "%s:" % c.kname]
        for i in o:
            txt.append(i.text if i.kind == "label" else "    " + i.text.replace("[0:0:1]", "[0,0,1]"))
        txt.append('.section .rodata,"a"\n.p2align 6\n.amdhsa_kernel %s' % c.kname)
        txt.append("""  .amdhsa_next_free_vgpr 512
  .amdhsa_next_free_sgpr 102
  .amdhsa_accum_offset 256
  .amdhsa_group_segment_fixed_size 0
  .amdhsa_kernarg_size 48
  .amdhsa_user_sgpr_count 2
  .amdhsa_user_sgpr_kernarg_segment_ptr 1
  .amdhsa_system_sgpr_workgroup_id_x 1
.end_amdhsa_kernel""")
        return "\n".join(txt) + "\n"

if __name__ == "__main__":
    cfg = Cfg()
    out = sys.argv[1]
    for a in sys.argv[2:]:
        k, v = a.split("=")
        assert hasattr(cfg, k), k
        setattr(cfg, k, eval(v))
    txt = Gen(cfg).build()
    open(out, "w").write(txt)
```
